```python
import torch

def _softmax(x, axis=-1):
    return torch.softmax(x, dim=axis)

def _gelu(x):
    return torch.nn.functional.gelu(x, approximate='tanh')

def _silu(x):
    return torch.nn.functional.silu(x)

def _sigmoid(x):
    return torch.sigmoid(x)

def _layernorm(x, axis=-1, eps=1e-05):
    m = x.mean(dim=axis, keepdim=True)
    v = x.var(dim=axis, keepdim=True, unbiased=False)
    return (x - m) / torch.sqrt(v + eps)

def _scatter_add(tgt, idx, src, axis=0):
    return tgt.clone().index_add_(axis, idx, src)

def _segment_sum(src, seg, n):
    out = torch.zeros((n,) + src.shape[1:], dtype=src.dtype)
    return out.index_add_(0, seg, src)

def _pad(x, pw):
    flat = tuple((v for pair in reversed(pw) for v in pair))
    return torch.nn.functional.pad(x, flat)
kernel_name = 'sequential_preLN__memory_aug_recurrent_mem_tr__moe_arch_mod__prompt'

def setup_inputs():

    _w = lambda a: (lambda t: t.to(torch.bfloat16) if t.is_floating_point() else t)(torch.as_tensor(a))

    def _A_setup():
        B, S, Dm = (1, 2048, 512)
        H, Dh = (32, 128)
        M, seg = (8, 32)
        seg = min(seg, S)
        S = S // seg * seg
        return {'x': _w((lambda *s: torch.randn(*s, dtype=torch.bfloat16) * 0.05)(B, S, Dm)), 'mem0': _w((lambda *s: torch.randn(*s, dtype=torch.bfloat16) * 0.2)(B, M, Dm)), 'Wq': _w((lambda *s: torch.randn(*s, dtype=torch.bfloat16) * 1.6)(Dm, H, Dh) * Dm ** (-0.5)), 'Wk': _w((lambda *s: torch.randn(*s, dtype=torch.bfloat16) * 1.6)(Dm, H, Dh) * Dm ** (-0.5)), 'Wv': _w((lambda *s: torch.randn(*s, dtype=torch.bfloat16) * 0.2)(Dm, H, Dh) * Dm ** (-0.5)), 'Wo': _w((lambda *s: torch.randn(*s, dtype=torch.bfloat16) * 0.2)(H, Dh, Dm) * (H * Dh) ** (-0.5)), 'seg_len': seg}
    _A_in = _A_setup()

    def _B_setup():
        B, S, D, F, C = (1, 2048, 512, 1792, 2)
        return {'x': _w((lambda *s: torch.randn(*s, dtype=torch.bfloat16) * 0.05)(B, S, D)), 'w_r': _w((lambda *s: torch.randn(*s, dtype=torch.bfloat16) * 0.05)(D)), 'w_gate': _w((lambda *s: torch.randn(*s, dtype=torch.bfloat16) * 0.05)(D, F)), 'w_up': _w((lambda *s: torch.randn(*s, dtype=torch.bfloat16) * 0.05)(D, F)), 'w_down': _w((lambda *s: torch.randn(*s, dtype=torch.bfloat16) * 0.05)(F, D))}
    _B_in = _B_setup()
    return {'A_x': _A_in['x'], 'A_mem0': _A_in['mem0'], 'A_Wq': _A_in['Wq'], 'A_Wk': _A_in['Wk'], 'A_Wv': _A_in['Wv'], 'A_Wo': _A_in['Wo'], 'A_seg_len': _A_in['seg_len'], 'B_x': _B_in['x'], 'B_w_r': _B_in['w_r'], 'B_w_gate': _B_in['w_gate'], 'B_w_up': _B_in['w_up'], 'B_w_down': _B_in['w_down']}

def reference(A_x, A_mem0, A_Wq, A_Wk, A_Wv, A_Wo, A_seg_len, B_x, B_w_r, B_w_gate, B_w_up, B_w_down):

    def _A_ref(x, mem0, Wq, Wk, Wv, Wo, seg_len):
        B, S, Dm = x.shape
        H, Dh = (Wq.shape[1], Wq.shape[2])
        M = mem0.shape[1]
        scale = Dh ** (-0.5)
        n_seg = S // seg_len
        L = M + seg_len
        idx = torch.arange(L)
        mask = (idx[:, None] < M) | (idx[:, None] >= idx[None, :])
        mem = mem0
        outs = []
        for s in range(n_seg):
            xs = x[:, s * seg_len:(s + 1) * seg_len, :].clone()
            h = torch.concatenate([mem, xs], axis=1)
            q = torch.einsum('btd,dhe->bhte', h, Wq)
            k = torch.einsum('btd,dhe->bhte', h, Wk)
            v = torch.einsum('btd,dhe->bhte', h, Wv)
            scores = torch.einsum('bhqe,bhke->bhqk', q, k) * scale
            scores = torch.where(mask[None, None], scores, -1000000000.0)
            p = _softmax(scores, axis=-1)
            o = torch.einsum('bhqk,bhke->bhqe', p, v)
            o = torch.einsum('bhte,hed->btd', o, Wo)
            mem = o[:, :M, :].clone()
            outs.append(o[:, M:, :])
        return torch.concatenate(outs, axis=1)

    def _B_ref(x, w_r, w_gate, w_up, w_down):
        B, S, D = x.shape
        C = 2
        r = x @ w_r
        idx = torch.argsort(-r, axis=-1)[:, :C]
        idx_e = (lambda x, n, axis: torch.repeat_interleave(x, n, dim=axis))(idx.reshape(B, C, 1), D, axis=2)
        x_sel = (lambda x, i, axis: torch.take_along_dim(x, i, dim=axis))(x, idx_e, axis=1)
        g = _silu(x_sel @ w_gate)
        u = x_sel @ w_up
        y = g * u @ w_down
        r_sel = _sigmoid((lambda x, i, axis: torch.take_along_dim(x, i, dim=axis))(r, idx, axis=1))
        y = y * r_sel.reshape(B, C, 1)
        b_off = (torch.arange(B) * S).reshape(B, 1)
        flat_idx = (idx + b_off).reshape(B * C)
        zero = (x * 0.0).reshape(B * S, D)
        upd = _scatter_add(zero, flat_idx, y.reshape(B * C, D), axis=0)
        return x + upd.reshape(B, S, D)
    x = A_x
    h = x + _A_ref(_layernorm(x, axis=-1), A_mem0, A_Wq, A_Wk, A_Wv, A_Wo, A_seg_len)
    h2 = h + _B_ref(_layernorm(h, axis=-1), B_w_r, B_w_gate, B_w_up, B_w_down)
    return h2
```

```python
import re

def v(i, n=1):
    return f"v{i}" if n == 1 else f"v[{i}:{i+n-1}]"
def a(i, n=1):
    return f"a{i}" if n == 1 else f"a[{i}:{i+n-1}]"
def s(i, n=1):
    return f"s{i}" if n == 1 else f"s[{i}:{i+n-1}]"

_RE1 = re.compile(r"^(-?)(?:abs\()?([vas])(\d+)\)?$")
_REN = re.compile(r"^(-?)([vas])\[(\d+):(\d+)\]$")

def regs_of(op):
    op = op.strip()
    m = _RE1.match(op)
    if m:
        return [m.group(2) + m.group(3)]
    m = _REN.match(op)
    if m:
        return [m.group(2) + str(i) for i in range(int(m.group(3)), int(m.group(4)) + 1)]
    if op in ("vcc", "vcc_lo", "vcc_hi"):
        return ["vcc"]
    if op in ("exec", "exec_lo", "exec_hi"):
        return ["exec"]
    if op == "m0":
        return ["m0"]
    return []

TRANS = ("v_exp_f32", "v_log_f32", "v_rcp_f32", "v_rsq_f32", "v_sqrt_f32", "v_sin_f32", "v_cos_f32", "v_rcp_iflag_f32")

def mfma_passes(op):
    if "32x32x16" in op or "32x32x8" in op or "32x32x32" in op:
        return 8
    if "16x16x32" in op or "16x16x16" in op or "16x16x64" in op:
        return 4
    raise ValueError(op)

class Asm:
    def __init__(self):
        self.out = []
        self.reset_haz()
        self.ninstr = 0
        self.uid = 0

    def reset_haz(self):
        self.t = 0
        self.mf_free = -100
        self.valu_w = {}
        self.trans_w = {}
        self.mf_w = {}
        self.mf_c = {}
        self.st_d = {}
        self.salu_m0 = -100
        self.dot_w = {}

    def barrier_haz(self, n=20):
        need = 0
        for r, (t, p, _, _) in self.mf_w.items():
            need = max(need, t + {4: 8, 8: 12}[p] + 1 - self.t)
        for r, t in self.valu_w.items():
            need = max(need, t + 5 + 1 - self.t)
        if need > 0:
            self.nop(need)

    def raw(self, text):
        self.out.append(text)

    def comment(self, text):
        self.out.append("    ; " + text)

    def label(self, name):
        self.out.append(name + ":")

    def newlabel(self, base):
        self.uid += 1
        return f"L_{base}_{self.uid}"

    def nop(self, n):
        f = getattr(self, "fill", None)
        if f is not None and n >= 3:
            for _ in range(n): self.out.append(f"    v_mov_b32 {f}, {f}")
            self.t += n; self.ninstr += n
            return
        while n > 0:
            k = min(n, 16)
            self.out.append(f"    s_nop {k-1}")
            self.t += k
            self.ninstr += 1
            n -= k

    def _defs_uses(self, op, ops, mods):
        R = [regs_of(o) for o in ops]
        flat = lambda L: [x for l in L for x in l]
        d, u = [], []
        kind = None
        if op.startswith("v_mfma"):
            kind = "mfma"; d = R[0]; u = flat(R[1:])
        elif op.startswith("v_smfmac"):
            kind = "mfma"; d = R[0]; u = flat(R)
        elif op.startswith("v_"):
            kind = "valu"
            if op.startswith("v_cmpx"):
                d = R[0] + ["exec"]; u = flat(R[1:])
            elif op.startswith("v_cmp"):
                d = R[0]; u = flat(R[1:])
            elif "_co_" in op or op.startswith("v_div_scale") or op.startswith("v_mad_u64"):
                d = R[0] + R[1]; u = flat(R[2:])
            elif op.startswith("v_permlane") and "swap" in op:
                d = R[0] + R[1]; u = R[0] + R[1]
            elif op.startswith("v_swap"):
                d = R[0] + R[1]; u = R[0] + R[1]
            elif op.startswith(("v_fmac", "v_dot2c", "v_pk_fmac", "v_writelane")):
                d = R[0]; u = flat(R)
            elif op.startswith("v_cndmask") and len(ops) == 3:
                d = R[0]; u = flat(R[1:]) + ["vcc"]
            elif op == "v_nop":
                pass
            else:
                d = R[0]; u = flat(R[1:])
                if "_dpp" in op or "row_" in mods or "quad_perm" in mods:
                    u = u + R[0]
        elif op.startswith("ds_"):
            kind = "ds"
            if op.startswith(("ds_read", "ds_bpermute", "ds_permute", "ds_swizzle")) or "_rtn" in op:
                d = R[0]; u = flat(R[1:])
            else:
                u = flat(R)
        elif op.startswith(("buffer_", "global_", "flat_")):
            kind = "vmem"
            if op in ("buffer_inv", "buffer_wbl2"):
                pass
            elif "_load" in op:
                if " lds" in (" " + mods) or "load_lds" in op:
                    u = flat(R) + ["m0"]
                else:
                    d = R[0]; u = flat(R[1:])
            elif "atomic" in op:
                if "sc0" in mods.split():
                    if op.startswith("buffer_"):
                        d = R[0]; u = flat(R)
                    else:
                        d = R[0]; u = flat(R[1:])
                else:
                    u = flat(R)
            else:
                u = flat(R)
        elif op.startswith("s_"):
            kind = "salu"
            if op.startswith(("s_cmp", "s_cbranch", "s_branch", "s_waitcnt", "s_barrier", "s_nop", "s_sleep",
                              "s_endpgm", "s_setprio", "s_bitcmp", "s_setreg", "s_sethalt")):
                u = flat(R)
            elif op.startswith(("s_load", "s_memtime", "s_memrealtime", "s_buffer_load", "s_atomic")):
                kind = "smem"; d = R[0]; u = flat(R[1:])
            elif "saveexec" in op:
                d = R[0] + ["exec"]; u = flat(R[1:]) + ["exec"]
            else:
                d = R[0]; u = flat(R[1:])
        else:
            raise ValueError("unknown op " + op)
        return kind, d, u, R

    def I(self, op, *ops, mods="", nohaz=False, cmt=None):
        ops = [str(o) for o in ops]
        kind, d, u, R = self._defs_uses(op, ops, mods)
        need = self.t
        def req(tprod, ws):
            nonlocal need
            need = max(need, tprod + ws + 1)
        isdpp = kind == "valu" and ("_dpp" in op or "row_" in mods or "quad_perm" in mods)
        isperm = op.startswith("v_permlane")
        isrl = op.startswith(("v_readlane", "v_readfirstlane", "v_writelane"))
        if not nohaz:
            for r in u + d:
                if r in self.dot_w and kind in ("valu", "mfma", "ds", "vmem"):
                    t0, o2 = self.dot_w[r]
                    srcc_only = (o2 == op) and (r not in (R[1] + R[2]))
                    if not srcc_only: req(t0, 3)
            if kind == "mfma":
                for r in u + d:
                    if r in self.valu_w: req(self.valu_w[r], 2 if r != "exec" else 4)
                if "exec" in self.valu_w: req(self.valu_w["exec"], 4)
                if need > self.t: self.nop(need - self.t)
                isS = op.startswith("v_smfmac")
                cregs = R[0] if isS else R[3]
                abregs = (R[1] + R[2] + R[3]) if isS else (R[1] + R[2])
                for r in abregs:
                    if r in self.mf_w:
                        t, p, _, _ = self.mf_w[r]; req(t, {4: 8, 8: 12}[p])
                for r in cregs:
                    if r in self.mf_w:
                        t, p, o2, span = self.mf_w[r]
                        same = span == (cregs[0], len(cregs)) and p == mfma_passes(op) and \
                            (("16x16x16" in o2) == ("16x16x16" in op))
                        req(t, 0 if same else {4: 6, 8: 10}[p])
                if not isS:
                    for r in d:
                        if r in self.mf_w and r not in cregs:
                            t, p, _, _ = self.mf_w[r]; req(t, {4: 6, 8: 10}[p])
            else:
                for r in u + d:
                    if r in self.mf_w and kind in ("valu", "ds", "vmem"):
                        t, p, _, _ = self.mf_w[r]; req(t, {4: 8, 8: 12}[p])
                if kind == "valu":
                    for r in d:
                        if r in self.mf_c:
                            t, p = self.mf_c[r]; req(t, {4: 3, 8: 7}[p])
                        if r in self.st_d: req(self.st_d[r], 2)
                    for r in u:
                        if r in self.trans_w and op.replace("_dpp", "") not in TRANS: req(self.trans_w[r], 1)
                        if r in self.valu_w:
                            if r[0] == "s" or r == "vcc":
                                req(self.valu_w[r], 4 if isrl else 2)
                            elif r == "exec":
                                req(self.valu_w[r], 4 if (isrl or isperm) else 2)
                            elif isdpp or isperm:
                                req(self.valu_w[r], 2)
                            elif isrl:
                                req(self.valu_w[r], 1)
                    if "exec" in self.valu_w:
                        if isdpp: req(self.valu_w["exec"], 5)
                        if isrl or isperm: req(self.valu_w["exec"], 4)
                elif kind in ("vmem", "ds"):
                    for r in u:
                        if r in self.valu_w and (r[0] == "s" or r == "vcc"): req(self.valu_w[r], 5)
                        if r == "m0": req(self.salu_m0, 1)
                    for r in d:
                        if r in self.st_d: req(self.st_d[r], 1)
                elif kind in ("salu", "smem"):
                    for r in u:
                        if r in self.valu_w and (r[0] == "s" or r == "vcc"): req(self.valu_w[r], 1)
        if kind == "mfma":
            tissue = max(self.t, self.mf_free)
            if need > tissue:
                self.nop(need - self.t)
            self.t = max(self.t, self.mf_free)
        else:
            if need > self.t:
                self.nop(need - self.t)
        txt = "    " + op + (" " + ", ".join(ops) if ops else "") + ((" " + mods) if mods else "")
        if cmt: txt += "    ; " + cmt
        self.out.append(txt)
        self.ninstr += 1
        t = self.t
        for r in d:
            self.valu_w.pop(r, None); self.trans_w.pop(r, None); self.mf_w.pop(r, None); self.dot_w.pop(r, None)
        if kind == "valu":
            for r in d:
                self.valu_w[r] = t
                if op.replace("_dpp", "") in TRANS: self.trans_w[r] = t
                if op.startswith("v_dot"): self.dot_w[r] = (t, op)
        elif kind == "mfma":
            p = mfma_passes(op)
            for r in d: self.mf_w[r] = (t, p, op, (d[0], len(d)))
            cregs = R[0] if op.startswith("v_smfmac") else R[3]
            for r in cregs: self.mf_c[r] = (t, p)
            self.mf_free = t + p
        elif kind == "vmem" and ("store" in op or "atomic" in op) and ("x4" in op or "x3" in op or "cmpswap_x2" in op):
            for r in u:
                if r[0] in "va": self.st_d[r] = t
        elif kind == "salu" and "m0" in d:
            self.salu_m0 = t
        if op == "s_nop":
            self.t += int(ops[0]) + 1
        else:
            self.t += 1
        if kind == "mfma" and getattr(self, "mfhook", None): self.mfhook()

    def text(self):
        return "\n".join(self.out) + "\n"
```

```python
import math, struct
from asmgen import *
from layout import *
from common import ts, f2h

MBUF, KXB, VXB, WV = 0x0, 0x2000, 0x6000, 0x8000
XI, OI, FLG, ZRO = 0x4000, 0x5000, 0x5800, 0x5c00
PBPAR = 0x40000

S_WS = 8; S_W = 12; S_DBG = 16
sH, sWV, sSTEP = 20, 21, 22
sMBLD, sMBST = 23, 24
sPBST = 25
sTHR = 27
sKVF = 28
sPBLD = 29
sKXN, sVXN, sKM, sTAG = 30, 31, 32, 33
sC1, sBIG = 34, 35
sOMASK = 36
sRMASK = 38
sT1, sT2, sT3, sT0 = 40, 41, 42, 43
sFLAGOFF = 44
sNRM, sNRR = 45, 46
sNRF = 47
sNRX = 76
sMBLD2 = 48
sRETRY = 49
sONES = 50
sW1K, sW2K = 51, 52
sPBLD2 = 53
sLOGO = 54
sRST = 55
sSENT = 56
sFLAGV = 57
sNEED = 58
sSEL = 92
sACC = 60

vM = 0; vQK = 32; vVA = 48; vWB = 56; vWA = 96; vPUB = 112
vIDX, vL16, vPBST, vMST, vXW, vXR, vOW, vWL, vWL2, vDUM, vFLG, vOR = range(116, 128)
vL4 = vMST; vSEL = vDUM
vWVR = 128; vWOR = 192
RETRY_MAX = 1 << 16
WE, WL_ = 2, 3

SMF = "v_smfmac_f32_16x16x64_bf16"; MF = "v_mfma_f32_16x16x32_bf16"; MF16 = "v_mfma_f32_16x16x16_bf16"

def home(mat, phi, slot):
    a_, fi = slot & 3, (slot >> 2) * 2 + phi
    if mat < 2:
        if a_ == 0: return ("lds", mat * 32768 + fi * 2048)
        return ("a", ((mat * 3 + a_ - 1) * 4 + fi) * 8)
    if a_ < 2: return ("a", 192 + (a_ * 4 + fi) * 8)
    return ("v", vWVR + ((a_ - 2) * 4 + fi) * 8)
def wo_home(T, j):
    if T < 2: return ("v", vWOR + (T * 4 + j) * 8)
    return ("lds", T * 32768 + j * 2048)
def reg8(h):
    return a(h[1], 8) if h[0] == "a" else v(h[1], 8)

class Chain:
    def __init__(self, A, sc, tag="f", **kw):
        self.A = A; self.sc = sc; self.tag = tag
        self.ool = []
        self.kw = kw
        self.x = kw.get('x', '')
        self.la = 4
        self.pollmod = kw.get('pollmod', 'nt') if not sc else 'sc1'
        self.align = kw.get('align', 0)
        self.cbar = kw.get('cbar', 4)
        self.flog = kw.get('flog', False)
        self.pubmod = 'sc1'
        self.wo = kw.get('wsoff', 0)
        self.pre_start = kw.get('pre_start')
        self.kvcheck = kw.get('kvcheck', False)
        self.skew = kw.get('skew', True)
        self.ring = kw.get('ring', True)
        self.merge = kw.get('merge', False)
        self.z = kw.get('z', (8, 24, 4, 24, 0))
        self.rp = kw.get('rp', (40, 65))
        self.lq = []; self.vq = []
        self.nfl = 0
        self.sSEL = sSEL if self.flog else 68
        self.sNRX = sNRF if self.flog else sNRX

    def mods(self, *m): return " ".join(x for x in m if x)
    def off(self, o): return f"offset:{o}" if o else ""

    def fl(self, i):
        if not isinstance(i, str): self.A.comment(f"@{i}")
        if self.flog == 2:
            if isinstance(i, str): i = int(i[1:])
            elif i == self.kw.get('probe', 3): i = 3
            elif i not in (0, 1, 14, 15): return
        elif self.flog == 3:
            if i == 1:
                cnt = [0]
                def hook():
                    k = cnt[0]; cnt[0] += 1
                    if k == self.kw['poff']: self.A.raw(f"    s_memtime {s(sACC + 4, 2)}")
                self.A.mfhook = hook
            elif i == 14: self.A.mfhook = None
            elif i != 0: return
        elif isinstance(i, str): return
        if self.flog:
            self.A.I("s_memtime", s(sACC + 2 * i, 2)); self.nfl = max(self.nfl, i + 1)

    def fl_collect(self, vt):
        if not self.flog: return
        A = self.A
        A.I("s_waitcnt", "lgkmcnt(0)")
        for i in range(16):
            if self.flog == 2 and i in (9, 10, 11): A.I("v_writelane_b32", v(vt), s((sNRM, sNRR, sNRF)[i - 9]), i)
            elif self.flog != 2 or i in (0, 1, 3, 5, 6, 7, 8, 14, 15): A.I("v_writelane_b32", v(vt), s(sACC + 2 * i), i)
        A.I("v_lshrrev_b32", v(vt + 1), 2, v(vL16))
        A.I("s_mov_b64", "exec", "0xffff")
        A.I("buffer_store_dword", v(vt), v(vt + 1), s(S_WS, 4), s(sLOGO), mods="offen")
        A.I("s_mov_b64", "exec", -1)
        A.I("s_add_u32", s(sLOGO), s(sLOGO), 64)

    def ds(self, tag, op, *ops, mods=""):
        self.A.I(op, *ops, mods=mods)
        if tag is None: return
        self.lq.append(tag)
    def vm(self, tag, op, *ops, mods=""):
        self.A.I(op, *ops, mods=mods); self.vq.append(tag)
    def needl(self, tag):
        if tag not in self.lq: return
        i = len(self.lq) - 1 - self.lq[::-1].index(tag)
        self.lq = self.lq[i + 1:]
        assert len(self.lq) <= 15, self.lq
        self.A.I("s_waitcnt", f"lgkmcnt({len(self.lq)})")
    def needv(self, tag):
        if tag not in self.vq: return
        i = len(self.vq) - 1 - self.vq[::-1].index(tag)
        self.vq = self.vq[i + 1:]
        if "n" in self.x and tag in ("f0", "f1", "fd", "r0", "r1", "r2", "r3"): return
        self.A.I("s_waitcnt", f"vmcnt({len(self.vq)})")

    def needvl(self, vt, lt):
        n = len(self.A.out); t = self.A.t
        self.needv(vt); self.needl(lt)
        if len(self.A.out) == n + 2:
            b = self.A.out.pop(); self.A.out[-1] += " " + b.split()[-1]; self.A.t = t + 1

    def wread(self, tag, dst, ldsoff):
        base, o = (vWL, ldsoff) if ldsoff < 65536 else (vWL2, ldsoff - 65536)
        self.ds(tag, "ds_read_b128", v(dst, 4), v(base), mods=self.off(o))

    def lane_consts(self):
        A = self.A
        L, G, C, T, U, R = 1, 2, 3, 4, 5, 6
        A.I("v_lshrrev_b32", v(T), 6, v(0))
        A.I("v_readfirstlane_b32", s(sWV), v(T))
        A.I("v_and_b32", v(L), 63, v(0))
        A.I("v_lshrrev_b32", v(G), 4, v(L))
        A.I("v_and_b32", v(C), 15, v(L))
        A.I("v_lshrrev_b32", v(R), 2, v(C))
        A.I("v_lshlrev_b32", v(vL16), 4, v(L))
        A.I("s_lshl_b32", s(sW1K), s(sWV), 10)
        A.I("s_lshl_b32", s(sW2K), s(sWV), 11)

    def lane_consts2(self):
        A = self.A
        L, G, C, T, U, R = 1, 2, 3, 4, 5, 6
        A.I("v_and_b32", v(T), 2, v(C))
        A.I("v_cmp_ne_u32", "vcc", 0, v(T))
        A.I("v_mov_b32", v(T), "0x4444")
        A.I("v_mov_b32", v(U), "0xeeee")
        A.I("v_cndmask_b32", v(vIDX), v(T), v(U), "vcc")
        A.I("v_lshrrev_b32", v(U), 1, v(G))
        A.I("v_lshl_add_u32", v(T), v(R), 3, v(U))
        A.I("s_lshl_b32", s(sT0), s(sWV), 1)
        A.I("v_add_u32", v(T), s(sT0), v(T))
        if self.skew:
            A.I("v_add_u32", v(U), s(sH), v(T))
            A.I("v_and_b32", v(U), 31, v(U))
        else:
            A.I("v_mov_b32", v(U), s(sH))
        A.I("v_lshl_add_u32", v(T), v(T), 6, v(U))
        A.I("v_and_b32", v(U), 1, v(G))
        A.I("v_lshl_add_u32", v(T), v(T), 1, v(U))
        A.I("v_and_b32", v(U), 3, v(C))
        A.I("v_lshl_add_u32", v(T), v(T), 2, v(U))
        A.I("v_lshlrev_b32", v(vPBST), 4, v(T))
        A.I("v_and_b32", v(T), 1, v(G))
        A.I("v_lshlrev_b32", v(T), 2, v(T))
        A.I("v_and_b32", v(7), 2, v(G))
        A.I("v_add_u32", v(T), v(T), v(7))
        A.I("v_and_b32", v(7), 1, v(R))
        A.I("v_add_u32", v(T), v(T), v(7))
        A.I("v_lshl_add_u32", v(T), v(T), 2, v(U))
        A.I("v_lshlrev_b32", v(T), 2, v(T))
        A.I("s_and_b32", s(sT0), s(sWV), 1)
        A.I("s_lshl_b32", s(sT0), s(sT0), 12)
        A.I("s_lshl_b32", s(sT1), s(sH), 7)
        A.I("s_add_u32", s(sT0), s(sT0), s(sT1))
        A.I("v_add_u32", v(vMST), s(sT0), v(T))
        A.I("v_sub_u32", v(7), 0, v(G))
        A.I("v_and_b32", v(7), 3, v(7))
        A.I("v_xor_b32", v(7), v(7), v(R))
        A.I("v_lshl_add_u32", v(T), v(G), 4, v(7))
        A.I("v_and_b32", v(U), 3, v(C))
        A.I("v_lshl_add_u32", v(T), v(T), 2, v(U))
        A.I("s_add_u32", s(sT0), s(sW1K), XI)
        A.I("v_lshl_add_u32", v(vXW), v(T), 2, s(sT0))
        A.I("v_sub_u32", v(7), 0, v(R))
        A.I("v_and_b32", v(7), 3, v(7))
        A.I("v_xor_b32", v(7), v(7), v(G))
        A.I("v_lshl_add_u32", v(T), v(C), 2, v(7))
        A.I("v_lshlrev_b32", v(vXR), 4, v(T))
        A.I("v_and_b32", v(U), 1, v(C))
        A.I("v_lshl_add_u32", v(T), v(R), 1, v(U))
        A.I("v_lshl_add_u32", v(T), v(G), 3, v(T))
        A.I("v_lshlrev_b32", v(vOR), 4, v(T))
        A.I("v_and_or_b32", v(vOW), v(vIDX), 8, v(vOR))
        A.I("s_lshl_b32", s(sT0), s(sWV), 13)
        A.I("s_add_u32", s(sT0), s(sT0), WV)
        A.I("v_add_u32", v(vWL), s(sT0), v(vL16))
        A.I("v_add_u32", v(vWL2), hex(0x10000), v(vWL))
        A.I("s_mov_b32", s(sOMASK), "0xcccccccc")
        A.I("s_mov_b32", s(sOMASK + 1), "0xcccccccc")
        A.I("s_mov_b32", s(sRMASK), "0x00ff00ff")
        A.I("s_mov_b32", s(sRMASK + 1), "0x00ff00ff")
        A.I("s_mov_b32", s(sC1), f2h((DH ** -0.5) * math.log2(math.e)))
        A.I("s_mov_b32", s(sBIG), f2h(2.0 ** self.kw.get('bigexp', 20)))
        A.I("s_mov_b32", s(sONES), "0x3f803f80")

    def set_wsrd(self, mat):
        A = self.A
        A.I("s_mov_b32", s(S_W), s(60 + 2 * mat))
        A.I("s_and_b32", s(S_W + 1), s(61 + 2 * mat), "0xffff")

    ORDER = [(0, 1), (0, 2), (0, 3), (1, 1), (1, 2), (1, 3), (2, 0), (2, 1), (2, 2), (2, 3), (3, 0), (3, 1),
             (0, 0), (1, 0), (3, 2), (3, 3)]

    def dma_chunk(self, idx):
        A = self.A
        mat, a_ = self.ORDER[idx]
        slot = idx & 3
        if idx == 0 or self.ORDER[idx - 1][0] != mat:
            self.set_wsrd(mat)
        if mat < 3:
            A.I("v_xor_b32", v(15), a_, v(14))
            A.I("v_lshl_add_u32", v(15), v(15), 15, v(8))
        for i in range(8):
            if mat < 3:
                vo = 15
                A.I("s_add_u32", s(sT0), s(sT2), hex((i << 6) * 8192))
            else:
                vo = 9 if i & 1 else 10
                A.I("s_add_u32", s(sT0), s(sT3), hex(16 * i * 1024 + a_ * 64))
            A.I("s_add_u32", "m0", s(sW1K), hex(WV + slot * 32768 + 4 * i * 1024))
            A.I("buffer_load_dwordx4", v(vo), s(S_W, 4), s(sT0), mods="offen lds")

    def read_chunk(self, idx, tmp=None):
        A = self.A
        mat, a_ = self.ORDER[idx]
        slot = idx & 3
        VT = 13
        def dst(h, fi, q):
            if tmp is not None: return v(tmp + fi * 8 + 2 * q, 2)
            return (a if h[0] == "a" else v)(h[1] + 2 * q, 2)
        if mat < 3:
            for phi in range(2):
                A.I("v_xor_b32", v(VT), phi << 5, v(11))
                A.I("v_add_u32", v(VT), hex(slot * 32768), v(VT))
                for hi in range(2):
                    for q in range(4):
                        o = (64 * (q >> 1) + 16 * hi + 4 * (q & 1)) * 256
                        A.I("ds_read_b64_tr_b16", dst(home(mat, phi, a_ + 4 * hi), hi * 2 + phi, q), v(VT), mods=self.off(o))
                A.I("s_waitcnt", "lgkmcnt(0)")
        else:
            for j in range(4):
                A.I("v_xor_b32", v(VT), hex(j << 13), v(12))
                A.I("v_add_u32", v(VT), hex(slot * 32768), v(VT))
                for q in range(4):
                    o = (8 * (q >> 1) + 2 * (q & 1)) * 256
                    A.I("ds_read_b64_tr_b16", dst(wo_home(a_, j), j, q), v(VT), mods=self.off(o))
                if j & 1: A.I("s_waitcnt", "lgkmcnt(0)")

    def load_weights(self):
        A = self.A
        L, G, C, T, U, R = 1, 2, 3, 4, 5, 6
        A.I("s_load_dwordx8", s(60, 8), s(0, 2), 16)
        A.I("s_mov_b32", s(S_W + 2), hex(4 << 20))
        A.I("s_mov_b32", s(S_W + 3), "0x20000")
        A.I("s_lshl_b32", s(sT2), s(sH), 8)
        A.I("s_lshl_b32", s(sT3), s(sH), 17)
        A.I("s_lshr_b32", s(sT0), s(sWV), 1)
        A.I("s_lshl_b32", s(sT0), s(sT0), 2)
        A.I("v_or_b32", v(U), s(sT0), v(G))
        A.I("v_lshlrev_b32", v(U), 1, v(U))
        A.I("v_xor_b32", v(U), v(U), v(C))
        A.I("v_lshrrev_b32", v(14), 2, v(U))
        A.I("v_lshlrev_b32", v(U), 4, v(U))
        A.I("s_lshl_b32", s(sT0), s(sWV), 4)
        A.I("v_add_u32", v(T), s(sT0), v(G))
        A.I("v_lshl_add_u32", v(8), v(T), 13, v(U))
        A.I("s_waitcnt", "lgkmcnt(0)")
        LA = self.la
        for idx in range(LA):
            self.dma_chunk(idx)
        self.lane_consts2()
        for odd, dst in ((0, 10), (1, 9)):
            A.I("v_and_b32", v(U), 1, v(G))
            A.I("v_or_b32", v(U), odd << 1, v(U))
            A.I("v_xor_b32", v(U), v(U), v(R))
            A.I("v_lshlrev_b32", v(U), 8, v(U))
            A.I("v_and_b32", v(7), 3, v(C))
            A.I("v_lshl_add_u32", v(7), v(7), 4, v(U))
            A.I("s_lshl_b32", s(sT0), s(sWV), 2)
            A.I("v_add_u32", v(T), s(sT0), v(G))
            A.I("v_lshl_add_u32", v(dst), v(T), 10, v(7))
        A.I("v_and_b32", v(U), 1, v(G))
        A.I("v_lshl_add_u32", v(T), v(U), 3, v(R))
        A.I("v_lshrrev_b32", v(7), 1, v(G))
        A.I("v_lshl_add_u32", v(T), v(7), 5, v(T))
        A.I("v_lshlrev_b32", v(T), 8, v(T))
        A.I("v_lshl_or_b32", v(U), v(U), 2, v(R))
        A.I("v_lshlrev_b32", v(U), 5, v(U))
        A.I("s_lshl_b32", s(sT0), s(sWV), 6)
        A.I("v_xor_b32", v(U), s(sT0), v(U))
        A.I("v_add_u32", v(T), v(T), v(U))
        A.I("v_and_b32", v(U), 3, v(C))
        A.I("v_lshl_add_u32", v(T), v(U), 3, v(T))
        A.I("v_add_u32", v(11), WV, v(T))
        A.I("v_and_b32", v(U), 1, v(G))
        A.I("v_lshlrev_b32", v(T), 4, v(U))
        A.I("v_lshl_add_u32", v(T), v(7), 2, v(T))
        A.I("v_and_b32", v(7), 1, v(R))
        A.I("v_add_u32", v(T), v(T), v(7))
        A.I("s_lshl_b32", s(sT0), s(sWV), 5)
        A.I("v_add_u32", v(T), s(sT0), v(T))
        A.I("v_lshlrev_b32", v(T), 8, v(T))
        A.I("v_lshl_or_b32", v(U), v(U), 1, v(7))
        A.I("v_xor_b32", v(U), s(sWV), v(U))
        A.I("v_lshl_add_u32", v(T), v(U), 6, v(T))
        A.I("v_lshrrev_b32", v(U), 1, v(R))
        A.I("v_lshl_add_u32", v(T), v(U), 5, v(T))
        A.I("v_and_b32", v(U), 3, v(C))
        A.I("v_lshl_add_u32", v(T), v(U), 3, v(T))
        A.I("v_add_u32", v(12), WV, v(T))
        self.init_buffers()
        self.write_mem0()
        nst = self.n_init_vm + 1
        for idx in range(16):
            left = min(LA - 1, 15 - idx)
            A.I("s_waitcnt", f"vmcnt({8 * left + (nst if idx < LA else 0)})")
            if idx == 4: self.write_mem0_b()
            A.I("s_barrier")
            if self.tag == "f": ts(A, 16 + idx, 24)
            if idx == 9: self.arrive()
            self.read_chunk(idx, tmp=32 if idx >= 12 else None)
            A.I("s_barrier")
            if idx + 4 < 16:
                self.dma_chunk(idx + 4)
            if idx >= 12:
                slot = idx & 3
                for k in range(8):
                    A.I("ds_write_b128", v(vWL if slot < 2 else vWL2), v(32 + 4 * k, 4), mods=self.off((slot & 1) * 32768 + k * 1024))
        A.I("s_waitcnt", "lgkmcnt(0)")

    def init_buffers(self):
        A = self.A
        sc = self.sc
        n = 0
        for i in range(4):
            A.I("v_mov_b32", v(16 + i), -1)
        A.I("s_lshl_b32", s(sT0), s(sH), 13)
        A.I("s_add_u32", s(sT0), s(sT0), hex(WS_PB + self.wo))
        A.I("s_and_b32", s(sT1), s(sWV), 1)
        A.I("s_lshl_b32", s(sT1), s(sT1), 12)
        A.I("s_add_u32", s(sPBLD), s(sT0), s(sT1))
        A.I("s_add_u32", s(sT0), s(sT0), s(sW2K))
        A.I("s_xor_b32", s(sT1), s(sT0), hex(PBPAR))
        for base in (sT0, sT1):
            for m in range(2):
                A.I("buffer_store_dwordx4", v(16, 4), v(vL16), s(S_WS, 4), s(base), mods=self.mods("offen", self.off(m * 1024), sc))
                n += 1
        if self.ring:
            for m in range(1, 4):
                A.I("s_mov_b32", s(sT0), hex(WS_MB + self.wo + m * 8192))
                A.I("buffer_store_dword", v(16), v(vMST), s(S_WS, 4), s(sT0), mods=self.mods("offen", sc))
            self.n_init_vm = n + 3
            return
        A.I("s_lshl_b32", s(sT0), s(sH), 14)
        A.I("s_lshl_b32", s(sT1), s(sWV), 12)
        A.I("s_add_u32", s(sT0), s(sT0), s(sT1))
        A.I("s_cmp_lt_u32", s(sT0), 8192)
        A.I("s_cselect_b32", s(sT0), 8192, s(sT0))
        A.I("s_add_u32", s(sT0), s(sT0), hex(WS_MB + self.wo))
        for m in range(4):
            A.I("buffer_store_dwordx4", v(16, 4), v(vL16), s(S_WS, 4), s(sT0), mods=self.mods("offen", self.off(m * 1024), sc))
            n += 1
        self.n_init_vm = n

    def write_mem0(self):
        A = self.A
        G, C, R, T, U = 2, 3, 6, 20, 21
        S_W = 4
        A.I("s_load_dwordx2", s(S_W, 2), s(0, 2), 8)
        A.I("s_waitcnt", "lgkmcnt(0)")
        A.I("s_and_b32", s(S_W + 1), s(S_W + 1), "0xffff")
        A.I("s_mov_b32", s(S_W + 2), 8192)
        A.I("s_mov_b32", s(S_W + 3), "0x20000")
        A.I("v_and_b32", v(T), 1, v(G))
        A.I("v_and_b32", v(U), 1, v(R))
        A.I("v_lshl_add_u32", v(T), v(T), 1, v(U))
        A.I("v_lshlrev_b32", v(T), 9, v(T))
        A.I("v_and_b32", v(U), 3, v(C))
        A.I("v_lshl_add_u32", v(T), v(U), 4, v(T))
        A.I("v_and_b32", v(U), 2, v(G))
        A.I("v_add_u32", v(T), v(T), v(U))
        A.I("s_and_b32", s(sT0), s(sH), 1)
        A.I("s_lshl_b32", s(sT0), s(sT0), 11)
        A.I("s_bfe_u32", s(sT1), s(sH), hex(0x20001))
        A.I("s_lshl_b32", s(sT1), s(sT1), 7)
        A.I("s_add_u32", s(sT0), s(sT0), s(sT1))
        A.I("s_and_b32", s(sT1), s(sWV), 1)
        A.I("s_lshl_b32", s(sT1), s(sT1), 6)
        A.I("s_add_u32", s(sT0), s(sT0), s(sT1))
        A.I("s_lshr_b32", s(sT1), s(sH), 3)
        A.I("s_lshl_b32", s(sT1), s(sT1), 2)
        A.I("s_add_u32", s(sT0), s(sT0), s(sT1))
        A.I("v_add_u32", v(T), s(sT0), v(T))
        A.I("v_lshlrev_b32", v(T), 1, v(T))
        A.I("buffer_load_dword", v(U), v(T), s(S_W, 4), 0, mods="offen")

    def write_mem0_b(self):
        A = self.A
        U = 21
        A.I("v_min_u32", v(U), "0xfffffffe", v(U))
        A.I("s_mov_b32", s(sT0), hex(WS_MB + self.wo))
        A.I("s_mov_b64", "exec", s(sRMASK, 2))
        A.I("buffer_store_dword", v(U), v(vMST), s(S_WS, 4), s(sT0), mods=self.mods("offen", self.sc))
        A.I("s_mov_b64", "exec", -1)

    def arrive(self):
        A = self.A
        l = A.newlabel("arr")
        A.I("s_cmp_lg_u32", s(sWV), 0)
        A.I("s_cbranch_scc1", l)
        A.I("v_mov_b32", v(23), 1)
        A.I("s_mov_b64", "exec", 1)
        A.I("buffer_atomic_add", v(23), "off", s(S_DBG, 4), 0, mods=f"offset:{self.cbar}")
        A.I("s_mov_b64", "exec", -1)
        A.label(l)

    def prologue(self):
        A = self.A
        if self.pre_start: self.pre_start(self)
        A.I("s_mov_b32", s(sSTEP), 0)
        A.I("s_mov_b32", s(sTAG), 0)
        if self.kw.get('rot') is not None:
            A.I("s_bfe_u32", s(sT0), s(sH), hex(0x10000 | self.kw['rot']))
            A.I("s_lshl_b32", s(sT0), s(sT0), 10)
            A.I("s_xor_b32", s(sPBLD), s(sPBLD), s(sT0))
        A.I("s_xor_b32", s(sPBLD2), s(sPBLD), 1024)
        A.I("s_add_u32", s(sMBLD), s(sW1K), hex(WS_MB + self.wo))
        A.I("s_add_u32", s(sMBLD2), s(sMBLD), 4096)
        A.I("s_mov_b32", s(sMBST), hex(WS_MB + 8192 + self.wo))
        A.I("s_add_u32", s(sRST), s(sMBST), 16384)
        for j in range(2):
            A.I("s_mov_b32", s(sPBST + j), hex(WS_PB + j * 4096 + self.wo))
        A.I("s_lshl_b32", s(sT0), s(sH), 13)
        for i in range(4): A.I("v_mov_b32", v(vPUB + i), 0)
        A.I("s_add_u32", s(sT0), s(sT0), s(sW2K))
        A.I("s_add_u32", s(sKXN), s(sT0), hex(WS_KX))
        A.I("s_add_u32", s(sVXN), s(sT0), hex(WS_VX))
        A.I("s_lshr_b32", s(sT0), s(sT0), 1)
        A.I("s_add_u32", s(sKM), s(sT0), hex(WS_KM - 32 * 4096))
        A.I("s_add_u32", "m0", s(sW2K), KXB)
        for i in range(2): self.kdma(i)
        for i in range(2): self.vdma(i)
        A.I("s_add_u32", "m0", s(sW1K), MBUF + 4096)
        for o in (FLG, ZRO): A.I("ds_write_b128", v(vL16), v(vPUB, 4), mods=self.off(o))
        A.I("s_cmp_lg_u32", s(sWV), 0)
        A.I("s_cselect_b32", s(sT1), -1, 0)
        A.I("v_mov_b32", v(vFLG), s(sT1))
        A.I("v_bfe_u32", v(1), v(vL16), 4, 1)
        A.I("v_lshlrev_b32", v(1), 4, v(1))
        A.I("s_movk_i32", s(sT0), "0x3f80")
        A.I("v_lshlrev_b32", v(vSEL), v(1), s(sT0))
        A.I("v_bfe_u32", v(1), v(vL16), 5, 3)
        for d in range(4): A.I("v_cmp_eq_u32", s(self.sSEL + 2 * d, 2), d, v(1))
        A.I("v_lshrrev_b32", v(1), 2, v(vL16))
        A.I("s_cmp_lt_u32", s(sWV), WE)
        A.I("s_cselect_b64", "vcc", -1, 0)
        A.I("v_cndmask_b32", v(vL4), v(vMST), v(1), "vcc")
        for r in range(vQK, vQK + 24): A.I("v_mov_b32", v(r), 0)
        A.I("s_add_u32", s(sKXN), s(sKXN), hex(32 * 8192))
        A.I("s_add_u32", s(sVXN), s(sVXN), hex(32 * 8192))
        A.I("s_mov_b32", s(sNRM), 0)
        A.I("s_mov_b32", s(sNRR), 0)
        A.I("s_mov_b32", s(sNRF), 0)
        A.I("s_mov_b32", s(self.sNRX), 0)
        A.I("s_and_b32", s(sT0), s(sWV), 1)
        A.I("s_lshl_b32", s(sT0), s(sT0), 5)
        A.I("s_add_u32", s(sT0), s(sT0), s(sH))
        A.I("s_lshl_b32", s(sT0), s(sT0), 6)
        A.I("s_add_u32", s(sKVF), s(sT0), hex(WS_CTRL + CT_F1))
        A.I("s_mov_b32", s(sNEED + 1), 0)
        if self.flog:
            A.I("s_lshl_b32", s(sT0), s(sH), 2)
            A.I("s_add_u32", s(sT0), s(sT0), s(sWV))
            A.I("s_lshl_b32", s(sT0), s(sT0), 12)
            A.I("s_add_u32", s(sLOGO), s(sT0), hex(WS_TS + 0x10000))
        for it in self.prefetch_items(): it()
        lw = A.newlabel("cb_skip"); lp = A.newlabel("cb_poll"); ld = A.newlabel("cb_done")
        A.I("s_cmp_lg_u32", s(sWV), 0)
        A.I("s_cbranch_scc1", lw)
        A.I("v_mov_b32", v(1), self.cbar)
        A.I("s_mov_b64", "exec", 1)
        A.I("s_mov_b32", s(sRETRY), 0)
        A.label(lp)
        A.I("buffer_load_dword", v(3), v(1), s(S_DBG, 4), 0, mods="offen sc1")
        A.I("s_waitcnt", "vmcnt(0)")
        A.I("v_readfirstlane_b32", s(sT0), v(3))
        A.I("s_cmp_ge_u32", s(sT0), 32)
        A.I("s_cbranch_scc1", ld)
        A.I("s_sleep", 2)
        A.I("s_add_u32", s(sRETRY), s(sRETRY), 1)
        A.I("s_cmp_lt_u32", s(sRETRY), hex(RETRY_MAX * 4))
        A.I("s_cbranch_scc1", lp)
        A.label(ld)
        A.I("s_mov_b64", "exec", -1)
        A.label(lw)
        A.I("s_mov_b32", s(sRETRY), 0)
        A.I("s_lshr_b32", s(sT0), s(sH), 1)
        A.I("s_lshl_b32", s(sT0), s(sT0), 7)
        A.I("s_and_b32", s(sT1), s(sH), 1)
        A.I("s_lshl_b32", s(sT1), s(sT1), 4)
        A.I("s_add_u32", s(sT0), s(sT0), s(sT1))
        A.I("s_add_u32", s(sFLAGOFF), s(sT0), hex(WS_CTRL + CT_PROG))
        A.I("s_cmp_eq_u32", s(sWV), 0)
        A.I("s_cselect_b32", s(sFLAGOFF), s(sFLAGOFF), "0x7ff00000")
        A.I("s_waitcnt", "vmcnt(0) lgkmcnt(0)")
        A.I("s_barrier")
        self.lq = []; self.vq = []

    STG = {(0, 0, 0): 80, (0, 1, 0): 56, (1, 0, 0): 64, (1, 1, 0): 72, (0, 0, 4): 88, (0, 1, 4): 96, (1, 0, 4): 104, (1, 1, 4): 24}
    MR = {0: 0, 4: 4, 1: 8, 5: 12, 2: 16, 3: 20, 6: 24, 7: 28}

    def prefetch_items(self):
        A = self.A
        L = []
        for f, r in self.STG.items():
            for hf in range(2):
                L.append(lambda f=f, r=r, hf=hf: self.wread(None, r + 4 * hf, home(*f)[1] + 1024 * hf))
        return L

    def kdma(self, i):
        self.vm("kd", "buffer_load_dwordx4", v(vL16), s(S_WS, 4), s(sKXN), mods=self.mods("offen", self.off(1024 * i), "lds"))
        if i: self.A.I("s_add_u32", "m0", s(sW2K), hex(VXB))
    def vdma(self, i, nxt=None):
        self.vm("kd", "buffer_load_dwordx4", v(vL16), s(S_WS, 4), s(sVXN), mods=self.mods("offen", self.off(1024 * i), "lds"))
        if nxt is not None: self.A.I("s_mov_b32", "m0", nxt)

    def retry_head(self, cnt, lgo):
        A = self.A
        A.I("s_add_u32", s(cnt), s(cnt), 1)
        A.I("s_add_u32", s(sRETRY), s(sRETRY), 1)
        A.I("s_cmp_ge_u32", s(sRETRY), hex(RETRY_MAX))
        A.I("s_cbranch_scc1", lgo)

    def step_loop(self):
        A = self.A; tg = self.tag
        A.barrier_haz()
        A.I("buffer_load_dwordx4", v(self.MR[0], 4), v(vL16), s(S_WS, 4), s(sMBLD), mods="offen sc1")
        A.I("s_waitcnt", "vmcnt(0)")
        for w in range(1, 4):
            A.I("s_cmp_eq_u32", s(sWV), w)
            A.I("s_cbranch_scc1", f"L_chain_top{w}_{tg}")
        for w in range(4): self.wave_loop(w)
        A.label(f"L_chain_last_{tg}")
        A.reset_haz()
        A.nop(2)
        for x in self.last: x()
        A.I("s_add_u32", s(sKM), s(sKM), hex(32 * 4096))
        A.I("buffer_store_dwordx4", v(vPUB, 4), v(vL16), s(S_WS, 4), s(sKM), mods="offen " + self.pubmod)
        A.I("v_mov_b32", v(94), NSEG)
        A.I("s_waitcnt", "vmcnt(0) lgkmcnt(0)")
        A.I("s_barrier")
        A.I("s_mov_b64", "exec", 1)
        A.I("buffer_store_dword", v(94), "off", s(S_WS, 4), s(sFLAGOFF), mods="sc1")
        A.I("s_mov_b64", "exec", -1)

    def wave_loop(self, w):
        A = self.A
        sc = self.sc; tg = self.tag; X_ = self.x
        def opt(k, d):
            x = self.kw.get(k, d)
            return x[w] if isinstance(x, list) else x
        LTOP = f"L_chain_top{w}_{tg}"; LLAST = f"L_chain_last_{tg}"
        nochk = "n" in X_
        Mr = lambda sl: self.MR[sl]
        acc = lambda mat, phi: (vQK + 8 * mat + 4 * phi) if mat < 2 else (vVA + 4 * phi)
        def smf(mat, phi, sl):
            h = home(mat, phi, sl)
            self.needl(f"m{sl}")
            B = v(self.STG[(mat, phi, sl)], 8) if h[0] == "lds" else reg8(h)
            A.I(SMF, v(acc(mat, phi), 4), v(Mr(sl), 4), B, v(vIDX))
        def valu(*x, **k): return lambda: A.I(*x, **k)
        untracked = lambda t_, *a_, **k: A.I(*a_, **k)

        A.raw(".p2align 6")
        for _ in range(self.align): A.raw("    s_nop 0")
        A.label(LTOP)
        A.reset_haz()
        self.lq = []; self.vq = []
        self.fl(0)
        t0 = 15
        RL = [4, 8, 16, 20]; SEL = 12; RD = vVA; tc = vVA + 4
        zr = list(range(vVA, vVA + 6)) if w >= WE else []
        def zero(n, pad=False):
            for _ in range(n):
                if zr: A.I("v_mov_b32", v(zr.pop(0)), 0)
                elif pad: A.I("v_mov_b32", v(t0), 0)
        def mload(half, mod, tag=None):
            (self.vm if tag else untracked)(tag, "buffer_load_dwordx4", v(Mr(4 * half), 4), v(vL16), s(S_WS, 4),
                    s(sMBLD2 if half else sMBLD), mods="offen " + mod)
        def mdma(mod, tag=None):
            (self.vm if tag else untracked)(tag, "buffer_load_dwordx4", v(vL16), s(S_WS, 4), s(sMBLD2), mods=f"offen {mod} lds")
            A.I("s_mov_b32", "m0", KXB + 2048 * w)
        self.mload0 = lambda: mload(0, self.pollmod)
        z = opt('z', (0, 16, 16))
        early3 = w == WL_ and opt('early3', False)
        if early3:
            self.vq += ["f0", "st"]
        else:
            zero(z[0], True)
            self.fl("h7")
            mload(0, self.pollmod, "f0")
        for i, n in enumerate(z[1:]):
            if i: mload(0, "sc1", "fx")
            if not (early3 and i == 0): zero(n, True)
        zero(8)
        chk = lambda r: [valu("v_max3_u32", v(t0), v(r), v(r + 1), v(r + 2)), valu("v_max_u32", v(t0), v(t0), v(r + 3)),
                         valu("v_cmp_lt_u32", "vcc", s(sSENT), v(t0))]
        def mwrite(): self.ds("mw0", "ds_write_b128", v(vL16), v(Mr(0), 4), mods=self.off(MBUF + 1024 * w))
        def mread(sl): self.ds(f"m{sl}", "ds_read_b128", v(Mr(sl), 4), v(vL16), mods=self.off(MBUF + (sl ^ w) * 1024))
        nw = opt('nw', '')
        own0 = [(0, 0, 0), (0, 1, 0), (1, 0, 0), (1, 1, 0), (2, 0, 0), (2, 1, 0)]
        spec = opt('spec', 2)
        lret0 = A.newlabel("mret")
        if opt('lal', None) is not None:
            A.raw(".p2align 6")
            for _ in range(opt('lal', 0)): A.raw("    s_nop 0")
        A.label(lret0)
        mload(0, "sc1", "fx")
        A.I("s_add_u32", s(sNRM), s(sNRM), 1)
        A.I("s_cmp_lt_u32", s(sNRM), hex(RETRY_MAX))
        A.I("s_cselect_b32", s(sSENT), -2, -1)
        if spec:
            A.nop(4)
            for i in range(4): A.I("v_mov_b32", v(acc(0, 0) + i), 0)
        for _ in range(opt('zl', 0)): A.I("v_mov_b32", v(t0), 0)
        self.needv("f0")
        self.fl(1)
        c = chk(Mr(0))
        c[0](); c[1]()
        if spec == 3: mwrite()
        if spec >= 2: c[2]()
        if spec: smf(*own0[0])
        if opt('wspec', False): mwrite()
        if spec < 2: c[2]()
        if not nochk: A.I("s_cbranch_vccnz", lret0)

        q0, q1, k0, k1 = vQK, vQK + 4, vQK + 8, vQK + 12
        K0, K1, VX, X, VA = 56, 72, 88, 32, vVA
        D0, D1, DM_, PX, PM, ONES, OA, LA, ri = 56, 60, 64, 68, 52, 48, 72, 80, 84
        OF = [60, 92, 80, 84]
        G = [72, 76]
        WS_ = {(2, 0): 0, (3, 0): 8, (2, 1): 16, (2, 2): 24, (2, 3): 32, (3, 1): 40, (3, 2): 56, (3, 3): 64}
        def woread(T, j, hf): self.wread(("o", T, j), WS_[(T, j)] + 4 * hf, wo_home(T, j)[1] + 1024 * hf)
        def W(T, j, hf): return lambda: woread(T, j, hf)
        def vread(i): return lambda: self.ds("vx", "ds_read_b128", v(VX + 4 * i, 4), v(vL16), mods=self.off(VXB + w * 2048 + i * 1024))
        def kread(i): return lambda: self.ds("k", "ds_read_b128", v(K0 + 4 * i, 4), v(vL16), mods=self.off(KXB + i * 1024))
        def zread(r, tag="z"): return lambda: self.ds(tag, "ds_read_b128", v(r, 4), v(vL16), mods=self.off(ZRO))
        def j_pub(): self.vm("pub", "buffer_store_dwordx4", v(vPUB, 4), v(vL16), s(S_WS, 4), s(sKM), mods="offen " + self.pubmod)
        def j_kvf(): self.vm("kvf", "buffer_load_dword", v(vDUM), v(vL4), s(S_WS, 4), s(sKVF), mods="offen sc1")
        add2 = lambda r: [valu("v_add_f32", v(r), v(r), v(r + 2)), valu("v_add_f32", v(r + 1), v(r + 1), v(r + 3))]
        mul2 = lambda r: [valu("v_mul_f32", v(r), s(sC1), v(r)), valu("v_mul_f32", v(r + 1), s(sC1), v(r + 1))]
        cvp = lambda d, x, y: valu("v_cvt_pk_bf16_f32", v(d), v(x), v(y))
        def xwrite(t):
            d = (vPUB + 1, vPUB + 3) if t else (q0 + 2, q0 + 3)
            o = 0 if t else 32
            self.ds(f"xw{t}", "ds_write2_b32", v(vXW), v(d[0]), v(d[1]), mods=f"offset0:{o} offset1:{o + 16}")
        def xread(i): return lambda: self.ds(f"x{i}", "ds_read_b128", v(X + 4 * i, 4), v(vXR), mods=self.off(XI + 1024 * i))
        def oread(j): return lambda: self.ds(f"of{j}", "ds_read_b128", v(OF[j], 4), v(vOR), mods=self.off(OI + (w ^ j) * 512))
        bar = valu("s_barrier")
        nl = lambda t: (lambda: self.needl(t))
        FL = lambda i: (lambda: self.fl(i))
        none = lambda: None
        E_ = lambda m, p: [(m, p, 1), (m, p, 2), (m, p, 3)]
        L_ = lambda m, p: [(m, p, 5), (m, p, 6), (m, p, 7)]
        ve = [(2, 0, 1), (2, 1, 1), (2, 0, 2), (2, 0, 3), (2, 1, 2), (2, 1, 3)][:opt('ve', 0)]
        es = [(0, 0, 1), (0, 1, 1), (0, 0, 2), (0, 1, 2), (0, 0, 3), (0, 1, 3)] + E_(1, 0) + E_(1, 1) + ve
        ne = opt('ne', len(es)); rest = es[ne:]; assert ne <= len(es) and not [f for f in rest if f[0] == 2]
        own1 = [(1, 1, 4), (0, 0, 4), (0, 1, 4), (1, 0, 4), (2, 0, 4), (2, 1, 4)]
        o1v = opt('o1v', 0); vdef = own1[4 + o1v:]; own1 = own1[:4 + o1v]
        R_ = lambda m, p: [f for f in rest if f[:2] == (m, p)]
        vl = vdef + [(2, p, sl) for p, sl in [(0, 1), (1, 1), (0, 5), (1, 5), (0, 2), (0, 3), (0, 6), (0, 7), (1, 2), (1, 3), (1, 6), (1, 7)] if (2, p, sl) not in ve]
        vm_ = opt('vmid', 2)
        frs = own0 + es[:ne] + own1 + R_(0, 0) + R_(0, 1) + L_(0, 0) + L_(0, 1) + R_(1, 0) + L_(1, 0) + vl[:vm_] + R_(1, 1) + L_(1, 1)
        NQ = len(frs)
        frs += vl[vm_:]
        NS = len(frs); assert NS == 48
        O1 = 6 + ne
        last = lambda m, p: max(i for i, f in enumerate(frs) if f[:2] == (m, p))
        def smf_(f):
            h = home(*f)
            return valu(SMF, v(acc(*f[:2]), 4), v(Mr(f[2]), 4), v(self.STG[f], 8) if h[0] == "lds" else reg8(h), v(vIDX))
        ST = [(smf_(f), [f"m{f[2]}"]) for f in frs]
        for D, Areg in ((D0, K0), (D1, K1), (DM_, X)):
            ST += [(valu(MF, v(D, 4), v(Areg + 4 * ks, 4), v(X + 4 * ks, 4), 0 if ks == 0 else v(D, 4)), [f"x{ks}"]) for ks in range(4)]
        pvx = {"a": valu(MF, v(OA, 4), v(VX, 4), v(PX, 4), 0), "b": valu(MF, v(OA + 4, 4), v(VX + 4, 4), v(PX, 4), 0), "l": valu(MF, v(LA, 4), v(ONES, 4), v(PX, 4), 0)}
        pvm = {"a": valu(MF16, v(OA, 4), v(vPUB, 2), v(PM, 2), v(OA, 4)), "b": valu(MF16, v(OA + 4, 4), v(vPUB + 2, 2), v(PM, 2), v(OA + 4, 4)),
               "l": valu(MF16, v(LA, 4), v(ONES, 2), v(PM, 2), v(LA, 4))}
        nrm = opt('nrm', 0)
        pvo = "abl" if nrm == 0 else "lab"
        ST += [(pvx[k], ["vx"]) for k in pvo] + [(pvm[k], []) for k in pvo]
        worder = [(T, 0) for T in range(4)] + [(T, j) for T in range(4) for j in (1, 2, 3)]
        for T, j in worder:
            h = wo_home(T, j)
            ST.append((valu(SMF, v(vWA + 4 * T, 4), v(OF[j], 4), v(WS_[(T, j)], 8) if h[0] == "lds" else reg8(h), v(vIDX)),
                       ["z", ("o", T, j), f"of{j}"]))
        SC, PV, WO, N = 48, 60, 66, 82
        assert len(ST) == N
        mems = [[] for _ in range(N)]; vals = [[] for _ in range(N)]; post = [[] for _ in range(N)]
        def place(L, ops, first, step=1):
            i = first
            while ops:
                if not L[i]:
                    L[i].append(ops.pop(0)); i += step - 1
                i += 1
            return i - step
        ab = opt('abar', 3); ar = opt('ard', 3)
        mems[0] += [none if opt('wspec', False) or spec == 3 else mwrite]
        pp = opt('pubpos', [7, 9, 11, 13])
        if "p" not in X_: mems[pp] += [j_pub]
        def j_flag():
            if w == 0: self.vm("j", "buffer_store_dword", v(vFLG), "off", s(S_WS, 4), s(sFLAGOFF), mods=self.pubmod)
            if w >= WE: self.vm("j", "buffer_store_dword", v(vFLG), v(vMST), s(S_WS, 4), s(sRST), mods=self.mods("offen", sc))
        keep = lambda n: [valu("v_mov_b32", v(vPBST), v(vPBST))] * n
        mems[ab] += keep(opt('ka', 0)) + [none if 'A' in nw else nl("mw0"), bar, FL(2)]
        a1 = opt('ard1', 1)
        rdA = [lambda: mread(1), lambda: mread(2), lambda: mread(3)]
        mems[ar] += rdA[:a1]; mems[ar + 1] += rdA[a1:]
        f1p = opt('f1pos', 1)
        mems[f1p].insert(int(f1p == 0), lambda: mload(1, self.pollmod, "f1")); mems[f1p + 1].insert(0, lambda: mdma(self.pollmod, "fd"))
        lret1 = A.newlabel("mret"); lgo1 = A.newlabel("mgo")
        def ool1():
            A.label(lret1)
            A.I("s_mov_b32", s(sT0), "m0")
            A.I("s_mov_b32", "m0", MBUF + 4096 + 1024 * w)
            mload(1, "sc1")
            mdma("sc1")
            A.I("s_mov_b32", "m0", s(sT0))
            A.I("s_waitcnt", "vmcnt(0)")
            for x in chk(Mr(4)): x()
            self.retry_head(sNRF, lgo1)
            A.I("s_cbranch_vccnz", lret1)
            A.I("s_branch", lgo1)
        self.ool.append(ool1)
        c = chk(Mr(4))
        ckn = opt('ckn', 3)
        cplan = {1: [c], 2: [c[:2], c[2:]], 3: [c[:1], c[1:2], c[2:]]}[ckn]
        fw = O1 - 1 - ckn
        mems[fw] += [lambda: self.needv("f1"), FL(3)]
        for i in range(ckn): vals[fw + i] = cplan[i]
        def xb():
            if not nochk: A.I("s_cbranch_vccnz", lret1)
            A.label(lgo1)
        bb = O1 - 1 + opt('bbar', 1); br = bb + opt('brd', 0)
        mems[O1 - 2] += [lambda: self.needvl("fd", "k")]
        mems[O1 - 1] += [xb]
        mems[bb] += [bar, FL(4)]
        mems[br] += [lambda: mread(5)]
        place(mems, [lambda: mread(6), lambda: mread(7)], max(br + 1, O1))
        kl = place(mems, [kread(i) for i in (6, 7, 0, 1, 2, 3, 4, 5)], opt('kfirst', 4))
        assert kl < O1 - 2
        place(mems, [vread(0), vread(1)], O1 + 1)
        i = place(vals, add2(q0) + mul2(q0), last(0, 0) + 2)
        i = place(vals, add2(q1) + mul2(q1) + [cvp(q0 + 2, q0, q1), cvp(q0 + 3, q0 + 1, q1 + 1)], max(i, last(0, 1) + 2))
        xq = i + 1
        xk = NQ + 1
        kf = add2(k0)
        for j in range(last(1, 0) + 2, xk):
            if kf and (not vals[j] or xk - j <= len(kf)): vals[j].append(kf.pop(0))
        if xq == xk: xq += 1
        assert not kf and xq <= xk + 1
        mems[xq] += [lambda: xwrite(0)]
        kt = add2(k1) + [cvp(vPUB + 1, k0, k1), cvp(vPUB + 3, k0 + 1, k1 + 1)]
        ks_ = opt('ksp', 1)
        for j in range(ks_): vals[xk + j] += kt[j * 4 // ks_:(j + 1) * 4 // ks_]
        xk += ks_ - 1
        cb = xk + 1 + opt('cbar_', 4); cr = cb + opt('crd', 1)
        mems[NQ] += [FL(5)]
        mems[xk + 1] += [lambda: xwrite(1), FL(6)]
        vf0, vf1 = add2(VA) + [cvp(vPUB, VA, VA + 1)], add2(VA + 4) + [cvp(vPUB + 2, VA + 4, VA + 5)]
        assert xk + 2 < cb and xk + 2 < last(2, 0) + 2
        mems[xk + 2] += [valu("s_cmp_eq_u32", s(sSTEP), NSEG - 1), valu("s_cbranch_scc1", LLAST)]
        self.last = [x[0] for x in ST[xk + 3:NS]] + vf0 + vf1
        if opt('cw', 0): mems[cb - 1] += [none if 'C' in nw else nl("xw1")]
        assert pp <= NQ
        fp = xk + opt('fpos', [2, 2, 3, 4]); assert fp > ab
        if w != 1: mems[fp] += [j_flag]
        mems[cb] += [none if 'C' in nw else nl("xw1"), bar, FL(7)]
        xp = opt('xpre', 2); xr = opt('xrate', 2)
        rdC = [xread(i) for i in range(4)]
        mems[cr] += rdC[:xp]; rdC = rdC[xp:]; j = cr + 1
        while rdC: mems[j] += rdC[:xr]; rdC = rdC[xr:]; j += 1
        xe = j
        vf0l = list(vf0)
        for j in range(last(2, 0) + 2, NS):
            if vf0l and not vals[j]: vals[j].append(vf0l.pop(0))
        vals[NS - 1] += vf0l
        post[NS - 1] += [FL(8)]
        for j in range(xk + 1, cr): mems[j].append(none)
        vms = [lambda: self.kdma(0), lambda: self.kdma(1), lambda: (self.needl("vx"), self.vdma(0)), lambda: self.vdma(1, MBUF + 4096 + 1024 * w)]
        if "k" in X_: vms = [valu("s_mov_b32", "m0", MBUF + 4096 + 1024 * w)]
        if self.kvcheck and w < WE: vms.insert(2, j_kvf)
        place(mems, vms, bb + 1 + opt('vbase', [2, 3, 4, 5]), opt('vstep', 3))
        ex = lambda r: valu("v_exp_f32", v(r), v(r))
        cv = lambda d, r: valu("v_cvt_pk_bf16_f32", v(d), v(r), v(r + 1))
        one = lambda i: valu("v_mov_b32", v(ONES + i), s(sONES))
        sv = [[one(0), one(1)], [one(2), one(3)], vf1[:1], vf1[1:2], vf1[2:] + [valu("v_mov_b32", v(PM + 1), 0)],
              [ex(D0)], [ex(D0 + 1)], [ex(D0 + 2)], [ex(D0 + 3), cv(PX, D0)], [ex(D1), cv(PX + 1, D0 + 2)], [ex(D1 + 1)],
              [ex(D1 + 2), ex(D1 + 3), cv(PX + 2, D1), cv(PX + 3, D1 + 2)], [ex(DM_)], [ex(DM_ + 1)], [cv(PM, DM_)]]
        for j, x in enumerate(sv): vals[SC + j] = x
        post[PV - 1] += [FL(9)]
        mfree = lambda r: max(i for i, f in enumerate(frs) if Mr(f[2]) == r)
        wfirst = {(2, 0, 0): mfree(0), (2, 0, 1): mfree(4), (3, 0, 0): mfree(8), (3, 0, 1): mfree(12), (2, 1, 0): mfree(16), (2, 1, 1): mfree(20),
                  (2, 2, 0): mfree(24), (2, 2, 1): mfree(28), (2, 3, 0): SC + 8, (2, 3, 1): SC + 9, (3, 1, 0): SC + 10, (3, 1, 1): SC + 11,
                  (3, 2, 0): SC + 10, (3, 2, 1): WO + 4, (3, 3, 0): PV + 3, (3, 3, 1): PV + 2}
        place(mems, [zread(vWA + 4 * i) for i in range(4)], O1 + 4)
        lnorm = A.newlabel("norm"); lfb = A.newlabel("smax")
        QH = "quad_perm:[2,3,2,3] row_mask:0xf bank_mask:0xf"; QL = "quad_perm:[0,1,0,1] row_mask:0xf bank_mask:0xf"
        fb = opt('fbpos', 0)
        fbr = valu("s_nop", 0) if "f" in X_ else valu("s_cbranch_vccnz", lfb)
        if fb >= 0 and nrm == 0: mems[WO + fb] += [fbr]
        def norm():
            self.fl(10)
            A.label(lnorm)
            A.I("s_mov_b64", "vcc", s(sOMASK, 2))
            R_ = OA + 4
            for i in range(4):
                A.I("v_cndmask_b32_dpp", v(R_ + i), v(OA + i), v(R_ + i), "vcc", mods=QH)
            A.I("v_rcp_f32_dpp", v(ri), v(LA), mods=QH)
            for i in range(2): A.I("v_pk_mul_f32", v(R_ + 2 * i, 2), v(R_ + 2 * i, 2), v(ri, 2), mods="op_sel_hi:[1,0]")
            for i in range(2): A.I("v_cvt_pk_bf16_f32", v(OA + i), v(R_ + 2 * i), v(R_ + 2 * i + 1))
            self.ds("ow", "ds_write_b64", v(vOW), v(OA, 2), mods=self.off(OI + w * 512))
            self.fl(11)
            A.I("v_max_f32_dpp", v(ri + 2), v(LA), v(ri), mods=QH)
            for i in range(4):
                A.I("v_mov_b32_dpp", v(OF[0] + i), v(OA + (i & 1)), mods=QH if i >> 1 else QL)
                if i == 1: A.I("v_cmp_lt_f32", "vcc", s(sBIG), v(ri + 2))
            if fb < 0: fbr()
        def norm1():
            self.fl(10)
            A.label(lnorm)
            A.I("v_rcp_f32_dpp", v(ri), v(LA), mods=QH)
            for t in range(2):
                r = OA + 4 * t
                for i in range(4): A.I("v_mul_f32_dpp", v(r + i), v(r + i), v(ri), mods=QH)
                for i in range(2): A.I("v_cvt_pk_bf16_f32", v(OF[0] + 2 * t + i), v(r + 2 * i), v(r + 2 * i + 1))
                if nrm == 2: self.ds("ow", "ds_write_b64", v(vOR), v(OF[0] + 2 * t, 2), mods=self.off(OI + w * 512 + 8 * t))
            if nrm == 1: self.ds("ow", "ds_write_b128", v(vOR), v(OF[0], 4), mods=self.off(OI + w * 512))
            self.fl(11)
        def norm3():
            self.fl(10)
            A.label(lnorm)
            A.I("v_rcp_f32_dpp", v(ri), v(LA), mods=QH)
            for i in range(4): A.I("v_mul_f32_dpp", v(OA + i), v(OA + i), v(ri), mods=QH)
            for i in range(2): A.I("v_cvt_pk_bf16_f32", v(OA + i), v(OA + 2 * i), v(OA + 2 * i + 1))
            R_ = OA + 4
            for i in range(2): A.I("v_pk_mul_f32", v(R_ + 2 * i, 2), v(R_ + 2 * i, 2), v(ri, 2), mods="op_sel_hi:[1,0]")
            A.I("s_mov_b64", "exec", s(sOMASK, 2))
            for i in range(2): A.I("v_cvt_pk_bf16_f32", v(OA + i), v(R_ + 2 * i), v(R_ + 2 * i + 1))
            A.I("s_mov_b64", "exec", -1)
            self.ds("ow", "ds_write_b64", v(vOW), v(OA, 2), mods=self.off(OI + w * 512))
            self.fl(11)
            A.I("v_max_f32_dpp", v(ri + 2), v(LA), v(ri), mods=QH)
            A.I("v_cmp_lt_f32", "vcc", s(sBIG), v(ri + 2))
            for i in range(4): A.I("v_mov_b32_dpp", v(OF[0] + i), v(OA + (i & 1)), mods=QH if i >> 1 else QL)
            if "f" in X_: A.I("s_nop", 0)
            else: A.I("s_cbranch_vccnz", lfb)
        if nrm == 0: post[WO - 1] += [norm]
        elif nrm == 3: post[WO - 1] += [norm3]
        else:
            post[WO - 1] += [norm1]
            vals[WO] = [valu("v_max_f32_dpp", v(ri + 2), v(LA), v(ri), mods=QH)]
            vals[WO + 1] = [valu("v_cmp_lt_f32", "vcc", s(sBIG), v(ri + 2))]
            mems[WO + 2] += [valu("s_nop", 0) if "f" in X_ else valu("s_cbranch_vccnz", lfb)]
        def ool_smax():
            A.label(lfb)
            A.I("s_add_u32", s(sNRF), s(sNRF), 1)
            A.I("s_mov_b32", s(sBIG), "0x7f800000")
            A.I("s_waitcnt", "lgkmcnt(0)")
            A.I("s_sub_u32", s(sT0), s(sKXN), hex(32 * 8192 + 2048 * w))
            A.I("s_add_u32", s(sT1), s(sT0), 4096)
            A.nop(8)
            for i in range(8):
                A.I("buffer_load_dwordx4", v(K0 + 4 * i, 4), v(vL16), s(S_WS, 4), s(sT1 if i > 3 else sT0), mods=self.mods("offen", self.off((i & 3) * 1024)))
            for i in range(4):
                A.I("ds_read_b128", v(X + 4 * i, 4), v(vXR), mods=self.off(XI + 1024 * i))
            for i in range(16): A.I("v_mov_b32", v(vWA + i), 0)
            A.I("s_waitcnt", "vmcnt(0) lgkmcnt(0)")
            for x in ST[SC:PV]: x[0]()
            tm, tt = 84, 85
            A.I("v_max3_f32", v(tm), v(D0), v(D0 + 1), v(D0 + 2))
            A.I("v_max3_f32", v(tm), v(tm), v(D0 + 3), v(D1))
            A.I("v_max3_f32", v(tm), v(tm), v(D1 + 1), v(D1 + 2))
            A.I("v_max3_f32", v(tm), v(tm), v(D1 + 3), v(DM_))
            A.I("v_max_f32", v(tm), v(tm), v(DM_ + 1))
            for b in (32, 16):
                A.I("v_mov_b32", v(tt), v(tm))
                A.I(f"v_permlane{b}_swap_b32", v(tt), v(tm))
                A.I("v_max_f32", v(tm), v(tt), v(tm))
            rs = [D0, D0 + 1, D0 + 2, D0 + 3, D1, D1 + 1, D1 + 2, D1 + 3, DM_, DM_ + 1]
            for r in rs: A.I("v_sub_f32", v(r), v(r), v(tm))
            for r in rs: A.I("v_exp_f32", v(r), v(r))
            for i in range(5): A.I("v_cvt_pk_bf16_f32", v(PX + i if i < 4 else PM), v(rs[2 * i]), v(rs[2 * i + 1]))
            for x in ST[PV:WO]: x[0]()
            self.lq = []
            for f in ((2, 3, 0), (2, 3, 1), (3, 1, 0), (3, 1, 1), (3, 2, 0), (3, 3, 0), (3, 3, 1)): woread(*f)
            A.I("s_waitcnt", "lgkmcnt(0)")
            A.barrier_haz()
            A.I("s_branch", lnorm)
        self.ool.append(ool_smax)
        ob = WO + opt('obar', 1); od = ob + opt('ord', 0)
        mems[ob] += keep(opt('kd', 0)) + [none if 'D' in nw else nl("ow"), bar, FL(12)]
        o1 = opt('ord1', 3)
        rdD = [oread(j) for j in (1, 2, 3)]
        mems[od] += rdD[:o1]; mems[od + 1] += rdD[o1:]
        mems[WO + 4] += [FL(13)]
        for j in range(WO - 1, od): mems[j].append(none)
        def pack(T):
            g = G[T >> 1] + (T & 1); r = vWA + 4 * T
            L = [valu("v_cvt_pk_bf16_f32", v(g), v(r), v(r + 2)), valu("v_cvt_pk_bf16_f32", v(g + 2), v(r + 1), v(r + 3))]
            if not T & 1: L.insert(1, valu("v_and_or_b32", v(g), v(g), -2, s(sTAG)))
            return L
        def pstore(jj): self.vm("p", "buffer_store_dwordx4", v(G[jj], 4), v(vPBST), s(S_WS, 4), s(sPBST + jj), mods=self.mods("offen", sc or opt('pmod', '')))
        W4 = WO + 4
        place(vals, pack(0), W4 + 4)
        vals[W4 + 7] += pack(1)
        mems[W4 + 8] += [lambda: pstore(0), FL("h5")]
        p2 = pack(2)
        vals[W4 + 10] += p2[:1]; vals[W4 + 11] += p2[1:] + pack(3)
        post[N - 1] += [lambda: pstore(1)]
        wlo = opt('wlo', 0)
        for j in range(cr, xe + opt('xgap', 0)): mems[j].append(none)
        for j in opt('wno', tuple(range(SC + 5, PV + 3)) + (xq - 1, xk, NS - 1, SC)): mems[j].append(none)
        for f, fs in sorted(wfirst.items(), key=lambda x: x[1]):
            j = place(mems, [W(*f)], max(fs, O1 + 4))
            assert j + 3 <= WO + worder.index(f[:2]), (f, j)
        mems[WO + 3] += keep(opt('ke', 0))
        mems[5] += keep(opt('kb', 0))
        if opt('fill', True): A.fill = v(vOW)
        for i, (x, deps) in enumerate(ST):
            for d in deps: self.needl(d)
            if i or not spec: x()
            if self.kw.get('pslot') == i: self.fl("h3")
            for m in mems[i]: m()
            if i + 1 < N and i != WO - 1:
                for d in reversed(ST[i + 1][1]): self.needl(d)
            for x in vals[i]: x()
            for x in post[i]: x()
        A.fill = None
        self.fl(14)
        if self.flog:
            self.fl_collect(14); self.lq = []; self.vq.append("log")
        def pad16(n):
            for _ in range(n):
                A.I("v_mov_b32", v(t0), 0); A.nop(3)
        junk = []
        for r, inc in ((sKXN, 32 * 8192), (sVXN, 32 * 8192), (sKM, 32 * 4096)):
            junk.append(valu("s_add_u32", s(r), s(r), hex(inc)))
        junk.append(valu("s_add_u32", s(sMBLD), s(sMBST), 1024 * w))
        junk.append(valu("s_add_u32", s(sMBLD2), s(sMBLD), 4096))
        for j in range(2): junk.append(valu("s_xor_b32", s(sPBST + j), s(sPBST + j), hex(PBPAR)))
        junk.append(valu("s_mov_b32", s(sBIG), f2h(2.0 ** self.kw.get('bigexp', 20))))
        if w == 0: junk.append(valu("v_mov_b32", v(vFLG), s(sSTEP)))
        junk.append(valu("s_add_u32", s(sSTEP), s(sSTEP), 1))
        if w >= WE: junk += [valu("v_cndmask_b32", v(SEL + d), 0, v(vSEL), s(self.sSEL + 2 * d, 2)) for d in range(4)]
        junk += [valu("v_mov_b32", v(r), 0) for r in range(vQK, vQK + 24) if w < WE or not vVA <= r < vVA + 6]
        pf = self.prefetch_items()
        def tail():
            A.I("s_add_u32", s(sMBST), s(sMBST), 8192)
            assert (WS_MB + self.wo) & 0xffff == 0
            A.I("s_bitset0_b32", s(sMBST), 15)
            A.I("s_xor_b32", s(sRST), s(sMBST), 16384)
            A.I("s_xor_b32", s(sPBLD), s(sPBLD), hex(PBPAR))
            A.I("s_xor_b32", s(sPBLD2), s(sPBLD), 1024)
            A.I("s_bfe_u32", s(sTAG), s(sSTEP), hex(0x10001))
        if w < WE:
            for x in junk: x()
            pad16(opt('wpre', 0))
            for x in pf: x()
            tail()
            if self.kvcheck:
                A.I("s_add_u32", s(sT1), s(sSTEP), 5)
                A.I("s_lshr_b32", s(sT1), s(sT1), 2)
                A.I("s_min_u32", s(sT1), s(sT1), 16)
                A.I("s_bfm_b32", s(sNEED), s(sT1), 0)
                lkv = A.newlabel("kvw"); lkb = A.newlabel("kvb")
                self.needv("kvf")
                A.I("v_cmp_eq_u32", "vcc", 0, v(vDUM))
                A.I("s_and_b64", "vcc", "vcc", s(sNEED, 2))
                A.I("s_cbranch_scc1", lkv)
                A.label(lkb)
                def ool_kv():
                    A.label(lkv)
                    self.retry_head(sNRF, lkb)
                    A.I("s_sleep", 4)
                    A.I("buffer_load_dword", v(vDUM), v(vL4), s(S_WS, 4), s(sKVF), mods="offen sc1")
                    A.I("s_waitcnt", "vmcnt(0)")
                    A.I("v_cmp_eq_u32", "vcc", 0, v(vDUM))
                    A.I("s_and_b64", "vcc", "vcc", s(sNEED, 2))
                    A.I("s_cbranch_scc1", lkv)
                    A.I("s_branch", lkb)
                self.ool.append(ool_kv)
            pad16(opt('wpad', 20) - (7 if self.flog else 0))
            A.I("s_waitcnt", "lgkmcnt(0)")
            A.I("s_branch", LTOP)
            return
        def rloads(mod, track=True):
            for m in range(4):
                (self.vm if track else untracked)(f"r{m}", "buffer_load_dwordx4", v(RL[m], 4), v(vL16), s(S_WS, 4), s(sPBLD2 if m & 1 else sPBLD),
                        mods=self.mods("offen", self.off((m & 2) * 1024), mod))
        rp = self.rp[w - WE] - (25 if self.flog else 0)
        junk = pf + junk
        junk += [valu("v_mov_b32", v(tc), 0)] * max(0, rp + 1 - len(junk))
        for i, x in enumerate(junk):
            if i == rp: self.fl("h6"); rloads(self.pollmod)
            x()
        lrl = A.newlabel("rl"); lrs = A.newlabel("rslow"); lrg = A.newlabel("rgo")
        if early3:
            for _ in range(opt('e3pad', 0)): A.I("v_mov_b32", v(tc), 0)
            if opt('e3pos', 0) == 0: self.fl("h7"); mload(0, self.pollmod, "f0n")
        for m in range(4):
            self.needv(f"r{m}")
            if m == 0 and early3 and opt('e3pos', 0) == 1: self.fl("h7"); mload(0, self.pollmod, "f0n")
            if m == 0: A.label(lrl)
            A.I(MF, v(RD, 4), v(RL[m], 4), v(SEL, 4), 0 if m == 0 else v(RD, 4))
            A.I("v_xor_b32", v(tc + (m > 0)), s(sTAG), v(RL[m]))
            if m: A.I("v_or_b32", v(tc), v(tc), v(tc + 1))
        self.fl("h8")
        A.I("v_and_b32", v(tc), 1, v(tc))
        A.I("v_cmp_ne_u32", "vcc", 0, v(tc))
        if not nochk: A.I("s_cbranch_vccnz", lrs)
        A.label(lrg)
        A.I("v_permlane32_swap_b32", v(RD), v(RD + 2))
        A.I("v_permlane32_swap_b32", v(RD + 1), v(RD + 3))
        A.I("v_pk_add_f32", v(RD, 2), v(RD, 2), v(RD + 2, 2))
        A.I("s_mov_b64", "exec", s(sRMASK, 2))
        A.I("v_cvt_pk_bf16_f32", v(SEL), v(RD), v(RD + 1))
        A.I("v_min_u32", v(SEL), "0xfffffffe", v(SEL))
        A.I("buffer_store_dword", v(SEL), v(vMST), s(S_WS, 4), s(sMBST), mods=self.mods("offen", sc or opt('mmod', '')))
        A.I("s_mov_b64", "exec", -1)
        self.fl(15)
        def ool_r():
            A.label(lrs)
            rloads("sc1", False)
            self.retry_head(sNRR, lrg)
            A.I("s_waitcnt", "vmcnt(0)")
            A.I("s_branch", lrl)
        self.ool.append(ool_r)
        tail()
        A.I("s_waitcnt", "lgkmcnt(0)")
        A.I("s_branch", LTOP)

    def dump_timing(self):
        A = self.A
        A.I("s_lshl_b32", s(sT0), s(sH), 2)
        A.I("s_add_u32", s(sT0), s(sT0), s(sWV))
        A.I("s_lshl_b32", s(sT0), s(sT0), 7)
        A.I("s_add_u32", s(sT0), s(sT0), hex(WS_TS))
        regs = [sACC + i for i in range(16)] + [sNRM, sNRR, sNRF, self.sNRX]
        for i, r in enumerate(regs):
            A.I("v_mov_b32", v(1), s(r))
            A.I("buffer_store_dword", v(1), "off", s(S_WS, 4), s(sT0), mods=f"offset:{4*i}")

    def emit_ool(self):
        for f in self.ool:
            self.A.reset_haz()
            f()
        self.ool = []
```

```python
import struct
from asmgen import *

def f2h(x):
    return hex(struct.unpack("<I", struct.pack("<f", x))[0])

def kernel_header(A, name):
    A.raw(f".globl {name}\n.p2align 8\n.type {name},@function")
    A.label(name)
    A.reset_haz()

def kernel_desc(name, vgpr=512, accum=256, sgpr=102):
    return f""".p2align 6
.amdhsa_kernel {name}
  .amdhsa_next_free_vgpr {vgpr}
  .amdhsa_next_free_sgpr {sgpr}
  .amdhsa_accum_offset {accum}
  .amdhsa_group_segment_fixed_size 0
  .amdhsa_kernarg_size 120
  .amdhsa_user_sgpr_count 2
  .amdhsa_user_sgpr_kernarg_segment_ptr 1
  .amdhsa_system_sgpr_workgroup_id_x 1
  .amdhsa_float_denorm_mode_32 3
.end_amdhsa_kernel
"""

def srd(A, sd, karg_off, nbytes):
    A.I("s_load_dwordx2", s(sd, 2), s(0, 2), karg_off)
    A.I("s_waitcnt", "lgkmcnt(0)")
    A.I("s_and_b32", s(sd + 1), s(sd + 1), "0xffff")
    A.I("s_mov_b32", s(sd + 2), hex(nbytes))
    A.I("s_mov_b32", s(sd + 3), "0x20000")

def off(o):
    return f"offset:{o}" if o else ""

def mods(*m):
    return " ".join(x for x in m if x)

def bf16r(A, d, x):
    A.I("v_cvt_pk_bf16_f32", v(d), v(x), v(x))
    A.I("v_and_b32", v(d), "0xffff0000", v(d))

def xor_reduce(A, op, x, t, bits=(32, 16)):
    for b in bits:
        A.I("v_mov_b32", v(t), v(x))
        A.I(f"v_permlane{b}_swap_b32", v(t), v(x))
        A.I(op, v(x), v(t), v(x))

def row_reduce16(A, op, x):
    for r in (1, 2, 4, 8):
        A.I(op + "_dpp", v(x), v(x), v(x), mods=f"row_ror:{r} row_mask:0xf bank_mask:0xf")

def ln_mean(A, S, mbf, dm):
    A.I("v_mul_f32", v(S), f2h(1.0 / 512), v(S))
    bf16r(A, mbf, S)
    A.I("v_sub_f32", v(dm), v(S), v(mbf))

def ln_rinv(A, Q, dm, t):
    A.I("v_mul_f32", v(t), v(dm), v(dm))
    A.I("v_mul_f32", v(Q), f2h(1.0 / 512), v(Q))
    A.I("v_sub_f32", v(Q), v(Q), v(t))
    A.I("v_max_f32", v(Q), 0, v(Q))
    bf16r(A, Q, Q)
    A.I("v_add_f32", v(Q), f2h(1e-5), v(Q))
    bf16r(A, Q, Q)
    A.I("v_sqrt_f32", v(Q), v(Q))
    bf16r(A, Q, Q)
    A.I("v_rcp_f32", v(Q), v(Q))

S_DBGG = 92
sGW = 100
sGB = 101
sPT0, sPT1 = 96, 97
POLL_MAX = 1 << 16

def restore_tid(A):
    A.I("v_mbcnt_lo_u32_b32", v(0), -1, 0)
    A.I("v_mbcnt_hi_u32_b32", v(0), -1, v(0))
    A.I("s_lshl_b32", s(sPT0), s(sGW), 6)
    A.I("v_add_u32", v(0), s(sPT0), v(0))

def wait_words(A, srd_, voff, soff, nlanes, minval, vt, sleep=8, barrier=True, mask=None, paced=False, equal=False):
    lp = A.newlabel("poll"); ld = A.newlabel("polld"); ls = A.newlabel("polls")
    if barrier:
        A.I("s_cmp_lg_u32", s(sGW), 0)
        A.I("s_cbranch_scc1", ls)
    if mask is not None:
        A.I("s_mov_b32", "exec_lo", hex(mask))
        A.I("s_mov_b32", "exec_hi", 0)
    elif nlanes < 64:
        if nlanes <= 32:
            A.I("s_mov_b32", "exec_lo", hex((1 << nlanes) - 1))
            A.I("s_mov_b32", "exec_hi", 0)
        else:
            A.I("s_mov_b32", "exec_hi", hex((1 << (nlanes - 32)) - 1))
    A.I("s_mov_b32", s(sPT0), 0)
    A.label(lp)
    A.I("buffer_load_dword", v(vt), v(voff), s(srd_, 4), soff, mods="offen sc1")
    A.I("s_waitcnt", "vmcnt(0)")
    A.I("v_cmp_ne_u32" if equal else "v_cmp_gt_u32", "vcc", minval, v(vt))
    A.I("s_cbranch_vccz", ld)
    if paced:
        l1 = A.newlabel("near")
        A.I("v_readfirstlane_b32", s(sPT1), v(vt))
        A.I("s_sub_u32", s(sPT1), minval, s(sPT1))
        A.I("s_cmp_lt_i32", s(sPT1), 3)
        A.I("s_cbranch_scc1", l1)
        A.I("s_sleep", 40)
        A.I("s_cmp_lt_i32", s(sPT1), 5)
        A.I("s_cbranch_scc1", l1)
        A.I("s_sleep", 100)
        A.label(l1)
    A.I("s_sleep", sleep)
    A.I("s_add_u32", s(sPT0), s(sPT0), 1)
    A.I("s_cmp_lt_u32", s(sPT0), hex(POLL_MAX))
    A.I("s_cbranch_scc1", lp)
    A.label(ld)
    A.I("s_mov_b64", "exec", -1)
    if barrier:
        A.label(ls)
        A.I("s_barrier")
    A.reset_haz()

def set_flag(A, srd_, soff, vt, val=1):
    ls = A.newlabel("flag")
    A.I("s_cmp_lg_u32", s(sGW), 0)
    A.I("s_cbranch_scc1", ls)
    A.I("v_mov_b32", v(vt), val)
    A.I("s_mov_b64", "exec", 1)
    A.I("buffer_store_dword", v(vt), "off", s(srd_, 4), soff, mods="sc1")
    A.I("s_mov_b64", "exec", -1)
    A.label(ls)

PROF = [False]
DBGTS = [None]
sPID = 88
def ts(A, slot, vt=255, dyn=None):
    if DBGTS[0] and dyn is None and slot in DBGTS[0]:
        pid, word = DBGTS[0][slot]
        l = A.newlabel("dts")
        A.I("s_cmp_lg_u32", s(sGW), 0)
        A.I("s_cbranch_scc1", l)
        A.I("s_cmp_lg_u32", s(sPID), pid)
        A.I("s_cbranch_scc1", l)
        A.I("s_memrealtime", s(90, 2))
        A.I("s_waitcnt", "lgkmcnt(0)")
        A.I("v_mov_b32", v(vt), s(90))
        A.I("s_mov_b64", "exec", 1)
        A.I("buffer_store_dword", v(vt), "off", s(S_DBGG, 4), 0, mods=f"offset:{4 * word}")
        A.I("s_mov_b64", "exec", -1)
        A.label(l)
    if not PROF[0]: return
    from layout import WS_TS
    l = A.newlabel("ts")
    A.I("s_cmp_lg_u32", s(sGW), 0)
    A.I("s_cbranch_scc1", l)
    A.I("s_memrealtime", s(90, 2))
    A.I("s_lshl_b32", s(89), s(sPID), 8)
    A.I("s_add_u32", s(89), s(89), hex(WS_TS + 4 * slot))
    if dyn is not None:
        A.I("s_lshl_b32", s(sPT1), s(dyn), 2)
        A.I("s_add_u32", s(89), s(89), s(sPT1))
    A.I("s_waitcnt", "lgkmcnt(0)")
    A.I("v_mov_b32", v(vt), s(90))
    A.I("s_mov_b64", "exec", 1)
    A.I("buffer_store_dword", v(vt), "off", s(8, 4), s(89))
    A.I("s_mov_b64", "exec", -1)
    A.label(l)
```

```python
S, DM, H, DH, M, SEG, NSEG, FF = 2048, 512, 32, 128, 8, 32, 64, 1792

WS_CTRL = 0x0
CT_PROG = 0x1000
CT_F1   = 0x2000
CT_F2   = 0x4000
CT_KEY  = 0x6000
CT_F4   = 0x8000
CT_SIZE = 0x9000
WS_MB   = 0x10000
WS_PB   = 0x100000
WS_KM   = 0x240000
WS_VM   = 0xA80000
WS_KX   = 0x1000000
WS_VX   = 0x2000000
WS_QX   = 0x3000000
WS_PO   = 0x4000000
WS_H    = 0x6000000
WS_HN   = 0x6200000
WS_KEY  = CT_KEY
WS_FY   = 0x6410000
NFW = 56
WS_TS   = 0x8000000

def tok_of_row(c):
    return 2 * (c >> 2) + (c & 1)
def half_of_row(c):
    return (c >> 1) & 1

def d_of(kappa, k):
    return 128 * (k >> 4) + 64 * (kappa >> 2) + 16 * ((k >> 2) & 3) + 4 * (kappa & 3) + (k & 3)

def e_of(kp, k):
    gA, p, gp, b = k >> 4, (k >> 2) & 3, (k >> 1) & 1, k & 1
    return 64 * kp + 32 * (gA >> 1) + 16 * (p >> 1) + 8 * (gA & 1) + 4 * gp + 2 * (p & 1) + b

def feat_of(ks, g, j):
    return 32 * ks + 16 * (j & 1) + 4 * g + (j >> 1)

def key_of(g, j):
    return 16 * (j >> 2) + 4 * g + (j & 3)
```

```python
from asmgen import *
from layout import *
from common import *

S_WS = 8; S_X = 12; S_W = 16
sRB, sWV, sCG, sU = 20, 21, 22, 23
sDH = 24
sOUT = 25
sT0, sT1, sT2 = 26, 27, 28
sW1K = 29
sPK, sPV, sPQ = 30, 32, 34
sNU, sSTR = 36, 37
sM = 38
sMD = 39
sPF = 40
sPO = 42
sPASS = 41

vACC = 0; vWB = 64; vTR = 128; vDMA = 136; vL16 = 137; vT = 138; vXO = 139
MF = "v_mfma_f32_16x16x32_bf16"

class Phase1:
    def __init__(self, A, tag="p1"):
        self.A = A; self.tag = tag

    def setup(self):
        A = self.A
        L, G, C, T, U, R = 144, 145, 146, 147, 148, 149
        A.I("s_load_dwordx2", s(sPQ, 2), s(0, 2), 16)
        A.I("s_load_dwordx2", s(sPK, 2), s(0, 2), 24)
        A.I("s_load_dwordx2", s(sPV, 2), s(0, 2), 32)
        A.I("s_load_dwordx2", s(sPO, 2), s(0, 2), 40)
        srd(A, S_X, 0, 2 << 20)
        A.I("v_lshrrev_b32", v(T), 6, v(0))
        A.I("v_readfirstlane_b32", s(sWV), v(T))
        A.I("v_and_b32", v(L), 63, v(0))
        A.I("v_lshrrev_b32", v(G), 4, v(L))
        A.I("v_and_b32", v(C), 15, v(L))
        A.I("v_lshrrev_b32", v(R), 2, v(C))
        A.I("v_lshlrev_b32", v(vL16), 4, v(L))
        A.I("s_lshl_b32", s(sW1K), s(sWV), 10)
        A.I("s_lshl_b32", s(sT0), s(sRB), 7)
        A.I("s_lshl_b32", s(sT1), s(sWV), 5)
        A.I("s_add_u32", s(sT0), s(sT0), s(sT1))
        A.I("v_add_u32", v(T), s(sT0), v(C))
        A.I("v_lshlrev_b32", v(T), 10, v(T))
        A.I("v_lshl_add_u32", v(vXO), v(G), 4, v(T))
        for tt in range(2):
            A.I("s_mov_b32", s(sT0), hex(tt * 16 * 1024))
            for ks in range(16):
                A.I("buffer_load_dwordx4", v(64 * tt + 4 * ks, 4), v(vXO), s(S_X, 4), s(sT0), mods=mods("offen", off(64 * ks)))
        A.I("s_lshr_b32", s(sT0), s(sWV), 1)
        A.I("s_lshl_b32", s(sT0), s(sT0), 2)
        A.I("v_or_b32", v(U), s(sT0), v(G))
        A.I("v_lshlrev_b32", v(U), 1, v(U))
        A.I("v_xor_b32", v(U), v(U), v(C))
        A.I("v_lshlrev_b32", v(U), 4, v(U))
        A.I("s_lshl_b32", s(sT0), s(sWV), 2)
        A.I("v_add_u32", v(T), s(sT0), v(G))
        A.I("v_lshl_add_u32", v(vDMA), v(T), 13, v(U))
        A.I("v_lshl_add_u32", v(T), v(G), 3, v(R))
        A.I("v_lshlrev_b32", v(T), 8, v(T))
        A.I("v_and_b32", v(U), 1, v(G))
        A.I("v_lshl_or_b32", v(U), v(U), 2, v(R))
        A.I("v_lshl_add_u32", v(T), v(U), 5, v(T))
        A.I("v_and_b32", v(U), 3, v(C))
        A.I("v_lshl_add_u32", v(vTR), v(U), 3, v(T))
        for p in range(1, 8):
            A.I("v_xor_b32", v(vTR + p), p << 5, v(vTR))
        A.I("s_mov_b32", s(S_W + 3), "0x20000")

    def warm(self, sid):
        A = self.A
        A.I("v_lshlrev_b32", v(vT), 2, v(vL16))
        A.I("s_mul_i32", s(sT0), s(sid), 18752)
        A.I("s_mul_i32", s(sT1), s(sWV), 4736)
        A.I("s_add_u32", s(sT0), s(sT0), s(sT1))
        A.I("s_add_u32", s(sT1), s(sT0), 4096)
        A.I("s_mov_b32", s(S_W + 2), hex(4 << 20))
        for pp in (sPQ, sPK, sPV, sPO) if self.warm_first else (sPK, sPV, sPQ, sPO):
            A.I("s_mov_b32", s(S_W), s(pp))
            A.I("s_and_b32", s(S_W + 1), s(pp + 1), "0xffff")
            A.I("buffer_load_dword", v(143), v(vT), s(S_W, 4), s(sT0), mods="offen")
            A.I("s_mov_b32", "exec_lo", "0x3ff")
            A.I("s_mov_b32", "exec_hi", 0)
            A.I("buffer_load_dword", v(143), v(vT), s(S_W, 4), s(sT1), mods="offen")
            A.I("s_mov_b64", "exec", -1)
        return 8

    def dma_unit(self):
        A = self.A
        A.I("s_lshr_b32", s(sT0), s(sMD), 5)
        A.I("s_cmp_eq_u32", s(sT0), 0)
        A.I("s_cselect_b64", s(S_W, 2), s(sPK, 2), s(sPQ, 2))
        A.I("s_cmp_eq_u32", s(sT0), 1)
        A.I("s_cselect_b64", s(S_W, 2), s(sPV, 2), s(S_W, 2))
        A.I("s_and_b32", s(S_W + 1), s(S_W + 1), "0xffff")
        A.I("s_cmp_lt_u32", s(sMD), 96)
        A.I("s_cselect_b32", s(S_W + 2), hex(4 << 20), 0)
        A.I("s_and_b32", s(sDH), s(sMD), 31)
        A.I("s_lshl_b32", s(sDH), s(sDH), 8)

    def dma_one(self, a_, i):
        A = self.A
        A.I("s_add_u32", s(sT0), s(sDH), hex((128 * a_ + 16 * i) * 8192))
        A.I("s_add_u32", "m0", s(sW1K), hex(a_ * 32768 + 4 * i * 1024))
        A.I("buffer_load_dwordx4", v(vDMA), s(S_W, 4), s(sT0), mods="offen lds")

    def dma_chunk(self, a_):
        for i in range(8): self.dma_one(a_, i)

    def layernorm(self, between):
        A = self.A
        S_, Q, MB, DMn, T, ONE = 150, 152, 154, 156, 157, 158
        F = 160
        A.I("v_mov_b32", v(ONE), "0x3f803f80")
        for tt in range(2):
            RAW = 64 * tt
            A.I("s_waitcnt", f"vmcnt({16 * (1 - tt)})")
            if tt == 1: between()
            A.I("v_pk_mov_b32", v(S_, 2), 0, 0)
            A.I("v_pk_mov_b32", v(Q, 2), 0, 0)
            for i in range(64):
                A.I("v_dot2_f32_bf16", v(S_ + (i & 1)), v(RAW + i), v(ONE), v(S_ + (i & 1)))
                A.I("v_dot2_f32_bf16", v(Q + (i & 1)), v(RAW + i), v(RAW + i), v(Q + (i & 1)))
            A.I("v_add_f32", v(S_), v(S_), v(S_ + 1))
            A.I("v_add_f32", v(Q), v(Q), v(Q + 1))
            xor_reduce(A, "v_add_f32", S_, T)
            xor_reduce(A, "v_add_f32", Q, T)
            ln_mean(A, S_, MB, DMn)
            ln_rinv(A, Q, S_, T)
            for i0 in range(0, 64, 8):
                R8 = range(i0, i0 + 8)
                for i in R8:
                    f = F + 2 * (i - i0)
                    A.I("v_lshlrev_b32", v(f), 16, v(RAW + i))
                    A.I("v_and_b32", v(f + 1), "0xffff0000", v(RAW + i))
                for i in R8:
                    f = F + 2 * (i - i0)
                    A.I("v_pk_add_f32", v(f, 2), v(f, 2), v(MB, 2), mods="op_sel_hi:[1,0] neg_lo:[0,1] neg_hi:[0,1]")
                for i in R8:
                    f = F + 2 * (i - i0)
                    A.I("v_cvt_pk_bf16_f32", v(RAW + i), v(f), v(f + 1))
                for i in R8:
                    f = F + 2 * (i - i0)
                    A.I("v_lshlrev_b32", v(f), 16, v(RAW + i))
                    A.I("v_and_b32", v(f + 1), "0xffff0000", v(RAW + i))
                for i in R8:
                    f = F + 2 * (i - i0)
                    A.I("v_pk_mul_f32", v(f, 2), v(f, 2), v(Q, 2), mods="op_sel_hi:[1,0]")
                for i in R8:
                    f = F + 2 * (i - i0)
                    A.I("v_cvt_pk_bf16_f32", v(f), v(f), v(f + 1))
                for i in R8:
                    A.I("v_accvgpr_write_b32", a(tt * 64 + i), v(F + 2 * (i - i0)))

    def wread(self, a_, ksl, buf, n):
        p, q = n >> 1, n & 1
        self.A.I("ds_read_b64_tr_b16", v(vWB + buf * 32 + 4 * p + 2 * q, 2), v(vTR + p),
                 mods=off((a_ & 1) * 32768 + ksl * 8192 + q * 1024))

    def unit(self, isV):
        A = self.A
        for a_ in range(4):
            A.I("s_waitcnt", "vmcnt(16)")
            A.I("s_barrier")
            for n in range(14):
                self.wread(a_, 0, 0, n)
            if a_ == 2 and self.flags:
                self.pending_flag()
            if a_ == 1:
                A.I("s_add_u32", s(sMD), s(sMD), s(sSTR))
                self.dma_unit()
            stream = [(k, n) for k in range(4) for n in range(16)][14:]
            for ksl in range(4):
                ks = a_ * 4 + ksl
                for p in range(8):
                    done_needed = ksl * 16 + 2 * p + 2
                    issued = 64 - len(stream)
                    A.I("s_waitcnt", f"lgkmcnt({issued - done_needed})")
                    for tau in range(2):
                        acc = v(vACC + (p * 2 + tau) * 4, 4)
                        W = v(vWB + (ksl & 1) * 32 + 4 * p, 4); X = a((tau * 16 + ks) * 4, 4)
                        A.I(MF, acc, X if isV else W, W if isV else X, 0 if ks == 0 else acc)
                        if stream:
                            k2, n2 = stream.pop(0)
                            self.wread(a_, k2, k2 & 1, n2)
                    if ksl == 0:
                        self.dma_one((a_ + 3) & 3, p)
            if a_ & 1:
                for p in range(8):
                    A.I("v_xor_b32", v(vTR + p), hex(0x10000), v(vTR + p))
        G = 144
        for x in range(8):
            g = G + 4 * (x & 3)
            if isV:
                t0 = vACC + (x * 2) * 4; t1 = t0 + 4
            else:
                tau, kk = x >> 2, x & 3
                t0 = vACC + ((2 * kk) * 2 + tau) * 4; t1 = t0 + 8
            if isV:
                A.I("v_cvt_pk_bf16_f32", v(g), v(t0), v(t0 + 1))
                A.I("v_cvt_pk_bf16_f32", v(g + 1), v(t0 + 2), v(t0 + 3))
                A.I("v_cvt_pk_bf16_f32", v(g + 2), v(t1), v(t1 + 1))
                A.I("v_cvt_pk_bf16_f32", v(g + 3), v(t1 + 2), v(t1 + 3))
            else:
                for i in range(4): A.I("v_cvt_pk_bf16_f32", v(g + i), v(t0 + i), v(t1 + i))
            if x == 4: A.I("s_add_u32", s(sOUT), s(sOUT), 4096)
            A.I("buffer_store_dwordx4", v(g, 4), v(vL16), s(S_WS, 4), s(sOUT), mods=mods("offen", off((x & 3) * 1024), self.stmod))

    def pending_flag(self):
        A = self.A
        l = A.newlabel("nopf")
        A.I("s_cmp_eq_u32", s(sPF), 0)
        A.I("s_cbranch_scc1", l)
        if self.pre_flag: self.pre_flag()
        set_flag(A, S_WS, s(sPF), vT)
        A.I("s_mov_b32", s(sPF), 0)
        A.label(l)

    def out_base(self):
        A = self.A
        A.I("s_lshr_b32", s(sT0), s(sM), 5)
        A.I("s_add_u32", s(sT1), s(sT0), 1)
        A.I("s_lshl_b32", s(sOUT), s(sT1), 24)
        A.I("s_lshl_b32", s(sT1), s(sRB), 2)
        A.I("s_add_u32", s(sT1), s(sT1), s(sWV))
        A.I("s_lshl_b32", s(sT1), s(sT1), 5)
        A.I("s_and_b32", s(sT2), s(sM), 31)
        A.I("s_add_u32", s(sT1), s(sT1), s(sT2))
        A.I("s_lshl_b32", s(sT1), s(sT1), 13)
        A.I("s_add_u32", s(sOUT), s(sOUT), s(sT1))

    def body(self, stmod="", flags=False, pre_flag=None, warm_id=None, next_pass=None, warm_first=False):
        A = self.A
        self.stmod = stmod
        self.flags = flags
        self.pre_flag = pre_flag
        self.warm_first = warm_first
        assert WS_KX == 1 << 24 and WS_VX == 2 << 24 and WS_QX == 3 << 24
        A.I("s_mov_b32", s(sPF), 0)
        A.I("s_mov_b32", s(80), 0)
        A.I("s_mov_b32", s(sU), 0)
        LP = f"L_{self.tag}_pass"
        A.label(LP)
        A.reset_haz()
        if next_pass: restore_tid(A)
        self.setup()
        A.I("s_mov_b32", s(sM), s(sCG))
        A.I("s_mov_b32", s(sMD), s(sCG))
        if warm_first and warm_id is not None:
            l = A.newlabel("nowarm")
            A.I("s_cmp_lg_u32", s(sU), 0)
            A.I("s_cbranch_scc1", l)
            self.warm(warm_id)
            A.I("s_mov_b32", s(sU), 1)
            A.label(l)
        def between():
            self.dma_unit()
            for a_ in range(3):
                self.dma_chunk(a_)
            if warm_id is not None:
                l = A.newlabel("nowarm")
                A.I("s_cmp_lg_u32", s(sU), 0)
                A.I("s_cbranch_scc1", l)
                self.warm(warm_id)
                self.dma_unit()
                A.I("s_mov_b32", s(sU), 1)
                A.label(l)
        self.layernorm(between)
        ts(A, 1)
        LU = f"L_{self.tag}_unit"; LV = f"L_{self.tag}_v"; LN = f"L_{self.tag}_next"; LE = f"L_{self.tag}_end"
        A.barrier_haz()
        A.label(LU)
        A.reset_haz()
        A.I("s_cmp_ge_u32", s(sM), 96)
        A.I("s_cbranch_scc1", LE)
        self.out_base()
        A.I("s_lshr_b32", s(sT0), s(sM), 5)
        A.I("s_cmp_eq_u32", s(sT0), 1)
        A.I("s_cbranch_scc1", LV)
        self.unit(False)
        A.I("s_branch", LN)
        A.label(LV)
        A.reset_haz()
        self.unit(True)
        A.label(LN)
        ts(A, 40, dyn=80)
        A.I("s_add_u32", s(80), s(80), 1)
        if flags:
            A.I("s_lshl_b32", s(sPF), s(sM), 4)
            A.I("s_add_u32", s(sPF), s(sPF), s(sRB))
            A.I("s_lshl_b32", s(sPF), s(sPF), 2)
            A.I("s_add_u32", s(sPF), s(sPF), hex(WS_CTRL + CT_F1))
        A.I("s_add_u32", s(sM), s(sM), s(sSTR))
        A.I("s_branch", LU)
        A.label(LE)
        A.reset_haz()
        A.I("s_waitcnt", "vmcnt(0)")
        A.I("s_barrier")
        if flags:
            self.pending_flag()
        if next_pass: next_pass(LP)
```

```python
import math
from asmgen import *
from layout import *
from common import *

S_WS = 8; S_W = 12
sHP, sWV, sSEG, sSTR = 20, 21, 22, 23
sT0, sT1, sT2 = 24, 25, 26
sW1K = 27
sC1 = 28
sMASK = 30
sQ, sK, sV, sKM, sVM, sPO = 46, 47, 48, 49, 50, 51
sOXW = 52
sNEG = 53
sK2, sV2 = 54, 55

vQ = 0; vK = 16; vKMf = 48; vV = 64; vKV = 172; vVMB = 104
KSCR = 0x22000
vS = 112
vP = 124
vLA = 132; vONE = 136
vO = 140
vOF = 0
vACC = 172
vL16, vL8, vPOo, vOXW, vOXR, vT, vT2, vT3 = 240, 241, 242, 243, 244, 246, 247, 248
vKSW, vKSR = 253, 254
MF = "v_mfma_f32_16x16x32_bf16"; MF16 = "v_mfma_f32_16x16x16_bf16"

class Phase2:
    def __init__(self, A, tag="p2", ldmod="", stmod="", progmask=0xff, sl=(8, 2)):
        self.sl = sl
        self.progmask = progmask
        self.A = A; self.tag = tag; self.ldmod = ldmod; self.stmod = stmod

    def setup(self):
        A = self.A
        L, G, C, T, U, R = 1, 2, 3, 4, 5, 6
        srd(A, S_W, 40, 4 << 20)
        A.I("v_lshrrev_b32", v(T), 6, v(0))
        A.I("v_readfirstlane_b32", s(sWV), v(T))
        A.I("v_and_b32", v(L), 63, v(0))
        A.I("v_lshrrev_b32", v(G), 4, v(L))
        A.I("v_and_b32", v(C), 15, v(L))
        A.I("v_lshrrev_b32", v(R), 2, v(C))
        A.I("v_lshlrev_b32", v(vL16), 4, v(L))
        A.I("v_lshlrev_b32", v(vL8), 3, v(L))
        A.I("s_lshl_b32", s(sW1K), s(sWV), 10)
        A.I("s_lshl_b32", s(sT0), s(sWV), 5)
        A.I("v_xor_b32", v(T), s(sT0), v(vL16))
        A.I("v_add_u32", v(8), s(sW1K), v(T))
        A.I("v_xor_b32", v(9), 128, v(8))
        A.I("v_lshl_add_u32", v(T), v(G), 2, v(R))
        A.I("v_and_b32", v(U), 7, v(T))
        A.I("v_lshlrev_b32", v(T), 10, v(T))
        A.I("v_lshl_add_u32", v(T), v(U), 5, v(T))
        A.I("v_and_b32", v(U), 3, v(C))
        A.I("v_lshl_add_u32", v(T), v(U), 3, v(T))
        A.I("s_lshl_b32", s(sT0), s(sWV), 8)
        A.I("v_add_u32", v(10), s(sT0), v(T))
        for hh in range(2):
            if hh: A.I("s_barrier")
            A.I("s_lshl_b32", s(sT1), s(sHP), 18)
            for ks in range(4):
                for i in range(8):
                    A.I("s_add_u32", s(sT0), s(sT1), hex(hh * 131072 + (32 * ks + 4 * i) * 1024))
                    A.I("s_add_u32", "m0", s(sW1K), hex(ks * 32768 + 4 * i * 1024))
                    A.I("buffer_load_dwordx4", v(9 if i & 1 else 8), s(S_W, 4), s(sT0), mods="offen lds")
            A.I("s_waitcnt", "vmcnt(0)")
            A.I("s_barrier")
            for half in range(2):
                for t in range(8):
                    A.I("v_xor_b32", v(11), hex((t << 5) | (half << 16)), v(10))
                    for k2 in range(2):
                        ks = 2 * half + k2
                        for q in range(2):
                            A.I("ds_read_b64_tr_b16", a(((hh * 4 + ks) * 8 + t) * 4 + 2 * q, 2), v(11), mods=off(k2 * 32768 + q * 16384))
                    if t & 1: A.I("s_waitcnt", "lgkmcnt(0)")
        A.I("s_barrier")
        A.I("s_and_b32", s(sT0), s(sWV), 1)
        A.I("s_lshl_b32", s(sT0), s(sT0), 4)
        A.I("v_add_u32", v(T), s(sT0), v(C))
        A.I("v_lshlrev_b32", v(U), 2, v(G))
        A.I("v_sub_u32", v(T), v(T), v(U))
        for tau in range(2):
            for r in range(4):
                A.I("v_cmp_le_i32", s(sMASK + 2 * (tau * 4 + r), 2), 16 * tau + r, v(T))
        c1 = f2h((DH ** -0.5) * math.log2(math.e))
        A.I("s_mov_b32", s(sC1), c1)
        A.I("s_mov_b32", s(sC1 + 1), c1)
        A.I("s_mov_b32", s(sNEG), "0xff000000")
        for i in range(4):
            A.I("v_mov_b32", v(vONE + i), "0x3f803f80")
        A.I("v_lshlrev_b32", v(T), 10, v(C))
        A.I("v_lshl_add_u32", v(T), v(G), 4, v(T))
        A.I("s_lshl_b32", s(sT0), s(sWV), 8)
        A.I("v_add_u32", v(vPOo), s(sT0), v(T))
        A.I("s_lshl_b32", s(sT0), s(sWV), 12)
        A.I("v_add_u32", v(vOXW), s(sT0), v(vL16))
        A.I("v_mov_b32", v(vOXR), v(vL16))
        A.I("s_add_u32", s(sT0), s(sT0), hex(KSCR))
        A.I("v_xor_b32", v(7), v(G), v(R))
        A.I("v_lshl_add_u32", v(T), v(G), 4, v(7))
        A.I("v_and_b32", v(U), 3, v(C))
        A.I("v_lshl_add_u32", v(T), v(T), 2, v(U))
        A.I("v_lshl_add_u32", v(vKSW), v(T), 2, s(sT0))
        A.I("v_lshl_add_u32", v(T), v(C), 2, v(7))
        A.I("v_lshl_add_u32", v(vKSR), v(T), 4, s(sT0))

    def seg_addrs(self):
        A = self.A
        A.I("s_lshl_b32", s(sT0), s(sSEG), 5)
        A.I("s_lshl_b32", s(sT1), s(sHP), 1)
        A.I("s_add_u32", s(sT0), s(sT0), s(sT1))
        A.I("s_lshr_b32", s(sT1), s(sWV), 1)
        A.I("s_add_u32", s(sT0), s(sT0), s(sT1))
        A.I("s_lshl_b32", s(sT1), s(sT0), 13)
        A.I("s_add_u32", s(sK), s(sT1), hex(WS_KX))
        A.I("s_add_u32", s(sK2), s(sK), 4096)
        A.I("s_add_u32", s(sV), s(sT1), hex(WS_VX))
        A.I("s_add_u32", s(sV2), s(sV), 4096)
        A.I("s_and_b32", s(sT2), s(sWV), 1)
        A.I("s_lshl_b32", s(sT2), s(sT2), 12)
        A.I("s_add_u32", s(sQ), s(sT1), s(sT2))
        A.I("s_add_u32", s(sQ), s(sQ), hex(WS_QX))
        A.I("s_lshl_b32", s(sT1), s(sT0), 12)
        A.I("s_add_u32", s(sKM), s(sT1), hex(WS_KM))
        A.I("s_lshl_b32", s(sT0), s(sSEG), 4)
        A.I("s_add_u32", s(sT0), s(sT0), s(sHP))
        A.I("s_lshl_b32", s(sT0), s(sT0), 15)
        A.I("s_add_u32", s(sPO), s(sT0), hex(WS_PO))

    def loads_x(self):
        A = self.A; m = self.ldmod
        for ks in range(4):
            A.I("buffer_load_dwordx4", v(vQ + 4 * ks, 4), v(vL16), s(S_WS, 4), s(sQ), mods=mods("offen", off(1024 * ks), m))
        for i in range(8):
            A.I("buffer_load_dwordx4", v(vK + 4 * i, 4), v(vL16), s(S_WS, 4), s(sK if i < 4 else sK2), mods=mods("offen", off(1024 * (i & 3)), m))
        for i in range(8):
            A.I("buffer_load_dwordx4", v(vV + 4 * i, 4), v(vL16), s(S_WS, 4), s(sV if i < 4 else sV2), mods=mods("offen", off(1024 * (i & 3)), m))

    def loads_m(self):
        A = self.A; m = self.ldmod
        for w in range(4):
            A.I("buffer_load_dwordx4", v(vKV + 4 * w, 4), v(vL16), s(S_WS, 4), s(sKM), mods=mods("offen", off(1024 * w), m))

    def segment(self, mid=None):
        A = self.A
        DM_, D0, D1 = vS, vS + 4, vS + 8
        PX, PM = vP, vP + 4
        tm, tt, mc, ri = vT, vT2, vT3, 250
        A.I("s_waitcnt", "vmcnt(8)" if mid else "vmcnt(12)")
        for tau, D in ((0, D0), (1, D1)):
            for ks in range(4):
                A.I(MF, v(D, 4), v(vK + 16 * tau + 4 * ks, 4), v(vQ + 4 * ks, 4), 0 if ks == 0 else v(D, 4))
        A.I("v_mov_b32", v(tt), s(sNEG))
        for tau, D in ((0, D0), (1, D1)):
            for r in range(4):
                A.I("v_cndmask_b32", v(D + r), v(tt), v(D + r), s(sMASK + 2 * (tau * 4 + r), 2))
        A.I("v_max3_f32", v(251), v(D0), v(D0 + 1), v(D0 + 2))
        A.I("v_max3_f32", v(251), v(251), v(D0 + 3), v(D1))
        A.I("v_max3_f32", v(251), v(251), v(D1 + 1), v(D1 + 2))
        if mid: mid()
        A.I("s_waitcnt", "vmcnt(0)")
        for w in range(4):
            for b in range(2):
                A.I("ds_write_b32", v(vKSW), v(vKV + 4 * w + 1 + 2 * b), mods=off(1024 * w + 64 * b))
        for ks in range(4):
            A.I("ds_read_b128", v(vKMf + 4 * ks, 4), v(vKSR), mods=off(1024 * ks))
        A.I("s_waitcnt", "lgkmcnt(0)")
        for ks in range(4):
            A.I(MF, v(DM_, 4), v(vKMf + 4 * ks, 4), v(vQ + 4 * ks, 4), 0 if ks == 0 else v(DM_, 4))
        A.I("v_mov_b32", v(tm), v(251))
        A.I("v_max3_f32", v(tm), v(tm), v(D1 + 3), v(DM_))
        A.I("v_max_f32", v(tm), v(tm), v(DM_ + 1))
        xor_reduce(A, "v_max_f32", tm, tt)
        A.I("v_mul_f32", v(mc), s(sC1), v(tm))
        prs = [D0, D0 + 2, D1, D1 + 2, DM_]
        for r in prs:
            A.I("v_pk_fma_f32", v(r, 2), v(r, 2), s(sC1, 2), v(mc, 2), mods="op_sel_hi:[1,1,0] neg_lo:[0,0,1] neg_hi:[0,0,1]")
        for r in prs:
            A.I("v_exp_f32", v(r), v(r))
            A.I("v_exp_f32", v(r + 1), v(r + 1))
        for i, r in enumerate(prs):
            A.I("v_cvt_pk_bf16_f32", v(PX + i), v(r), v(r + 1))
        A.I("v_mov_b32", v(PM + 1), 0)
        A.I(MF, v(vLA, 4), v(vONE, 4), v(PX, 4), 0)
        for phi in range(8):
            A.I(MF, v(vO + 4 * phi, 4), v(vV + 4 * phi, 4), v(PX, 4), 0)
        A.I(MF16, v(vLA, 4), v(vONE, 2), v(PM, 2), v(vLA, 4))
        for phi in range(8):
            src = vKV + 2 * phi
            A.I(MF16, v(vO + 4 * phi, 4), v(src, 2), v(PM, 2), v(vO + 4 * phi, 4))
        A.I("v_rcp_f32", v(ri), v(vLA))
        for i in range(16):
            A.I("v_pk_mul_f32", v(vO + 2 * i, 2), v(vO + 2 * i, 2), v(ri, 2), mods="op_sel_hi:[1,0]")
        for i in range(16):
            A.I("v_cvt_pk_bf16_f32", v(vO + i), v(vO + 2 * i), v(vO + 2 * i + 1))
        for ks in range(4):
            A.I("ds_write_b128", v(vOXW), v(vO + 4 * ks, 4), mods=off(1024 * ks))
        A.I("s_waitcnt", "lgkmcnt(0)")
        A.I("s_barrier")
        for f in range(16):
            A.I("ds_read_b128", v(vOF + 4 * f, 4), v(vOXR), mods=off(1024 * f))
            if f == 7: A.I("s_waitcnt", "lgkmcnt(4)")
        A.I("v_xor_b32", v(vOXW), hex(0x4000), v(vOXW))
        A.I("v_xor_b32", v(vOXR), hex(0x4000), v(vOXR))
        A.I("s_waitcnt", "lgkmcnt(0)")
        for qt in range(2):
            for hh in range(2):
                for ks in range(4):
                    for t in range(8):
                        acc = v(vACC + (qt * 8 + t) * 4, 4)
                        A.I(MF, acc, a(((hh * 4 + ks) * 8 + t) * 4, 4), v(vOF + ((hh * 2 + qt) * 4 + ks) * 4, 4),
                            0 if (hh == 0 and ks == 0) else acc)
                    if qt == 1 and hh == 0: self.store_u(0, ks)

    def store_u(self, qt, u):
        A = self.A
        g = vO + 4 * u
        t0 = vACC + (qt * 8 + 2 * u) * 4
        for i in range(4):
            A.I("v_cvt_pk_bf16_f32", v(g + i), v(t0 + 2 * i), v(t0 + 2 * i + 1))
        if u == 0: A.I("s_add_u32", s(sT0), s(sPO), qt * 16384)
        A.I("buffer_store_dwordx4", v(g, 4), v(vPOo), s(S_WS, 4), s(sT0), mods=mods("offen", off(64 * u), self.stmod))

    def store_po(self):
        for u in range(4): self.store_u(1, u)

    def body(self):
        A = self.A
        self.setup()
        LP = f"L_{self.tag}_seg"; LE = f"L_{self.tag}_end"
        A.barrier_haz()
        A.label(LP)
        A.reset_haz()
        A.I("s_cmp_ge_u32", s(sSEG), NSEG)
        A.I("s_cbranch_scc1", LE)
        self.seg_addrs()
        self.loads_x()
        self.loads_m()
        self.segment()
        self.store_po()
        A.I("s_add_u32", s(sSEG), s(sSEG), s(sSTR))
        A.I("s_branch", LP)
        A.label(LE)
        A.reset_haz()

    def mega(self, fin, after_setup=None):
        A = self.A
        self.setup()
        fin.setup()
        if after_setup: after_setup()
        ts(A, 3)
        A.I("v_lshrrev_b32", v(vT), 2, v(vL16))
        for mat in range(3):
            A.I("s_lshl_b32", s(sT0), s(sHP), 7)
            A.I("s_add_u32", s(sT0), s(sT0), hex(WS_CTRL + CT_F1 + mat * 32 * 64))
            wait_words(A, S_WS, vT, s(sT0), 32, 1, vT2, sleep=32)
        ts(A, 4)
        A.I("s_mov_b32", s(80), 0)
        LP = f"L_{self.tag}_seg"; LE = f"L_{self.tag}_end"
        A.barrier_haz()
        A.label(LP)
        A.reset_haz()
        A.I("s_cmp_ge_u32", s(sSEG), NSEG)
        A.I("s_cbranch_scc1", LE)
        self.seg_addrs()
        self.loads_x()
        def mid():
            A.I("v_lshrrev_b32", v(vT), 2, v(vL16))
            A.I("s_lshl_b32", s(sT0), s(sHP), 7)
            A.I("s_add_u32", s(sT0), s(sT0), hex(WS_CTRL + CT_PROG))
            A.I("s_add_u32", s(sT1), s(sSEG), 1)
            A.barrier_haz()
            wait_words(A, S_WS, vT, s(sT0), 8, s(sT1), vT2, sleep=self.sl[0], paced=True, mask=self.progmask)
            ts(A, 16, dyn=80)
            self.loads_m()
        self.segment(mid)
        self.store_po()
        A.I("s_waitcnt", "vmcnt(0)")
        A.I("s_barrier")
        ts(A, 17, dyn=80)
        A.I("s_lshl_b32", s(sT1), s(sSEG), 6)
        A.I("s_add_u32", s(sT1), s(sT1), hex(WS_CTRL + CT_F2))
        A.I("s_lshl_b32", s(sT0), s(sHP), 2)
        A.I("s_add_u32", s(sT0), s(sT0), s(sT1))
        set_flag(A, S_WS, s(sT0), vT)
        A.I("v_lshrrev_b32", v(vT), 2, v(vL16))
        wait_words(A, S_WS, vT, s(sT1), 16, 1, vT2, sleep=self.sl[1])
        ts(A, 18, dyn=80)
        lsk = A.newlabel("nofin")
        A.I("s_cmp_ge_u32", s(sGW), 2)
        A.I("s_cbranch_scc1", lsk)
        A.I("s_lshl_b32", s(fin.sROW), s(sSEG), 5)
        A.I("s_lshl_b32", s(sT0), s(sHP), 1)
        A.I("s_add_u32", s(fin.sROW), s(fin.sROW), s(sT0))
        A.I("s_add_u32", s(fin.sROW), s(fin.sROW), s(sGW))
        fin.row()
        A.barrier_haz()
        A.label(lsk)
        A.reset_haz()
        ts(A, 19, dyn=80)
        A.I("s_add_u32", s(80), s(80), 4)
        A.I("s_add_u32", s(sSEG), s(sSEG), s(sSTR))
        A.I("s_branch", LP)
        A.label(LE)
        A.reset_haz()
```

```python
import math
from asmgen import *
from layout import *
from common import *

MF = "v_mfma_f32_16x16x32_bf16"
LOG2E = math.log2(math.e)

def full_reduce(A, op, x, t):
    row_reduce16(A, op, x)
    xor_reduce(A, op, x, t)

class Finisher:
    S_WS = 8; S_X = 12; S_OUT = 16; S_WR = 56
    sROW, sWV, sT0, sT1, sT2, sLO, sHI = 60, 61, 62, 63, 64, 65, 66
    def __init__(self, A, ldmod="", stmod="", base=0, home=(96, 97, 104, 88)):
        self.A = A; self.ldmod = ldmod; self.stmod = stmod; self.b = base; self.home = home

    def setup(self):
        A = self.A; b = self.b
        srd(A, self.S_X, 0, 2 << 20)
        srd(A, self.S_OUT, 96, 2 << 20)
        srd(A, self.S_WR, 64, 1024)
        L, T, U = b + 100, b + 101, b + 102
        self.vL16, self.vCOL, self.vWRP, self.vWR = self.home
        A.I("v_and_b32", v(L), 63, v(0))
        A.I("v_lshlrev_b32", v(self.vL16), 4, v(L))
        A.I("v_lshrrev_b32", v(T), 2, v(L))
        A.I("v_lshlrev_b32", v(T), 6, v(T))
        A.I("v_and_b32", v(U), 3, v(L))
        A.I("v_lshl_add_u32", v(self.vCOL), v(U), 3, v(T))
        A.I("buffer_load_dwordx2", v(self.vWRP, 2), v(self.vCOL), s(self.S_WR, 4), 0, mods="offen")
        A.I("buffer_load_dwordx2", v(self.vWRP + 2, 2), v(self.vCOL), s(self.S_WR, 4), 0, mods="offen offset:32")
        A.I("s_mov_b32", s(self.sLO), "0x3f80")
        A.I("s_mov_b32", s(self.sHI), "0x3f800000")
        A.I("s_waitcnt", "vmcnt(0)")

    def row(self):
        A = self.A; b = self.b
        sROW, sT0, sT1, sT2 = self.sROW, self.sT0, self.sT1, self.sT2
        P = b; X = b + 64; Hh = b + 68; D = b + 76; S_, T, MB, DMn, Q = b + 84, b + 85, b + 86, b + 87, b + 100
        A.I("s_lshr_b32", s(sT0), s(sROW), 5)
        A.I("s_lshl_b32", s(sT0), s(sT0), 19)
        A.I("s_and_b32", s(sT1), s(sROW), 31)
        A.I("s_lshl_b32", s(sT1), s(sT1), 10)
        A.I("s_add_u32", s(sT0), s(sT0), s(sT1))
        A.I("s_add_u32", s(sT0), s(sT0), hex(WS_PO))
        A.I("s_lshl_b32", s(sT2), s(sROW), 10)
        A.I("buffer_load_dwordx2", v(X, 2), v(self.vCOL), s(self.S_X, 4), s(sT2), mods="offen")
        A.I("buffer_load_dwordx2", v(X + 2, 2), v(self.vCOL), s(self.S_X, 4), s(sT2), mods="offen offset:32")
        for hp in range(16):
            A.I("buffer_load_dwordx4", v(P + 4 * hp, 4), v(self.vL16), s(self.S_WS, 4), s(sT0), mods=mods("offen", self.ldmod))
            if hp < 15: A.I("s_add_u32", s(sT0), s(sT0), 32768)
        for i in range(8):
            A.I("v_mov_b32", v(Hh + i), 0)
        for hp in range(16):
            A.I("s_waitcnt", f"vmcnt({15 - hp})")
            for i in range(4):
                A.I("v_dot2_f32_bf16", v(Hh + 2 * i), v(P + 4 * hp + i), s(self.sLO), v(Hh + 2 * i))
                A.I("v_dot2_f32_bf16", v(Hh + 2 * i + 1), v(P + 4 * hp + i), s(self.sHI), v(Hh + 2 * i + 1))
        for i in range(4):
            A.I("v_cvt_pk_bf16_f32", v(P + i), v(Hh + 2 * i), v(Hh + 2 * i + 1))
        for i in range(4):
            A.I("v_lshlrev_b32", v(Hh + 2 * i), 16, v(P + i))
            A.I("v_and_b32", v(Hh + 2 * i + 1), "0xffff0000", v(P + i))
            A.I("v_lshlrev_b32", v(D + 2 * i), 16, v(X + i))
            A.I("v_and_b32", v(D + 2 * i + 1), "0xffff0000", v(X + i))
        for i in range(4):
            A.I("v_pk_add_f32", v(Hh + 2 * i, 2), v(Hh + 2 * i, 2), v(D + 2 * i, 2))
        HP_ = P + 4
        for i in range(4):
            A.I("v_cvt_pk_bf16_f32", v(HP_ + i), v(Hh + 2 * i), v(Hh + 2 * i + 1))
        for i in range(4):
            A.I("v_lshlrev_b32", v(Hh + 2 * i), 16, v(HP_ + i))
            A.I("v_and_b32", v(Hh + 2 * i + 1), "0xffff0000", v(HP_ + i))
        A.I("s_add_u32", s(sT0), s(sT2), hex(WS_H))
        A.I("buffer_store_dwordx2", v(HP_, 2), v(self.vCOL), s(self.S_WS, 4), s(sT0), mods=mods("offen", self.stmod))
        A.I("buffer_store_dwordx2", v(HP_ + 2, 2), v(self.vCOL), s(self.S_WS, 4), s(sT0), mods=mods("offen offset:32", self.stmod))
        A.I("v_add_f32", v(S_), v(Hh), v(Hh + 1))
        for i in range(2, 8):
            A.I("v_add_f32", v(S_), v(S_), v(Hh + i))
        full_reduce(A, "v_add_f32", S_, T)
        ln_mean(A, S_, MB, DMn)
        for i in range(8):
            A.I("v_sub_f32", v(D + i), v(Hh + i), v(MB))
        A.I("v_mul_f32", v(Q), v(D), v(D))
        for i in range(1, 8):
            A.I("v_fmac_f32", v(Q), v(D + i), v(D + i))
        full_reduce(A, "v_add_f32", Q, T)
        ln_rinv(A, Q, DMn, T)
        NP = P + 8
        for i in range(4):
            A.I("v_cvt_pk_bf16_f32", v(NP + i), v(D + 2 * i), v(D + 2 * i + 1))
        for i in range(4):
            A.I("v_lshlrev_b32", v(D + 2 * i), 16, v(NP + i))
            A.I("v_and_b32", v(D + 2 * i + 1), "0xffff0000", v(NP + i))
        for i in range(8):
            A.I("v_mul_f32", v(D + i), v(Q), v(D + i))
        for i in range(4):
            A.I("v_cvt_pk_bf16_f32", v(NP + i), v(D + 2 * i), v(D + 2 * i + 1))
        for i in range(4):
            A.I("v_lshlrev_b32", v(D + 2 * i), 16, v(NP + i))
            A.I("v_and_b32", v(D + 2 * i + 1), "0xffff0000", v(NP + i))
        A.I("s_add_u32", s(sT0), s(sT2), hex(WS_HN))
        A.I("buffer_store_dwordx2", v(NP, 2), v(self.vCOL), s(self.S_WS, 4), s(sT0), mods=mods("offen", self.stmod))
        A.I("buffer_store_dwordx2", v(NP + 2, 2), v(self.vCOL), s(self.S_WS, 4), s(sT0), mods=mods("offen offset:32", self.stmod))
        OP = P + 12
        for i in range(4):
            A.I("v_pk_add_f32", v(Hh + 2 * i, 2), v(Hh + 2 * i, 2), v(D + 2 * i, 2))
        for i in range(4):
            A.I("v_cvt_pk_bf16_f32", v(OP + i), v(Hh + 2 * i), v(Hh + 2 * i + 1))
        A.I("buffer_store_dwordx2", v(OP, 2), v(self.vCOL), s(self.S_OUT, 4), s(sT2), mods=mods("offen", self.stmod))
        A.I("buffer_store_dwordx2", v(OP + 2, 2), v(self.vCOL), s(self.S_OUT, 4), s(sT2), mods=mods("offen offset:32", self.stmod))
        for i in range(4):
            A.I("v_lshlrev_b32", v(self.vWR + 2 * i), 16, v(self.vWRP + i))
            A.I("v_and_b32", v(self.vWR + 2 * i + 1), "0xffff0000", v(self.vWRP + i))
        A.I("v_mul_f32", v(S_), v(D), v(self.vWR))
        for i in range(1, 8):
            A.I("v_fmac_f32", v(S_), v(D + i), v(self.vWR + i))
        full_reduce(A, "v_add_f32", S_, T)
        bf16r(A, S_, S_)
        A.I("v_ashrrev_i32", v(T), 31, v(S_))
        A.I("v_or_b32", v(T), "0x80000000", v(T))
        A.I("v_xor_b32", v(S_), v(S_), v(T))
        A.I("v_and_b32", v(S_), "0xffff0000", v(S_))
        A.I("s_sub_u32", s(sT0), hex(0x8000 + 2047), s(sROW))
        A.I("v_or_b32", v(S_), s(sT0), v(S_))
        A.I("s_waitcnt", "vmcnt(0)")
        A.I("s_lshl_b32", s(sT0), s(sROW), 2)
        A.I("s_add_u32", s(sT0), s(sT0), hex(WS_KEY))
        A.I("s_mov_b64", "exec", 1)
        A.I("buffer_store_dword", v(S_), "off", s(self.S_WS, 4), s(sT0), mods=self.stmod)
        A.I("s_mov_b64", "exec", -1)


def top2(A, S_WS, sK1, sK2, ldmod, lds_off, tb=0, poll=False, srnd=None):
    K, T, U, AD = tb + 4, tb + 12, tb + 13, tb + 14
    A.I("v_lshlrev_b32", v(AD), 5, v(0))
    A.I("s_mov_b32", s(sK1), hex(WS_KEY))
    if srnd is not None:
        A.I("v_cmp_le_u32", "vcc", 240, v(0))
        A.I("v_mov_b32", v(U), s(srnd))
        A.I("v_add_u32", v(U), -1, v(U))
        A.I("v_cndmask_b32", v(tb + 3), 0, v(U), "vcc")
    if poll:
        lp = A.newlabel("kpoll"); ld = A.newlabel("kpolld")
        A.I("s_mov_b32", s(sK2), 0)
        A.label(lp)
        ldmod = "sc1"
    A.I("buffer_load_dwordx4", v(K, 4), v(AD), s(S_WS, 4), s(sK1), mods=mods("offen", ldmod))
    A.I("buffer_load_dwordx4", v(K + 4, 4), v(AD), s(S_WS, 4), s(sK1), mods=mods("offen offset:16", ldmod))
    if poll:
        A.I("s_waitcnt", "vmcnt(0)")
        A.I("v_min3_u32", v(T), v(K), v(K + 1), v(K + 2))
        A.I("v_min3_u32", v(T), v(T), v(K + 3), v(K + 4))
        A.I("v_min3_u32", v(T), v(T), v(K + 5), v(K + 6))
        A.I("v_min_u32", v(T), v(T), v(K + 7))
        if srnd is not None:
            A.I("v_or_b32", v(T), v(T), v(tb + 3))
        A.I("v_cmp_eq_u32", "vcc", 0, v(T))
        A.I("s_cbranch_vccz", ld)
        A.I("s_sleep", 6)
        A.I("s_add_u32", s(sK2), s(sK2), 1)
        A.I("s_cmp_lt_u32", s(sK2), hex(POLL_MAX))
        A.I("s_cbranch_scc1", lp)
        A.label(ld)
        if srnd is not None:
            for i in range(8):
                A.I("v_bfi_b32", v(K + i), v(tb + 3), 0, v(K + i))
    A.I("v_lshrrev_b32", v(AD), 6, v(0))
    A.I("v_lshlrev_b32", v(AD), 2, v(AD))
    A.I("v_add_u32", v(AD), hex(lds_off), v(AD))
    A.I("v_mov_b32", v(tb + 15), hex(lds_off))
    A.I("s_waitcnt", "vmcnt(0)")
    for rnd, sK in ((0, sK1), (1, sK2)):
        if rnd:
            for i in range(8):
                A.I("v_cmp_ne_u32", "vcc", s(sK1), v(K + i))
                A.I("v_cndmask_b32", v(K + i), 0, v(K + i), "vcc")
        A.I("v_max3_u32", v(T), v(K), v(K + 1), v(K + 2))
        A.I("v_max3_u32", v(T), v(T), v(K + 3), v(K + 4))
        A.I("v_max3_u32", v(T), v(T), v(K + 5), v(K + 6))
        A.I("v_max_u32", v(T), v(T), v(K + 7))
        full_reduce(A, "v_max_u32", T, U)
        A.I("ds_write_b32", v(AD), v(T), mods=off(16 * rnd))
        A.I("s_waitcnt", "lgkmcnt(0)")
        A.I("s_barrier")
        A.I("ds_read_b128", v(tb, 4), v(tb + 15), mods=off(16 * rnd))
        A.I("s_waitcnt", "lgkmcnt(0)")
        A.I("v_max3_u32", v(T), v(tb), v(tb + 1), v(tb + 2))
        A.I("v_max_u32", v(T), v(T), v(tb + 3))
        A.I("v_readfirstlane_b32", s(sK), v(T))

def sigmoid(A, d, x, t):
    A.I("v_mul_f32", v(t), f2h(-LOG2E), v(x))
    A.I("v_exp_f32", v(t), v(t))
    A.I("v_add_f32", v(t), 1.0, v(t))
    A.I("v_rcp_f32", v(d), v(t))

class FFN:
    S_WS = 8; S_W = 76
    sJ, sWV, sK1, sK2, sT0, sT1, sW1K = 67, 68, 69, 70, 71, 72, 73
    LG, LU, LD, LX = 32768, 65536, 98304, 131072
    def __init__(self, A, ldmod="", stmod="", poll=False):
        self.A = A; self.ldmod = ldmod; self.stmod = stmod; self.poll = poll

    def stage(self):
        A = self.A
        L, T, U = 1, 2, 3
        A.I("v_lshrrev_b32", v(T), 6, v(0))
        A.I("v_readfirstlane_b32", s(self.sWV), v(T))
        A.I("v_and_b32", v(L), 63, v(0))
        A.I("s_lshl_b32", s(self.sW1K), s(self.sWV), 10)
        A.I("v_lshrrev_b32", v(T), 2, v(L))
        A.I("s_lshl_b32", s(self.sT0), s(self.sWV), 4)
        A.I("v_add_u32", v(T), s(self.sT0), v(T))
        A.I("s_movk_i32", s(self.sT0), 3584)
        A.I("v_mul_lo_u32", v(T), v(T), s(self.sT0))
        A.I("v_and_b32", v(U), 3, v(L))
        A.I("v_lshl_add_u32", v(4), v(U), 4, v(T))
        for karg, lds in ((72, self.LG), (80, self.LU)):
            srd(A, self.S_W, karg, 512 * 3584)
            for i in range(8):
                A.I("s_lshl_b32", s(self.sT0), s(self.sJ), 6)
                A.I("s_add_u32", s(self.sT0), s(self.sT0), hex(64 * i * 3584))
                A.I("s_add_u32", "m0", s(self.sW1K), hex(lds + 4096 * i))
                A.I("buffer_load_dwordx4", v(4), s(self.S_W, 4), s(self.sT0), mods="offen lds")
        srd(A, self.S_W, 88, 1792 * 1024)
        A.I("v_lshlrev_b32", v(5), 4, v(L))
        A.I("v_add_u32", v(5), s(self.sW1K), v(5))
        for i in range(8):
            A.I("s_lshl_b32", s(self.sT0), s(self.sJ), 15)
            A.I("s_add_u32", s(self.sT0), s(self.sT0), 4096 * i)
            A.I("s_add_u32", "m0", s(self.sW1K), hex(self.LD + 4096 * i))
            A.I("buffer_load_dwordx4", v(5), s(self.S_W, 4), s(self.sT0), mods="offen lds")

    def select(self, srnd=None):
        top2(self.A, self.S_WS, self.sK1, self.sK2, self.ldmod, self.LX + 1024, tb=16, poll=self.poll, srnd=srnd)
        self.A.I("s_barrier")

    def reselect(self):
        A = self.A
        sK1, sK2, sT0, sT1 = self.sK1, self.sK2, self.sT0, self.sT1
        K, T, U, AD = 20, 22, 23, 24
        lp = A.newlabel("rsel"); ld = A.newlabel("rseld"); le = A.newlabel("rsele")
        A.I("v_and_b32", v(AD), 63, v(0))
        A.I("v_lshlrev_b32", v(AD), 3, v(AD))
        A.I("s_mov_b32", s(sT0), hex(WS_KEY + 1920 * 4))
        A.I("s_mov_b32", s(sT1), 0)
        A.label(lp)
        A.I("buffer_load_dwordx2", v(K, 2), v(AD), s(self.S_WS, 4), s(sT0), mods="offen sc1")
        A.I("s_waitcnt", "vmcnt(0)")
        A.I("v_min_u32", v(T), v(K), v(K + 1))
        A.I("v_cmp_eq_u32", "vcc", 0, v(T))
        A.I("s_cbranch_vccz", ld)
        A.I("s_sleep", 3)
        A.I("s_add_u32", s(sT1), s(sT1), 1)
        A.I("s_cmp_lt_u32", s(sT1), hex(POLL_MAX))
        A.I("s_cbranch_scc1", lp)
        A.label(ld)
        A.reset_haz()
        A.I("v_max_u32", v(T), v(K), v(K + 1))
        A.I("v_cmp_lt_u32", "vcc", s(sK2), v(T))
        A.I("s_cbranch_vccz", le)
        full_reduce(A, "v_max_u32", T, U)
        A.I("v_readfirstlane_b32", s(sT0), v(T))
        for i in range(2):
            A.I("v_cmp_ne_u32", "vcc", s(sT0), v(K + i))
            A.I("v_cndmask_b32", v(K + i), 0, v(K + i), "vcc")
        A.I("v_max_u32", v(T), v(K), v(K + 1))
        full_reduce(A, "v_max_u32", T, U)
        A.I("v_readfirstlane_b32", s(sT1), v(T))
        A.I("s_max_u32", s(sK2), s(sK2), s(sT1))
        A.I("s_min_u32", s(sT1), s(sT0), s(sK1))
        A.I("s_max_u32", s(sK2), s(sK2), s(sT1))
        A.I("s_max_u32", s(sK1), s(sK1), s(sT0))
        A.label(le)
        A.reset_haz()

    def compute(self):
        A = self.A
        sK1, sK2, sT0, sT1 = self.sK1, self.sK2, self.sT0, self.sT1
        L, G, C, T, U, R = 1, 2, 3, 4, 5, 6
        A.I("v_and_b32", v(L), 63, v(0))
        A.I("v_lshrrev_b32", v(G), 4, v(L))
        A.I("v_and_b32", v(C), 15, v(L))
        A.I("v_lshrrev_b32", v(R), 2, v(C))
        A.I("s_and_b32", s(sT0), s(sK1), 2047)
        A.I("s_sub_u32", s(sT0), 2047, s(sT0))
        A.I("s_and_b32", s(sT1), s(sK2), 2047)
        A.I("s_sub_u32", s(sT1), 2047, s(sT1))
        A.I("v_and_b32", v(T), 1, v(C))
        A.I("v_cmp_eq_u32", "vcc", 0, v(T))
        A.I("v_mov_b32", v(T), s(sT0))
        A.I("v_mov_b32", v(U), s(sT1))
        A.I("v_cndmask_b32", v(T), v(U), v(T), "vcc")
        A.I("v_lshlrev_b32", v(T), 10, v(T))
        A.I("v_lshl_add_u32", v(T), v(G), 4, v(T))
        XA = 32
        A.I("s_mov_b32", s(sT0), hex(WS_HN))
        for ks in range(16):
            A.I("buffer_load_dwordx4", v(XA + 4 * ks, 4), v(T), s(self.S_WS, 4), s(sT0), mods=mods("offen", off(64 * ks), self.ldmod))
        A.I("v_lshl_add_u32", v(T), v(G), 3, v(R))
        A.I("v_lshlrev_b32", v(T), 6, v(T))
        A.I("v_and_b32", v(U), 3, v(C))
        A.I("v_lshl_add_u32", v(T), v(U), 3, v(T))
        A.I("s_lshr_b32", s(sT0), s(self.sWV), 1)
        A.I("s_lshl_b32", s(sT0), s(sT0), 15)
        A.I("s_and_b32", s(sT1), s(self.sWV), 1)
        A.I("s_lshl_b32", s(sT1), s(sT1), 5)
        A.I("s_add_u32", s(sT0), s(sT0), s(sT1))
        A.I("s_add_u32", s(sT0), s(sT0), hex(self.LG))
        A.I("v_add_u32", v(7), s(sT0), v(T))
        WB = 96
        for ks in range(16):
            for q in range(2):
                A.I("ds_read_b64_tr_b16", v(WB + 4 * ks + 2 * q, 2), v(7), mods=off(ks * 2048 + q * 256))
            if ks % 4 == 3: A.I("s_waitcnt", "lgkmcnt(0)")
        A.I("s_waitcnt", "vmcnt(0)")
        D = 8
        for ks in range(16):
            A.I(MF, v(D, 4), v(XA + 4 * ks, 4), v(WB + 4 * ks, 4), 0 if ks == 0 else v(D, 4))
        for r in range(2):
            bf16r(A, D + r, D + r)
        lu = A.newlabel("ffn_up")
        A.I("s_cmp_ge_u32", s(self.sWV), 2)
        A.I("s_cbranch_scc1", lu)
        for r in range(2):
            sigmoid(A, 12, D + r, 13)
            A.I("v_mul_f32", v(D + r), v(12), v(D + r))
            bf16r(A, D + r, D + r)
        A.barrier_haz()
        A.label(lu)
        A.I("s_lshr_b32", s(sT0), s(self.sWV), 1)
        A.I("s_lshl_b32", s(sT0), s(sT0), 8)
        A.I("s_and_b32", s(sT1), s(self.sWV), 1)
        A.I("s_lshl_b32", s(sT1), s(sT1), 6)
        A.I("s_add_u32", s(sT0), s(sT0), s(sT1))
        A.I("s_add_u32", s(sT0), s(sT0), hex(self.LX))
        A.I("v_lshlrev_b32", v(T), 2, v(C))
        A.I("v_add_u32", v(T), s(sT0), v(T))
        A.I("ds_write_b32", v(T), v(D))
        A.I("ds_write_b32", v(T), v(D + 1), mods="offset:128")
        A.I("s_waitcnt", "lgkmcnt(0)")
        A.I("s_barrier")
        A.I("v_and_b32", v(T), 1, v(C))
        A.I("v_lshlrev_b32", v(T), 7, v(T))
        A.I("v_lshl_add_u32", v(T), v(G), 5, v(T))
        A.I("v_add_u32", v(T), hex(self.LX), v(T))
        GG, UU = 32, 40
        A.I("ds_read_b128", v(GG, 4), v(T))
        A.I("ds_read_b128", v(GG + 4, 4), v(T), mods="offset:16")
        A.I("ds_read_b128", v(UU, 4), v(T), mods="offset:256")
        A.I("ds_read_b128", v(UU + 4, 4), v(T), mods="offset:272")
        A.I("v_lshl_add_u32", v(U), v(G), 3, v(R))
        A.I("v_lshlrev_b32", v(U), 10, v(U))
        A.I("v_and_b32", v(7), 3, v(C))
        A.I("v_lshl_add_u32", v(U), v(7), 3, v(U))
        A.I("s_lshl_b32", s(sT0), s(self.sWV), 8)
        A.I("s_add_u32", s(sT0), s(sT0), hex(self.LD))
        A.I("v_add_u32", v(7), s(sT0), v(U))
        A.I("s_waitcnt", "lgkmcnt(0)")
        for t in range(8):
            for q in range(2):
                A.I("ds_read_b64_tr_b16", v(WB + 4 * t + 2 * q, 2), v(7), mods=off(t * 32 + q * 4096))
            if t == 3: A.I("s_waitcnt", "lgkmcnt(0)")
        for i in range(8):
            A.I("v_mul_f32", v(GG + i), v(GG + i), v(UU + i))
        HA = 48
        for i in range(4):
            A.I("v_cvt_pk_bf16_f32", v(HA + i), v(GG + 2 * i), v(GG + 2 * i + 1))
        A.I("s_waitcnt", "lgkmcnt(0)")
        Y = 56
        for t in range(8):
            A.I(MF, v(Y + 4 * t, 4), v(HA, 4), v(WB + 4 * t, 4), 0)
        A.I("v_cmp_eq_u32", "vcc", 0, v(G))
        A.I("v_lshlrev_b32", v(T), 11, v(G))
        A.I("v_lshl_add_u32", v(T), v(C), 2, v(T))
        A.I("s_lshl_b32", s(sT0), s(self.sJ), 12)
        A.I("s_lshl_b32", s(sT1), s(self.sWV), 9)
        A.I("s_add_u32", s(sT0), s(sT0), s(sT1))
        A.I("s_add_u32", s(sT0), s(sT0), hex(WS_FY))
        for t in range(8):
            A.I("v_cndmask_b32", v(Y + 4 * t), v(Y + 4 * t + 1), v(Y + 4 * t), "vcc")
        A.I("s_mov_b32", "exec_hi", 0)
        for t in range(8):
            A.I("buffer_store_dword", v(Y + 4 * t), v(T), s(self.S_WS, 4), s(sT0), mods=mods("offen", off(64 * t), self.stmod))
        A.I("s_mov_b64", "exec", -1)

class Final:
    S_WS = 8; S_OUT = 16
    NWG = 8
    sK1, sK2, sT0, sT1 = 69, 70, 71, 72
    def __init__(self, A, ldmod="sc1"):
        self.A = A; self.ldmod = ldmod

    def pre(self, sI):
        A = self.A
        sK1, sK2, sT0, sT1 = self.sK1, self.sK2, self.sT0, self.sT1
        srd(A, self.S_OUT, 96, 2 << 20)
        L, U, KEY, RO, FO = 3, 4, 5, 6, 7
        A.I("v_and_b32", v(L), 63, v(0))
        A.I("s_cmp_lt_u32", s(sGW), 2)
        A.I("s_cselect_b32", s(sT0), s(sK1), s(sK2))
        A.I("v_mov_b32", v(KEY), s(sT0))
        A.I("s_and_b32", s(sT0), s(sT0), 2047)
        A.I("s_sub_u32", s(sT0), 2047, s(sT0))
        A.I("s_lshl_b32", s(sT0), s(sT0), 10)
        A.I("s_lshl_b32", s(sT1), s(sI), 1)
        A.I("s_and_b32", s(sPT0), s(sGW), 1)
        A.I("s_add_u32", s(sT1), s(sT1), s(sPT0))
        A.I("s_lshl_b32", s(sPT0), s(sT1), 6)
        A.I("s_add_u32", s(sT0), s(sT0), s(sPT0))
        A.I("v_and_b32", v(U), 7, v(L))
        A.I("v_lshlrev_b32", v(RO), 3, v(U))
        A.I("v_add_u32", v(RO), s(sT0), v(RO))
        A.I("v_lshrrev_b32", v(FO), 3, v(L))
        A.I("v_lshlrev_b32", v(FO), 12, v(FO))
        A.I("v_lshl_add_u32", v(FO), v(U), 4, v(FO))
        A.I("s_lshl_b32", s(sT1), s(sT1), 7)
        A.I("s_lshr_b32", s(sPT0), s(sGW), 1)
        A.I("s_lshl_b32", s(sPT0), s(sPT0), 11)
        A.I("s_add_u32", s(sT1), s(sT1), s(sPT0))
        A.I("v_add_u32", v(FO), s(sT1), v(FO))
        A.I("s_mov_b32", s(sT0), hex(WS_H))
        A.I("s_mov_b32", s(sT1), hex(WS_HN))
        A.I("buffer_load_dwordx2", v(8, 2), v(RO), s(self.S_WS, 4), s(sT0), mods=mods("offen", self.ldmod))
        A.I("buffer_load_dwordx2", v(10, 2), v(RO), s(self.S_WS, 4), s(sT1), mods=mods("offen", self.ldmod))
        A.I("v_and_b32", v(KEY), "0xffff0000", v(KEY))
        A.I("v_ashrrev_i32", v(U), 31, v(KEY))
        A.I("v_not_b32", v(U), v(U))
        A.I("v_or_b32", v(U), "0x80000000", v(U))
        A.I("v_xor_b32", v(KEY), v(KEY), v(U))
        A.I("v_and_b32", v(KEY), "0xffff0000", v(KEY))
        sigmoid(A, 22, KEY, 23)
        bf16r(A, 22, 22)

    def post(self):
        A = self.A
        sT0 = self.sT0
        RO, FO, P = 6, 7, 32
        A.I("s_mov_b32", s(sT0), hex(WS_FY))
        for j in range(NFW // 8):
            A.I("buffer_load_dwordx4", v(P + 4 * j, 4), v(FO), s(self.S_WS, 4), s(sT0), mods=mods("offen", self.ldmod))
            A.I("s_add_u32", s(sT0), s(sT0), 32768)
        Hh, N = 12, 16
        A.I("s_waitcnt", f"vmcnt({NFW // 8})")
        for i in range(2):
            A.I("v_lshlrev_b32", v(Hh + 2 * i), 16, v(8 + i))
            A.I("v_and_b32", v(Hh + 2 * i + 1), "0xffff0000", v(8 + i))
            A.I("v_lshlrev_b32", v(N + 2 * i), 16, v(10 + i))
            A.I("v_and_b32", v(N + 2 * i + 1), "0xffff0000", v(10 + i))
        A.I("s_waitcnt", "vmcnt(0)")
        for j in range(1, NFW // 8):
            A.I("v_pk_add_f32", v(P, 2), v(P, 2), v(P + 4 * j, 2))
            A.I("v_pk_add_f32", v(P + 2, 2), v(P + 2, 2), v(P + 4 * j + 2, 2))
        for i in range(4):
            A.I("v_add_f32_dpp", v(P + i), v(P + i), v(P + i), mods="row_ror:8 row_mask:0xf bank_mask:0xf")
        for i in range(4):
            xor_reduce(A, "v_add_f32", P + i, 24)
        for i in range(4):
            bf16r(A, P + i, P + i)
            A.I("v_mul_f32", v(P + i), v(22), v(P + i))
            bf16r(A, P + i, P + i)
            A.I("v_add_f32", v(P + i), v(N + i), v(P + i))
            bf16r(A, P + i, P + i)
            A.I("v_add_f32", v(P + i), v(Hh + i), v(P + i))
        A.I("v_cvt_pk_bf16_f32", v(200), v(P), v(P + 1))
        A.I("v_cvt_pk_bf16_f32", v(201), v(P + 2), v(P + 3))
        A.I("v_mov_b32", v(202), v(RO))

    def store(self):
        A = self.A
        A.I("s_mov_b32", "exec_lo", "0xff")
        A.I("s_mov_b32", "exec_hi", 0)
        A.I("buffer_store_dwordx2", v(200, 2), v(202), s(self.S_OUT, 4), 0, mods="offen")
        A.I("s_mov_b64", "exec", -1)
```

```python
import sys
from asmgen import *
from layout import *
from common import *
import chain6 as C
import phase1 as P1
import phase2 as P2
import tail as TL

HEAD = open("sequential_preLN__memory_aug_recurrent_mem_tr__moe_arch_mod__prompt.s.ref").read().split("; Override launch")[0]

KNAME = "sequential_preLN__memory_aug_recurrent_mem_tr__moe_arch_mod__prompt_kernel"
DB_GARR, DB_MODE, DB_CTRL, DB_TICK, DB_XCD = 32, 36, 40, 44, 64
FB_OFF = 0x7000000

def entry_warm(A):
    A.I("s_load_dwordx4", s(20, 4), s(0, 2), 16)
    A.I("s_load_dwordx4", s(24, 4), s(0, 2), 32)
    A.I("v_lshlrev_b32", v(3), 6, v(0))
    A.I("s_lshl_b32", s(28), s(2), 14)
    A.I("s_cmp_eq_u32", s(84), 0)
    A.I("s_cselect_b32", s(14), 0, hex(4 << 20))
    A.I("s_mov_b32", s(15), "0x20000")
    A.I("s_waitcnt", "lgkmcnt(0)")
    for i in range(4):
        A.I("s_mov_b32", s(12), s(20 + 2 * i))
        A.I("s_and_b32", s(13), s(21 + 2 * i), "0xffff")
        A.I("buffer_load_dword", v(255), v(3), s(12, 4), s(28), mods="offen")

def bcast_atomic(A, off_s_or_imm, sdst, lds_slot, mid=None):
    l = A.newlabel("at")
    A.I("s_cmp_lg_u32", s(sGW), 0)
    A.I("s_cbranch_scc1", l)
    A.I("s_mov_b64", "exec", 1)
    A.I("v_mov_b32", v(2), 1)
    A.I("buffer_atomic_add", v(2), "off", s(S_DBGG, 4), off_s_or_imm, mods="sc0")
    A.I("s_mov_b64", "exec", -1)
    A.label(l)
    l = A.newlabel("at2")
    if mid: mid(A)
    A.I("s_cmp_lg_u32", s(sGW), 0)
    A.I("s_cbranch_scc1", l)
    A.I("s_mov_b64", "exec", 1)
    A.I("v_mov_b32", v(1), lds_slot)
    A.I("s_waitcnt", "vmcnt(4)" if mid else "vmcnt(0)")
    A.I("ds_write_b32", v(1), v(2))
    A.I("s_waitcnt", "lgkmcnt(0)")
    A.I("s_mov_b64", "exec", -1)
    A.label(l)
    A.I("s_barrier")
    A.I("v_mov_b32", v(1), lds_slot)
    A.I("ds_read_b32", v(2), v(1))
    A.I("s_waitcnt", "lgkmcnt(0)")
    A.I("v_readfirstlane_b32", s(sdst), v(2))

def wait_mode(A, sdst, vt):
    lp = A.newlabel("mode"); ld = A.newlabel("moded"); lf = A.newlabel("modef")
    A.I("s_mov_b32", s(sPT0), 0)
    A.label(lp)
    A.I("buffer_load_dwordx2", v(vt, 2), "off", s(S_DBGG, 4), 0, mods=f"offset:{DB_MODE} sc1")
    A.I("s_waitcnt", "vmcnt(0)")
    A.I("v_readfirstlane_b32", s(sdst), v(vt))
    A.I("v_readfirstlane_b32", s(sPT1), v(vt + 1))
    A.I("s_min_u32", s(sPT1), s(sPT1), s(sdst))
    A.I("s_cmp_lg_u32", s(sPT1), 0)
    A.I("s_cbranch_scc1", ld)
    A.I("s_sleep", 4)
    A.I("s_add_u32", s(sPT0), s(sPT0), 1)
    A.I("s_cmp_lg_u32", s(sPT0), hex(1 << 8))
    A.I("s_cbranch_scc1", lf)
    A.I("v_mov_b32", v(vt), 2)
    A.I("v_mov_b32", v(vt + 1), 0)
    A.I("s_mov_b64", "exec", 1)
    A.I("buffer_atomic_cmpswap", v(vt, 2), "off", s(S_DBGG, 4), 0, mods=f"offset:{DB_MODE}")
    A.I("s_mov_b64", "exec", -1)
    A.label(lf)
    A.I("s_cmp_lt_u32", s(sPT0), hex(POLL_MAX))
    A.I("s_cbranch_scc1", lp)
    A.label(ld)
    A.reset_haz()

def k_mega(A, force_fb=False, **kw):
    name = KNAME
    kernel_header(A, name)
    sX, sR, sG, sMODE = 84, 85, 86, 87
    A.I("s_cmp_ge_u32", s(2), 256)
    A.I("s_cbranch_scc1", "L_exit")
    srd(A, 8, 112, 0x10000000)
    srd(A, S_DBGG, 104, 256)
    A.I("v_lshrrev_b32", v(1), 6, v(0))
    A.I("v_readfirstlane_b32", s(sGW), v(1))
    A.I("s_getreg_b32", s(sX), "hwreg(HW_REG_XCC_ID)")
    A.I("s_and_b32", s(sX), s(sX), 7)
    A.I("s_lshl_b32", s(sPT1), s(sX), 4)
    A.I("s_add_u32", s(sPT1), s(sPT1), DB_XCD)
    bcast_atomic(A, s(sPT1), sR, 0, mid=entry_warm if kw.get('ewarm') else None)
    A.I("s_mov_b32", s(sMODE), 0)
    A.I("s_cmp_lg_u32", s(2), 0)
    A.I("s_cbranch_scc1", "L_noz")
    for i in range(4):
        A.I("v_mov_b32", v(4 + i), 0)
    A.I("v_lshlrev_b32", v(1), 4, v(0))
    for i in range(CT_SIZE // 4096):
        A.I("s_mov_b32", s(sPT1), hex(WS_CTRL + i * 4096))
        A.I("buffer_store_dwordx4", v(4, 4), v(1), s(8, 4), s(sPT1), mods="offen sc1")
    A.I("s_waitcnt", "vmcnt(0)")
    A.I("s_barrier")
    set_flag(A, S_DBGG, DB_CTRL, 2)
    A.label("L_noz")
    A.I("s_cmp_lg_u32", s(sR), 32 if force_fb else 31)
    A.I("s_cbranch_scc1", "L_nod")
    A.I("s_cmp_lg_u32", s(sGW), 0)
    A.I("s_cbranch_scc1", "L_nod")
    A.I("s_mov_b64", "exec", 1)
    A.I("v_mov_b32", v(2), 1)
    A.I("buffer_atomic_add", v(2), "off", s(S_DBGG, 4), 0, mods=f"offset:{DB_GARR} sc0")
    A.I("s_waitcnt", "vmcnt(0)")
    A.I("v_readfirstlane_b32", s(sG), v(2))
    A.I("s_cmp_lg_u32", s(sG), 7)
    A.I("s_cbranch_scc1", "L_nod2")
    A.I("v_mov_b32", v(2), 1)
    A.I("v_mov_b32", v(3), 0)
    A.I("buffer_atomic_cmpswap", v(2, 2), "off", s(S_DBGG, 4), 0, mods=f"offset:{DB_MODE}")
    A.label("L_nod2")
    A.I("s_mov_b64", "exec", -1)
    A.label("L_nod")
    A.reset_haz()
    A.I("s_cmp_ge_u32", s(sR), 32)
    A.I("s_cbranch_scc1", "L_odd")
    A.I("s_cmp_lg_u32", s(sX), 0)
    A.I("s_cbranch_scc1", "L_other")

    def kv_wait(ch, first=True, mask=0x00010001):
        t0, t1 = (1, 2) if first else (8, 9)
        A.I("v_lshrrev_b32", v(t0), 4, v(C.vL16))
        A.I("v_and_b32", v(t1), 15, v(t0))
        A.I("v_lshrrev_b32", v(t0), 4, v(t0))
        A.I("v_lshlrev_b32", v(t0), 11, v(t0))
        A.I("v_lshl_add_u32", v(t0), v(t1), 2, v(t0))
        A.I("s_lshl_b32", s(C.sT0), s(C.sH), 6)
        A.I("s_add_u32", s(C.sT0), s(C.sT0), hex(WS_CTRL + CT_F1))
        wait_words(A, C.S_WS, t0, s(C.sT0), 32, 1, t1, sleep=4, barrier=first, mask=mask)

    def chain_role(fast):
        for i in range(4):
            A.I("s_mov_b32", s(C.S_DBG + i), s(S_DBGG + i))
        A.I("s_mov_b32", s(sPID), s(C.sH))
        ts(A, 0, 3)
        def pre(ch):
            ts(A, 1, 3)
            if fast:
                wait_mode(A, sMODE, 2)
                A.I("s_cmp_lg_u32", s(sMODE), 1)
                A.I("s_cbranch_scc1", "L_fallback")
            kv_wait(ch)
            ts(A, 2, 3)
        ch = C.Chain(A, sc="" if fast else "sc1", tag="f" if fast else "s", wsoff=0 if fast else FB_OFF, cbar=4 if fast else 8, pre_start=pre, kvcheck=True, **kw)
        ch.lane_consts()
        ch.load_weights()
        ch.prologue()
        ts(A, 3, 3)
        ch.step_loop()
        ts(A, 4, 3)
        if kw.get("wb"):
            l = A.newlabel("nowb")
            A.I("s_add_u32", s(C.sT0), s(C.sH), s(C.sWV))
            A.I("s_cmp_lg_u32", s(C.sT0), 0)
            A.I("s_cbranch_scc1", l)
            A.I("buffer_wbl2", mods="sc1")
            A.I("s_waitcnt", "vmcnt(0)")
            A.label(l)
        A.I("s_endpgm")
        return ch

    A.I("s_mov_b32", s(C.sH), s(sR))
    chf = chain_role(True)
    chf.emit_ool()
    A.label("L_other")
    A.reset_haz()
    A.I("s_sub_u32", s(sGB), s(sX), 1)
    A.I("s_lshl_b32", s(sGB), s(sGB), 5)
    A.I("s_add_u32", s(sGB), s(sGB), s(sR))
    A.I("s_branch", "L_bulk")
    A.label("L_odd")
    A.reset_haz()
    wait_mode(A, sMODE, 2)
    A.I("s_cmp_eq_u32", s(sMODE), 1)
    A.I("s_cbranch_scc1", "L_exit")
    A.label("L_fallback")
    A.reset_haz()
    A.I("s_waitcnt", "vmcnt(0) lgkmcnt(0)")
    A.I("s_barrier")
    restore_tid(A)
    A.I("s_mov_b32", s(sPT1), DB_TICK)
    bcast_atomic(A, s(sPT1), sR, 8)
    A.I("s_barrier")
    A.I("s_sub_u32", s(sGB), s(sR), 32)
    A.I("s_cmp_ge_u32", s(sR), 32)
    A.I("s_cbranch_scc1", "L_bulk")
    A.I("s_mov_b32", s(C.sH), s(sR))
    chs = chain_role(False)
    chs.emit_ool()
    A.label("L_bulk")
    A.reset_haz()
    A.I("s_add_u32", s(sPID), s(sGB), 32)
    ts(A, 0)
    NURG = 3
    def pass_b():
        A.I("s_mov_b32", s(P1.sPASS), 1)
        A.I("s_and_b32", s(P1.sRB), s(sGB), 15)
        A.I("s_lshr_b32", s(P1.sCG), s(sGB), 4)
        A.I("s_mov_b32", s(P1.sSTR), 14)
        A.I("s_add_u32", s(P1.sT0), s(P1.sCG), 70)
        A.I("s_add_u32", s(P1.sT1), s(P1.sCG), 56)
        A.I("s_cmp_ge_u32", s(P1.sT1), 64)
        A.I("s_cselect_b32", s(P1.sT0), s(P1.sT1), s(P1.sT0))
        A.I("s_add_u32", s(P1.sT1), s(P1.sCG), 42)
        A.I("s_add_u32", s(P1.sT2), s(P1.sCG), 28)
        A.I("s_cmp_ge_u32", s(P1.sT2), 32)
        A.I("s_cselect_b32", s(P1.sT1), s(P1.sT2), s(P1.sT1))
        A.I("s_cmp_eq_u32", s(P1.sRB), NURG)
        A.I("s_cselect_b32", s(P1.sCG), s(P1.sT1), s(P1.sCG))
        A.I("s_cmp_lt_u32", s(P1.sRB), NURG)
        A.I("s_cselect_b32", s(P1.sCG), s(P1.sT0), s(P1.sCG))
    A.I("s_mov_b32", s(P1.sPASS), 0)
    A.I("s_lshr_b32", s(P1.sRB), s(sGB), 6)
    A.I("s_and_b32", s(P1.sCG), s(sGB), 63)
    A.I("s_movk_i32", s(P1.sSTR), 1000)
    A.label("L_p1go")
    def next_pass(LP):
        A.I("s_cmp_lg_u32", s(P1.sPASS), 0)
        A.I("s_cbranch_scc1", "L_p1done")
        pass_b()
        A.I("s_branch", LP)
        A.label("L_p1done")
        A.reset_haz()
    def pre_flag():
        l = A.newlabel("modeok")
        A.I("s_cmp_lg_u32", s(sMODE), 0)
        A.I("s_cbranch_scc1", l)
        wait_mode(A, sMODE, 140)
        A.I("s_cmp_lg_u32", s(sMODE), 1)
        A.I("s_cbranch_scc1", "L_fallback")
        A.label(l)
    P1.Phase1(A).body(stmod="sc1", flags=True, pre_flag=pre_flag, warm_id=None if (kw.get('nowarm') or kw.get('ewarm')) else sGB, next_pass=next_pass, warm_first=kw.get('warmfirst', False))
    ts(A, 2)
    restore_tid(A)
    A.I("s_and_b32", s(P2.sHP), s(sGB), 15)
    A.I("s_lshr_b32", s(P2.sSEG), s(sGB), 4)
    A.I("s_mov_b32", s(P2.sSTR), 14)
    fin = TL.Finisher(A, stmod="sc1", home=(P2.vL16, 252, 236, 88))
    ffn = TL.FFN(A, stmod="sc1", poll=True)
    def stage():
        l = A.newlabel("nostage")
        A.I("s_sub_u32", s(ffn.sJ), s(sGB), 128)
        A.I("s_cmp_ge_u32", s(ffn.sJ), NFW)
        A.I("s_cbranch_scc1", l)
        ffn.stage()
        A.label(l)
        A.reset_haz()
    P2.Phase2(A, stmod="sc1", progmask=0x11 if kw.get("flag0") else 0xff, sl=kw.get("sl", (8, 2))).mega(fin, after_setup=stage)
    A.I("s_cmp_ge_u32", s(ffn.sJ), NFW)
    A.I("s_cbranch_scc1", "L_exit")
    ts(A, 5)
    sID, sRND = 74, 75
    A.I("s_mov_b32", s(sID), 0)
    A.I("s_mov_b32", s(sRND), 0)
    A.I("v_mov_b32", v(202), "0x7ffffff0")
    A.I("v_mov_b32", v(1), 0)
    A.I("s_and_b32", s(ffn.sT0), s(sGB), 15)
    A.I("s_lshl_b32", s(ffn.sT0), s(ffn.sT0), 7)
    A.I("s_add_u32", s(ffn.sT0), s(ffn.sT0), hex(WS_CTRL + CT_PROG))
    A.I("s_mov_b32", s(ffn.sT1), 61)
    wait_words(A, 8, 1, s(ffn.sT0), 1, s(ffn.sT1), 2, sleep=16, paced=True)
    A.label("L_ffn_round")
    A.reset_haz()
    restore_tid(A)
    A.I("s_cmp_lg_u32", s(sRND), 0)
    A.I("s_cbranch_scc1", "L_ffn_re")
    ffn.select(sRND)
    A.I("s_branch", "L_ffn_sel")
    A.label("L_ffn_re")
    A.reset_haz()
    ffn.reselect()
    A.label("L_ffn_sel")
    A.reset_haz()
    A.I("s_and_b32", s(ffn.sT0), s(ffn.sK1), 2047)
    A.I("s_lshl_b32", s(ffn.sT0), s(ffn.sT0), 11)
    A.I("s_and_b32", s(ffn.sT1), s(ffn.sK2), 2047)
    A.I("s_or_b32", s(ffn.sT0), s(ffn.sT0), s(ffn.sT1))
    A.I("s_add_u32", s(ffn.sT0), s(ffn.sT0), 1)
    A.I("s_cmp_eq_u32", s(ffn.sT0), s(sID))
    A.I("s_cbranch_scc1", "L_ffn_same")
    A.I("s_mov_b32", s(sID), s(ffn.sT0))
    ffn.compute()
    A.I("s_waitcnt", "vmcnt(0)")
    A.I("s_barrier")
    A.I("s_lshl_b32", s(ffn.sT0), s(ffn.sJ), 2)
    A.I("s_lshl_b32", s(ffn.sT1), s(sRND), 8)
    A.I("s_add_u32", s(ffn.sT0), s(ffn.sT0), s(ffn.sT1))
    A.I("s_add_u32", s(ffn.sT0), s(ffn.sT0), hex(WS_CTRL + CT_F4))
    set_flag(A, 8, s(ffn.sT0), 2, val=s(sID))
    A.I("s_cmp_ge_u32", s(ffn.sJ), TL.Final.NWG)
    A.I("s_cbranch_scc1", "L_ffn_same")
    fnl = TL.Final(A)
    fnl.pre(ffn.sJ)
    A.I("v_lshlrev_b32", v(1), 2, v(0))
    A.I("s_lshl_b32", s(ffn.sT0), s(sRND), 8)
    A.I("s_add_u32", s(ffn.sT0), s(ffn.sT0), hex(WS_CTRL + CT_F4))
    wait_words(A, 8, 1, s(ffn.sT0), NFW, s(sID), 2, sleep=2, equal=True)
    fnl.post()
    A.label("L_ffn_same")
    A.reset_haz()
    ts(A, 6, dyn=sRND)
    A.I("s_add_u32", s(sRND), s(sRND), 1)
    A.I("s_cmp_lt_u32", s(sRND), 2)
    A.I("s_cbranch_scc1", "L_ffn_round")
    A.I("s_cmp_ge_u32", s(ffn.sJ), TL.Final.NWG)
    A.I("s_cbranch_scc1", "L_exit")
    fnl.store()
    A.I("s_waitcnt", "vmcnt(0)")
    ts(A, 8)
    A.label("L_exit")
    A.I("s_endpgm")
    return name, 256, 163840

def build_single(k):
    A = Asm()
    name, grid, lds = k(A)[:3]
    out = HEAD + f"; @launch grid=({grid},1,1) block=(256,1,1) lds={lds}\n"
    out += '.amdgcn_target "amdgcn-amd-amdhsa--gfx950"\n.text\n' + A.text()
    out += '.section .rodata,"a"\n' + kernel_desc(name)
    return out

def build(kernels):
    A = Asm()
    infos = []
    for k in kernels:
        infos.append(k(A))
    body = A.text()
    out = HEAD
    for info in infos:
        name, grid, lds = info[:3]
        out += f"; @launch kernel={name} grid=({grid},1,1) block=(256,1,1) lds={lds}\n"
    out += '.amdgcn_target "amdgcn-amd-amdhsa--gfx950"\n.text\n' + body
    out += '.section .rodata,"a"\n'
    for info in infos:
        out += kernel_desc(info[0], *info[3:])
    return out

if __name__ == "__main__":
    which = sys.argv[1] if len(sys.argv) > 1 else "mega"
    CH = dict(ewarm=True, flag0=True, rp=(60, 90), wpad=31)
    if len(sys.argv) > 2: CH.update(eval(sys.argv[2]))
    OUT = sys.argv[3] if len(sys.argv) > 3 else None
    if which == "mega":
        txt = build_single(lambda A: k_mega(A, **CH))
        open("sequential_preLN__memory_aug_recurrent_mem_tr__moe_arch_mod__prompt.s", "w").write(txt)
        open("mega.s", "w").write(build([lambda A: k_mega(A, **CH)]))
        open("megafb.s", "w").write(build([lambda A: k_mega(A, force_fb=True, **CH)]))
    if which == "prof":
        PROF[0] = True
        open(OUT or "prof.s", "w").write(build([lambda A: k_mega(A, **CH)]))
    if which == "dbgts":
        DBGTS[0] = {0: (0, 12), 3: (0, 13), 4: (0, 14), 8: (160, 15)}
        open("dbgts.s", "w").write(build_single(lambda A: k_mega(A, **CH)))
```

```python
import math, struct
from asmgen import *
from layout import *
from common import ts, f2h

MBUF, KXB, VXB, WV = 0x0, 0x2000, 0x6000, 0x8000
XI, OI, FLG, ZRO = 0x4000, 0x5000, 0x5800, 0x5c00
PBPAR = 0x40000

S_WS = 8; S_W = 12; S_DBG = 16
sH, sWV, sSTEP = 20, 21, 22
sMBLD, sMBST = 23, 24
sPBST = 25
sTHR = 27
sKVF = 28
sPBLD = 29
sKXN, sVXN, sKM, sTAG = 30, 31, 32, 33
sC1, sBIG = 34, 35
sOMASK = 36
sRMASK = 38
sT1, sT2, sT3, sT0 = 40, 41, 42, 43
sFLAGOFF = 44
sNRM, sNRR = 45, 46
sNRF = 47
sNRX = 76
sMBLD2 = 48
sRETRY = 49
sONES = 50
sW1K, sW2K = 51, 52
sPBLD2 = 53
sLOGO = 54
sRST = 55
sSENT = 56
sFLAGV = 57
sNEED = 58
sSEL = 92
sACC = 60

vM = 0; vQK = 32; vVA = 48; vWB = 56; vWA = 96; vPUB = 112
vIDX, vL16, vPBST, vMST, vXW, vXR, vOW, vWL, vWL2, vDUM, vFLG, vOR = range(116, 128)
vL4 = vMST; vSEL = vDUM
vWVR = 128; vWOR = 192
RETRY_MAX = 1 << 16
WE, WL_ = 2, 3

SMF = "v_smfmac_f32_16x16x64_bf16"; MF = "v_mfma_f32_16x16x32_bf16"; MF16 = "v_mfma_f32_16x16x16_bf16"

def home(mat, phi, slot):
    a_, fi = slot & 3, (slot >> 2) * 2 + phi
    if mat < 2:
        if a_ == 0: return ("lds", mat * 32768 + fi * 2048)
        return ("a", ((mat * 3 + a_ - 1) * 4 + fi) * 8)
    if a_ < 2: return ("a", 192 + (a_ * 4 + fi) * 8)
    return ("v", vWVR + ((a_ - 2) * 4 + fi) * 8)
def wo_home(T, j):
    if T < 2: return ("v", vWOR + (T * 4 + j) * 8)
    return ("lds", T * 32768 + j * 2048)
def reg8(h):
    return a(h[1], 8) if h[0] == "a" else v(h[1], 8)

class Chain:
    def __init__(self, A, sc, tag="f", **kw):
        self.A = A; self.sc = sc; self.tag = tag
        self.ool = []
        self.kw = kw
        self.x = kw.get('x', '')
        self.la = 4
        self.pollmod = kw.get('pollmod', 'nt') if not sc else 'sc1'
        self.align = kw.get('align', 0)
        self.cbar = kw.get('cbar', 4)
        self.flog = kw.get('flog', False)
        self.pubmod = 'sc1'
        self.wo = kw.get('wsoff', 0)
        self.pre_start = kw.get('pre_start')
        self.kvcheck = kw.get('kvcheck', False)
        self.skew = kw.get('skew', True)
        self.ring = kw.get('ring', True)
        self.merge = kw.get('merge', False)
        self.z = kw.get('z', (8, 24, 4, 24, 0))
        self.rp = kw.get('rp', (40, 65))
        self.lq = []; self.vq = []
        self.nfl = 0
        self.sSEL = sSEL if self.flog else 68
        self.sNRX = sNRF if self.flog else sNRX
        self.kreg = kw.get('kreg', True)
        if self.kreg:
            self.STG = {(0, 0, 0): 24, (0, 1, 0): 88, (1, 0, 0): 96, (1, 1, 0): 104, (1, 1, 4): 24, (0, 0, 4): 88, (0, 1, 4): 96, (1, 0, 4): 104}

    def mods(self, *m): return " ".join(x for x in m if x)
    def off(self, o): return f"offset:{o}" if o else ""

    def fl(self, i):
        if not isinstance(i, str): self.A.comment(f"@{i}")
        if self.flog == 2:
            if i == self.kw.get('probe2', 'h5'): i = 5
            elif i == 'h5': return
            elif isinstance(i, str): i = int(i[1:])
            elif i == self.kw.get('probe', 3): i = 3
            elif i not in (0, 1, 14, 15): return
        elif self.flog == 3:
            if i == 1:
                cnt = [0]
                def hook():
                    k = cnt[0]; cnt[0] += 1
                    if k == self.kw['poff']: self.A.raw(f"    s_memtime {s(sACC + 4, 2)}")
                self.A.mfhook = hook
            elif i == 14: self.A.mfhook = None
            elif i != 0: return
        elif isinstance(i, str): return
        if self.flog:
            self.A.I("s_memtime", s(sACC + 2 * i, 2)); self.nfl = max(self.nfl, i + 1)

    def fl_collect(self, vt):
        if not self.flog: return
        A = self.A
        A.I("s_waitcnt", "lgkmcnt(0)")
        for i in range(16):
            if self.flog == 2 and i in (9, 10, 11): A.I("v_writelane_b32", v(vt), s((sNRM, sNRR, sNRF)[i - 9]), i)
            elif self.flog != 2 or i in (0, 1, 3, 5, 6, 7, 8, 14, 15): A.I("v_writelane_b32", v(vt), s(sACC + 2 * i), i)
        A.I("v_lshrrev_b32", v(vt + 1), 2, v(vL16))
        A.I("s_mov_b64", "exec", "0xffff")
        A.I("buffer_store_dword", v(vt), v(vt + 1), s(S_WS, 4), s(sLOGO), mods="offen")
        A.I("s_mov_b64", "exec", -1)
        A.I("s_add_u32", s(sLOGO), s(sLOGO), 64)

    def ds(self, tag, op, *ops, mods=""):
        self.A.I(op, *ops, mods=mods)
        if tag is None: return
        self.lq.append(tag)
    def vm(self, tag, op, *ops, mods=""):
        self.A.I(op, *ops, mods=mods); self.vq.append(tag)
    def needl(self, tag):
        if tag not in self.lq: return
        i = len(self.lq) - 1 - self.lq[::-1].index(tag)
        self.lq = self.lq[i + 1:]
        assert len(self.lq) <= 15, self.lq
        self.A.I("s_waitcnt", f"lgkmcnt({len(self.lq)})")
    def needv(self, tag):
        if tag not in self.vq: return
        i = len(self.vq) - 1 - self.vq[::-1].index(tag)
        self.vq = self.vq[i + 1:]
        if "n" in self.x and tag in ("f0", "f1", "fd", "r0", "r1", "r2", "r3"): return
        self.A.I("s_waitcnt", f"vmcnt({len(self.vq)})")

    def needvl(self, vt, lt):
        n = len(self.A.out); t = self.A.t
        self.needv(vt); self.needl(lt)
        if len(self.A.out) == n + 2:
            b = self.A.out.pop(); self.A.out[-1] += " " + b.split()[-1]; self.A.t = t + 1

    def wread(self, tag, dst, ldsoff):
        base, o = (vWL, ldsoff) if ldsoff < 65536 else (vWL2, ldsoff - 65536)
        self.ds(tag, "ds_read_b128", v(dst, 4), v(base), mods=self.off(o))

    def lane_consts(self):
        A = self.A
        L, G, C, T, U, R = 1, 2, 3, 4, 5, 6
        A.I("v_lshrrev_b32", v(T), 6, v(0))
        A.I("v_readfirstlane_b32", s(sWV), v(T))
        A.I("v_and_b32", v(L), 63, v(0))
        A.I("v_lshrrev_b32", v(G), 4, v(L))
        A.I("v_and_b32", v(C), 15, v(L))
        A.I("v_lshrrev_b32", v(R), 2, v(C))
        A.I("v_lshlrev_b32", v(vL16), 4, v(L))
        A.I("s_lshl_b32", s(sW1K), s(sWV), 10)
        A.I("s_lshl_b32", s(sW2K), s(sWV), 11)

    def lane_consts2(self):
        A = self.A
        L, G, C, T, U, R = 1, 2, 3, 4, 5, 6
        A.I("v_and_b32", v(T), 2, v(C))
        A.I("v_cmp_ne_u32", "vcc", 0, v(T))
        A.I("v_mov_b32", v(T), "0x4444")
        A.I("v_mov_b32", v(U), "0xeeee")
        A.I("v_cndmask_b32", v(vIDX), v(T), v(U), "vcc")
        A.I("v_lshrrev_b32", v(U), 1, v(G))
        A.I("v_lshl_add_u32", v(T), v(R), 3, v(U))
        A.I("s_lshl_b32", s(sT0), s(sWV), 1)
        A.I("v_add_u32", v(T), s(sT0), v(T))
        if self.skew:
            A.I("v_add_u32", v(U), s(sH), v(T))
            A.I("v_and_b32", v(U), 31, v(U))
        else:
            A.I("v_mov_b32", v(U), s(sH))
        A.I("v_lshl_add_u32", v(T), v(T), 6, v(U))
        A.I("v_and_b32", v(U), 1, v(G))
        A.I("v_lshl_add_u32", v(T), v(T), 1, v(U))
        A.I("v_and_b32", v(U), 3, v(C))
        A.I("v_lshl_add_u32", v(T), v(T), 2, v(U))
        A.I("v_lshlrev_b32", v(vPBST), 4, v(T))
        A.I("v_and_b32", v(T), 1, v(G))
        A.I("v_lshlrev_b32", v(T), 2, v(T))
        A.I("v_and_b32", v(7), 2, v(G))
        A.I("v_add_u32", v(T), v(T), v(7))
        A.I("v_and_b32", v(7), 1, v(R))
        A.I("v_add_u32", v(T), v(T), v(7))
        A.I("v_lshl_add_u32", v(T), v(T), 2, v(U))
        A.I("v_lshlrev_b32", v(T), 2, v(T))
        A.I("s_and_b32", s(sT0), s(sWV), 1)
        A.I("s_lshl_b32", s(sT0), s(sT0), 12)
        A.I("s_lshl_b32", s(sT1), s(sH), 7)
        A.I("s_add_u32", s(sT0), s(sT0), s(sT1))
        A.I("v_add_u32", v(vMST), s(sT0), v(T))
        A.I("v_sub_u32", v(7), 0, v(G))
        A.I("v_and_b32", v(7), 3, v(7))
        A.I("v_xor_b32", v(7), v(7), v(R))
        A.I("v_lshl_add_u32", v(T), v(G), 4, v(7))
        A.I("v_and_b32", v(U), 3, v(C))
        A.I("v_lshl_add_u32", v(T), v(T), 2, v(U))
        A.I("s_add_u32", s(sT0), s(sW1K), XI)
        A.I("v_lshl_add_u32", v(vXW), v(T), 2, s(sT0))
        A.I("v_sub_u32", v(7), 0, v(R))
        A.I("v_and_b32", v(7), 3, v(7))
        A.I("v_xor_b32", v(7), v(7), v(G))
        A.I("v_lshl_add_u32", v(T), v(C), 2, v(7))
        A.I("v_lshlrev_b32", v(vXR), 4, v(T))
        A.I("v_and_b32", v(U), 1, v(C))
        A.I("v_lshl_add_u32", v(T), v(R), 1, v(U))
        A.I("v_lshl_add_u32", v(T), v(G), 3, v(T))
        A.I("v_lshlrev_b32", v(vOR), 4, v(T))
        A.I("v_and_or_b32", v(vOW), v(vIDX), 8, v(vOR))
        A.I("s_lshl_b32", s(sT0), s(sWV), 13)
        A.I("s_add_u32", s(sT0), s(sT0), WV)
        A.I("v_add_u32", v(vWL), s(sT0), v(vL16))
        A.I("v_add_u32", v(vWL2), hex(0x10000), v(vWL))
        A.I("s_mov_b32", s(sOMASK), "0xcccccccc")
        A.I("s_mov_b32", s(sOMASK + 1), "0xcccccccc")
        A.I("s_mov_b32", s(sRMASK), "0x00ff00ff")
        A.I("s_mov_b32", s(sRMASK + 1), "0x00ff00ff")
        A.I("s_mov_b32", s(sC1), f2h((DH ** -0.5) * math.log2(math.e)))
        A.I("s_mov_b32", s(sBIG), f2h(2.0 ** self.kw.get('bigexp', 20)))
        A.I("s_mov_b32", s(sONES), "0x3f803f80")

    def set_wsrd(self, mat):
        A = self.A
        A.I("s_mov_b32", s(S_W), s(60 + 2 * mat))
        A.I("s_and_b32", s(S_W + 1), s(61 + 2 * mat), "0xffff")

    ORDER = [(0, 1), (0, 2), (0, 3), (1, 1), (1, 2), (1, 3), (2, 0), (2, 1), (2, 2), (2, 3), (3, 0), (3, 1),
             (0, 0), (1, 0), (3, 2), (3, 3)]

    def dma_chunk(self, idx):
        A = self.A
        mat, a_ = self.ORDER[idx]
        slot = idx & 3
        if idx == 0 or self.ORDER[idx - 1][0] != mat:
            self.set_wsrd(mat)
        if mat < 3:
            A.I("v_xor_b32", v(15), a_, v(14))
            A.I("v_lshl_add_u32", v(15), v(15), 15, v(8))
        for i in range(8):
            if mat < 3:
                vo = 15
                A.I("s_add_u32", s(sT0), s(sT2), hex((i << 6) * 8192))
            else:
                vo = 9 if i & 1 else 10
                A.I("s_add_u32", s(sT0), s(sT3), hex(16 * i * 1024 + a_ * 64))
            A.I("s_add_u32", "m0", s(sW1K), hex(WV + slot * 32768 + 4 * i * 1024))
            A.I("buffer_load_dwordx4", v(vo), s(S_W, 4), s(sT0), mods=self.mods("offen", self.kw.get('wmod', ''), "lds"))

    def read_chunk(self, idx, tmp=None):
        A = self.A
        mat, a_ = self.ORDER[idx]
        slot = idx & 3
        VT = 13
        def dst(h, fi, q):
            if tmp is not None: return v(tmp + fi * 8 + 2 * q, 2)
            return (a if h[0] == "a" else v)(h[1] + 2 * q, 2)
        if mat < 3:
            for phi in range(2):
                A.I("v_xor_b32", v(VT), phi << 5, v(11))
                A.I("v_add_u32", v(VT), hex(slot * 32768), v(VT))
                for hi in range(2):
                    for q in range(4):
                        o = (64 * (q >> 1) + 16 * hi + 4 * (q & 1)) * 256
                        A.I("ds_read_b64_tr_b16", dst(home(mat, phi, a_ + 4 * hi), hi * 2 + phi, q), v(VT), mods=self.off(o))
                A.I("s_waitcnt", "lgkmcnt(0)")
        else:
            for j in range(4):
                A.I("v_xor_b32", v(VT), hex(j << 13), v(12))
                A.I("v_add_u32", v(VT), hex(slot * 32768), v(VT))
                for q in range(4):
                    o = (8 * (q >> 1) + 2 * (q & 1)) * 256
                    A.I("ds_read_b64_tr_b16", dst(wo_home(a_, j), j, q), v(VT), mods=self.off(o))
                if j & 1: A.I("s_waitcnt", "lgkmcnt(0)")

    def load_weights(self):
        A = self.A
        L, G, C, T, U, R = 1, 2, 3, 4, 5, 6
        A.I("s_load_dwordx8", s(60, 8), s(0, 2), 16)
        A.I("s_mov_b32", s(S_W + 2), hex(4 << 20))
        A.I("s_mov_b32", s(S_W + 3), "0x20000")
        A.I("s_lshl_b32", s(sT2), s(sH), 8)
        A.I("s_lshl_b32", s(sT3), s(sH), 17)
        A.I("s_lshr_b32", s(sT0), s(sWV), 1)
        A.I("s_lshl_b32", s(sT0), s(sT0), 2)
        A.I("v_or_b32", v(U), s(sT0), v(G))
        A.I("v_lshlrev_b32", v(U), 1, v(U))
        A.I("v_xor_b32", v(U), v(U), v(C))
        A.I("v_lshrrev_b32", v(14), 2, v(U))
        A.I("v_lshlrev_b32", v(U), 4, v(U))
        A.I("s_lshl_b32", s(sT0), s(sWV), 4)
        A.I("v_add_u32", v(T), s(sT0), v(G))
        A.I("v_lshl_add_u32", v(8), v(T), 13, v(U))
        A.I("s_waitcnt", "lgkmcnt(0)")
        LA = self.la
        for idx in range(LA):
            self.dma_chunk(idx)
        self.lane_consts2()
        for odd, dst in ((0, 10), (1, 9)):
            A.I("v_and_b32", v(U), 1, v(G))
            A.I("v_or_b32", v(U), odd << 1, v(U))
            A.I("v_xor_b32", v(U), v(U), v(R))
            A.I("v_lshlrev_b32", v(U), 8, v(U))
            A.I("v_and_b32", v(7), 3, v(C))
            A.I("v_lshl_add_u32", v(7), v(7), 4, v(U))
            A.I("s_lshl_b32", s(sT0), s(sWV), 2)
            A.I("v_add_u32", v(T), s(sT0), v(G))
            A.I("v_lshl_add_u32", v(dst), v(T), 10, v(7))
        A.I("v_and_b32", v(U), 1, v(G))
        A.I("v_lshl_add_u32", v(T), v(U), 3, v(R))
        A.I("v_lshrrev_b32", v(7), 1, v(G))
        A.I("v_lshl_add_u32", v(T), v(7), 5, v(T))
        A.I("v_lshlrev_b32", v(T), 8, v(T))
        A.I("v_lshl_or_b32", v(U), v(U), 2, v(R))
        A.I("v_lshlrev_b32", v(U), 5, v(U))
        A.I("s_lshl_b32", s(sT0), s(sWV), 6)
        A.I("v_xor_b32", v(U), s(sT0), v(U))
        A.I("v_add_u32", v(T), v(T), v(U))
        A.I("v_and_b32", v(U), 3, v(C))
        A.I("v_lshl_add_u32", v(T), v(U), 3, v(T))
        A.I("v_add_u32", v(11), WV, v(T))
        A.I("v_and_b32", v(U), 1, v(G))
        A.I("v_lshlrev_b32", v(T), 4, v(U))
        A.I("v_lshl_add_u32", v(T), v(7), 2, v(T))
        A.I("v_and_b32", v(7), 1, v(R))
        A.I("v_add_u32", v(T), v(T), v(7))
        A.I("s_lshl_b32", s(sT0), s(sWV), 5)
        A.I("v_add_u32", v(T), s(sT0), v(T))
        A.I("v_lshlrev_b32", v(T), 8, v(T))
        A.I("v_lshl_or_b32", v(U), v(U), 1, v(7))
        A.I("v_xor_b32", v(U), s(sWV), v(U))
        A.I("v_lshl_add_u32", v(T), v(U), 6, v(T))
        A.I("v_lshrrev_b32", v(U), 1, v(R))
        A.I("v_lshl_add_u32", v(T), v(U), 5, v(T))
        A.I("v_and_b32", v(U), 3, v(C))
        A.I("v_lshl_add_u32", v(T), v(U), 3, v(T))
        A.I("v_add_u32", v(12), WV, v(T))
        T0 = self.kw.get('t0', 11) if self.kw.get('touch', True) and not self.sc else None
        self.init_buffers()
        self.write_mem0()
        q = [c for c in range(LA) for _ in range(8)] + [-1] * (self.n_init_vm + 1)
        for idx in range(16):
            q = q[len(q) - q[::-1].index(idx):]
            A.I("s_waitcnt", f"vmcnt({len(q)})")
            if idx == 4 or (T0 and idx == 15): self.write_mem0_b()
            if T0 and idx == 15 and self.kw.get('redo', True): self.init_buffers(True)
            A.I("s_barrier")
            if self.tag == "f": ts(A, 16 + idx, 24)
            if idx == 9: self.arrive()
            self.read_chunk(idx, tmp=32 if idx >= 12 else None)
            A.I("s_barrier")
            if idx == T0: self.touch(); q += [-1] * 8
            if idx + 4 < 16:
                self.dma_chunk(idx + 4); q += [idx + 4] * 8
            if idx >= 12:
                slot = idx & 3
                for k in range(8):
                    A.I("ds_write_b128", v(vWL if slot < 2 else vWL2), v(32 + 4 * k, 4), mods=self.off((slot & 1) * 32768 + k * 1024))
        A.I("s_waitcnt", "lgkmcnt(0)")

    def touch(self):
        A = self.A
        tm = self.kw.get('tmod', 'sc1')
        A.I("s_lshl_b32", s(sT0), s(sH), 13)
        A.I("s_add_u32", s(sT0), s(sT0), hex(WS_PB + self.wo))
        A.I("s_add_u32", s(sT0), s(sT0), s(sW2K))
        A.I("s_xor_b32", s(sT1), s(sT0), hex(PBPAR))
        for base in (sT0, sT1):
            for m in range(2):
                A.I("buffer_load_dwordx4", v(28, 4), v(vL16), s(S_WS, 4), s(base), mods=self.mods("offen", self.off(m * 1024), tm))
        for m in range(4):
            A.I("s_mov_b32", s(sT0), hex(WS_MB + self.wo + m * 8192))
            A.I("buffer_load_dword", v(28), v(vMST), s(S_WS, 4), s(sT0), mods=self.mods("offen", tm))

    def init_buffers(self, again=False):
        A = self.A
        sc = self.sc
        n = 0
        for i in range(4):
            A.I("v_mov_b32", v(16 + i), -1)
        A.I("s_lshl_b32", s(sT0), s(sH), 13)
        A.I("s_add_u32", s(sT0), s(sT0), hex(WS_PB + self.wo))
        A.I("s_and_b32", s(sT1), s(sWV), 1)
        A.I("s_lshl_b32", s(sT1), s(sT1), 12)
        A.I("s_add_u32", s(sPBLD), s(sT0), s(sT1))
        A.I("s_add_u32", s(sT0), s(sT0), s(sW2K))
        A.I("s_xor_b32", s(sT1), s(sT0), hex(PBPAR))
        for base in (sT0, sT1)[again:]:
            for m in range(2):
                A.I("buffer_store_dwordx4", v(16, 4), v(vL16), s(S_WS, 4), s(base), mods=self.mods("offen", self.off(m * 1024), sc))
                n += 1
        if self.ring:
            for m in range(1, 4):
                A.I("s_mov_b32", s(sT0), hex(WS_MB + self.wo + m * 8192))
                A.I("buffer_store_dword", v(16), v(vMST), s(S_WS, 4), s(sT0), mods=self.mods("offen", sc))
            self.n_init_vm = n + 3
            return
        A.I("s_lshl_b32", s(sT0), s(sH), 14)
        A.I("s_lshl_b32", s(sT1), s(sWV), 12)
        A.I("s_add_u32", s(sT0), s(sT0), s(sT1))
        A.I("s_cmp_lt_u32", s(sT0), 8192)
        A.I("s_cselect_b32", s(sT0), 8192, s(sT0))
        A.I("s_add_u32", s(sT0), s(sT0), hex(WS_MB + self.wo))
        for m in range(4):
            A.I("buffer_store_dwordx4", v(16, 4), v(vL16), s(S_WS, 4), s(sT0), mods=self.mods("offen", self.off(m * 1024), sc))
            n += 1
        self.n_init_vm = n

    def write_mem0(self):
        A = self.A
        G, C, R, T, U = 2, 3, 6, 20, 21
        S_W = 4
        A.I("s_load_dwordx2", s(S_W, 2), s(0, 2), 8)
        A.I("s_waitcnt", "lgkmcnt(0)")
        A.I("s_and_b32", s(S_W + 1), s(S_W + 1), "0xffff")
        A.I("s_mov_b32", s(S_W + 2), 8192)
        A.I("s_mov_b32", s(S_W + 3), "0x20000")
        A.I("v_and_b32", v(T), 1, v(G))
        A.I("v_and_b32", v(U), 1, v(R))
        A.I("v_lshl_add_u32", v(T), v(T), 1, v(U))
        A.I("v_lshlrev_b32", v(T), 9, v(T))
        A.I("v_and_b32", v(U), 3, v(C))
        A.I("v_lshl_add_u32", v(T), v(U), 4, v(T))
        A.I("v_and_b32", v(U), 2, v(G))
        A.I("v_add_u32", v(T), v(T), v(U))
        A.I("s_and_b32", s(sT0), s(sH), 1)
        A.I("s_lshl_b32", s(sT0), s(sT0), 11)
        A.I("s_bfe_u32", s(sT1), s(sH), hex(0x20001))
        A.I("s_lshl_b32", s(sT1), s(sT1), 7)
        A.I("s_add_u32", s(sT0), s(sT0), s(sT1))
        A.I("s_and_b32", s(sT1), s(sWV), 1)
        A.I("s_lshl_b32", s(sT1), s(sT1), 6)
        A.I("s_add_u32", s(sT0), s(sT0), s(sT1))
        A.I("s_lshr_b32", s(sT1), s(sH), 3)
        A.I("s_lshl_b32", s(sT1), s(sT1), 2)
        A.I("s_add_u32", s(sT0), s(sT0), s(sT1))
        A.I("v_add_u32", v(T), s(sT0), v(T))
        A.I("v_lshlrev_b32", v(T), 1, v(T))
        A.I("buffer_load_dword", v(U), v(T), s(S_W, 4), 0, mods="offen")

    def write_mem0_b(self):
        A = self.A
        U = 21
        A.I("v_min_u32", v(U), "0xfffffffe", v(U))
        A.I("s_mov_b32", s(sT0), hex(WS_MB + self.wo))
        A.I("s_mov_b64", "exec", s(sRMASK, 2))
        A.I("buffer_store_dword", v(U), v(vMST), s(S_WS, 4), s(sT0), mods=self.mods("offen", self.sc))
        A.I("s_mov_b64", "exec", -1)

    def arrive(self):
        A = self.A
        l = A.newlabel("arr")
        A.I("s_cmp_lg_u32", s(sWV), 0)
        A.I("s_cbranch_scc1", l)
        A.I("v_mov_b32", v(23), 1)
        A.I("s_mov_b64", "exec", 1)
        A.I("buffer_atomic_add", v(23), "off", s(S_DBG, 4), 0, mods=f"offset:{self.cbar}")
        A.I("s_mov_b64", "exec", -1)
        A.label(l)

    def prologue(self):
        A = self.A
        if self.pre_start: self.pre_start(self)
        A.I("s_mov_b32", s(sSTEP), 0)
        A.I("s_mov_b32", s(sTAG), 0)
        if self.kw.get('rot') is not None:
            A.I("s_bfe_u32", s(sT0), s(sH), hex(0x10000 | self.kw['rot']))
            A.I("s_lshl_b32", s(sT0), s(sT0), 10)
            A.I("s_xor_b32", s(sPBLD), s(sPBLD), s(sT0))
        A.I("s_xor_b32", s(sPBLD2), s(sPBLD), 1024)
        A.I("s_add_u32", s(sMBLD), s(sW1K), hex(WS_MB + self.wo))
        A.I("s_add_u32", s(sMBLD2), s(sMBLD), 4096)
        A.I("s_mov_b32", s(sMBST), hex(WS_MB + 8192 + self.wo))
        A.I("s_add_u32", s(sRST), s(sMBST), 16384)
        for j in range(2):
            A.I("s_mov_b32", s(sPBST + j), hex(WS_PB + j * 4096 + self.wo))
        A.I("s_lshl_b32", s(sT0), s(sH), 13)
        for i in range(4): A.I("v_mov_b32", v(vPUB + i), 0)
        A.I("s_add_u32", s(sT0), s(sT0), s(sW2K))
        A.I("s_add_u32", s(sKXN), s(sT0), hex(WS_KX))
        A.I("s_add_u32", s(sVXN), s(sT0), hex(WS_VX))
        A.I("s_lshr_b32", s(sT0), s(sT0), 1)
        A.I("s_add_u32", s(sKM), s(sT0), hex(WS_KM - 32 * 4096))
        A.I("s_add_u32", "m0", s(sW2K), KXB)
        for i in range(2): self.kdma(i)
        for i in range(2): self.vdma(i)
        A.I("s_add_u32", "m0", s(sW1K), MBUF + 4096)
        for o in (FLG, ZRO): A.I("ds_write_b128", v(vL16), v(vPUB, 4), mods=self.off(o))
        A.I("s_cmp_lg_u32", s(sWV), 0)
        A.I("s_cselect_b32", s(sT1), -1, 0)
        A.I("v_mov_b32", v(vFLG), s(sT1))
        if self.kw.get('pfk'):
            A.I("s_cmp_eq_u32", s(sWV), 1)
            A.I("s_cselect_b64", "vcc", -1, 0)
            A.I("s_mov_b32", s(sT1), hex(32 * 8192 - 2048))
            A.I("v_lshl_add_u32", v(1), v(vL16), self.kw.get('pfsh', 3), s(sT1))
            A.I("v_cndmask_b32", v(vFLG), v(vFLG), v(1), "vcc")
        A.I("v_bfe_u32", v(1), v(vL16), 4, 1)
        A.I("v_lshlrev_b32", v(1), 4, v(1))
        A.I("s_movk_i32", s(sT0), "0x3f80")
        A.I("v_lshlrev_b32", v(vSEL), v(1), s(sT0))
        A.I("v_bfe_u32", v(1), v(vL16), 5, 3)
        for d in range(4): A.I("v_cmp_eq_u32", s(self.sSEL + 2 * d, 2), d, v(1))
        A.I("v_lshrrev_b32", v(1), 2, v(vL16))
        A.I("s_cmp_lt_u32", s(sWV), WE)
        A.I("s_cselect_b64", "vcc", -1, 0)
        A.I("v_cndmask_b32", v(vL4), v(vMST), v(1), "vcc")
        for r in range(vQK, vQK + 24): A.I("v_mov_b32", v(r), 0)
        A.I("s_add_u32", s(sKXN), s(sKXN), hex(32 * 8192))
        A.I("s_add_u32", s(sVXN), s(sVXN), hex(32 * 8192))
        A.I("s_mov_b32", s(sNRM), 0)
        A.I("s_mov_b32", s(sNRR), 0)
        A.I("s_mov_b32", s(sNRF), 0)
        A.I("s_mov_b32", s(self.sNRX), 0)
        A.I("s_and_b32", s(sT0), s(sWV), 1)
        A.I("s_lshl_b32", s(sT0), s(sT0), 5)
        A.I("s_add_u32", s(sT0), s(sT0), s(sH))
        A.I("s_lshl_b32", s(sT0), s(sT0), 6)
        A.I("s_add_u32", s(sKVF), s(sT0), hex(WS_CTRL + CT_F1))
        A.I("s_mov_b32", s(sNEED + 1), 0)
        if self.flog:
            A.I("s_lshl_b32", s(sT0), s(sH), 2)
            A.I("s_add_u32", s(sT0), s(sT0), s(sWV))
            A.I("s_lshl_b32", s(sT0), s(sT0), 12)
            A.I("s_add_u32", s(sLOGO), s(sT0), hex(WS_TS + 0x10000))
        for it in self.prefetch_items(): it()
        lw = A.newlabel("cb_skip"); lp = A.newlabel("cb_poll"); ld = A.newlabel("cb_done")
        A.I("s_cmp_lg_u32", s(sWV), 0)
        A.I("s_cbranch_scc1", lw)
        A.I("v_mov_b32", v(1), self.cbar)
        A.I("s_mov_b64", "exec", 1)
        A.I("s_mov_b32", s(sRETRY), 0)
        A.label(lp)
        A.I("buffer_load_dword", v(3), v(1), s(S_DBG, 4), 0, mods="offen sc1")
        A.I("s_waitcnt", "vmcnt(0)")
        A.I("v_readfirstlane_b32", s(sT0), v(3))
        A.I("s_cmp_ge_u32", s(sT0), 32)
        A.I("s_cbranch_scc1", ld)
        A.I("s_sleep", 2)
        A.I("s_add_u32", s(sRETRY), s(sRETRY), 1)
        A.I("s_cmp_lt_u32", s(sRETRY), hex(RETRY_MAX * 4))
        A.I("s_cbranch_scc1", lp)
        A.label(ld)
        A.I("s_mov_b64", "exec", -1)
        A.label(lw)
        A.I("s_mov_b32", s(sRETRY), 0)
        A.I("s_lshr_b32", s(sT0), s(sH), 1)
        A.I("s_lshl_b32", s(sT0), s(sT0), 7)
        A.I("s_and_b32", s(sT1), s(sH), 1)
        A.I("s_lshl_b32", s(sT1), s(sT1), 4)
        A.I("s_add_u32", s(sT0), s(sT0), s(sT1))
        A.I("s_add_u32", s(sFLAGOFF), s(sT0), hex(WS_CTRL + CT_PROG))
        A.I("s_cmp_eq_u32", s(sWV), 0)
        A.I("s_cselect_b32", s(sFLAGOFF), s(sFLAGOFF), "0x7ff00000")
        A.I("s_waitcnt", "vmcnt(0) lgkmcnt(0)")
        A.I("s_barrier")
        self.lq = []; self.vq = []

    STG = {(0, 0, 0): 80, (0, 1, 0): 56, (1, 0, 0): 64, (1, 1, 0): 72, (0, 0, 4): 88, (0, 1, 4): 96, (1, 0, 4): 104, (1, 1, 4): 24}
    MR = {0: 0, 4: 4, 1: 8, 5: 12, 2: 16, 3: 20, 6: 24, 7: 28}

    def prefetch_items(self, late=False, tag=None):
        A = self.A
        L = []
        for f, r in self.STG.items():
            if self.kreg and (f[2] == 4) != late: continue
            for hf in range(2):
                L.append(lambda f=f, r=r, hf=hf: self.wread(tag and (tag, f), r + 4 * hf, home(*f)[1] + 1024 * hf))
        return L

    def kreads(self, tag=None):
        return [lambda i=i: self.ds(tag, "ds_read_b128", v(56 + 4 * i, 4), v(vL16), mods=self.off(KXB + i * 1024)) for i in (6, 7, 0, 1, 2, 3, 4, 5)]

    def kdma(self, i):
        if "g" in self.x:
            self.vm("kk", "buffer_load_dwordx4", v(240 + 4 * i, 4), v(vL16), s(S_WS, 4), s(sKXN), mods=self.mods("offen", self.off(1024 * i), self.kw.get('kmod', '')))
            return
        self.vm("kk", "buffer_load_dwordx4", v(vL16), s(S_WS, 4), s(sKXN), mods=self.mods("offen", self.off(1024 * i), self.kw.get('kmod', ''), "lds"))
        if i: self.A.I("s_add_u32", "m0", s(sW2K), hex(VXB))
    def vdma(self, i, nxt=None):
        if "g" in self.x:
            self.vm("kd", "buffer_load_dwordx4", v(248 + 4 * i, 4), v(vL16), s(S_WS, 4), s(sVXN), mods=self.mods("offen", self.off(1024 * i), self.kw.get('kmod', '')))
            if nxt is not None: self.A.I("s_mov_b32", "m0", nxt)
            return
        self.vm("kd", "buffer_load_dwordx4", v(vL16), s(S_WS, 4), s(sVXN), mods=self.mods("offen", self.off(1024 * i), self.kw.get('kmod', ''), "lds"))
        if nxt is not None: self.A.I("s_mov_b32", "m0", nxt)

    def retry_head(self, cnt, lgo):
        A = self.A
        A.I("s_add_u32", s(cnt), s(cnt), 1)
        A.I("s_add_u32", s(sRETRY), s(sRETRY), 1)
        A.I("s_cmp_ge_u32", s(sRETRY), hex(RETRY_MAX))
        A.I("s_cbranch_scc1", lgo)

    def step_loop(self):
        A = self.A; tg = self.tag
        A.barrier_haz()
        A.I("buffer_load_dwordx4", v(self.MR[0], 4), v(vL16), s(S_WS, 4), s(sMBLD), mods="offen sc1")
        if self.kreg:
            for x in self.kreads(): x()
        A.I("s_waitcnt", "vmcnt(0) lgkmcnt(0)")
        for w in range(1, 4):
            A.I("s_cmp_eq_u32", s(sWV), w)
            A.I("s_cbranch_scc1", f"L_chain_top{w}_{tg}")
        for w in range(4): self.wave_loop(w)
        A.label(f"L_chain_last_{tg}")
        A.reset_haz()
        A.nop(2)
        for x in self.last: x()
        A.I("s_add_u32", s(sKM), s(sKM), hex(32 * 4096))
        A.I("buffer_store_dwordx4", v(vPUB, 4), v(vL16), s(S_WS, 4), s(sKM), mods="offen " + self.pubmod)
        A.I("v_mov_b32", v(94), NSEG)
        A.I("s_waitcnt", "vmcnt(0) lgkmcnt(0)")
        A.I("s_barrier")
        A.I("s_mov_b64", "exec", 1)
        A.I("buffer_store_dword", v(94), "off", s(S_WS, 4), s(sFLAGOFF), mods="sc1")
        A.I("s_mov_b64", "exec", -1)

    def wave_loop(self, w):
        A = self.A
        sc = self.sc; tg = self.tag; X_ = self.x
        def opt(k, d):
            x = self.kw.get(k, d)
            return x[w] if isinstance(x, list) else x
        LTOP = f"L_chain_top{w}_{tg}"; LLAST = f"L_chain_last_{tg}"
        nochk = "n" in X_
        Mr = lambda sl: self.MR[sl]
        acc = lambda mat, phi: (vQK + 8 * mat + 4 * phi) if mat < 2 else (vVA + 4 * phi)
        def smf(mat, phi, sl):
            h = home(mat, phi, sl)
            self.needl(f"m{sl}")
            B = v(self.STG[(mat, phi, sl)], 8) if h[0] == "lds" else reg8(h)
            A.I(SMF, v(acc(mat, phi), 4), v(Mr(sl), 4), B, v(vIDX))
        def valu(*x, **k): return lambda: A.I(*x, **k)
        untracked = lambda t_, *a_, **k: A.I(*a_, **k)

        A.raw(".p2align 6")
        for _ in range(self.align): A.raw("    s_nop 0")
        A.label(LTOP)
        A.reset_haz()
        self.lq = []; self.vq = []
        self.fl(0)
        t0 = 15
        RL = [4, 8, 16, 20]; SEL = 12; RD = vVA; tc = vVA + 4
        zr = list(range(vVA, vVA + 6)) if w >= WE else []
        def zero(n, pad=False):
            for _ in range(n):
                if zr: A.I("v_mov_b32", v(zr.pop(0)), 0)
                elif pad: A.I("v_mov_b32", v(t0), 0)
        def mload(half, mod, tag=None):
            (self.vm if tag else untracked)(tag, "buffer_load_dwordx4", v(Mr(4 * half), 4), v(vL16), s(S_WS, 4),
                    s(sMBLD2 if half else sMBLD), mods="offen " + mod)
        def mdma(mod, tag=None):
            (self.vm if tag else untracked)(tag, "buffer_load_dwordx4", v(vL16), s(S_WS, 4), s(sMBLD2), mods=f"offen {mod} lds")
            A.I("s_mov_b32", "m0", KXB + 2048 * w)
        self.mload0 = lambda: mload(0, self.pollmod)
        z = opt('z', (0, 16, 16))
        early3 = w == WL_ and opt('early3', False)
        if early3:
            self.vq += ["f0", "st"]
        else:
            zero(z[0], True)
            self.fl("h7")
            mload(0, self.pollmod, "f0")
        for i, n in enumerate(z[1:]):
            if i: mload(0, "sc1", "fx")
            if not (early3 and i == 0): zero(n, True)
        zero(8)
        chk = lambda r: [valu("v_max3_u32", v(t0), v(r), v(r + 1), v(r + 2)), valu("v_max_u32", v(t0), v(t0), v(r + 3)),
                         valu("v_cmp_lt_u32", "vcc", s(sSENT), v(t0))]
        def mwrite(): self.ds("mw0", "ds_write_b128", v(vL16), v(Mr(0), 4), mods=self.off(MBUF + 1024 * w))
        def mread(sl): self.ds(f"m{sl}", "ds_read_b128", v(Mr(sl), 4), v(vL16), mods=self.off(MBUF + (sl ^ w) * 1024))
        nw = opt('nw', '')
        own0 = [(0, 0, 0), (0, 1, 0), (1, 0, 0), (1, 1, 0), (2, 0, 0), (2, 1, 0)]
        spec = opt('spec', 2)
        lret0 = A.newlabel("mret")
        if opt('lal', None) is not None:
            A.raw(".p2align 6")
            for _ in range(opt('lal', 0)): A.raw("    s_nop 0")
        A.label(lret0)
        mload(0, "sc1", "fx")
        A.I("s_add_u32", s(sNRM), s(sNRM), 1)
        A.I("s_cmp_lt_u32", s(sNRM), hex(RETRY_MAX))
        A.I("s_cselect_b32", s(sSENT), -2, -1)
        if spec:
            A.nop(4)
            for i in range(4): A.I("v_mov_b32", v(acc(0, 0) + i), 0)
        for _ in range(opt('zl', 0)): A.I("v_mov_b32", v(t0), 0)
        self.needv("f0")
        self.fl(1)
        c = chk(Mr(0))
        c[0](); c[1]()
        if spec == 3: mwrite()
        if spec >= 2: c[2]()
        if spec: smf(*own0[0])
        if opt('wspec', False): mwrite()
        if spec < 2: c[2]()
        if not nochk: A.I("s_cbranch_vccnz", lret0)

        q0, q1, k0, k1 = vQK, vQK + 4, vQK + 8, vQK + 12
        K0, K1, VX, X, VA = 56, 72, 88, 32, vVA
        D0, D1, DM_, PX, PM, ONES, OA, LA, ri = 56, 60, 64, 68, 52, 48, 72, 80, 84
        OF = [60, 92, 80, 84]
        G = [72, 76]
        WS_ = {(2, 0): 0, (3, 0): 8, (2, 1): 16, (2, 2): 24, (2, 3): 32, (3, 1): 40, (3, 2): 56, (3, 3): 64}
        def woread(T, j, hf): self.wread(("o", T, j), WS_[(T, j)] + 4 * hf, wo_home(T, j)[1] + 1024 * hf)
        def W(T, j, hf): return lambda: woread(T, j, hf)
        def vread(i): return lambda: self.ds("vx", "ds_read_b128", v(VX + 4 * i, 4), v(vL16), mods=self.off(VXB + w * 2048 + i * 1024))
        def kread(i): return lambda: self.ds("k", "ds_read_b128", v(K0 + 4 * i, 4), v(vL16), mods=self.off(KXB + i * 1024))
        def zread(r, tag="z"): return lambda: self.ds(tag, "ds_read_b128", v(r, 4), v(vL16), mods=self.off(ZRO))
        def j_pub(): self.vm("pub", "buffer_store_dwordx4", v(vPUB, 4), v(vL16), s(S_WS, 4), s(sKM), mods="offen " + self.pubmod)
        def j_kvf(): self.vm("kvf", "buffer_load_dword", v(vDUM), v(vL4), s(S_WS, 4), s(sKVF), mods="offen sc1")
        add2 = lambda r: [valu("v_add_f32", v(r), v(r), v(r + 2)), valu("v_add_f32", v(r + 1), v(r + 1), v(r + 3))]
        mul2 = lambda r: [valu("v_mul_f32", v(r), s(sC1), v(r)), valu("v_mul_f32", v(r + 1), s(sC1), v(r + 1))]
        cvp = lambda d, x, y: valu("v_cvt_pk_bf16_f32", v(d), v(x), v(y))
        def xwrite(t):
            d = (vPUB + 1, vPUB + 3) if t else (q0 + 2, q0 + 3)
            o = 0 if t else 32
            self.ds(f"xw{t}", "ds_write2_b32", v(vXW), v(d[0]), v(d[1]), mods=f"offset0:{o} offset1:{o + 16}")
        def xread(i): return lambda: self.ds(f"x{i}", "ds_read_b128", v(X + 4 * i, 4), v(vXR), mods=self.off(XI + 1024 * i))
        def oread(j): return lambda: self.ds(f"of{j}", "ds_read_b128", v(OF[j], 4), v(vOR), mods=self.off(OI + (w ^ j) * 512))
        bar = valu("s_barrier")
        nl = lambda t: (lambda: self.needl(t))
        FL = lambda i: (lambda: self.fl(i))
        none = lambda: None
        E_ = lambda m, p: [(m, p, 1), (m, p, 2), (m, p, 3)]
        L_ = lambda m, p: [(m, p, 5), (m, p, 6), (m, p, 7)]
        ve = [(2, 0, 1), (2, 1, 1), (2, 0, 2), (2, 0, 3), (2, 1, 2), (2, 1, 3)][:opt('ve', 0)]
        es = [(0, 0, 1), (0, 1, 1), (0, 0, 2), (0, 1, 2), (0, 0, 3), (0, 1, 3)] + E_(1, 0) + E_(1, 1) + ve
        ne = opt('ne', len(es)); rest = es[ne:]; assert ne <= len(es) and not [f for f in rest if f[0] == 2]
        own1 = [(1, 1, 4), (0, 0, 4), (0, 1, 4), (1, 0, 4), (2, 0, 4), (2, 1, 4)]
        o1v = opt('o1v', 0); vdef = own1[4 + o1v:]; own1 = own1[:4 + o1v]
        R_ = lambda m, p: [f for f in rest if f[:2] == (m, p)]
        vl = vdef + [(2, p, sl) for p, sl in [(0, 1), (1, 1), (0, 5), (1, 5), (0, 2), (0, 3), (0, 6), (0, 7), (1, 2), (1, 3), (1, 6), (1, 7)] if (2, p, sl) not in ve]
        vm_ = opt('vmid', 2)
        frs = own0 + es[:ne] + own1 + R_(0, 0) + R_(0, 1) + L_(0, 0) + L_(0, 1) + R_(1, 0) + L_(1, 0) + vl[:vm_] + R_(1, 1) + L_(1, 1)
        NQ = len(frs)
        frs += vl[vm_:]
        NS = len(frs); assert NS == 48
        O1 = 6 + ne
        last = lambda m, p: max(i for i, f in enumerate(frs) if f[:2] == (m, p))
        def smf_(f):
            h = home(*f)
            return valu(SMF, v(acc(*f[:2]), 4), v(Mr(f[2]), 4), v(self.STG[f], 8) if h[0] == "lds" else reg8(h), v(vIDX))
        ST = [(smf_(f), [f"m{f[2]}", ("k", f)]) for f in frs]
        for D, Areg in ((D0, K0), (D1, K1), (DM_, X)):
            ST += [(valu(MF, v(D, 4), v(Areg + 4 * ks, 4), v(X + 4 * ks, 4), 0 if ks == 0 else v(D, 4)), [f"x{ks}"]) for ks in range(4)]
        pvx = {"a": valu(MF, v(OA, 4), v(VX, 4), v(PX, 4), 0), "b": valu(MF, v(OA + 4, 4), v(VX + 4, 4), v(PX, 4), 0), "l": valu(MF, v(LA, 4), v(ONES, 4), v(PX, 4), 0)}
        pvm = {"a": valu(MF16, v(OA, 4), v(vPUB, 2), v(PM, 2), v(OA, 4)), "b": valu(MF16, v(OA + 4, 4), v(vPUB + 2, 2), v(PM, 2), v(OA + 4, 4)),
               "l": valu(MF16, v(LA, 4), v(ONES, 2), v(PM, 2), v(LA, 4))}
        nrm = opt('nrm', 0)
        pvo = "abl" if nrm == 0 else "lab"
        ST += [(pvx[k], ["vx"]) for k in pvo] + [(pvm[k], []) for k in pvo]
        worder = [(T, 0) for T in range(4)] + [(T, j) for T in range(4) for j in (1, 2, 3)]
        for T, j in worder:
            h = wo_home(T, j)
            ST.append((valu(SMF, v(vWA + 4 * T, 4), v(OF[j], 4), v(WS_[(T, j)], 8) if h[0] == "lds" else reg8(h), v(vIDX)),
                       ["z", ("o", T, j), f"of{j}"]))
        SC, PV, WO, N = 48, 60, 66, 82
        assert len(ST) == N
        mems = [[] for _ in range(N)]; vals = [[] for _ in range(N)]; post = [[] for _ in range(N)]
        def place(L, ops, first, step=1):
            i = first
            while ops:
                if not L[i]:
                    L[i].append(ops.pop(0)); i += step - 1
                i += 1
            return i - step
        ab = opt('abar', 3); ar = opt('ard', 3)
        mems[0] += [none if opt('wspec', False) or spec == 3 else mwrite]
        pp = opt('pubpos', [7, 9, 11, 13])
        if "p" not in X_: mems[pp] += [j_pub]
        def j_flag():
            if w == 0: self.vm("j", "buffer_store_dword", v(vFLG), "off", s(S_WS, 4), s(sFLAGOFF), mods=self.pubmod)
            if w >= WE: self.vm("j", "buffer_store_dword", v(vFLG), v(vMST), s(S_WS, 4), s(sRST), mods=self.mods("offen", sc))
        keep = lambda n: [valu("v_mov_b32", v(vPBST), v(vPBST))] * n
        mems[ab] += keep(opt('ka', 0)) + [none if 'A' in nw else nl("mw0"), bar, FL(2)]
        a1 = opt('ard1', 1)
        rdA = [lambda: mread(1), lambda: mread(2), lambda: mread(3)]
        mems[ar] += rdA[:a1]; mems[ar + 1] += rdA[a1:]
        f1p = opt('f1pos', 1)
        mems[f1p].insert(int(f1p == 0), lambda: mload(1, self.pollmod, "f1")); mems[f1p + 1].insert(0, lambda: mdma(self.pollmod, "fd"))
        def kplace():
            if self.kreg and "k" not in X_:
                for i, j in enumerate(opt('kdpos', [(5, 6), (7, 8), (9, 10), (11, 12)])):
                    assert j > ab and j > f1p + 1
                    mems[j] += [lambda i=i: self.kdma(i)]
            kl = place(mems, self.prefetch_items(True, "k") if self.kreg else self.kreads("k"), opt('kfirst', 4))
            assert kl < O1 - (1 if self.kreg else 2)
        if self.kreg: kplace()
        lret1 = A.newlabel("mret"); lgo1 = A.newlabel("mgo")
        def ool1():
            A.label(lret1)
            A.I("s_mov_b32", s(sT0), "m0")
            A.I("s_mov_b32", "m0", MBUF + 4096 + 1024 * w)
            mload(1, "sc1")
            mdma("sc1")
            A.I("s_mov_b32", "m0", s(sT0))
            A.I("s_waitcnt", "vmcnt(0)")
            for x in chk(Mr(4)): x()
            self.retry_head(sNRF, lgo1)
            A.I("s_cbranch_vccnz", lret1)
            A.I("s_branch", lgo1)
        self.ool.append(ool1)
        c = chk(Mr(4))
        ckn = opt('ckn', 3)
        cplan = {1: [c], 2: [c[:2], c[2:]], 3: [c[:1], c[1:2], c[2:]]}[ckn]
        fw = O1 - 1 - ckn
        mems[fw] += [lambda: self.needv("f1"), FL(3)]
        for i in range(ckn): vals[fw + i] = cplan[i]
        def xb():
            if not nochk: A.I("s_cbranch_vccnz", lret1)
            A.label(lgo1)
        bb = O1 - 1 + opt('bbar', 1); br = bb + opt('brd', 0)
        mems[O1 - 2] += [lambda: self.needvl("fd", "k")]
        mems[O1 - 1] += [xb]
        mems[bb] += [bar, FL(4)]
        mems[br] += [lambda: mread(5)]
        place(mems, [lambda: mread(6), lambda: mread(7)], max(br + 1, O1))
        if not self.kreg: kplace()
        place(mems, [vread(0), vread(1)], O1 + 1)
        i = place(vals, add2(q0) + mul2(q0), last(0, 0) + 2)
        i = place(vals, add2(q1) + mul2(q1) + [cvp(q0 + 2, q0, q1), cvp(q0 + 3, q0 + 1, q1 + 1)], max(i, last(0, 1) + 2))
        xq = i + 1
        xk = NQ + 1
        kf = add2(k0)
        for j in range(last(1, 0) + 2, xk):
            if kf and (not vals[j] or xk - j <= len(kf)): vals[j].append(kf.pop(0))
        if xq == xk: xq += 1
        assert not kf and xq <= xk + 1
        mems[xq] += [lambda: xwrite(0)]
        kt = add2(k1) + [cvp(vPUB + 1, k0, k1), cvp(vPUB + 3, k0 + 1, k1 + 1)]
        ks_ = opt('ksp', 1)
        for j in range(ks_): vals[xk + j] += kt[j * 4 // ks_:(j + 1) * 4 // ks_]
        xk += ks_ - 1
        cb = xk + 1 + opt('cbar_', 4); cr = cb + opt('crd', 1)
        mems[NQ] += [FL(5)]
        mems[xk + 1] += [lambda: xwrite(1), FL(6)]
        vf0, vf1 = add2(VA) + [cvp(vPUB, VA, VA + 1)], add2(VA + 4) + [cvp(vPUB + 2, VA + 4, VA + 5)]
        assert xk + 2 < cb and xk + 2 < last(2, 0) + 2
        mems[xk + 2] += [valu("s_cmp_eq_u32", s(sSTEP), NSEG - 1), valu("s_cbranch_scc1", LLAST)]
        self.last = [x[0] for x in ST[xk + 3:NS]] + vf0 + vf1
        if opt('cw', 0): mems[cb - 1] += [none if 'C' in nw else nl("xw1")]
        assert pp <= NQ
        fp = xk + opt('fpos', [2, 2, 3, 4]); assert fp > ab
        if w != 1: mems[fp] += [j_flag]
        mems[cb] += keep(opt('kc', 0)) + [none if 'C' in nw else nl("xw1")] + [FL(21)] + keep(opt('kc2', 0)) + [bar, FL(7)]
        xp = opt('xpre', 2); xr = opt('xrate', 2)
        rdC = [xread(i) for i in range(4)]
        mems[cr] += rdC[:xp]; rdC = rdC[xp:]; j = cr + 1
        while rdC: mems[j] += rdC[:xr]; rdC = rdC[xr:]; j += 1
        xe = j
        vf0l = list(vf0)
        for j in range(last(2, 0) + 2, NS):
            if vf0l and not vals[j]: vals[j].append(vf0l.pop(0))
        vals[NS - 1] += vf0l
        post[NS - 1] += [FL(8)]
        for j in range(xk + 1, cr): mems[j].append(none)
        vms = [lambda: self.kdma(0), lambda: self.kdma(1), lambda: (self.needl("vx"), self.vdma(0)), lambda: self.vdma(1, MBUF + 4096 + 1024 * w)]
        if self.kreg: vms = vms[2:]
        if "k" in X_: vms = [valu("s_mov_b32", "m0", MBUF + 4096 + 1024 * w)]
        if "v" in X_: vms = vms[:-2] + [valu("s_mov_b32", "m0", MBUF + 4096 + 1024 * w)]
        if "1" in X_: vms = vms[:1] + [valu("s_mov_b32", "m0", MBUF + 4096 + 1024 * w)]
        if self.kvcheck and w < WE: vms.insert(opt('kvfi', 2), j_kvf)
        place(mems, vms, bb + 1 + opt('vbase', [2, 3, 4, 5]), opt('vstep', 3))
        if opt('pfk', 0) and w == 1:
            pfl = [(sKXN, 0), (sVXN, 0)] if opt('pfsh', 3) == 3 else [(sKXN, 0), (sKXN, 4095), (sVXN, 0), (sVXN, 4095)]
            for i, (r, o) in enumerate(pfl):
                mems[opt('pfk', 0) + i * opt('pfstep', 1)] += [lambda r=r, o=o: self.vm("pf", "buffer_load_ubyte" if o else "buffer_load_dword", v(vDUM), v(vFLG), s(S_WS, 4), s(r),
                                                                   mods=self.mods("offen", self.off(o), self.kw.get('pfmod', '')))]
        if opt('kprobe', 0): mems[opt('kprobe', 0)] += [lambda: self.needv(opt('ktag', "kd")), FL(20)]
        ex = lambda r: valu("v_exp_f32", v(r), v(r))
        cv = lambda d, r: valu("v_cvt_pk_bf16_f32", v(d), v(r), v(r + 1))
        one = lambda i: valu("v_mov_b32", v(ONES + i), s(sONES))
        sv = [[one(0), one(1)], [one(2), one(3)], vf1[:1], vf1[1:2], vf1[2:] + [valu("v_mov_b32", v(PM + 1), 0)],
              [ex(D0)], [ex(D0 + 1)], [ex(D0 + 2)], [ex(D0 + 3), cv(PX, D0)], [ex(D1), cv(PX + 1, D0 + 2)], [ex(D1 + 1)],
              [ex(D1 + 2), ex(D1 + 3), cv(PX + 2, D1), cv(PX + 3, D1 + 2)], [ex(DM_)], [ex(DM_ + 1)], [cv(PM, DM_)]]
        for j, x in enumerate(sv): vals[SC + j] = x
        post[PV - 1] += [FL(9)]
        mfree = lambda r: max(i for i, f in enumerate(frs) if Mr(f[2]) == r)
        wfirst = {(2, 0, 0): mfree(0), (2, 0, 1): mfree(4), (3, 0, 0): mfree(8), (3, 0, 1): mfree(12), (2, 1, 0): mfree(16), (2, 1, 1): mfree(20),
                  (2, 2, 0): mfree(24), (2, 2, 1): mfree(28), (2, 3, 0): SC + 8, (2, 3, 1): SC + 9, (3, 1, 0): SC + 10, (3, 1, 1): SC + 11,
                  (3, 2, 0): SC + 10, (3, 2, 1): WO + 4, (3, 3, 0): PV + 3, (3, 3, 1): PV + 2}
        place(mems, [zread(vWA + 4 * i) for i in range(4)], O1 + 4)
        lnorm = A.newlabel("norm"); lfb = A.newlabel("smax")
        QH = "quad_perm:[2,3,2,3] row_mask:0xf bank_mask:0xf"; QL = "quad_perm:[0,1,0,1] row_mask:0xf bank_mask:0xf"
        fb = opt('fbpos', 0)
        fbr = valu("s_nop", 0) if "f" in X_ else valu("s_cbranch_vccnz", lfb)
        if fb >= 0 and nrm == 0: mems[WO + fb] += [fbr]
        def norm():
            self.fl(10)
            A.label(lnorm)
            A.I("s_mov_b64", "vcc", s(sOMASK, 2))
            R_ = OA + 4
            for i in range(4):
                A.I("v_cndmask_b32_dpp", v(R_ + i), v(OA + i), v(R_ + i), "vcc", mods=QH)
            A.I("v_rcp_f32_dpp", v(ri), v(LA), mods=QH)
            for i in range(2): A.I("v_pk_mul_f32", v(R_ + 2 * i, 2), v(R_ + 2 * i, 2), v(ri, 2), mods="op_sel_hi:[1,0]")
            for i in range(2): A.I("v_cvt_pk_bf16_f32", v(OA + i), v(R_ + 2 * i), v(R_ + 2 * i + 1))
            self.ds("ow", "ds_write_b64", v(vOW), v(OA, 2), mods=self.off(OI + w * 512))
            self.fl(11)
            A.I("v_max_f32_dpp", v(ri + 2), v(LA), v(ri), mods=QH)
            for i in range(4):
                A.I("v_mov_b32_dpp", v(OF[0] + i), v(OA + (i & 1)), mods=QH if i >> 1 else QL)
                if i == 1: A.I("v_cmp_lt_f32", "vcc", s(sBIG), v(ri + 2))
            if fb < 0: fbr()
        def norm1():
            self.fl(10)
            A.label(lnorm)
            A.I("v_rcp_f32_dpp", v(ri), v(LA), mods=QH)
            for t in range(2):
                r = OA + 4 * t
                for i in range(4): A.I("v_mul_f32_dpp", v(r + i), v(r + i), v(ri), mods=QH)
                for i in range(2): A.I("v_cvt_pk_bf16_f32", v(OF[0] + 2 * t + i), v(r + 2 * i), v(r + 2 * i + 1))
                if nrm == 2: self.ds("ow", "ds_write_b64", v(vOR), v(OF[0] + 2 * t, 2), mods=self.off(OI + w * 512 + 8 * t))
            if nrm == 1: self.ds("ow", "ds_write_b128", v(vOR), v(OF[0], 4), mods=self.off(OI + w * 512))
            self.fl(11)
        def norm3():
            self.fl(10)
            A.label(lnorm)
            A.I("v_rcp_f32_dpp", v(ri), v(LA), mods=QH)
            for i in range(4): A.I("v_mul_f32_dpp", v(OA + i), v(OA + i), v(ri), mods=QH)
            for i in range(2): A.I("v_cvt_pk_bf16_f32", v(OA + i), v(OA + 2 * i), v(OA + 2 * i + 1))
            R_ = OA + 4
            for i in range(2): A.I("v_pk_mul_f32", v(R_ + 2 * i, 2), v(R_ + 2 * i, 2), v(ri, 2), mods="op_sel_hi:[1,0]")
            A.I("s_mov_b64", "exec", s(sOMASK, 2))
            for i in range(2): A.I("v_cvt_pk_bf16_f32", v(OA + i), v(R_ + 2 * i), v(R_ + 2 * i + 1))
            A.I("s_mov_b64", "exec", -1)
            self.ds("ow", "ds_write_b64", v(vOW), v(OA, 2), mods=self.off(OI + w * 512))
            self.fl(11)
            A.I("v_max_f32_dpp", v(ri + 2), v(LA), v(ri), mods=QH)
            A.I("v_cmp_lt_f32", "vcc", s(sBIG), v(ri + 2))
            for i in range(4): A.I("v_mov_b32_dpp", v(OF[0] + i), v(OA + (i & 1)), mods=QH if i >> 1 else QL)
            if "f" in X_: A.I("s_nop", 0)
            else: A.I("s_cbranch_vccnz", lfb)
        if nrm == 0: post[WO - 1] += [norm]
        elif nrm == 3: post[WO - 1] += [norm3]
        else:
            post[WO - 1] += [norm1]
            vals[WO] = [valu("v_max_f32_dpp", v(ri + 2), v(LA), v(ri), mods=QH)]
            vals[WO + 1] = [valu("v_cmp_lt_f32", "vcc", s(sBIG), v(ri + 2))]
            mems[WO + 2] += [valu("s_nop", 0) if "f" in X_ else valu("s_cbranch_vccnz", lfb)]
        def ool_smax():
            A.label(lfb)
            A.I("s_add_u32", s(sNRF), s(sNRF), 1)
            A.I("s_mov_b32", s(sBIG), "0x7f800000")
            A.I("s_waitcnt", "lgkmcnt(0)")
            A.I("s_sub_u32", s(sT0), s(sKXN), hex(32 * 8192 + 2048 * w))
            A.I("s_add_u32", s(sT1), s(sT0), 4096)
            A.nop(8)
            for i in range(8):
                A.I("buffer_load_dwordx4", v(K0 + 4 * i, 4), v(vL16), s(S_WS, 4), s(sT1 if i > 3 else sT0), mods=self.mods("offen", self.off((i & 3) * 1024)))
            for i in range(4):
                A.I("ds_read_b128", v(X + 4 * i, 4), v(vXR), mods=self.off(XI + 1024 * i))
            for i in range(16): A.I("v_mov_b32", v(vWA + i), 0)
            A.I("s_waitcnt", "vmcnt(0) lgkmcnt(0)")
            for x in ST[SC:PV]: x[0]()
            tm, tt = 84, 85
            A.I("v_max3_f32", v(tm), v(D0), v(D0 + 1), v(D0 + 2))
            A.I("v_max3_f32", v(tm), v(tm), v(D0 + 3), v(D1))
            A.I("v_max3_f32", v(tm), v(tm), v(D1 + 1), v(D1 + 2))
            A.I("v_max3_f32", v(tm), v(tm), v(D1 + 3), v(DM_))
            A.I("v_max_f32", v(tm), v(tm), v(DM_ + 1))
            for b in (32, 16):
                A.I("v_mov_b32", v(tt), v(tm))
                A.I(f"v_permlane{b}_swap_b32", v(tt), v(tm))
                A.I("v_max_f32", v(tm), v(tt), v(tm))
            rs = [D0, D0 + 1, D0 + 2, D0 + 3, D1, D1 + 1, D1 + 2, D1 + 3, DM_, DM_ + 1]
            for r in rs: A.I("v_sub_f32", v(r), v(r), v(tm))
            for r in rs: A.I("v_exp_f32", v(r), v(r))
            for i in range(5): A.I("v_cvt_pk_bf16_f32", v(PX + i if i < 4 else PM), v(rs[2 * i]), v(rs[2 * i + 1]))
            for x in ST[PV:WO]: x[0]()
            self.lq = []
            for f in ((2, 3, 0), (2, 3, 1), (3, 1, 0), (3, 1, 1), (3, 2, 0), (3, 3, 0), (3, 3, 1)): woread(*f)
            A.I("s_waitcnt", "lgkmcnt(0)")
            A.barrier_haz()
            A.I("s_branch", lnorm)
        self.ool.append(ool_smax)
        ob = WO + opt('obar', 1); od = ob + opt('ord', 0)
        if self.kreg and opt('kbd', False): mems[ob - 1] += [lambda: self.needv("kk")]
        mems[ob] += keep(opt('kd', 0)) + [none if 'D' in nw else nl("ow"), bar, FL(12)]
        o1 = opt('ord1', 3)
        rdD = [oread(j) for j in (1, 2, 3)]
        mems[od] += rdD[:o1]; mems[od + 1] += rdD[o1:]
        mems[WO + 4] += [FL(13)]
        for j in range(WO - 1, od): mems[j].append(none)
        def pack(T):
            g = G[T >> 1] + (T & 1); r = vWA + 4 * T
            L = [valu("v_cvt_pk_bf16_f32", v(g), v(r), v(r + 2)), valu("v_cvt_pk_bf16_f32", v(g + 2), v(r + 1), v(r + 3))]
            if not T & 1: L.insert(1, valu("v_and_or_b32", v(g), v(g), -2, s(sTAG)))
            return L
        def pstore(jj): self.vm("p", "buffer_store_dwordx4", v(G[jj], 4), v(vPBST), s(S_WS, 4), s(sPBST + jj), mods=self.mods("offen", sc or opt('pmod', '')))
        W4 = WO + 4
        place(vals, pack(0), W4 + 4)
        vals[W4 + 7] += pack(1)
        mems[W4 + 8] += [lambda: pstore(0), FL("h5")]
        p2 = pack(2)
        vals[W4 + 10] += p2[:1]; vals[W4 + 11] += p2[1:] + pack(3)
        post[N - 1] += [lambda: pstore(1)]
        wlo = opt('wlo', 0)
        for j in range(cr, xe + opt('xgap', 0)): mems[j].append(none)
        for j in opt('wno', tuple(range(SC + 5, PV + 3)) + (xq - 1, xk, NS - 1, SC)): mems[j].append(none)
        for f, fs in sorted(wfirst.items(), key=lambda x: x[1]):
            j = place(mems, [W(*f)], max(fs, O1 + 4))
            assert j + 3 <= WO + worder.index(f[:2]), (f, j)
        mems[WO + 3] += keep(opt('ke', 0))
        mems[5] += keep(opt('kb', 0))
        if opt('fill', True): A.fill = v(vOW)
        for i, (x, deps) in enumerate(ST):
            for d in deps: self.needl(d)
            if i or not spec: x()
            if self.kw.get('pslot') == i: self.fl("h3")
            for m in mems[i]: m()
            if i + 1 < N and i != WO - 1:
                for d in reversed(ST[i + 1][1]): self.needl(d)
            for x in vals[i]: x()
            for x in post[i]: x()
        A.fill = None
        self.fl(14)
        if self.flog:
            self.fl_collect(14); self.lq = []; self.vq.append("log")
        def pad16(n):
            for _ in range(n):
                A.I("v_mov_b32", v(t0), 0); A.nop(3)
        junk = []
        for r, inc in ((sKXN, 32 * 8192), (sVXN, 32 * 8192), (sKM, 32 * 4096)):
            junk.append(valu("s_add_u32", s(r), s(r), hex(inc)))
        junk.append(valu("s_add_u32", s(sMBLD), s(sMBST), 1024 * w))
        junk.append(valu("s_add_u32", s(sMBLD2), s(sMBLD), 4096))
        for j in range(2): junk.append(valu("s_xor_b32", s(sPBST + j), s(sPBST + j), hex(PBPAR)))
        junk.append(valu("s_mov_b32", s(sBIG), f2h(2.0 ** self.kw.get('bigexp', 20))))
        if w == 0: junk.append(valu("v_mov_b32", v(vFLG), s(sSTEP)))
        junk.append(valu("s_add_u32", s(sSTEP), s(sSTEP), 1))
        if w >= WE: junk += [valu("v_cndmask_b32", v(SEL + d), 0, v(vSEL), s(self.sSEL + 2 * d, 2)) for d in range(4)]
        junk += [valu("v_mov_b32", v(r), 0) for r in range(vQK, vQK + 24) if w < WE or not vVA <= r < vVA + 6]
        pf = self.prefetch_items()
        if self.kreg:
            kb = [] if opt('kbd', False) else [lambda: self.needv("kk"), bar]
            pf = kb + pf + self.kreads() if opt('kb0', True) else pf + kb + self.kreads()
        def tail():
            A.I("s_add_u32", s(sMBST), s(sMBST), 8192)
            assert (WS_MB + self.wo) & 0xffff == 0
            A.I("s_bitset0_b32", s(sMBST), 15)
            A.I("s_xor_b32", s(sRST), s(sMBST), 16384)
            A.I("s_xor_b32", s(sPBLD), s(sPBLD), hex(PBPAR))
            A.I("s_xor_b32", s(sPBLD2), s(sPBLD), 1024)
            A.I("s_bfe_u32", s(sTAG), s(sSTEP), hex(0x10001))
        if w < WE:
            if opt('pf1', self.kreg): junk, pf = pf, junk
            for x in junk: x()
            pad16(opt('wpre', 0))
            for x in pf: x()
            tail()
            if self.kvcheck:
                A.I("s_add_u32", s(sT1), s(sSTEP), 6 if opt('pfk', 0) else 5)
                A.I("s_lshr_b32", s(sT1), s(sT1), 2)
                A.I("s_min_u32", s(sT1), s(sT1), 16)
                A.I("s_bfm_b32", s(sNEED), s(sT1), 0)
                lkv = A.newlabel("kvw"); lkb = A.newlabel("kvb")
                self.needv("kvf")
                A.I("v_cmp_eq_u32", "vcc", 0, v(vDUM))
                A.I("s_and_b64", "vcc", "vcc", s(sNEED, 2))
                A.I("s_cbranch_scc1", lkv)
                A.label(lkb)
                def ool_kv():
                    A.label(lkv)
                    self.retry_head(sNRF, lkb)
                    A.I("s_sleep", 4)
                    A.I("buffer_load_dword", v(vDUM), v(vL4), s(S_WS, 4), s(sKVF), mods="offen sc1")
                    A.I("s_waitcnt", "vmcnt(0)")
                    A.I("v_cmp_eq_u32", "vcc", 0, v(vDUM))
                    A.I("s_and_b64", "vcc", "vcc", s(sNEED, 2))
                    A.I("s_cbranch_scc1", lkv)
                    A.I("s_branch", lkb)
                self.ool.append(ool_kv)
            pad16(opt('wpad', 20) - (7 if self.flog else 0))
            A.I("s_waitcnt", "lgkmcnt(0)")
            A.I("s_branch", LTOP)
            return
        def rloads(mod, track=True):
            for m in range(4):
                (self.vm if track else untracked)(f"r{m}", "buffer_load_dwordx4", v(RL[m], 4), v(vL16), s(S_WS, 4), s(sPBLD2 if m & 1 else sPBLD),
                        mods=self.mods("offen", self.off((m & 2) * 1024), mod))
        rp = self.rp[w - WE] - (25 if self.flog else 0)
        npf = len(pf) - 16 + opt('rpf', 0 if self.kreg else 16)
        junk = pf[:npf] + junk
        junk += [valu("v_mov_b32", v(tc), 0)] * max(0, rp + 1 - len(junk))
        junk = junk[:rp] + pf[npf:] + junk[rp:]
        for i, x in enumerate(junk):
            if i == rp: self.fl("h6"); rloads(self.pollmod)
            x()
        lrl = A.newlabel("rl"); lrs = A.newlabel("rslow"); lrg = A.newlabel("rgo")
        if early3:
            for _ in range(opt('e3pad', 0)): A.I("v_mov_b32", v(tc), 0)
            if opt('e3pos', 0) == 0: self.fl("h7"); mload(0, self.pollmod, "f0n")
        for m in range(4):
            self.needv(f"r{m}")
            if m == 0 and early3 and opt('e3pos', 0) == 1: self.fl("h7"); mload(0, self.pollmod, "f0n")
            if m == 0: A.label(lrl)
            A.I(MF, v(RD, 4), v(RL[m], 4), v(SEL, 4), 0 if m == 0 else v(RD, 4))
            A.I("v_xor_b32", v(tc + (m > 0)), s(sTAG), v(RL[m]))
            if m: A.I("v_or_b32", v(tc), v(tc), v(tc + 1))
        self.fl("h8")
        A.I("v_and_b32", v(tc), 1, v(tc))
        A.I("v_cmp_ne_u32", "vcc", 0, v(tc))
        if not nochk: A.I("s_cbranch_vccnz", lrs)
        A.label(lrg)
        A.I("v_permlane32_swap_b32", v(RD), v(RD + 2))
        A.I("v_permlane32_swap_b32", v(RD + 1), v(RD + 3))
        A.I("v_pk_add_f32", v(RD, 2), v(RD, 2), v(RD + 2, 2))
        A.I("s_mov_b64", "exec", s(sRMASK, 2))
        A.I("v_cvt_pk_bf16_f32", v(SEL), v(RD), v(RD + 1))
        A.I("v_min_u32", v(SEL), "0xfffffffe", v(SEL))
        A.I("buffer_store_dword", v(SEL), v(vMST), s(S_WS, 4), s(sMBST), mods=self.mods("offen", sc or opt('mmod', '')))
        A.I("s_mov_b64", "exec", -1)
        self.fl(15)
        def ool_r():
            A.label(lrs)
            rloads("sc1", False)
            self.retry_head(sNRR, lrg)
            A.I("s_waitcnt", "vmcnt(0)")
            A.I("s_branch", lrl)
        self.ool.append(ool_r)
        tail()
        A.I("s_waitcnt", "lgkmcnt(0)")
        A.I("s_branch", LTOP)

    def dump_timing(self):
        A = self.A
        A.I("s_lshl_b32", s(sT0), s(sH), 2)
        A.I("s_add_u32", s(sT0), s(sT0), s(sWV))
        A.I("s_lshl_b32", s(sT0), s(sT0), 7)
        A.I("s_add_u32", s(sT0), s(sT0), hex(WS_TS))
        regs = [sACC + i for i in range(16)] + [sNRM, sNRR, sNRF, self.sNRX]
        for i, r in enumerate(regs):
            A.I("v_mov_b32", v(1), s(r))
            A.I("buffer_store_dword", v(1), "off", s(S_WS, 4), s(sT0), mods=f"offset:{4*i}")

    def emit_ool(self):
        for f in self.ool:
            self.A.reset_haz()
            f()
        self.ool = []
```

```python
import math
from asmgen import *
from layout import *
from common import *

S_WS = 8; S_W = 12
sHP, sWV, sSEG, sSTR = 20, 21, 22, 23
sT0, sT1, sT2 = 24, 25, 26
sW1K = 27
sC1 = 28
sMASK = 30
sQ, sK, sV, sKM, sVM, sPO = 46, 47, 48, 49, 50, 51
sOXW = 52
sNEG = 53
sK2, sV2 = 54, 55

vQ = 0; vK = 16; vKMf = 48; vV = 64; vKV = 172; vVMB = 104
KSCR = 0x22000
vS = 112
vP = 124
vLA = 132; vONE = 136
vO = 140
vOF = 0
vACC = 172
vL16, vL8, vPOo, vOXW, vOXR, vT, vT2, vT3 = 240, 241, 242, 243, 244, 246, 247, 248
vKSW, vKSR = 253, 254
MF = "v_mfma_f32_16x16x32_bf16"; MF16 = "v_mfma_f32_16x16x16_bf16"

class Phase2:
    def __init__(self, A, tag="p2", ldmod="", stmod="", progmask=0xff, sl=(8, 2)):
        self.sl = sl
        self.progmask = progmask
        self.A = A; self.tag = tag; self.ldmod = ldmod; self.stmod = stmod

    def setup(self):
        A = self.A
        L, G, C, T, U, R = 1, 2, 3, 4, 5, 6
        srd(A, S_W, 40, 4 << 20)
        A.I("v_lshrrev_b32", v(T), 6, v(0))
        A.I("v_readfirstlane_b32", s(sWV), v(T))
        A.I("v_and_b32", v(L), 63, v(0))
        A.I("v_lshrrev_b32", v(G), 4, v(L))
        A.I("v_and_b32", v(C), 15, v(L))
        A.I("v_lshrrev_b32", v(R), 2, v(C))
        A.I("v_lshlrev_b32", v(vL16), 4, v(L))
        A.I("v_lshlrev_b32", v(vL8), 3, v(L))
        A.I("s_lshl_b32", s(sW1K), s(sWV), 10)
        A.I("s_lshl_b32", s(sT0), s(sWV), 5)
        A.I("v_xor_b32", v(T), s(sT0), v(vL16))
        A.I("v_add_u32", v(8), s(sW1K), v(T))
        A.I("v_xor_b32", v(9), 128, v(8))
        A.I("v_lshl_add_u32", v(T), v(G), 2, v(R))
        A.I("v_and_b32", v(U), 7, v(T))
        A.I("v_lshlrev_b32", v(T), 10, v(T))
        A.I("v_lshl_add_u32", v(T), v(U), 5, v(T))
        A.I("v_and_b32", v(U), 3, v(C))
        A.I("v_lshl_add_u32", v(T), v(U), 3, v(T))
        A.I("s_lshl_b32", s(sT0), s(sWV), 8)
        A.I("v_add_u32", v(10), s(sT0), v(T))
        for hh in range(2):
            if hh: A.I("s_barrier")
            A.I("s_lshl_b32", s(sT1), s(sHP), 18)
            for ks in range(4):
                for i in range(8):
                    A.I("s_add_u32", s(sT0), s(sT1), hex(hh * 131072 + (32 * ks + 4 * i) * 1024))
                    A.I("s_add_u32", "m0", s(sW1K), hex(ks * 32768 + 4 * i * 1024))
                    A.I("buffer_load_dwordx4", v(9 if i & 1 else 8), s(S_W, 4), s(sT0), mods="offen lds")
            A.I("s_waitcnt", "vmcnt(0)")
            A.I("s_barrier")
            for half in range(2):
                for t in range(8):
                    A.I("v_xor_b32", v(11), hex((t << 5) | (half << 16)), v(10))
                    for k2 in range(2):
                        ks = 2 * half + k2
                        for q in range(2):
                            A.I("ds_read_b64_tr_b16", a(((hh * 4 + ks) * 8 + t) * 4 + 2 * q, 2), v(11), mods=off(k2 * 32768 + q * 16384))
                    if t & 1: A.I("s_waitcnt", "lgkmcnt(0)")
        A.I("s_barrier")
        A.I("s_and_b32", s(sT0), s(sWV), 1)
        A.I("s_lshl_b32", s(sT0), s(sT0), 4)
        A.I("v_add_u32", v(T), s(sT0), v(C))
        A.I("v_lshlrev_b32", v(U), 2, v(G))
        A.I("v_sub_u32", v(T), v(T), v(U))
        for tau in range(2):
            for r in range(4):
                A.I("v_cmp_le_i32", s(sMASK + 2 * (tau * 4 + r), 2), 16 * tau + r, v(T))
        c1 = f2h((DH ** -0.5) * math.log2(math.e))
        A.I("s_mov_b32", s(sC1), c1)
        A.I("s_mov_b32", s(sC1 + 1), c1)
        A.I("s_mov_b32", s(sNEG), "0xff000000")
        for i in range(4):
            A.I("v_mov_b32", v(vONE + i), "0x3f803f80")
        A.I("v_lshlrev_b32", v(T), 10, v(C))
        A.I("v_lshl_add_u32", v(T), v(G), 4, v(T))
        A.I("s_lshl_b32", s(sT0), s(sWV), 8)
        A.I("v_add_u32", v(vPOo), s(sT0), v(T))
        A.I("s_lshl_b32", s(sT0), s(sWV), 12)
        A.I("v_add_u32", v(vOXW), s(sT0), v(vL16))
        A.I("v_mov_b32", v(vOXR), v(vL16))
        A.I("s_add_u32", s(sT0), s(sT0), hex(KSCR))
        A.I("v_xor_b32", v(7), v(G), v(R))
        A.I("v_lshl_add_u32", v(T), v(G), 4, v(7))
        A.I("v_and_b32", v(U), 3, v(C))
        A.I("v_lshl_add_u32", v(T), v(T), 2, v(U))
        A.I("v_lshl_add_u32", v(vKSW), v(T), 2, s(sT0))
        A.I("v_lshl_add_u32", v(T), v(C), 2, v(7))
        A.I("v_lshl_add_u32", v(vKSR), v(T), 4, s(sT0))

    def seg_addrs(self):
        A = self.A
        A.I("s_lshl_b32", s(sT0), s(sSEG), 5)
        A.I("s_lshl_b32", s(sT1), s(sHP), 1)
        A.I("s_add_u32", s(sT0), s(sT0), s(sT1))
        A.I("s_lshr_b32", s(sT1), s(sWV), 1)
        A.I("s_add_u32", s(sT0), s(sT0), s(sT1))
        A.I("s_lshl_b32", s(sT1), s(sT0), 13)
        A.I("s_add_u32", s(sK), s(sT1), hex(WS_KX))
        A.I("s_add_u32", s(sK2), s(sK), 4096)
        A.I("s_add_u32", s(sV), s(sT1), hex(WS_VX))
        A.I("s_add_u32", s(sV2), s(sV), 4096)
        A.I("s_and_b32", s(sT2), s(sWV), 1)
        A.I("s_lshl_b32", s(sT2), s(sT2), 12)
        A.I("s_add_u32", s(sQ), s(sT1), s(sT2))
        A.I("s_add_u32", s(sQ), s(sQ), hex(WS_QX))
        A.I("s_lshl_b32", s(sT1), s(sT0), 12)
        A.I("s_add_u32", s(sKM), s(sT1), hex(WS_KM))
        A.I("s_lshl_b32", s(sT0), s(sSEG), 4)
        A.I("s_add_u32", s(sT0), s(sT0), s(sHP))
        A.I("s_lshl_b32", s(sT0), s(sT0), 15)
        A.I("s_add_u32", s(sPO), s(sT0), hex(WS_PO))

    def loads_x(self):
        A = self.A; m = self.ldmod
        for ks in range(4):
            A.I("buffer_load_dwordx4", v(vQ + 4 * ks, 4), v(vL16), s(S_WS, 4), s(sQ), mods=mods("offen", off(1024 * ks), m))
        for i in range(8):
            A.I("buffer_load_dwordx4", v(vK + 4 * i, 4), v(vL16), s(S_WS, 4), s(sK if i < 4 else sK2), mods=mods("offen", off(1024 * (i & 3)), m))
        for i in range(8):
            A.I("buffer_load_dwordx4", v(vV + 4 * i, 4), v(vL16), s(S_WS, 4), s(sV if i < 4 else sV2), mods=mods("offen", off(1024 * (i & 3)), m))

    def loads_m(self):
        A = self.A; m = self.ldmod
        for w in range(4):
            A.I("buffer_load_dwordx4", v(vKV + 4 * w, 4), v(vL16), s(S_WS, 4), s(sKM), mods=mods("offen", off(1024 * w), m))

    def segment(self, mid=None):
        A = self.A
        DM_, D0, D1 = vS, vS + 4, vS + 8
        PX, PM = vP, vP + 4
        tm, tt, mc, ri = vT, vT2, vT3, 250
        A.I("s_waitcnt", "vmcnt(8)" if mid else "vmcnt(12)")
        for tau, D in ((0, D0), (1, D1)):
            for ks in range(4):
                A.I(MF, v(D, 4), v(vK + 16 * tau + 4 * ks, 4), v(vQ + 4 * ks, 4), 0 if ks == 0 else v(D, 4))
        A.I("v_mov_b32", v(tt), s(sNEG))
        for tau, D in ((0, D0), (1, D1)):
            for r in range(4):
                A.I("v_cndmask_b32", v(D + r), v(tt), v(D + r), s(sMASK + 2 * (tau * 4 + r), 2))
        A.I("v_max3_f32", v(251), v(D0), v(D0 + 1), v(D0 + 2))
        A.I("v_max3_f32", v(251), v(251), v(D0 + 3), v(D1))
        A.I("v_max3_f32", v(251), v(251), v(D1 + 1), v(D1 + 2))
        if mid: mid()
        A.I("s_waitcnt", "vmcnt(0)")
        for w in range(4):
            for b in range(2):
                A.I("ds_write_b32", v(vKSW), v(vKV + 4 * w + 1 + 2 * b), mods=off(1024 * w + 64 * b))
        for ks in range(4):
            A.I("ds_read_b128", v(vKMf + 4 * ks, 4), v(vKSR), mods=off(1024 * ks))
        A.I("s_waitcnt", "lgkmcnt(0)")
        for ks in range(4):
            A.I(MF, v(DM_, 4), v(vKMf + 4 * ks, 4), v(vQ + 4 * ks, 4), 0 if ks == 0 else v(DM_, 4))
        A.I("v_mov_b32", v(tm), v(251))
        A.I("v_max3_f32", v(tm), v(tm), v(D1 + 3), v(DM_))
        A.I("v_max_f32", v(tm), v(tm), v(DM_ + 1))
        xor_reduce(A, "v_max_f32", tm, tt)
        A.I("v_mul_f32", v(mc), s(sC1), v(tm))
        prs = [D0, D0 + 2, D1, D1 + 2, DM_]
        for r in prs:
            A.I("v_pk_fma_f32", v(r, 2), v(r, 2), s(sC1, 2), v(mc, 2), mods="op_sel_hi:[1,1,0] neg_lo:[0,0,1] neg_hi:[0,0,1]")
        for r in prs:
            A.I("v_exp_f32", v(r), v(r))
            A.I("v_exp_f32", v(r + 1), v(r + 1))
        for i, r in enumerate(prs):
            A.I("v_cvt_pk_bf16_f32", v(PX + i), v(r), v(r + 1))
        A.I("v_mov_b32", v(PM + 1), 0)
        A.I(MF, v(vLA, 4), v(vONE, 4), v(PX, 4), 0)
        for phi in range(8):
            A.I(MF, v(vO + 4 * phi, 4), v(vV + 4 * phi, 4), v(PX, 4), 0)
        A.I(MF16, v(vLA, 4), v(vONE, 2), v(PM, 2), v(vLA, 4))
        for phi in range(8):
            src = vKV + 2 * phi
            A.I(MF16, v(vO + 4 * phi, 4), v(src, 2), v(PM, 2), v(vO + 4 * phi, 4))
        A.I("v_rcp_f32", v(ri), v(vLA))
        for i in range(16):
            A.I("v_pk_mul_f32", v(vO + 2 * i, 2), v(vO + 2 * i, 2), v(ri, 2), mods="op_sel_hi:[1,0]")
        for i in range(16):
            A.I("v_cvt_pk_bf16_f32", v(vO + i), v(vO + 2 * i), v(vO + 2 * i + 1))
        for ks in range(4):
            A.I("ds_write_b128", v(vOXW), v(vO + 4 * ks, 4), mods=off(1024 * ks))
        A.I("s_waitcnt", "lgkmcnt(0)")
        A.I("s_barrier")
        for f in range(16):
            A.I("ds_read_b128", v(vOF + 4 * f, 4), v(vOXR), mods=off(1024 * f))
            if f == 7: A.I("s_waitcnt", "lgkmcnt(4)")
        A.I("v_xor_b32", v(vOXW), hex(0x4000), v(vOXW))
        A.I("v_xor_b32", v(vOXR), hex(0x4000), v(vOXR))
        A.I("s_waitcnt", "lgkmcnt(0)")
        for qt in range(2):
            for hh in range(2):
                for ks in range(4):
                    for t in range(8):
                        acc = v(vACC + (qt * 8 + t) * 4, 4)
                        A.I(MF, acc, a(((hh * 4 + ks) * 8 + t) * 4, 4), v(vOF + ((hh * 2 + qt) * 4 + ks) * 4, 4),
                            0 if (hh == 0 and ks == 0) else acc)
                    if qt == 1 and hh == 0: self.store_u(0, ks)

    def store_u(self, qt, u):
        A = self.A
        g = vO + 4 * u
        t0 = vACC + (qt * 8 + 2 * u) * 4
        for i in range(4):
            A.I("v_cvt_pk_bf16_f32", v(g + i), v(t0 + 2 * i), v(t0 + 2 * i + 1))
        if u == 0: A.I("s_add_u32", s(sT0), s(sPO), qt * 16384)
        A.I("buffer_store_dwordx4", v(g, 4), v(vPOo), s(S_WS, 4), s(sT0), mods=mods("offen", off(64 * u), self.stmod))

    def store_po(self):
        for u in range(4): self.store_u(1, u)

    def body(self):
        A = self.A
        self.setup()
        LP = f"L_{self.tag}_seg"; LE = f"L_{self.tag}_end"
        A.barrier_haz()
        A.label(LP)
        A.reset_haz()
        A.I("s_cmp_ge_u32", s(sSEG), NSEG)
        A.I("s_cbranch_scc1", LE)
        self.seg_addrs()
        self.loads_x()
        self.loads_m()
        self.segment()
        self.store_po()
        A.I("s_add_u32", s(sSEG), s(sSEG), s(sSTR))
        A.I("s_branch", LP)
        A.label(LE)
        A.reset_haz()

    def mega(self, fin, after_setup=None, lag=None, late_stage=None):
        A = self.A
        self.setup()
        fin.setup()
        if after_setup: after_setup()
        ts(A, 3)
        A.I("v_lshrrev_b32", v(vT), 2, v(vL16))
        for mat in range(3):
            A.I("s_lshl_b32", s(sT0), s(sHP), 7)
            A.I("s_add_u32", s(sT0), s(sT0), hex(WS_CTRL + CT_F1 + mat * 32 * 64))
            wait_words(A, S_WS, vT, s(sT0), 32, 1, vT2, sleep=32)
        ts(A, 4)
        A.I("s_mov_b32", s(80), 0)
        LP = f"L_{self.tag}_seg"; LE = f"L_{self.tag}_end"
        A.barrier_haz()
        A.label(LP)
        A.reset_haz()
        A.I("s_cmp_ge_u32", s(sSEG), NSEG)
        A.I("s_cbranch_scc1", LE)
        if lag:
            A.I("v_lshrrev_b32", v(vT), 2, v(vL16))
            A.I("s_lshl_b32", s(sT0), s(sHP), 7)
            A.I("s_add_u32", s(sT0), s(sT0), hex(WS_CTRL + CT_PROG))
            A.I("s_mul_i32", s(sT1), s(sSEG), lag[1])
            A.I("s_lshr_b32", s(sT1), s(sT1), 4)
            A.I("s_add_u32", s(sT1), s(sT1), lag[0])
            wait_words(A, S_WS, vT, s(sT0), 1, s(sT1), vT2, sleep=self.sl[0], paced=True)
        if late_stage: late_stage()
        self.seg_addrs()
        self.loads_x()
        def mid():
            A.I("v_lshrrev_b32", v(vT), 2, v(vL16))
            A.I("s_lshl_b32", s(sT0), s(sHP), 7)
            A.I("s_add_u32", s(sT0), s(sT0), hex(WS_CTRL + CT_PROG))
            A.I("s_add_u32", s(sT1), s(sSEG), 1)
            A.barrier_haz()
            wait_words(A, S_WS, vT, s(sT0), 8, s(sT1), vT2, sleep=self.sl[0], paced=True, mask=self.progmask)
            ts(A, 16, dyn=80)
            self.loads_m()
        self.segment(mid)
        self.store_po()
        A.I("s_waitcnt", "vmcnt(0)")
        A.I("s_barrier")
        ts(A, 17, dyn=80)
        A.I("s_lshl_b32", s(sT1), s(sSEG), 6)
        A.I("s_add_u32", s(sT1), s(sT1), hex(WS_CTRL + CT_F2))
        A.I("s_lshl_b32", s(sT0), s(sHP), 2)
        A.I("s_add_u32", s(sT0), s(sT0), s(sT1))
        set_flag(A, S_WS, s(sT0), vT)
        A.I("v_lshrrev_b32", v(vT), 2, v(vL16))
        wait_words(A, S_WS, vT, s(sT1), 16, 1, vT2, sleep=self.sl[1])
        ts(A, 18, dyn=80)
        lsk = A.newlabel("nofin")
        A.I("s_cmp_ge_u32", s(sGW), 2)
        A.I("s_cbranch_scc1", lsk)
        A.I("s_lshl_b32", s(fin.sROW), s(sSEG), 5)
        A.I("s_lshl_b32", s(sT0), s(sHP), 1)
        A.I("s_add_u32", s(fin.sROW), s(fin.sROW), s(sT0))
        A.I("s_add_u32", s(fin.sROW), s(fin.sROW), s(sGW))
        fin.row()
        A.barrier_haz()
        A.label(lsk)
        A.reset_haz()
        ts(A, 19, dyn=80)
        A.I("s_add_u32", s(80), s(80), 4)
        A.I("s_add_u32", s(sSEG), s(sSEG), s(sSTR))
        A.I("s_branch", LP)
        A.label(LE)
        A.reset_haz()
```

```python
import sys
from asmgen import *
from layout import *
from common import *
import chain6 as C
import phase1 as P1
import phase2 as P2
import tail as TL

HEAD = open("sequential_preLN__memory_aug_recurrent_mem_tr__moe_arch_mod__prompt.s.ref").read().split("; Override launch")[0]

KNAME = "sequential_preLN__memory_aug_recurrent_mem_tr__moe_arch_mod__prompt_kernel"
DB_GARR, DB_MODE, DB_CTRL, DB_TICK, DB_XCD = 32, 36, 40, 44, 64
FB_OFF = 0x7000000

def entry_warm(A):
    A.I("s_load_dwordx4", s(20, 4), s(0, 2), 16)
    A.I("s_load_dwordx4", s(24, 4), s(0, 2), 32)
    A.I("v_lshlrev_b32", v(3), 6, v(0))
    A.I("s_lshl_b32", s(28), s(2), 14)
    A.I("s_cmp_eq_u32", s(84), 0)
    A.I("s_cselect_b32", s(14), 0, hex(4 << 20))
    A.I("s_mov_b32", s(15), "0x20000")
    A.I("s_waitcnt", "lgkmcnt(0)")
    for i in range(4):
        A.I("s_mov_b32", s(12), s(20 + 2 * i))
        A.I("s_and_b32", s(13), s(21 + 2 * i), "0xffff")
        A.I("buffer_load_dword", v(255), v(3), s(12, 4), s(28), mods="offen")

def bcast_atomic(A, off_s_or_imm, sdst, lds_slot, mid=None):
    l = A.newlabel("at")
    A.I("s_cmp_lg_u32", s(sGW), 0)
    A.I("s_cbranch_scc1", l)
    A.I("s_mov_b64", "exec", 1)
    A.I("v_mov_b32", v(2), 1)
    A.I("buffer_atomic_add", v(2), "off", s(S_DBGG, 4), off_s_or_imm, mods="sc0")
    A.I("s_mov_b64", "exec", -1)
    A.label(l)
    l = A.newlabel("at2")
    if mid: mid(A)
    A.I("s_cmp_lg_u32", s(sGW), 0)
    A.I("s_cbranch_scc1", l)
    A.I("s_mov_b64", "exec", 1)
    A.I("v_mov_b32", v(1), lds_slot)
    A.I("s_waitcnt", "vmcnt(4)" if mid else "vmcnt(0)")
    A.I("ds_write_b32", v(1), v(2))
    A.I("s_waitcnt", "lgkmcnt(0)")
    A.I("s_mov_b64", "exec", -1)
    A.label(l)
    A.I("s_barrier")
    A.I("v_mov_b32", v(1), lds_slot)
    A.I("ds_read_b32", v(2), v(1))
    A.I("s_waitcnt", "lgkmcnt(0)")
    A.I("v_readfirstlane_b32", s(sdst), v(2))

def wait_mode(A, sdst, vt):
    lp = A.newlabel("mode"); ld = A.newlabel("moded"); lf = A.newlabel("modef")
    A.I("s_mov_b32", s(sPT0), 0)
    A.label(lp)
    A.I("buffer_load_dwordx2", v(vt, 2), "off", s(S_DBGG, 4), 0, mods=f"offset:{DB_MODE} sc1")
    A.I("s_waitcnt", "vmcnt(0)")
    A.I("v_readfirstlane_b32", s(sdst), v(vt))
    A.I("v_readfirstlane_b32", s(sPT1), v(vt + 1))
    A.I("s_min_u32", s(sPT1), s(sPT1), s(sdst))
    A.I("s_cmp_lg_u32", s(sPT1), 0)
    A.I("s_cbranch_scc1", ld)
    A.I("s_sleep", 4)
    A.I("s_add_u32", s(sPT0), s(sPT0), 1)
    A.I("s_cmp_lg_u32", s(sPT0), hex(1 << 8))
    A.I("s_cbranch_scc1", lf)
    A.I("v_mov_b32", v(vt), 2)
    A.I("v_mov_b32", v(vt + 1), 0)
    A.I("s_mov_b64", "exec", 1)
    A.I("buffer_atomic_cmpswap", v(vt, 2), "off", s(S_DBGG, 4), 0, mods=f"offset:{DB_MODE}")
    A.I("s_mov_b64", "exec", -1)
    A.label(lf)
    A.I("s_cmp_lt_u32", s(sPT0), hex(POLL_MAX))
    A.I("s_cbranch_scc1", lp)
    A.label(ld)
    A.reset_haz()

def k_mega(A, force_fb=False, **kw):
    name = KNAME
    kernel_header(A, name)
    sX, sR, sG, sMODE = 84, 85, 86, 87
    A.I("s_cmp_ge_u32", s(2), 256)
    A.I("s_cbranch_scc1", "L_exit")
    srd(A, 8, 112, 0x10000000)
    srd(A, S_DBGG, 104, 256)
    A.I("v_lshrrev_b32", v(1), 6, v(0))
    A.I("v_readfirstlane_b32", s(sGW), v(1))
    A.I("s_getreg_b32", s(sX), "hwreg(HW_REG_XCC_ID)")
    A.I("s_and_b32", s(sX), s(sX), 7)
    A.I("s_lshl_b32", s(sPT1), s(sX), 4)
    A.I("s_add_u32", s(sPT1), s(sPT1), DB_XCD)
    bcast_atomic(A, s(sPT1), sR, 0, mid=entry_warm if kw.get('ewarm') else None)
    A.I("s_mov_b32", s(sMODE), 0)
    A.I("s_cmp_lg_u32", s(2), 0)
    A.I("s_cbranch_scc1", "L_noz")
    for i in range(4):
        A.I("v_mov_b32", v(4 + i), 0)
    A.I("v_lshlrev_b32", v(1), 4, v(0))
    for i in range(CT_SIZE // 4096):
        A.I("s_mov_b32", s(sPT1), hex(WS_CTRL + i * 4096))
        A.I("buffer_store_dwordx4", v(4, 4), v(1), s(8, 4), s(sPT1), mods="offen sc1")
    A.I("s_waitcnt", "vmcnt(0)")
    A.I("s_barrier")
    set_flag(A, S_DBGG, DB_CTRL, 2)
    A.label("L_noz")
    A.I("s_cmp_lg_u32", s(sR), 32 if force_fb else 31)
    A.I("s_cbranch_scc1", "L_nod")
    A.I("s_cmp_lg_u32", s(sGW), 0)
    A.I("s_cbranch_scc1", "L_nod")
    A.I("s_mov_b64", "exec", 1)
    A.I("v_mov_b32", v(2), 1)
    A.I("buffer_atomic_add", v(2), "off", s(S_DBGG, 4), 0, mods=f"offset:{DB_GARR} sc0")
    A.I("s_waitcnt", "vmcnt(0)")
    A.I("v_readfirstlane_b32", s(sG), v(2))
    A.I("s_cmp_lg_u32", s(sG), 7)
    A.I("s_cbranch_scc1", "L_nod2")
    A.I("v_mov_b32", v(2), 1)
    A.I("v_mov_b32", v(3), 0)
    A.I("buffer_atomic_cmpswap", v(2, 2), "off", s(S_DBGG, 4), 0, mods=f"offset:{DB_MODE}")
    A.label("L_nod2")
    A.I("s_mov_b64", "exec", -1)
    A.label("L_nod")
    A.reset_haz()
    A.I("s_cmp_ge_u32", s(sR), 32)
    A.I("s_cbranch_scc1", "L_odd")
    A.I("s_cmp_lg_u32", s(sX), 0)
    A.I("s_cbranch_scc1", "L_other")

    def kv_wait(ch, first=True, mask=0x00010001):
        t0, t1 = (1, 2) if first else (8, 9)
        A.I("v_lshrrev_b32", v(t0), 4, v(C.vL16))
        A.I("v_and_b32", v(t1), 15, v(t0))
        A.I("v_lshrrev_b32", v(t0), 4, v(t0))
        A.I("v_lshlrev_b32", v(t0), 11, v(t0))
        A.I("v_lshl_add_u32", v(t0), v(t1), 2, v(t0))
        A.I("s_lshl_b32", s(C.sT0), s(C.sH), 6)
        A.I("s_add_u32", s(C.sT0), s(C.sT0), hex(WS_CTRL + CT_F1))
        wait_words(A, C.S_WS, t0, s(C.sT0), 32, 1, t1, sleep=4, barrier=first, mask=mask)

    def chain_role(fast):
        for i in range(4):
            A.I("s_mov_b32", s(C.S_DBG + i), s(S_DBGG + i))
        A.I("s_mov_b32", s(sPID), s(C.sH))
        ts(A, 0, 3)
        def pre(ch):
            ts(A, 1, 3)
            if fast:
                wait_mode(A, sMODE, 2)
                A.I("s_cmp_lg_u32", s(sMODE), 1)
                A.I("s_cbranch_scc1", "L_fallback")
            kv_wait(ch)
            ts(A, 2, 3)
        ch = C.Chain(A, sc="" if fast else "sc1", tag="f" if fast else "s", wsoff=0 if fast else FB_OFF, cbar=4 if fast else 8, pre_start=pre, kvcheck=True, **kw)
        ch.lane_consts()
        ch.load_weights()
        ch.prologue()
        ts(A, 3, 3)
        if PROF[0]:
            A.I("s_memtime", s(78, 2))
            A.I("s_waitcnt", "lgkmcnt(0)")
        ch.step_loop()
        if PROF[0]: A.I("s_mov_b32", s(sPID), s(C.sH))
        ts(A, 4, 3)
        if PROF[0]:
            A.I("s_memtime", s(80, 2))
            A.I("s_lshl_b32", s(C.sT0), s(C.sH), 2)
            A.I("s_add_u32", s(C.sT0), s(C.sT0), s(C.sWV))
            A.I("s_lshl_b32", s(C.sT0), s(C.sT0), 5)
            A.I("s_add_u32", s(C.sT0), s(C.sT0), hex(WS_TS + 0x100000))
            A.I("s_waitcnt", "lgkmcnt(0)")
            A.I("s_sub_u32", s(80), s(80), s(78))
            for i, r in enumerate((80, C.sNRM, C.sNRR, C.sNRF)):
                A.I("v_mov_b32", v(1), s(r))
                A.I("buffer_store_dword", v(1), "off", s(C.S_WS, 4), s(C.sT0), mods=f"offset:{4 * i}")
        if kw.get("wb"):
            l = A.newlabel("nowb")
            A.I("s_add_u32", s(C.sT0), s(C.sH), s(C.sWV))
            A.I("s_cmp_lg_u32", s(C.sT0), 0)
            A.I("s_cbranch_scc1", l)
            A.I("buffer_wbl2", mods="sc1")
            A.I("s_waitcnt", "vmcnt(0)")
            A.label(l)
        A.I("s_endpgm")
        return ch

    A.I("s_mov_b32", s(C.sH), s(sR))
    chf = chain_role(True)
    chf.emit_ool()
    A.label("L_other")
    A.reset_haz()
    A.I("s_sub_u32", s(sGB), s(sX), 1)
    A.I("s_lshl_b32", s(sGB), s(sGB), 5)
    A.I("s_add_u32", s(sGB), s(sGB), s(sR))
    A.I("s_branch", "L_bulk")
    A.label("L_odd")
    A.reset_haz()
    wait_mode(A, sMODE, 2)
    A.I("s_cmp_eq_u32", s(sMODE), 1)
    A.I("s_cbranch_scc1", "L_exit")
    A.label("L_fallback")
    A.reset_haz()
    A.I("s_waitcnt", "vmcnt(0) lgkmcnt(0)")
    A.I("s_barrier")
    restore_tid(A)
    A.I("s_mov_b32", s(sPT1), DB_TICK)
    bcast_atomic(A, s(sPT1), sR, 8)
    A.I("s_barrier")
    A.I("s_sub_u32", s(sGB), s(sR), 32)
    A.I("s_cmp_ge_u32", s(sR), 32)
    A.I("s_cbranch_scc1", "L_bulk")
    A.I("s_mov_b32", s(C.sH), s(sR))
    chs = chain_role(False)
    chs.emit_ool()
    A.label("L_bulk")
    A.reset_haz()
    A.I("s_add_u32", s(sPID), s(sGB), 32)
    ts(A, 0)
    NURG = 3
    def pass_b():
        A.I("s_mov_b32", s(P1.sPASS), 1)
        A.I("s_and_b32", s(P1.sRB), s(sGB), 15)
        A.I("s_lshr_b32", s(P1.sCG), s(sGB), 4)
        A.I("s_mov_b32", s(P1.sSTR), 14)
        A.I("s_add_u32", s(P1.sT0), s(P1.sCG), 70)
        A.I("s_add_u32", s(P1.sT1), s(P1.sCG), 56)
        A.I("s_cmp_ge_u32", s(P1.sT1), 64)
        A.I("s_cselect_b32", s(P1.sT0), s(P1.sT1), s(P1.sT0))
        A.I("s_add_u32", s(P1.sT1), s(P1.sCG), 42)
        A.I("s_add_u32", s(P1.sT2), s(P1.sCG), 28)
        A.I("s_cmp_ge_u32", s(P1.sT2), 32)
        A.I("s_cselect_b32", s(P1.sT1), s(P1.sT2), s(P1.sT1))
        A.I("s_cmp_eq_u32", s(P1.sRB), NURG)
        A.I("s_cselect_b32", s(P1.sCG), s(P1.sT1), s(P1.sCG))
        A.I("s_cmp_lt_u32", s(P1.sRB), NURG)
        A.I("s_cselect_b32", s(P1.sCG), s(P1.sT0), s(P1.sCG))
    A.I("s_mov_b32", s(P1.sPASS), 0)
    A.I("s_lshr_b32", s(P1.sRB), s(sGB), 6)
    A.I("s_and_b32", s(P1.sCG), s(sGB), 63)
    A.I("s_movk_i32", s(P1.sSTR), 1000)
    A.label("L_p1go")
    def next_pass(LP):
        A.I("s_cmp_lg_u32", s(P1.sPASS), 0)
        A.I("s_cbranch_scc1", "L_p1done")
        pass_b()
        A.I("s_branch", LP)
        A.label("L_p1done")
        A.reset_haz()
    def pre_flag():
        l = A.newlabel("modeok")
        A.I("s_cmp_lg_u32", s(sMODE), 0)
        A.I("s_cbranch_scc1", l)
        wait_mode(A, sMODE, 140)
        A.I("s_cmp_lg_u32", s(sMODE), 1)
        A.I("s_cbranch_scc1", "L_fallback")
        A.label(l)
    P1.Phase1(A).body(stmod="sc1", flags=True, pre_flag=pre_flag, warm_id=None if (kw.get('nowarm') or kw.get('ewarm')) else sGB, next_pass=next_pass, warm_first=kw.get('warmfirst', False))
    ts(A, 2)
    restore_tid(A)
    A.I("s_and_b32", s(P2.sHP), s(sGB), 15)
    A.I("s_lshr_b32", s(P2.sSEG), s(sGB), 4)
    A.I("s_mov_b32", s(P2.sSTR), 14)
    fin = TL.Finisher(A, stmod="sc1", home=(P2.vL16, 252, 236, 88))
    ffn = TL.FFN(A, stmod="sc1", poll=True)
    def stage():
        l = A.newlabel("nostage")
        A.I("s_sub_u32", s(ffn.sJ), s(sGB), 128)
        A.I("s_cmp_ge_u32", s(ffn.sJ), NFW)
        A.I("s_cbranch_scc1", l)
        if not kw.get('nostage'): ffn.stage()
        A.label(l)
        A.reset_haz()
    P2.Phase2(A, stmod="sc1", progmask=0x11 if kw.get("flag0") else 0xff, sl=kw.get("sl", (8, 2))).mega(fin, after_setup=stage, lag=kw.get('lag'))
    A.I("s_cmp_ge_u32", s(ffn.sJ), NFW)
    A.I("s_cbranch_scc1", "L_exit")
    ts(A, 5)
    sID, sRND = 74, 75
    A.I("s_mov_b32", s(sID), 0)
    A.I("s_mov_b32", s(sRND), 0)
    A.I("v_mov_b32", v(202), "0x7ffffff0")
    A.I("v_mov_b32", v(1), 0)
    A.I("s_and_b32", s(ffn.sT0), s(sGB), 15)
    A.I("s_lshl_b32", s(ffn.sT0), s(ffn.sT0), 7)
    A.I("s_add_u32", s(ffn.sT0), s(ffn.sT0), hex(WS_CTRL + CT_PROG))
    A.I("s_mov_b32", s(ffn.sT1), 61)
    wait_words(A, 8, 1, s(ffn.sT0), 1, s(ffn.sT1), 2, sleep=16, paced=True)
    A.label("L_ffn_round")
    A.reset_haz()
    restore_tid(A)
    A.I("s_cmp_lg_u32", s(sRND), 0)
    A.I("s_cbranch_scc1", "L_ffn_re")
    ffn.select(sRND)
    A.I("s_branch", "L_ffn_sel")
    A.label("L_ffn_re")
    A.reset_haz()
    ffn.reselect()
    A.label("L_ffn_sel")
    A.reset_haz()
    A.I("s_and_b32", s(ffn.sT0), s(ffn.sK1), 2047)
    A.I("s_lshl_b32", s(ffn.sT0), s(ffn.sT0), 11)
    A.I("s_and_b32", s(ffn.sT1), s(ffn.sK2), 2047)
    A.I("s_or_b32", s(ffn.sT0), s(ffn.sT0), s(ffn.sT1))
    A.I("s_add_u32", s(ffn.sT0), s(ffn.sT0), 1)
    A.I("s_cmp_eq_u32", s(ffn.sT0), s(sID))
    A.I("s_cbranch_scc1", "L_ffn_same")
    A.I("s_mov_b32", s(sID), s(ffn.sT0))
    ffn.compute()
    A.I("s_waitcnt", "vmcnt(0)")
    A.I("s_barrier")
    A.I("s_lshl_b32", s(ffn.sT0), s(ffn.sJ), 2)
    A.I("s_lshl_b32", s(ffn.sT1), s(sRND), 8)
    A.I("s_add_u32", s(ffn.sT0), s(ffn.sT0), s(ffn.sT1))
    A.I("s_add_u32", s(ffn.sT0), s(ffn.sT0), hex(WS_CTRL + CT_F4))
    set_flag(A, 8, s(ffn.sT0), 2, val=s(sID))
    A.I("s_cmp_ge_u32", s(ffn.sJ), TL.Final.NWG)
    A.I("s_cbranch_scc1", "L_ffn_same")
    fnl = TL.Final(A)
    fnl.pre(ffn.sJ)
    A.I("v_lshlrev_b32", v(1), 2, v(0))
    A.I("s_lshl_b32", s(ffn.sT0), s(sRND), 8)
    A.I("s_add_u32", s(ffn.sT0), s(ffn.sT0), hex(WS_CTRL + CT_F4))
    wait_words(A, 8, 1, s(ffn.sT0), NFW, s(sID), 2, sleep=2, equal=True)
    fnl.post()
    A.label("L_ffn_same")
    A.reset_haz()
    ts(A, 6, dyn=sRND)
    A.I("s_add_u32", s(sRND), s(sRND), 1)
    A.I("s_cmp_lt_u32", s(sRND), 2)
    A.I("s_cbranch_scc1", "L_ffn_round")
    A.I("s_cmp_ge_u32", s(ffn.sJ), TL.Final.NWG)
    A.I("s_cbranch_scc1", "L_exit")
    fnl.store()
    A.I("s_waitcnt", "vmcnt(0)")
    ts(A, 8)
    A.label("L_exit")
    A.I("s_endpgm")
    return name, 256, 163840

def build_single(k):
    A = Asm()
    name, grid, lds = k(A)[:3]
    out = HEAD + f"; @launch grid=({grid},1,1) block=(256,1,1) lds={lds}\n"
    out += '.amdgcn_target "amdgcn-amd-amdhsa--gfx950"\n.text\n' + A.text()
    out += '.section .rodata,"a"\n' + kernel_desc(name)
    return out

def build(kernels):
    A = Asm()
    infos = []
    for k in kernels:
        infos.append(k(A))
    body = A.text()
    out = HEAD
    for info in infos:
        name, grid, lds = info[:3]
        out += f"; @launch kernel={name} grid=({grid},1,1) block=(256,1,1) lds={lds}\n"
    out += '.amdgcn_target "amdgcn-amd-amdhsa--gfx950"\n.text\n' + body
    out += '.section .rodata,"a"\n'
    for info in infos:
        out += kernel_desc(info[0], *info[3:])
    return out

CH = dict(ewarm=True, flag0=True, rp=(60, 90), wpad=31, kreg=False, lag=(17, 10))
if __name__ == "__main__":
    which = sys.argv[1] if len(sys.argv) > 1 else "mega"
    if len(sys.argv) > 2: CH.update(eval(sys.argv[2]))
    OUT = sys.argv[3] if len(sys.argv) > 3 else None
    if which == "mega":
        txt = build_single(lambda A: k_mega(A, **CH))
        open("sequential_preLN__memory_aug_recurrent_mem_tr__moe_arch_mod__prompt.s", "w").write(txt)
        open("mega.s", "w").write(build([lambda A: k_mega(A, **CH)]))
        open("megafb.s", "w").write(build([lambda A: k_mega(A, force_fb=True, **CH)]))
    if which == "prof":
        PROF[0] = True
        open(OUT or "prof.s", "w").write(build([lambda A: k_mega(A, **CH)]))
    if which == "dbgts":
        DBGTS[0] = {0: (0, 12), 3: (0, 13), 4: (0, 14), 8: (160, 15)}
        open("dbgts.s", "w").write(build_single(lambda A: k_mega(A, **CH)))
```

```python
import math, struct
from asmgen import *
from layout import *
from common import ts, f2h, code_touch, mark

MBUF, KXB, VXB, WV = 0x0, 0x2000, 0x6000, 0x8000
XI, OI, FLG, ZRO = 0x4000, 0x5000, 0x5800, 0x5c00
PBPAR = 0x40000

S_WS = 8; S_W = 12; S_DBG = 16
sH, sWV, sSTEP = 20, 21, 22
sMBLD, sMBST = 23, 24
sPBST = 25
sTHR = 27
sKVF = 28
sPBLD = 29
sKXN, sVXN, sKM, sTAG = 30, 31, 32, 33
sC1, sBIG = 34, 35
sOMASK = 36
sRMASK = 38
sT1, sT2, sT3, sT0 = 40, 41, 42, 43
sFLAGOFF = 44
sNRM, sNRR = 45, 46
sNRF = 47
sNRX = 76
sMBLD2 = 48
sRETRY = 49
sONES = 50
sW1K, sW2K = 51, 52
sPBLD2 = 53
sLOGO = 54
sRST = 55
sSENT = 56
sOK = 57
sNEED = 58
sSEL = 92
sACC = 60

vM = 0; vQK = 32; vVA = 48; vWB = 56; vWA = 96; vPUB = 112
vIDX, vL16, vPBST, vMST, vXW, vXR, vOW, vWL, vWL2, vDUM, vFLG, vOR = range(116, 128)
vL4 = vMST; vSEL = vDUM
vWVR = 128; vWOR = 192
RETRY_MAX = 1 << 16
WE, WL_ = 2, 3

SMF = "v_smfmac_f32_16x16x64_bf16"; MF = "v_mfma_f32_16x16x32_bf16"; MF16 = "v_mfma_f32_16x16x16_bf16"

def home(mat, phi, slot):
    a_, fi = slot & 3, (slot >> 2) * 2 + phi
    if mat < 2:
        if a_ == 0: return ("lds", mat * 32768 + fi * 2048)
        return ("a", ((mat * 3 + a_ - 1) * 4 + fi) * 8)
    if a_ < 2: return ("a", 192 + (a_ * 4 + fi) * 8)
    return ("v", vWVR + ((a_ - 2) * 4 + fi) * 8)
def wo_home(T, j):
    if T < 2: return ("v", vWOR + (T * 4 + j) * 8)
    return ("lds", T * 32768 + j * 2048)
def reg8(h):
    return a(h[1], 8) if h[0] == "a" else v(h[1], 8)

class Chain:
    def __init__(self, A, sc, tag="f", **kw):
        self.A = A; self.sc = sc; self.tag = tag
        self.ool = []
        self.kw = kw
        self.x = kw.get('x', '')
        self.la = 4
        self.pollmod = kw.get('pollmod', 'nt') if not sc else 'sc1'
        self.align = kw.get('align', 0)
        self.cbar = kw.get('cbar', 4)
        self.flog = kw.get('flog', False)
        self.pubmod = 'sc1'
        self.wo = kw.get('wsoff', 0)
        self.pre_start = kw.get('pre_start')
        self.kvcheck = kw.get('kvcheck', False)
        self.skew = kw.get('skew', True)
        self.ring = kw.get('ring', True)
        self.merge = kw.get('merge', False)
        self.z = kw.get('z', (8, 24, 4, 24, 0))
        self.rp = kw.get('rp', (40, 65))
        self.lq = []; self.vq = []
        self.nfl = 0
        self.sSEL = sSEL if self.flog else 68
        self.sNRX = sNRF if self.flog else sNRX
        od = kw.get('order', 1)
        if od == 1: self.ORDER = [(0, 2), (0, 3), (1, 2), (1, 3), (2, 0), (2, 1), (2, 2), (2, 3), (3, 0), (3, 1), (1, 1), (0, 1), (0, 0), (1, 0), (3, 2), (3, 3)]
        if od == 2: self.ORDER = [(0, 2), (0, 3), (1, 2), (1, 3), (2, 0), (2, 1), (2, 2), (2, 3), (3, 0), (3, 1), (0, 1), (1, 1), (0, 0), (1, 0), (3, 2), (3, 3)]
        self.full = kw.get('full', True)
        if self.full: self.ORDER = [(0, 2), (0, 3), (1, 2), (1, 3), (2, 0), (2, 1), (2, 2), (2, 3), (0, 0), (1, 0), (3, 0), (3, 1), (0, 1), (1, 1), (3, 2), (3, 3)]
        if kw.get('seq'):
            self.ORDER = [("qkvo".index(x[0]), int(x[1])) for x in kw['seq'].split()]
            o = self.ORDER
            assert sorted(o) == [(m, a_) for m in range(4) for a_ in range(4)] and o[14:] == [(3, 2), (3, 3)] and o[12][0] < 3 and o[13][0] < 3
            assert max(o.index((0, 0)), o.index((0, 1))) <= 12 and all(x[0] < 3 for x in o[:4])
        self.kreg = kw.get('kreg', True)
        if self.kreg:
            self.STG = {(0, 0, 0): 24, (0, 1, 0): 88, (1, 0, 0): 96, (1, 1, 0): 104, (1, 1, 4): 24, (0, 0, 4): 88, (0, 1, 4): 96, (1, 0, 4): 104}

    def mods(self, *m): return " ".join(x for x in m if x)
    def off(self, o): return f"offset:{o}" if o else ""

    def fl(self, i):
        if not isinstance(i, str): self.A.comment(f"@{i}")
        if self.flog == 2:
            if i == self.kw.get('probe2', 'h5'): i = 5
            elif i == 'h5': return
            elif isinstance(i, str): i = int(i[1:])
            elif i == self.kw.get('probe', 3): i = 3
            elif i not in (0, 1, 14, 15): return
        elif self.flog == 3:
            if i == 1:
                cnt = [0]
                def hook():
                    k = cnt[0]; cnt[0] += 1
                    if k == self.kw['poff']: self.A.raw(f"    s_memtime {s(sACC + 4, 2)}")
                self.A.mfhook = hook
            elif i == 14: self.A.mfhook = None
            elif i != 0: return
        elif isinstance(i, str): return
        if self.flog:
            self.A.I("s_memtime", s(sACC + 2 * i, 2)); self.nfl = max(self.nfl, i + 1)

    def fl_collect(self, vt):
        if not self.flog: return
        A = self.A
        if self.flog == 2: A.I("s_memrealtime", s(sACC + 4, 2))
        A.I("s_waitcnt", "lgkmcnt(0)")
        for i in range(16):
            if self.flog == 2 and i in (9, 10, 11): A.I("v_writelane_b32", v(vt), s((sNRM, sNRR, sNRF)[i - 9]), i)
            elif self.flog != 2 or i in (0, 1, 2, 3, 5, 6, 7, 8, 14, 15): A.I("v_writelane_b32", v(vt), s(sACC + 2 * i), i)
        A.I("v_lshrrev_b32", v(vt + 1), 2, v(vL16))
        A.I("s_mov_b64", "exec", "0xffff")
        A.I("buffer_store_dword", v(vt), v(vt + 1), s(S_WS, 4), s(sLOGO), mods="offen")
        A.I("s_mov_b64", "exec", -1)
        A.I("s_add_u32", s(sLOGO), s(sLOGO), 64)

    def ds(self, tag, op, *ops, mods=""):
        self.A.I(op, *ops, mods=mods)
        if tag is None: return
        self.lq.append(tag)
    def vm(self, tag, op, *ops, mods=""):
        self.A.I(op, *ops, mods=mods); self.vq.append(tag)
    def needl(self, tag):
        if tag not in self.lq: return
        i = len(self.lq) - 1 - self.lq[::-1].index(tag)
        self.lq = self.lq[i + 1:]
        assert len(self.lq) <= 15, self.lq
        self.A.I("s_waitcnt", f"lgkmcnt({len(self.lq)})")
    def needv(self, tag):
        if tag not in self.vq: return
        i = len(self.vq) - 1 - self.vq[::-1].index(tag)
        self.vq = self.vq[i + 1:]
        if "n" in self.x and tag in ("f0", "f1", "fd", "r0", "r1", "r2", "r3"): return
        self.A.I("s_waitcnt", f"vmcnt({len(self.vq)})")

    def needvl(self, vt, lt):
        n = len(self.A.out); t = self.A.t
        self.needv(vt); self.needl(lt)
        if len(self.A.out) == n + 2:
            b = self.A.out.pop(); self.A.out[-1] += " " + b.split()[-1]; self.A.t = t + 1

    def wread(self, tag, dst, ldsoff):
        base, o = (vWL, ldsoff) if ldsoff < 65536 else (vWL2, ldsoff - 65536)
        self.ds(tag, "ds_read_b128", v(dst, 4), v(base), mods=self.off(o))

    def lane_consts(self):
        A = self.A
        L, G, C, T, U, R = 1, 2, 3, 4, 5, 6
        A.I("v_lshrrev_b32", v(T), 6, v(0))
        A.I("v_readfirstlane_b32", s(sWV), v(T))
        A.I("v_and_b32", v(L), 63, v(0))
        A.I("v_lshrrev_b32", v(G), 4, v(L))
        A.I("v_and_b32", v(C), 15, v(L))
        A.I("v_lshrrev_b32", v(R), 2, v(C))
        A.I("v_lshlrev_b32", v(vL16), 4, v(L))
        A.I("s_lshl_b32", s(sW1K), s(sWV), 10)
        A.I("s_lshl_b32", s(sW2K), s(sWV), 11)

    def lane_consts2(self):
        A = self.A
        L, G, C, T, U, R = 1, 2, 3, 4, 5, 6
        A.I("v_and_b32", v(T), 2, v(C))
        A.I("v_cmp_ne_u32", "vcc", 0, v(T))
        A.I("v_mov_b32", v(T), "0x4444")
        A.I("v_mov_b32", v(U), "0xeeee")
        A.I("v_cndmask_b32", v(vIDX), v(T), v(U), "vcc")
        A.I("v_lshrrev_b32", v(U), 1, v(G))
        A.I("v_lshl_add_u32", v(T), v(R), 3, v(U))
        A.I("s_lshl_b32", s(sT0), s(sWV), 1)
        A.I("v_add_u32", v(T), s(sT0), v(T))
        if self.skew:
            A.I("v_add_u32", v(U), s(sH), v(T))
            A.I("v_and_b32", v(U), 31, v(U))
        else:
            A.I("v_mov_b32", v(U), s(sH))
        A.I("v_lshl_add_u32", v(T), v(T), 6, v(U))
        A.I("v_and_b32", v(U), 1, v(G))
        A.I("v_lshl_add_u32", v(T), v(T), 1, v(U))
        A.I("v_and_b32", v(U), 3, v(C))
        A.I("v_lshl_add_u32", v(T), v(T), 2, v(U))
        A.I("v_lshlrev_b32", v(vPBST), 4, v(T))
        A.I("v_and_b32", v(T), 1, v(G))
        A.I("v_lshlrev_b32", v(T), 2, v(T))
        A.I("v_and_b32", v(7), 2, v(G))
        A.I("v_add_u32", v(T), v(T), v(7))
        A.I("v_and_b32", v(7), 1, v(R))
        A.I("v_add_u32", v(T), v(T), v(7))
        A.I("v_lshl_add_u32", v(T), v(T), 2, v(U))
        A.I("v_lshlrev_b32", v(T), 2, v(T))
        A.I("s_and_b32", s(sT0), s(sWV), 1)
        A.I("s_lshl_b32", s(sT0), s(sT0), 12)
        A.I("s_lshl_b32", s(sT1), s(sH), 7)
        A.I("s_add_u32", s(sT0), s(sT0), s(sT1))
        A.I("v_add_u32", v(vMST), s(sT0), v(T))
        A.I("v_sub_u32", v(7), 0, v(G))
        A.I("v_and_b32", v(7), 3, v(7))
        A.I("v_xor_b32", v(7), v(7), v(R))
        A.I("v_lshl_add_u32", v(T), v(G), 4, v(7))
        A.I("v_and_b32", v(U), 3, v(C))
        A.I("v_lshl_add_u32", v(T), v(T), 2, v(U))
        A.I("s_add_u32", s(sT0), s(sW1K), XI)
        A.I("v_lshl_add_u32", v(vXW), v(T), 2, s(sT0))
        A.I("v_sub_u32", v(7), 0, v(R))
        A.I("v_and_b32", v(7), 3, v(7))
        A.I("v_xor_b32", v(7), v(7), v(G))
        A.I("v_lshl_add_u32", v(T), v(C), 2, v(7))
        A.I("v_lshlrev_b32", v(vXR), 4, v(T))
        A.I("v_and_b32", v(U), 1, v(C))
        A.I("v_lshl_add_u32", v(T), v(R), 1, v(U))
        A.I("v_lshl_add_u32", v(T), v(G), 3, v(T))
        A.I("v_lshlrev_b32", v(vOR), 4, v(T))
        A.I("v_and_or_b32", v(vOW), v(vIDX), 8, v(vOR))
        A.I("s_lshl_b32", s(sT0), s(sWV), 13)
        A.I("s_add_u32", s(sT0), s(sT0), WV)
        A.I("v_add_u32", v(vWL), s(sT0), v(vL16))
        A.I("v_add_u32", v(vWL2), hex(0x10000), v(vWL))
        A.I("s_mov_b32", s(sOMASK), "0xcccccccc")
        A.I("s_mov_b32", s(sOMASK + 1), "0xcccccccc")
        A.I("s_mov_b32", s(sRMASK), "0x00ff00ff")
        A.I("s_mov_b32", s(sRMASK + 1), "0x00ff00ff")
        A.I("s_mov_b32", s(sC1), f2h((DH ** -0.5) * math.log2(math.e)))
        A.I("s_mov_b32", s(sBIG), f2h(2.0 ** self.kw.get('bigexp', 20)))
        A.I("s_mov_b32", s(sONES), "0x3f803f80")

    def set_wsrd(self, mat):
        A = self.A
        A.I("s_mov_b32", s(S_W), s(60 + 2 * mat))
        A.I("s_and_b32", s(S_W + 1), s(61 + 2 * mat), "0xffff")

    ORDER = [(0, 1), (0, 2), (0, 3), (1, 1), (1, 2), (1, 3), (2, 0), (2, 1), (2, 2), (2, 3), (3, 0), (3, 1),
             (0, 0), (1, 0), (3, 2), (3, 3)]

    def dma_chunk(self, idx, lo=None, hi=8):
        A = self.A
        mat, a_ = self.ORDER[idx]
        slot = idx & 3
        if lo is None and (idx == 0 or self.ORDER[idx - 1][0] != mat):
            self.set_wsrd(mat)
        if lo is None and mat < 3:
            A.I("v_xor_b32", v(15), a_ & 2 if self.full else a_, v(14))
            A.I("v_lshl_add_u32", v(15), v(15), 15, v(8))
        for i in range(lo or 0, hi):
            if mat < 3:
                vo = 15
                row = 128 * (i >> 1) + 64 * (a_ & 1) + 4 * (i & 1) if self.full else i << 6
                A.I("s_add_u32", s(sT0), s(sT2), hex(row * 8192))
            else:
                vo = 9 if i & 1 else 10
                A.I("s_add_u32", s(sT0), s(sT3), hex(16 * i * 1024 + a_ * 64))
            A.I("s_add_u32", "m0", s(sW1K), hex(WV + slot * 32768 + 4 * i * 1024))
            A.I("buffer_load_dwordx4", v(vo), s(S_W, 4), s(sT0), mods=self.mods("offen", self.kw.get('wmod', ''), "lds"))

    def read_chunk(self, idx, tmp=None):
        A = self.A
        mat, a_ = self.ORDER[idx]
        slot = idx & 3
        VT = 13
        def dst(h, fi, q):
            if tmp is not None: return v(tmp + fi * 8 + 2 * q, 2)
            return (a if h[0] == "a" else v)(h[1] + 2 * q, 2)
        if mat < 3 and self.full:
            hi = a_ & 1
            for e in range(2):
                for phi in range(2):
                    A.I("v_xor_b32", v(VT), hex(phi << 5 | e << 12), v(11))
                    A.I("v_add_u32", v(VT), hex(slot * 32768), v(VT))
                    h = home(mat, phi, (a_ & 2) + e + 4 * hi)
                    if h[0] == "lds": h = ("v", 32 + 32 * mat + (hi * 2 + phi) * 8)
                    for q in range(4):
                        o = (64 * (q >> 1) + 4 * (q & 1)) * 256
                        A.I("ds_read_b64_tr_b16", (a if h[0] == "a" else v)(h[1] + 2 * q, 2), v(VT), mods=self.off(o))
        elif mat < 3:
            for phi in range(2):
                A.I("v_xor_b32", v(VT), phi << 5, v(11))
                A.I("v_add_u32", v(VT), hex(slot * 32768), v(VT))
                for hi in range(2):
                    for q in range(4):
                        o = (64 * (q >> 1) + 16 * hi + 4 * (q & 1)) * 256
                        A.I("ds_read_b64_tr_b16", dst(home(mat, phi, a_ + 4 * hi), hi * 2 + phi, q), v(VT), mods=self.off(o))
                A.I("s_waitcnt", "lgkmcnt(0)")
        else:
            for j in range(4):
                A.I("v_xor_b32", v(VT), hex(j << 13), v(12))
                A.I("v_add_u32", v(VT), hex(slot * 32768), v(VT))
                for q in range(4):
                    o = (8 * (q >> 1) + 2 * (q & 1)) * 256
                    A.I("ds_read_b64_tr_b16", dst(wo_home(a_, j), j, q), v(VT), mods=self.off(o))

    def load_weights(self):
        A = self.A
        L, G, C, T, U, R = 1, 2, 3, 4, 5, 6
        if not self.kw.get('wptr'): A.I("s_load_dwordx8", s(60, 8), s(0, 2), 16)
        A.I("s_mov_b32", s(S_W + 2), hex(4 << 20))
        A.I("s_mov_b32", s(S_W + 3), "0x20000")
        A.I("s_lshl_b32", s(sT2), s(sH), 8)
        A.I("s_lshl_b32", s(sT3), s(sH), 17)
        A.I("s_lshr_b32", s(sT0), s(sWV), 1)
        A.I("s_lshl_b32", s(sT0), s(sT0), 2)
        A.I("v_or_b32", v(U), s(sT0), v(G))
        A.I("v_lshlrev_b32", v(U), 1, v(U))
        A.I("v_xor_b32", v(U), v(U), v(C))
        A.I("v_lshrrev_b32", v(14), 2, v(U))
        if self.full: A.I("v_and_b32", v(14), 2, v(14))
        A.I("v_lshlrev_b32", v(U), 4, v(U))
        A.I("s_lshl_b32", s(sT0), s(sWV), 4)
        A.I("v_add_u32", v(T), s(sT0), v(G))
        A.I("v_lshl_add_u32", v(8), v(T), 13, v(U))
        A.I("s_waitcnt", "lgkmcnt(0)")
        LA = self.la
        hf, hold = self.kw.get('hold', (0, 0))
        if self.sc: hold = hf
        sFAR = sTHR
        A.I("s_lshr_b32", s(sFAR), s(60), 8)
        A.I("s_add_u32", s(sFAR), s(sFAR), s(sH))
        A.I("s_and_b32", s(sFAR), s(sFAR), 3)
        if self.kw.get('only') is not None:
            A.I("s_lshr_b32", s(sT0), self.kw['only'], s(sH))
            A.I("s_and_b32", s(sT0), s(sT0), 1)
            A.I("s_lshl_b32", s(S_W + 2), s(sT0), 22)
        q = []; qn = []
        def span(lo, hi, Q):
            for n in range(max(lo, 0), min(hi, 128)):
                self.dma_chunk(n >> 3, (n & 7) or None, (n & 7) + 1)
                for x in Q: x.append(n >> 3)
        def issue(lo, hi):
            if hold == hf: return span(lo - hf, hi - hf, (q, qn))
            l = A.newlabel("far"); l2 = A.newlabel("near")
            A.I("s_cmp_eq_u32", s(sFAR), self.kw.get('far', 1))
            A.I("s_cbranch_scc1", l)
            span(lo - hold, hi - hold, (qn,))
            A.I("s_branch", l2)
            A.label(l)
            span(lo - hf, hi - hf, (q,))
            A.label(l2)
        HELP = self.kw.get('help', {}) if not self.sc else {}
        def helper(when):
            if when not in HELP: return
            A.I("s_sub_u32", s(sT0), s(sFAR), self.kw.get('far', 1))
            A.I("s_and_b32", s(sT0), s(sT0), 3)
            A.I("s_sub_u32", s(sT1), s(sH), s(sT0))
            A.I("s_and_b32", s(sT1), s(sT1), 31)
            A.I("s_lshl_b32", s(sT1), s(sT1), 8)
            A.I("s_mov_b32", s(7), "0x20000")
            le = A.newlabel("helped")
            for k in (1, 2, 3, 0):
                c = HELP[when][k - 1] if k else None
                if k and c is None: continue
                l = A.newlabel("help")
                if k:
                    A.I("s_cmp_lg_u32", s(sT0), k)
                    A.I("s_cbranch_scc1", l)
                mat, a_ = self.ORDER[c or 0]
                assert mat < 3
                A.I("s_mov_b32", s(4), s(60 + 2 * mat))
                A.I("s_and_b32", s(5), s(61 + 2 * mat), "0xffff")
                A.I("s_mov_b32", s(6), hex(4 << 20) if k else 0)
                A.I("v_xor_b32", v(25), a_ & 2, v(14))
                A.I("v_lshl_add_u32", v(25), v(25), 15, v(8))
                for i in range(8):
                    A.I("s_add_u32", s(sT0), s(sT1), hex((128 * (i >> 1) + 64 * (a_ & 1) + 4 * (i & 1)) * 8192))
                    A.I("buffer_load_dwordx4", v(28, 4), v(25), s(4, 4), s(sT0), mods="offen")
                if k: A.I("s_branch", le)
                A.label(l)
            A.label(le)
            for x in (q, qn): x += [-1] * 8
        mark(A, 2)
        if self.kw.get('diag1'):
            self.dma_chunk(0, None, self.kw['diag1'])
            A.I("s_waitcnt", "vmcnt(0)")
            mark(A, 3)
        helper(-1)
        span(0, 8 * LA - hold, (q, qn))
        if not self.kw.get('diag1'): mark(A, 3)
        if hold != hf:
            l = A.newlabel("near")
            A.I("s_cmp_eq_u32", s(sFAR), self.kw.get('far', 1))
            A.I("s_cbranch_scc0", l)
            span(8 * LA - hold, 8 * LA - hf, (q,))
            A.label(l)
        self.lane_consts2()
        for odd, dst in ((0, 10), (1, 9)):
            A.I("v_and_b32", v(U), 1, v(G))
            A.I("v_or_b32", v(U), odd << 1, v(U))
            A.I("v_xor_b32", v(U), v(U), v(R))
            A.I("v_lshlrev_b32", v(U), 8, v(U))
            A.I("v_and_b32", v(7), 3, v(C))
            A.I("v_lshl_add_u32", v(7), v(7), 4, v(U))
            A.I("s_lshl_b32", s(sT0), s(sWV), 2)
            A.I("v_add_u32", v(T), s(sT0), v(G))
            A.I("v_lshl_add_u32", v(dst), v(T), 10, v(7))
        A.I("v_and_b32", v(U), 1, v(G))
        A.I("v_lshl_add_u32", v(T), v(U), 3, v(R))
        A.I("v_lshrrev_b32", v(7), 1, v(G))
        A.I("v_lshl_add_u32", v(T), v(7), 5, v(T))
        A.I("v_lshlrev_b32", v(T), 8, v(T))
        A.I("v_lshl_or_b32", v(U), v(U), 2, v(R))
        A.I("v_lshlrev_b32", v(U), 5, v(U))
        A.I("s_lshl_b32", s(sT0), s(sWV), 6)
        A.I("v_xor_b32", v(U), s(sT0), v(U))
        A.I("v_add_u32", v(T), v(T), v(U))
        A.I("v_and_b32", v(U), 3, v(C))
        A.I("v_lshl_add_u32", v(T), v(U), 3, v(T))
        A.I("v_add_u32", v(11), WV, v(T))
        if self.full:
            A.I("s_and_b32", s(sT0), s(sWV), 1)
            A.I("s_lshl_b32", s(sT0), s(sT0), 12)
            A.I("v_add_u32", v(11), s(sT0), v(11))
        A.I("v_and_b32", v(U), 1, v(G))
        A.I("v_lshlrev_b32", v(T), 4, v(U))
        A.I("v_lshl_add_u32", v(T), v(7), 2, v(T))
        A.I("v_and_b32", v(7), 1, v(R))
        A.I("v_add_u32", v(T), v(T), v(7))
        A.I("s_lshl_b32", s(sT0), s(sWV), 5)
        A.I("v_add_u32", v(T), s(sT0), v(T))
        A.I("v_lshlrev_b32", v(T), 8, v(T))
        A.I("v_lshl_or_b32", v(U), v(U), 1, v(7))
        A.I("v_xor_b32", v(U), s(sWV), v(U))
        A.I("v_lshl_add_u32", v(T), v(U), 6, v(T))
        A.I("v_lshrrev_b32", v(U), 1, v(R))
        A.I("v_lshl_add_u32", v(T), v(U), 5, v(T))
        A.I("v_and_b32", v(U), 3, v(C))
        A.I("v_lshl_add_u32", v(T), v(U), 3, v(T))
        A.I("v_add_u32", v(12), WV, v(T))
        T0 = self.kw.get('t0', 11) if self.kw.get('touch', True) and not self.sc else None
        self.init_buffers()
        self.write_mem0()
        for x in (q, qn): x += [-1] * (self.n_init_vm + 1)
        EV = self.kw.get('ev', 14) if not self.sc else None
        RD_ = EV or 15
        gate = self.kw.get('gate')
        A.I("s_mov_b32", s(sOK), 0)
        self.kv_addr()
        probed = False
        mark(A, 4)
        for idx in range(16):
            for x in (q, qn):
                if idx in x: del x[:len(x) - x[::-1].index(idx)]
                if idx == EV: del x[:]
            if not (EV and idx > EV): A.I("s_waitcnt", f"vmcnt({max(len(q), len(qn))})")
            if len(qn) != len(q):
                l = A.newlabel("far")
                A.I("s_cmp_eq_u32", s(sFAR), self.kw.get('far', 1))
                A.I("s_cbranch_scc1" if len(qn) < len(q) else "s_cbranch_scc0", l)
                A.I("s_waitcnt", f"vmcnt({min(len(q), len(qn))})")
                A.label(l)
            if EV and gate and idx == 9:
                A.I("v_readfirstlane_b32", s(sOK), v(26))
                A.I("v_readfirstlane_b32", s(sT0), v(27))
                A.I("s_cmp_lg_u32", s(sT0), 0)
                A.I("s_cselect_b32", s(sOK), s(sOK), 0)
            if idx == EV:
                assert probed
                if gate:
                    A.I("v_readlane_b32", s(sT0), v(26), 0)
                    A.I("v_readlane_b32", s(sT1), v(26), 16)
                    A.I("s_min_u32", s(sT0), s(sT0), s(sT1))
                    A.I("s_cmp_lg_u32", s(sT0), 0)
                    A.I("s_cselect_b32", s(sOK), s(sOK), 0)
                else: A.I("s_mov_b32", s(sOK), 1)
                A.I("v_readfirstlane_b32", s(sT0), v(27))
                A.I("s_cmp_ge_u32", s(sT0), 32)
                A.I("s_cselect_b32", s(sOK), s(sOK), 0)
                l = A.newlabel("nokv")
                A.I("s_cmp_lg_u32", s(sOK), 1)
                A.I("s_cbranch_scc1", l)
                self.kv_first()
                A.label(l)
            if idx == 4 or (T0 and idx == RD_): self.write_mem0_b()
            if T0 and idx == RD_ and self.kw.get('redo', True): self.init_buffers(True)
            both = EV == 14 and self.full
            if not (both and idx == 15):
                A.I("s_barrier")
                if self.tag == "f": ts(A, 16 + idx, 24)
                if idx == 9: self.arrive()
                self.read_chunk(idx, tmp=(64 if self.full and idx & 1 else 32) if idx >= 12 else None)
                if both and idx == 14: self.read_chunk(15, tmp=64)
                A.I("s_waitcnt", "lgkmcnt(0)")
                A.I("s_barrier")
            if idx == T0: self.touch(); q += [-1] * 8; qn += [-1] * 8
            if idx in self.kw.get('ccode', ()) and not self.sc:
                A.I("v_lshlrev_b32", v(25), 2, v(vL16))
                A.I("s_lshl_b32", s(sT0), s(sWV), 12)
                code_touch(A, "L_chain_warm", 4, 25, 29, extra=s(sT0))
                q.append(-1); qn.append(-1)
            if idx == 12 and not self.sc: A.label("L_chain_warm")
            if EV and gate and idx == 5:
                A.I("buffer_load_dwordx2", v(26, 2), "off", s(S_DBG, 4), 0, mods=f"offset:{gate} sc1")
                q.append(-1); qn.append(-1)
            helper(idx)
            if 8 * (idx + 4) - hold < 128: issue(8 * (idx + 4), 8 * (idx + 5))
            if EV and not probed and 8 * (idx + 5) - hold >= 128:
                probed = True
                if gate:
                    A.I("v_lshlrev_b32", v(26), 3, v(vL16))
                    A.I("v_and_b32", v(26), 0x800, v(26))
                    A.I("s_lshl_b32", s(sT0), s(sH), 6)
                    A.I("s_add_u32", s(sT0), s(sT0), hex(WS_CTRL + CT_F1))
                    A.I("buffer_load_dword", v(26), v(26), s(S_WS, 4), s(sT0), mods="offen sc1")
                A.I("buffer_load_dword", v(27), "off", s(S_DBG, 4), 0, mods=f"offset:{self.cbar} sc1")
                for x in (q, qn): x += [-1] * (2 if gate else 1)
            if idx >= 12:
                slot = idx & 3
                tb = 64 if self.full and slot & 1 else 32
                for k in range(8):
                    A.I("ds_write_b128", v(vWL if slot < 2 else vWL2), v(tb + 4 * k, 4), mods=self.off((slot & 1) * 32768 + k * 1024))
        A.I("s_waitcnt", "lgkmcnt(0)")

    def kv_addr(self):
        A = self.A
        A.I("s_lshl_b32", s(sT0), s(sH), 13)
        A.I("s_add_u32", s(sT0), s(sT0), s(sW2K))
        A.I("s_add_u32", s(sKXN), s(sT0), hex(WS_KX))
        A.I("s_add_u32", s(sVXN), s(sT0), hex(WS_VX))
        A.I("s_lshr_b32", s(sT0), s(sT0), 1)
        A.I("s_add_u32", s(sKM), s(sT0), hex(WS_KM - 32 * 4096))

    def kv_first(self):
        self.A.I("s_add_u32", "m0", s(sW2K), KXB)
        for i in range(2): self.kdma(i)
        for i in range(2): self.vdma(i)

    def touch(self):
        A = self.A
        tm = self.kw.get('tmod', 'sc1')
        A.I("s_lshl_b32", s(sT0), s(sH), 13)
        A.I("s_add_u32", s(sT0), s(sT0), hex(WS_PB + self.wo))
        A.I("s_add_u32", s(sT0), s(sT0), s(sW2K))
        A.I("s_xor_b32", s(sT1), s(sT0), hex(PBPAR))
        for base in (sT0, sT1):
            for m in range(2):
                A.I("buffer_load_dwordx4", v(28, 4), v(vL16), s(S_WS, 4), s(base), mods=self.mods("offen", self.off(m * 1024), tm))
        for m in range(4):
            A.I("s_mov_b32", s(sT0), hex(WS_MB + self.wo + m * 8192))
            A.I("buffer_load_dword", v(28), v(vMST), s(S_WS, 4), s(sT0), mods=self.mods("offen", tm))

    def init_buffers(self, again=False):
        A = self.A
        sc = self.sc
        n = 0
        for i in range(4):
            A.I("v_mov_b32", v(16 + i), -1)
        A.I("s_lshl_b32", s(sT0), s(sH), 13)
        A.I("s_add_u32", s(sT0), s(sT0), hex(WS_PB + self.wo))
        A.I("s_and_b32", s(sT1), s(sWV), 1)
        A.I("s_lshl_b32", s(sT1), s(sT1), 12)
        A.I("s_add_u32", s(sPBLD), s(sT0), s(sT1))
        A.I("s_add_u32", s(sT0), s(sT0), s(sW2K))
        A.I("s_xor_b32", s(sT1), s(sT0), hex(PBPAR))
        for base in (sT0, sT1)[again:]:
            for m in range(2):
                A.I("buffer_store_dwordx4", v(16, 4), v(vL16), s(S_WS, 4), s(base), mods=self.mods("offen", self.off(m * 1024), sc))
                n += 1
        if self.ring:
            for m in range(1, 4):
                A.I("s_mov_b32", s(sT0), hex(WS_MB + self.wo + m * 8192))
                A.I("buffer_store_dword", v(16), v(vMST), s(S_WS, 4), s(sT0), mods=self.mods("offen", sc))
            self.n_init_vm = n + 3
            return
        A.I("s_lshl_b32", s(sT0), s(sH), 14)
        A.I("s_lshl_b32", s(sT1), s(sWV), 12)
        A.I("s_add_u32", s(sT0), s(sT0), s(sT1))
        A.I("s_cmp_lt_u32", s(sT0), 8192)
        A.I("s_cselect_b32", s(sT0), 8192, s(sT0))
        A.I("s_add_u32", s(sT0), s(sT0), hex(WS_MB + self.wo))
        for m in range(4):
            A.I("buffer_store_dwordx4", v(16, 4), v(vL16), s(S_WS, 4), s(sT0), mods=self.mods("offen", self.off(m * 1024), sc))
            n += 1
        self.n_init_vm = n

    def write_mem0(self):
        A = self.A
        G, C, R, T, U = 2, 3, 6, 20, 21
        S_W = 4
        A.I("s_load_dwordx2", s(S_W, 2), s(0, 2), 8)
        A.I("s_waitcnt", "lgkmcnt(0)")
        A.I("s_and_b32", s(S_W + 1), s(S_W + 1), "0xffff")
        A.I("s_mov_b32", s(S_W + 2), 8192)
        A.I("s_mov_b32", s(S_W + 3), "0x20000")
        A.I("v_and_b32", v(T), 1, v(G))
        A.I("v_and_b32", v(U), 1, v(R))
        A.I("v_lshl_add_u32", v(T), v(T), 1, v(U))
        A.I("v_lshlrev_b32", v(T), 9, v(T))
        A.I("v_and_b32", v(U), 3, v(C))
        A.I("v_lshl_add_u32", v(T), v(U), 4, v(T))
        A.I("v_and_b32", v(U), 2, v(G))
        A.I("v_add_u32", v(T), v(T), v(U))
        A.I("s_and_b32", s(sT0), s(sH), 1)
        A.I("s_lshl_b32", s(sT0), s(sT0), 11)
        A.I("s_bfe_u32", s(sT1), s(sH), hex(0x20001))
        A.I("s_lshl_b32", s(sT1), s(sT1), 7)
        A.I("s_add_u32", s(sT0), s(sT0), s(sT1))
        A.I("s_and_b32", s(sT1), s(sWV), 1)
        A.I("s_lshl_b32", s(sT1), s(sT1), 6)
        A.I("s_add_u32", s(sT0), s(sT0), s(sT1))
        A.I("s_lshr_b32", s(sT1), s(sH), 3)
        A.I("s_lshl_b32", s(sT1), s(sT1), 2)
        A.I("s_add_u32", s(sT0), s(sT0), s(sT1))
        A.I("v_add_u32", v(T), s(sT0), v(T))
        A.I("v_lshlrev_b32", v(T), 1, v(T))
        A.I("buffer_load_dword", v(U), v(T), s(S_W, 4), 0, mods="offen")

    def write_mem0_b(self):
        A = self.A
        U = 21
        A.I("v_min_u32", v(U), "0xfffffffe", v(U))
        A.I("s_mov_b32", s(sT0), hex(WS_MB + self.wo))
        A.I("s_mov_b64", "exec", s(sRMASK, 2))
        A.I("buffer_store_dword", v(U), v(vMST), s(S_WS, 4), s(sT0), mods=self.mods("offen", self.sc))
        A.I("s_mov_b64", "exec", -1)

    def arrive(self):
        A = self.A
        l = A.newlabel("arr")
        A.I("s_cmp_lg_u32", s(sWV), 0)
        A.I("s_cbranch_scc1", l)
        A.I("v_mov_b32", v(23), 1)
        A.I("s_mov_b64", "exec", 1)
        A.I("buffer_atomic_add", v(23), "off", s(S_DBG, 4), 0, mods=f"offset:{self.cbar}")
        A.I("s_mov_b64", "exec", -1)
        A.label(l)

    def prologue(self):
        A = self.A
        lok = A.newlabel("started")
        A.I("s_cmp_eq_u32", s(sOK), 1)
        A.I("s_cbranch_scc1", lok)
        if self.pre_start: self.pre_start(self)
        self.kv_first()
        lp = A.newlabel("cb_poll"); ld = A.newlabel("cb_done")
        A.I("s_mov_b32", s(sRETRY), 0)
        A.label(lp)
        A.I("buffer_load_dword", v(3), "off", s(S_DBG, 4), 0, mods=f"offset:{self.cbar} sc1")
        A.I("s_waitcnt", "vmcnt(0)")
        A.I("v_readfirstlane_b32", s(sT0), v(3))
        A.I("s_cmp_ge_u32", s(sT0), 32)
        A.I("s_cbranch_scc1", lok)
        A.I("s_sleep", 8)
        A.I("s_add_u32", s(sRETRY), s(sRETRY), 1)
        A.I("s_cmp_lt_u32", s(sRETRY), hex(RETRY_MAX * 4))
        A.I("s_cbranch_scc1", lp)
        A.label(lok)
        A.reset_haz()
        A.I("s_lshr_b32", s(sT0), s(sH), 1)
        A.I("s_lshl_b32", s(sT0), s(sT0), 7)
        A.I("s_and_b32", s(sT1), s(sH), 1)
        A.I("s_lshl_b32", s(sT1), s(sT1), 4)
        A.I("s_add_u32", s(sT0), s(sT0), s(sT1))
        A.I("s_add_u32", s(sFLAGOFF), s(sT0), hex(WS_CTRL + CT_PROG))
        A.I("s_cmp_eq_u32", s(sWV), 0)
        A.I("s_cselect_b32", s(sFLAGOFF), s(sFLAGOFF), "0x7ff00000")
        if self.kw.get('pbw'):
            A.I("v_mov_b32", v(1), 1)
            A.I("buffer_store_dword", v(1), "off", s(S_WS, 4), s(sFLAGOFF), mods="offset:4 sc1")
        A.I("s_mov_b32", s(sSTEP), 0)
        A.I("s_mov_b32", s(sTAG), 0)
        if self.kw.get('rot') is not None:
            A.I("s_bfe_u32", s(sT0), s(sH), hex(0x10000 | self.kw['rot']))
            A.I("s_lshl_b32", s(sT0), s(sT0), 10)
            A.I("s_xor_b32", s(sPBLD), s(sPBLD), s(sT0))
        A.I("s_xor_b32", s(sPBLD2), s(sPBLD), 1024)
        A.I("s_add_u32", s(sMBLD), s(sW1K), hex(WS_MB + self.wo))
        A.I("s_add_u32", s(sMBLD2), s(sMBLD), 4096)
        A.I("s_mov_b32", s(sMBST), hex(WS_MB + 8192 + self.wo))
        A.I("s_add_u32", s(sRST), s(sMBST), 16384)
        for j in range(2):
            A.I("s_mov_b32", s(sPBST + j), hex(WS_PB + j * 4096 + self.wo))
        for i in range(4): A.I("v_mov_b32", v(vPUB + i), 0)
        A.I("s_add_u32", "m0", s(sW1K), MBUF + 4096)
        for o in (FLG, ZRO): A.I("ds_write_b128", v(vL16), v(vPUB, 4), mods=self.off(o))
        A.I("s_cmp_lg_u32", s(sWV), 0)
        A.I("s_cselect_b32", s(sT1), -1, 0)
        A.I("v_mov_b32", v(vFLG), s(sT1))
        if self.kw.get('pfk'):
            A.I("s_cmp_eq_u32", s(sWV), 1)
            A.I("s_cselect_b64", "vcc", -1, 0)
            A.I("s_mov_b32", s(sT1), hex(32 * 8192 - 2048))
            A.I("v_lshl_add_u32", v(1), v(vL16), self.kw.get('pfsh', 3), s(sT1))
            A.I("v_cndmask_b32", v(vFLG), v(vFLG), v(1), "vcc")
        A.I("v_bfe_u32", v(1), v(vL16), 4, 1)
        A.I("v_lshlrev_b32", v(1), 4, v(1))
        A.I("s_movk_i32", s(sT0), "0x3f80")
        A.I("v_lshlrev_b32", v(vSEL), v(1), s(sT0))
        A.I("v_bfe_u32", v(1), v(vL16), 5, 3)
        for d in range(4): A.I("v_cmp_eq_u32", s(self.sSEL + 2 * d, 2), d, v(1))
        A.I("v_lshrrev_b32", v(1), 2, v(vL16))
        A.I("s_cmp_lt_u32", s(sWV), WE)
        A.I("s_cselect_b64", "vcc", -1, 0)
        A.I("v_cndmask_b32", v(vL4), v(vMST), v(1), "vcc")
        for r in range(vQK, vQK + 24): A.I("v_mov_b32", v(r), 0)
        A.I("s_add_u32", s(sKXN), s(sKXN), hex(32 * 8192))
        A.I("s_add_u32", s(sVXN), s(sVXN), hex(32 * 8192))
        A.I("s_mov_b32", s(sNRM), 0)
        A.I("s_mov_b32", s(sNRR), 0)
        A.I("s_mov_b32", s(sNRF), 0)
        A.I("s_mov_b32", s(self.sNRX), 0)
        A.I("s_and_b32", s(sT0), s(sWV), 1)
        A.I("s_lshl_b32", s(sT0), s(sT0), 5)
        A.I("s_add_u32", s(sT0), s(sT0), s(sH))
        A.I("s_lshl_b32", s(sT0), s(sT0), 6)
        A.I("s_add_u32", s(sKVF), s(sT0), hex(WS_CTRL + CT_F1))
        A.I("s_mov_b32", s(sNEED + 1), 0)
        if self.flog:
            A.I("s_lshl_b32", s(sT0), s(sH), 2)
            A.I("s_add_u32", s(sT0), s(sT0), s(sWV))
            A.I("s_lshl_b32", s(sT0), s(sT0), 12)
            A.I("s_add_u32", s(sLOGO), s(sT0), hex(WS_TS + 0x10000))
        for it in self.prefetch_items(): it()
        A.I("s_mov_b32", s(sRETRY), 0)
        A.I("s_waitcnt", "vmcnt(0) lgkmcnt(0)")
        A.I("s_barrier")
        self.lq = []; self.vq = []

    STG = {(0, 0, 0): 80, (0, 1, 0): 56, (1, 0, 0): 64, (1, 1, 0): 72, (0, 0, 4): 88, (0, 1, 4): 96, (1, 0, 4): 104, (1, 1, 4): 24}
    MR = {0: 0, 4: 4, 1: 8, 5: 12, 2: 16, 3: 20, 6: 24, 7: 28}

    def prefetch_items(self, late=False, tag=None):
        A = self.A
        L = []
        for f, r in self.STG.items():
            if self.kreg and (f[2] == 4) != late: continue
            for hf in range(2):
                L.append(lambda f=f, r=r, hf=hf: self.wread(tag and (tag, f), r + 4 * hf, home(*f)[1] + 1024 * hf))
        return L

    def kreads(self, tag=None):
        return [lambda i=i: self.ds(tag, "ds_read_b128", v(56 + 4 * i, 4), v(vL16), mods=self.off(KXB + i * 1024)) for i in (6, 7, 0, 1, 2, 3, 4, 5)]

    def kdma(self, i):
        if "g" in self.x:
            self.vm("kk", "buffer_load_dwordx4", v(240 + 4 * i, 4), v(vL16), s(S_WS, 4), s(sKXN), mods=self.mods("offen", self.off(1024 * i), self.kw.get('kmod', '')))
            return
        self.vm("kk", "buffer_load_dwordx4", v(vL16), s(S_WS, 4), s(sKXN), mods=self.mods("offen", self.off(1024 * i), self.kw.get('kmod', ''), "lds"))
        if i: self.A.I("s_add_u32", "m0", s(sW2K), hex(VXB))
    def vdma(self, i, nxt=None):
        if "g" in self.x:
            self.vm("kd", "buffer_load_dwordx4", v(248 + 4 * i, 4), v(vL16), s(S_WS, 4), s(sVXN), mods=self.mods("offen", self.off(1024 * i), self.kw.get('kmod', '')))
            if nxt is not None: self.A.I("s_mov_b32", "m0", nxt)
            return
        self.vm("kd", "buffer_load_dwordx4", v(vL16), s(S_WS, 4), s(sVXN), mods=self.mods("offen", self.off(1024 * i), self.kw.get('kmod', ''), "lds"))
        if nxt is not None: self.A.I("s_mov_b32", "m0", nxt)

    def retry_head(self, cnt, lgo):
        A = self.A
        A.I("s_add_u32", s(cnt), s(cnt), 1)
        A.I("s_add_u32", s(sRETRY), s(sRETRY), 1)
        A.I("s_cmp_ge_u32", s(sRETRY), hex(RETRY_MAX))
        A.I("s_cbranch_scc1", lgo)

    def step_loop(self):
        A = self.A; tg = self.tag
        A.barrier_haz()
        if self.kw.get('early3'): A.I("buffer_load_dwordx4", v(self.MR[0], 4), v(vL16), s(S_WS, 4), s(sMBLD), mods="offen sc1")
        if self.kreg:
            for x in self.kreads(): x()
        A.I("s_waitcnt", "vmcnt(0) lgkmcnt(0)")
        for w in range(1, 4):
            A.I("s_cmp_eq_u32", s(sWV), w)
            A.I("s_cbranch_scc1", f"L_chain_top{w}_{tg}")
        for w in range(4): self.wave_loop(w)
        A.label(f"L_chain_last_{tg}")
        A.reset_haz()
        A.nop(2)
        for x in self.last: x()
        A.I("s_add_u32", s(sKM), s(sKM), hex(32 * 4096))
        A.I("buffer_store_dwordx4", v(vPUB, 4), v(vL16), s(S_WS, 4), s(sKM), mods="offen " + self.pubmod)
        A.I("v_mov_b32", v(94), NSEG)
        A.I("s_waitcnt", "vmcnt(0) lgkmcnt(0)")
        A.I("s_barrier")
        A.I("s_mov_b64", "exec", 1)
        A.I("buffer_store_dword", v(94), "off", s(S_WS, 4), s(sFLAGOFF), mods="sc1")
        A.I("s_mov_b64", "exec", -1)

    def wave_loop(self, w):
        A = self.A
        sc = self.sc; tg = self.tag; X_ = self.x
        def opt(k, d):
            x = self.kw.get(k, d)
            return x[w] if isinstance(x, list) else x
        LTOP = f"L_chain_top{w}_{tg}"; LLAST = f"L_chain_last_{tg}"
        nochk = "n" in X_
        Mr = lambda sl: self.MR[sl]
        acc = lambda mat, phi: (vQK + 8 * mat + 4 * phi) if mat < 2 else (vVA + 4 * phi)
        def smf(mat, phi, sl):
            h = home(mat, phi, sl)
            self.needl(f"m{sl}")
            B = v(self.STG[(mat, phi, sl)], 8) if h[0] == "lds" else reg8(h)
            A.I(SMF, v(acc(mat, phi), 4), v(Mr(sl), 4), B, v(vIDX))
        def valu(*x, **k): return lambda: A.I(*x, **k)
        untracked = lambda t_, *a_, **k: A.I(*a_, **k)

        A.raw(".p2align 6")
        for _ in range(self.align): A.raw("    s_nop 0")
        A.label(LTOP)
        A.reset_haz()
        self.lq = []; self.vq = []
        self.fl(0)
        t0 = 15
        RL = [4, 8, 16, 20]; SEL = 12; RD = vVA; tc = vVA + 4
        zr = list(range(vVA, vVA + 6)) if w >= WE else []
        def zero(n, pad=False):
            for _ in range(n):
                if zr: A.I("v_mov_b32", v(zr.pop(0)), 0)
                elif pad: A.I("v_mov_b32", v(t0), 0)
        def mload(half, mod, tag=None):
            (self.vm if tag else untracked)(tag, "buffer_load_dwordx4", v(Mr(4 * half), 4), v(vL16), s(S_WS, 4),
                    s(sMBLD2 if half else sMBLD), mods="offen " + mod)
        def mdma(mod, tag=None):
            (self.vm if tag else untracked)(tag, "buffer_load_dwordx4", v(vL16), s(S_WS, 4), s(sMBLD2), mods=f"offen {mod} lds")
            A.I("s_mov_b32", "m0", KXB + 2048 * w)
        self.mload0 = lambda: mload(0, self.pollmod)
        z = opt('z', (0, 16, 16))
        early3 = w == WL_ and opt('early3', False)
        if early3:
            self.vq += ["f0", "st"]
        else:
            zero(z[0], True)
            self.fl("h7")
            mload(0, self.pollmod, "f0")
        rg = self.kw.get('rg')
        for i, n in enumerate(z[1:]):
            if i: mload(0, "sc1", "fx")
            if i == len(z) - 2 and rg and w >= WE:
                A.I("s_waitcnt", f"vmcnt({len(self.vq) + 1})")
                zr += list(range(vQK + 4, vQK + 16))
            if not (early3 and i == 0): zero(n, True)
        zero(20)
        chk = lambda r: [valu("v_max3_u32", v(t0), v(r), v(r + 1), v(r + 2)), valu("v_max_u32", v(t0), v(t0), v(r + 3)),
                         valu("v_cmp_lt_u32", "vcc", s(sSENT), v(t0))]
        def mwrite(): self.ds("mw0", "ds_write_b128", v(vL16), v(Mr(0), 4), mods=self.off(MBUF + 1024 * w))
        def mread(sl): self.ds(f"m{sl}", "ds_read_b128", v(Mr(sl), 4), v(vL16), mods=self.off(MBUF + (sl ^ w) * 1024))
        nw = opt('nw', '')
        own0 = [(0, 0, 0), (0, 1, 0), (1, 0, 0), (1, 1, 0), (2, 0, 0), (2, 1, 0)]
        spec = opt('spec', 2)
        lret0 = A.newlabel("mret")
        if opt('lal', None) is not None:
            A.raw(".p2align 6")
            for _ in range(opt('lal', 0)): A.raw("    s_nop 0")
        A.label(lret0)
        mload(0, "sc1", "fx")
        A.I("s_add_u32", s(sNRM), s(sNRM), 1)
        A.I("s_cmp_lt_u32", s(sNRM), hex(RETRY_MAX))
        A.I("s_cselect_b32", s(sSENT), -2, -1)
        if spec:
            A.nop(4)
            for i in range(4): A.I("v_mov_b32", v(acc(0, 0) + i), 0)
        for _ in range(opt('zl', 0)): A.I("v_mov_b32", v(t0), 0)
        self.needv("f0")
        self.fl(1)
        c = chk(Mr(0))
        c[0](); c[1]()
        if spec == 3: mwrite()
        if spec >= 2: c[2]()
        if spec: smf(*own0[0])
        if opt('wspec', False): mwrite()
        if spec < 2: c[2]()
        if not nochk: A.I("s_cbranch_vccnz", lret0)

        q0, q1, k0, k1 = vQK, vQK + 4, vQK + 8, vQK + 12
        K0, K1, VX, X, VA = 56, 72, 88, 32, vVA
        D0, D1, DM_, PX, PM, ONES, OA, LA, ri = 56, 60, 64, 68, 52, 48, 72, 80, 84
        OF = [60, 92, 80, 84]
        G = [72, 76]
        WS_ = {(2, 0): 0, (3, 0): 8, (2, 1): 16, (2, 2): 24, (2, 3): 32, (3, 1): 40, (3, 2): 56, (3, 3): 64}
        def woread(T, j, hf): self.wread(("o", T, j), WS_[(T, j)] + 4 * hf, wo_home(T, j)[1] + 1024 * hf)
        def W(T, j, hf): return lambda: woread(T, j, hf)
        def vread(i): return lambda: self.ds("vx", "ds_read_b128", v(VX + 4 * i, 4), v(vL16), mods=self.off(VXB + w * 2048 + i * 1024))
        def kread(i): return lambda: self.ds("k", "ds_read_b128", v(K0 + 4 * i, 4), v(vL16), mods=self.off(KXB + i * 1024))
        def zread(r, tag="z"): return lambda: self.ds(tag, "ds_read_b128", v(r, 4), v(vL16), mods=self.off(ZRO))
        def j_pub(): self.vm("pub", "buffer_store_dwordx4", v(vPUB, 4), v(vL16), s(S_WS, 4), s(sKM), mods="offen " + self.pubmod)
        def j_kvf(): self.vm("kvf", "buffer_load_dword", v(vDUM), v(vL4), s(S_WS, 4), s(sKVF), mods="offen sc1")
        add2 = lambda r: [valu("v_add_f32", v(r), v(r), v(r + 2)), valu("v_add_f32", v(r + 1), v(r + 1), v(r + 3))]
        mul2 = lambda r: [valu("v_mul_f32", v(r), s(sC1), v(r)), valu("v_mul_f32", v(r + 1), s(sC1), v(r + 1))]
        cvp = lambda d, x, y: valu("v_cvt_pk_bf16_f32", v(d), v(x), v(y))
        def xwrite(t):
            d = (vPUB + 1, vPUB + 3) if t else (q0 + 2, q0 + 3)
            o = 0 if t else 32
            self.ds(f"xw{t}", "ds_write2_b32", v(vXW), v(d[0]), v(d[1]), mods=f"offset0:{o} offset1:{o + 16}")
        def xread(i): return lambda: self.ds(f"x{i}", "ds_read_b128", v(X + 4 * i, 4), v(vXR), mods=self.off(XI + 1024 * i))
        def oread(j): return lambda: self.ds(f"of{j}", "ds_read_b128", v(OF[j], 4), v(vOR), mods=self.off(OI + (w ^ j) * 512))
        bar = valu("s_barrier")
        nl = lambda t: (lambda: self.needl(t))
        FL = lambda i: (lambda: self.fl(i))
        none = lambda: None
        E_ = lambda m, p: [(m, p, 1), (m, p, 2), (m, p, 3)]
        L_ = lambda m, p: [(m, p, 5), (m, p, 6), (m, p, 7)]
        ve = [(2, 0, 1), (2, 1, 1), (2, 0, 2), (2, 0, 3), (2, 1, 2), (2, 1, 3)][:opt('ve', 0)]
        es = [(0, 0, 1), (0, 1, 1), (0, 0, 2), (0, 1, 2), (0, 0, 3), (0, 1, 3)] + E_(1, 0) + E_(1, 1) + ve
        ne = opt('ne', len(es)); rest = es[ne:]; assert ne <= len(es) and not [f for f in rest if f[0] == 2]
        own1 = [(1, 1, 4), (0, 0, 4), (0, 1, 4), (1, 0, 4), (2, 0, 4), (2, 1, 4)]
        o1v = opt('o1v', 0); vdef = own1[4 + o1v:]; own1 = own1[:4 + o1v]
        R_ = lambda m, p: [f for f in rest if f[:2] == (m, p)]
        vl = vdef + [(2, p, sl) for p, sl in [(0, 1), (1, 1), (0, 5), (1, 5), (0, 2), (0, 3), (0, 6), (0, 7), (1, 2), (1, 3), (1, 6), (1, 7)] if (2, p, sl) not in ve]
        vm_ = opt('vmid', 2)
        frs = own0 + es[:ne] + own1 + R_(0, 0) + R_(0, 1) + L_(0, 0) + L_(0, 1) + R_(1, 0) + L_(1, 0) + vl[:vm_] + R_(1, 1) + L_(1, 1)
        NQ = len(frs)
        frs += vl[vm_:]
        NS = len(frs); assert NS == 48
        O1 = 6 + ne
        last = lambda m, p: max(i for i, f in enumerate(frs) if f[:2] == (m, p))
        def smf_(f):
            h = home(*f)
            return valu(SMF, v(acc(*f[:2]), 4), v(Mr(f[2]), 4), v(self.STG[f], 8) if h[0] == "lds" else reg8(h), v(vIDX))
        ST = [(smf_(f), [f"m{f[2]}", ("k", f)]) for f in frs]
        for D, Areg in ((D0, K0), (D1, K1), (DM_, X)):
            ST += [(valu(MF, v(D, 4), v(Areg + 4 * ks, 4), v(X + 4 * ks, 4), 0 if ks == 0 else v(D, 4)), [f"x{ks}"]) for ks in range(4)]
        pvx = {"a": valu(MF, v(OA, 4), v(VX, 4), v(PX, 4), 0), "b": valu(MF, v(OA + 4, 4), v(VX + 4, 4), v(PX, 4), 0), "l": valu(MF, v(LA, 4), v(ONES, 4), v(PX, 4), 0)}
        pvm = {"a": valu(MF16, v(OA, 4), v(vPUB, 2), v(PM, 2), v(OA, 4)), "b": valu(MF16, v(OA + 4, 4), v(vPUB + 2, 2), v(PM, 2), v(OA + 4, 4)),
               "l": valu(MF16, v(LA, 4), v(ONES, 2), v(PM, 2), v(LA, 4))}
        nrm = opt('nrm', 0)
        pvo = "abl" if nrm == 0 else "lab"
        ST += [(pvx[k], ["vx"]) for k in pvo] + [(pvm[k], []) for k in pvo]
        worder = [(T, 0) for T in range(4)] + [(T, j) for T in range(4) for j in (1, 2, 3)]
        for T, j in worder:
            h = wo_home(T, j)
            ST.append((valu(SMF, v(vWA + 4 * T, 4), v(OF[j], 4), v(WS_[(T, j)], 8) if h[0] == "lds" else reg8(h), v(vIDX)),
                       ["z", ("o", T, j), f"of{j}"]))
        SC, PV, WO, N = 48, 60, 66, 82
        assert len(ST) == N
        mems = [[] for _ in range(N)]; vals = [[] for _ in range(N)]; post = [[] for _ in range(N)]
        def place(L, ops, first, step=1):
            i = first
            while ops:
                if not L[i]:
                    L[i].append(ops.pop(0)); i += step - 1
                i += 1
            return i - step
        ab = opt('abar', 3); ar = opt('ard', 3)
        mems[0] += [none if opt('wspec', False) or spec == 3 else mwrite]
        pp = opt('pubpos', [7, 9, 11, 13])
        if "p" not in X_: mems[pp] += [j_pub]
        def j_flag():
            if w == 0: self.vm("j", "buffer_store_dword", v(vFLG), "off", s(S_WS, 4), s(sFLAGOFF), mods=self.pubmod)
            if w >= WE: self.vm("j", "buffer_store_dword", v(vFLG), v(vMST), s(S_WS, 4), s(sRST), mods=self.mods("offen", sc))
        keep = lambda n: [valu("v_mov_b32", v(vPBST), v(vPBST))] * n
        mems[ab] += keep(opt('ka', 0)) + [none if 'A' in nw else nl("mw0"), bar, FL(2)]
        a1 = opt('ard1', 1)
        rdA = [lambda: mread(1), lambda: mread(2), lambda: mread(3)]
        mems[ar] += rdA[:a1]; mems[ar + 1] += rdA[a1:]
        f1p = opt('f1pos', 1)
        mems[f1p].insert(int(f1p == 0), lambda: mload(1, self.pollmod, "f1")); mems[f1p + 1].insert(0, lambda: mdma(self.pollmod, "fd"))
        def kplace():
            if self.kreg and "k" not in X_:
                for i, j in enumerate(opt('kdpos', [(5, 6), (7, 8), (9, 10), (11, 12)])):
                    assert j > ab and j > f1p + 1
                    mems[j] += [lambda i=i: self.kdma(i)]
            kl = place(mems, self.prefetch_items(True, "k") if self.kreg else self.kreads("k"), opt('kfirst', 4))
            assert kl < O1 - (1 if self.kreg else 2)
        if self.kreg: kplace()
        lret1 = A.newlabel("mret"); lgo1 = A.newlabel("mgo")
        def ool1():
            A.label(lret1)
            A.I("s_mov_b32", s(sT0), "m0")
            A.I("s_mov_b32", "m0", MBUF + 4096 + 1024 * w)
            mload(1, "sc1")
            mdma("sc1")
            A.I("s_mov_b32", "m0", s(sT0))
            A.I("s_waitcnt", "vmcnt(0)")
            for x in chk(Mr(4)): x()
            self.retry_head(sNRF, lgo1)
            A.I("s_cbranch_vccnz", lret1)
            A.I("s_branch", lgo1)
        self.ool.append(ool1)
        c = chk(Mr(4))
        ckn = opt('ckn', 3)
        cplan = {1: [c], 2: [c[:2], c[2:]], 3: [c[:1], c[1:2], c[2:]]}[ckn]
        fw = O1 - 1 - ckn
        mems[fw] += [lambda: self.needv("f1"), FL(3)]
        for i in range(ckn): vals[fw + i] = cplan[i]
        def xb():
            if not nochk: A.I("s_cbranch_vccnz", lret1)
            A.label(lgo1)
        bb = O1 - 1 + opt('bbar', 1); br = bb + opt('brd', 0)
        mems[O1 - 2] += [lambda: self.needvl("fd", "k")]
        mems[O1 - 1] += [xb]
        mems[bb] += [bar, FL(4)]
        mems[br] += [lambda: mread(5)]
        place(mems, [lambda: mread(6), lambda: mread(7)], max(br + 1, O1))
        if not self.kreg: kplace()
        place(mems, [vread(0), vread(1)], O1 + 1)
        i = place(vals, add2(q0) + mul2(q0), last(0, 0) + 2)
        i = place(vals, add2(q1) + mul2(q1) + [cvp(q0 + 2, q0, q1), cvp(q0 + 3, q0 + 1, q1 + 1)], max(i, last(0, 1) + 2))
        xq = i + 1
        xk = NQ + 1
        kf = add2(k0)
        for j in range(last(1, 0) + 2, xk):
            if kf and (not vals[j] or xk - j <= len(kf)): vals[j].append(kf.pop(0))
        if xq == xk: xq += 1
        assert not kf and xq <= xk + 1
        mems[xq] += [lambda: xwrite(0)]
        kt = add2(k1) + [cvp(vPUB + 1, k0, k1), cvp(vPUB + 3, k0 + 1, k1 + 1)]
        ks_ = opt('ksp', 1)
        for j in range(ks_): vals[xk + j] += kt[j * 4 // ks_:(j + 1) * 4 // ks_]
        xk += ks_ - 1
        cb = xk + 1 + opt('cbar_', 4); cr = cb + opt('crd', 1)
        mems[NQ] += [FL(5)]
        mems[xk + 1] += [lambda: xwrite(1), FL(6)]
        vf0, vf1 = add2(VA) + [cvp(vPUB, VA, VA + 1)], add2(VA + 4) + [cvp(vPUB + 2, VA + 4, VA + 5)]
        assert xk + 2 < cb and xk + 2 < last(2, 0) + 2
        mems[xk + 2] += [valu("s_cmp_eq_u32", s(sSTEP), NSEG - 1), valu("s_cbranch_scc1", LLAST)]
        self.last = [x[0] for x in ST[xk + 3:NS]] + vf0 + vf1
        if opt('cw', 0): mems[cb - 1] += [none if 'C' in nw else nl("xw1")]
        assert pp <= NQ
        fp = xk + opt('fpos', [2, 2, 3, 4]); assert fp > ab
        if w != 1: mems[fp] += [j_flag]
        mems[cb] += keep(opt('kc', 0)) + [none if 'C' in nw else nl("xw1")] + [FL(21)] + keep(opt('kc2', 0)) + [bar, FL(7)]
        xp = opt('xpre', 2); xr = opt('xrate', 2)
        rdC = [xread(i) for i in range(4)]
        mems[cr] += rdC[:xp]; rdC = rdC[xp:]; j = cr + 1
        while rdC: mems[j] += rdC[:xr]; rdC = rdC[xr:]; j += 1
        xe = j
        vf0l = list(vf0)
        for j in range(last(2, 0) + 2, NS):
            if vf0l and not vals[j]: vals[j].append(vf0l.pop(0))
        vals[NS - 1] += vf0l
        post[NS - 1] += [FL(8)]
        for j in range(xk + 1, cr): mems[j].append(none)
        vms = [lambda: self.kdma(0), lambda: self.kdma(1), lambda: (self.needl("vx"), self.vdma(0)), lambda: self.vdma(1, MBUF + 4096 + 1024 * w)]
        if self.kreg: vms = vms[2:]
        if "k" in X_: vms = [valu("s_mov_b32", "m0", MBUF + 4096 + 1024 * w)]
        if "v" in X_: vms = vms[:-2] + [valu("s_mov_b32", "m0", MBUF + 4096 + 1024 * w)]
        if "1" in X_: vms = vms[:1] + [valu("s_mov_b32", "m0", MBUF + 4096 + 1024 * w)]
        if self.kvcheck and w < WE: vms.insert(opt('kvfi', 2), j_kvf)
        place(mems, vms, bb + 1 + opt('vbase', [2, 3, 4, 5]), opt('vstep', 3))
        if opt('pfk', 0) and w == 1:
            pfl = [(sKXN, 0), (sVXN, 0)] if opt('pfsh', 3) == 3 else [(sKXN, 0), (sKXN, 4095), (sVXN, 0), (sVXN, 4095)]
            for i, (r, o) in enumerate(pfl):
                mems[opt('pfk', 0) + i * opt('pfstep', 1)] += [lambda r=r, o=o: self.vm("pf", "buffer_load_ubyte" if o else "buffer_load_dword", v(vDUM), v(vFLG), s(S_WS, 4), s(r),
                                                                   mods=self.mods("offen", self.off(o), self.kw.get('pfmod', '')))]
        if opt('kprobe', 0): mems[opt('kprobe', 0)] += [lambda: self.needv(opt('ktag', "kd")), FL(20)]
        ex = lambda r: valu("v_exp_f32", v(r), v(r))
        cv = lambda d, r: valu("v_cvt_pk_bf16_f32", v(d), v(r), v(r + 1))
        one = lambda i: valu("v_mov_b32", v(ONES + i), s(sONES))
        sv = [[one(0), one(1)], [one(2), one(3)], vf1[:1], vf1[1:2], vf1[2:] + [valu("v_mov_b32", v(PM + 1), 0)],
              [ex(D0)], [ex(D0 + 1)], [ex(D0 + 2)], [ex(D0 + 3), cv(PX, D0)], [ex(D1), cv(PX + 1, D0 + 2)], [ex(D1 + 1)],
              [ex(D1 + 2), ex(D1 + 3), cv(PX + 2, D1), cv(PX + 3, D1 + 2)], [ex(DM_)], [ex(DM_ + 1)], [cv(PM, DM_)]]
        for j, x in enumerate(sv): vals[SC + j] = x
        post[PV - 1] += [FL(9)]
        mfree = lambda r: max(i for i, f in enumerate(frs) if Mr(f[2]) == r)
        wfirst = {(2, 0, 0): mfree(0), (2, 0, 1): mfree(4), (3, 0, 0): mfree(8), (3, 0, 1): mfree(12), (2, 1, 0): mfree(16), (2, 1, 1): mfree(20),
                  (2, 2, 0): mfree(24), (2, 2, 1): mfree(28), (2, 3, 0): SC + 8, (2, 3, 1): SC + 9, (3, 1, 0): SC + 10, (3, 1, 1): SC + 11,
                  (3, 2, 0): SC + 10, (3, 2, 1): WO + 4, (3, 3, 0): PV + 3, (3, 3, 1): PV + 2}
        place(mems, [zread(vWA + 4 * i) for i in range(4)], O1 + 4)
        lnorm = A.newlabel("norm"); lfb = A.newlabel("smax")
        QH = "quad_perm:[2,3,2,3] row_mask:0xf bank_mask:0xf"; QL = "quad_perm:[0,1,0,1] row_mask:0xf bank_mask:0xf"
        fb = opt('fbpos', 0)
        fbr = valu("s_nop", 0) if "f" in X_ else valu("s_cbranch_vccnz", lfb)
        if fb >= 0 and nrm == 0: mems[WO + fb] += [fbr]
        def norm():
            self.fl(10)
            A.label(lnorm)
            A.I("s_mov_b64", "vcc", s(sOMASK, 2))
            R_ = OA + 4
            for i in range(4):
                A.I("v_cndmask_b32_dpp", v(R_ + i), v(OA + i), v(R_ + i), "vcc", mods=QH)
            A.I("v_rcp_f32_dpp", v(ri), v(LA), mods=QH)
            for i in range(2): A.I("v_pk_mul_f32", v(R_ + 2 * i, 2), v(R_ + 2 * i, 2), v(ri, 2), mods="op_sel_hi:[1,0]")
            for i in range(2): A.I("v_cvt_pk_bf16_f32", v(OA + i), v(R_ + 2 * i), v(R_ + 2 * i + 1))
            self.ds("ow", "ds_write_b64", v(vOW), v(OA, 2), mods=self.off(OI + w * 512))
            self.fl(11)
            A.I("v_max_f32_dpp", v(ri + 2), v(LA), v(ri), mods=QH)
            for i in range(4):
                A.I("v_mov_b32_dpp", v(OF[0] + i), v(OA + (i & 1)), mods=QH if i >> 1 else QL)
                if i == 1: A.I("v_cmp_lt_f32", "vcc", s(sBIG), v(ri + 2))
            if fb < 0: fbr()
        def norm1():
            self.fl(10)
            A.label(lnorm)
            A.I("v_rcp_f32_dpp", v(ri), v(LA), mods=QH)
            for t in range(2):
                r = OA + 4 * t
                for i in range(4): A.I("v_mul_f32_dpp", v(r + i), v(r + i), v(ri), mods=QH)
                for i in range(2): A.I("v_cvt_pk_bf16_f32", v(OF[0] + 2 * t + i), v(r + 2 * i), v(r + 2 * i + 1))
                if nrm == 2: self.ds("ow", "ds_write_b64", v(vOR), v(OF[0] + 2 * t, 2), mods=self.off(OI + w * 512 + 8 * t))
            if nrm == 1: self.ds("ow", "ds_write_b128", v(vOR), v(OF[0], 4), mods=self.off(OI + w * 512))
            self.fl(11)
        def norm3():
            self.fl(10)
            A.label(lnorm)
            A.I("v_rcp_f32_dpp", v(ri), v(LA), mods=QH)
            for i in range(4): A.I("v_mul_f32_dpp", v(OA + i), v(OA + i), v(ri), mods=QH)
            for i in range(2): A.I("v_cvt_pk_bf16_f32", v(OA + i), v(OA + 2 * i), v(OA + 2 * i + 1))
            R_ = OA + 4
            for i in range(2): A.I("v_pk_mul_f32", v(R_ + 2 * i, 2), v(R_ + 2 * i, 2), v(ri, 2), mods="op_sel_hi:[1,0]")
            A.I("s_mov_b64", "exec", s(sOMASK, 2))
            for i in range(2): A.I("v_cvt_pk_bf16_f32", v(OA + i), v(R_ + 2 * i), v(R_ + 2 * i + 1))
            A.I("s_mov_b64", "exec", -1)
            self.ds("ow", "ds_write_b64", v(vOW), v(OA, 2), mods=self.off(OI + w * 512))
            self.fl(11)
            A.I("v_max_f32_dpp", v(ri + 2), v(LA), v(ri), mods=QH)
            A.I("v_cmp_lt_f32", "vcc", s(sBIG), v(ri + 2))
            for i in range(4): A.I("v_mov_b32_dpp", v(OF[0] + i), v(OA + (i & 1)), mods=QH if i >> 1 else QL)
            if "f" in X_: A.I("s_nop", 0)
            else: A.I("s_cbranch_vccnz", lfb)
        if nrm == 0: post[WO - 1] += [norm]
        elif nrm == 3: post[WO - 1] += [norm3]
        else:
            post[WO - 1] += [norm1]
            vals[WO] = [valu("v_max_f32_dpp", v(ri + 2), v(LA), v(ri), mods=QH)]
            vals[WO + 1] = [valu("v_cmp_lt_f32", "vcc", s(sBIG), v(ri + 2))]
            mems[WO + 2] += [valu("s_nop", 0) if "f" in X_ else valu("s_cbranch_vccnz", lfb)]
        def ool_smax():
            A.label(lfb)
            A.I("s_add_u32", s(sNRF), s(sNRF), 1)
            A.I("s_mov_b32", s(sBIG), "0x7f800000")
            A.I("s_waitcnt", "lgkmcnt(0)")
            A.I("s_sub_u32", s(sT0), s(sKXN), hex(32 * 8192 + 2048 * w))
            A.I("s_add_u32", s(sT1), s(sT0), 4096)
            A.nop(8)
            for i in range(8):
                A.I("buffer_load_dwordx4", v(K0 + 4 * i, 4), v(vL16), s(S_WS, 4), s(sT1 if i > 3 else sT0), mods=self.mods("offen", self.off((i & 3) * 1024)))
            for i in range(4):
                A.I("ds_read_b128", v(X + 4 * i, 4), v(vXR), mods=self.off(XI + 1024 * i))
            for i in range(16): A.I("v_mov_b32", v(vWA + i), 0)
            A.I("s_waitcnt", "vmcnt(0) lgkmcnt(0)")
            for x in ST[SC:PV]: x[0]()
            tm, tt = 84, 85
            A.I("v_max3_f32", v(tm), v(D0), v(D0 + 1), v(D0 + 2))
            A.I("v_max3_f32", v(tm), v(tm), v(D0 + 3), v(D1))
            A.I("v_max3_f32", v(tm), v(tm), v(D1 + 1), v(D1 + 2))
            A.I("v_max3_f32", v(tm), v(tm), v(D1 + 3), v(DM_))
            A.I("v_max_f32", v(tm), v(tm), v(DM_ + 1))
            for b in (32, 16):
                A.I("v_mov_b32", v(tt), v(tm))
                A.I(f"v_permlane{b}_swap_b32", v(tt), v(tm))
                A.I("v_max_f32", v(tm), v(tt), v(tm))
            rs = [D0, D0 + 1, D0 + 2, D0 + 3, D1, D1 + 1, D1 + 2, D1 + 3, DM_, DM_ + 1]
            for r in rs: A.I("v_sub_f32", v(r), v(r), v(tm))
            for r in rs: A.I("v_exp_f32", v(r), v(r))
            for i in range(5): A.I("v_cvt_pk_bf16_f32", v(PX + i if i < 4 else PM), v(rs[2 * i]), v(rs[2 * i + 1]))
            for x in ST[PV:WO]: x[0]()
            self.lq = []
            for f in ((2, 3, 0), (2, 3, 1), (3, 1, 0), (3, 1, 1), (3, 2, 0), (3, 3, 0), (3, 3, 1)): woread(*f)
            A.I("s_waitcnt", "lgkmcnt(0)")
            A.barrier_haz()
            A.I("s_branch", lnorm)
        self.ool.append(ool_smax)
        ob = WO + opt('obar', 1); od = ob + opt('ord', 0)
        if self.kreg and opt('kbd', False): mems[ob - 1] += [lambda: self.needv("kk")]
        mems[ob] += keep(opt('kd', 0)) + [none if 'D' in nw else nl("ow"), bar, FL(12)]
        o1 = opt('ord1', 3)
        rdD = [oread(j) for j in (1, 2, 3)]
        mems[od] += rdD[:o1]; mems[od + 1] += rdD[o1:]
        mems[WO + 4] += [FL(13)]
        for j in range(WO - 1, od): mems[j].append(none)
        def pack(T):
            g = G[T >> 1] + (T & 1); r = vWA + 4 * T
            L = [valu("v_cvt_pk_bf16_f32", v(g), v(r), v(r + 2)), valu("v_cvt_pk_bf16_f32", v(g + 2), v(r + 1), v(r + 3))]
            if not T & 1: L.insert(1, valu("v_and_or_b32", v(g), v(g), -2, s(sTAG)))
            return L
        def pstore(jj): self.vm("p", "buffer_store_dwordx4", v(G[jj], 4), v(vPBST), s(S_WS, 4), s(sPBST + jj), mods=self.mods("offen", sc or opt('pmod', '')))
        W4 = WO + 4
        place(vals, pack(0), W4 + 4)
        vals[W4 + 7] += pack(1)
        mems[W4 + 8] += [lambda: pstore(0), FL("h5")]
        p2 = pack(2)
        vals[W4 + 10] += p2[:1]; vals[W4 + 11] += p2[1:] + pack(3)
        post[N - 1] += [lambda: pstore(1)]
        wlo = opt('wlo', 0)
        for j in range(cr, xe + opt('xgap', 0)): mems[j].append(none)
        for j in opt('wno', tuple(range(SC + 5, PV + 3)) + (xq - 1, xk, NS - 1, SC)): mems[j].append(none)
        for f, fs in sorted(wfirst.items(), key=lambda x: x[1]):
            j = place(mems, [W(*f)], max(fs, O1 + 4))
            assert j + 3 <= WO + worder.index(f[:2]), (f, j)
        mems[WO + 3] += keep(opt('ke', 0))
        mems[5] += keep(opt('kb', 0))
        if opt('fill', True): A.fill = v(vOW)
        for i, (x, deps) in enumerate(ST):
            for d in deps: self.needl(d)
            if i or not spec: x()
            if self.kw.get('pslot') == i: self.fl("h3")
            for m in mems[i]: m()
            if i + 1 < N and i != WO - 1:
                for d in reversed(ST[i + 1][1]): self.needl(d)
            for x in vals[i]: x()
            for x in post[i]: x()
        A.fill = None
        self.fl(14)
        if self.flog:
            self.fl_collect(14); self.lq = []; self.vq.append("log")
        def pad16(n):
            for _ in range(n):
                A.I("v_mov_b32", v(t0), 0); A.nop(3)
        junk = []
        for r, inc in ((sKXN, 32 * 8192), (sVXN, 32 * 8192), (sKM, 32 * 4096)):
            junk.append(valu("s_add_u32", s(r), s(r), hex(inc)))
        junk.append(valu("s_add_u32", s(sMBLD), s(sMBST), 1024 * w))
        junk.append(valu("s_add_u32", s(sMBLD2), s(sMBLD), 4096))
        for j in range(2): junk.append(valu("s_xor_b32", s(sPBST + j), s(sPBST + j), hex(PBPAR)))
        junk.append(valu("s_mov_b32", s(sBIG), f2h(2.0 ** self.kw.get('bigexp', 20))))
        if w == 0: junk.append(valu("v_mov_b32", v(vFLG), s(sSTEP)))
        junk.append(valu("s_add_u32", s(sSTEP), s(sSTEP), 1))
        if w >= WE: junk += [valu("v_cndmask_b32", v(SEL + d), 0, v(vSEL), s(self.sSEL + 2 * d, 2)) for d in range(4)]
        junk += [valu("v_mov_b32", v(r), 0) for r in range(vQK, vQK + 24) if w < WE or not (vQK if rg else vVA) <= r < vVA + 6]
        pf = self.prefetch_items()
        if self.kreg:
            kb = [] if opt('kbd', False) else [lambda: self.needv("kk"), bar]
            pf = kb + pf + self.kreads() if opt('kb0', True) else pf + kb + self.kreads()
        def tail():
            A.I("s_add_u32", s(sMBST), s(sMBST), 8192)
            assert (WS_MB + self.wo) & 0xffff == 0
            A.I("s_bitset0_b32", s(sMBST), 15)
            A.I("s_xor_b32", s(sRST), s(sMBST), 16384)
            A.I("s_xor_b32", s(sPBLD), s(sPBLD), hex(PBPAR))
            A.I("s_xor_b32", s(sPBLD2), s(sPBLD), 1024)
            A.I("s_bfe_u32", s(sTAG), s(sSTEP), hex(0x10001))
        if w < WE:
            if opt('pf1', self.kreg): junk, pf = pf, junk
            for x in junk: x()
            pad16(opt('wpre', 0))
            for x in pf: x()
            tail()
            if self.kvcheck:
                A.I("s_add_u32", s(sT1), s(sSTEP), 6 if opt('pfk', 0) else 5)
                A.I("s_lshr_b32", s(sT1), s(sT1), 2)
                A.I("s_min_u32", s(sT1), s(sT1), 16)
                A.I("s_bfm_b32", s(sNEED), s(sT1), 0)
                lkv = A.newlabel("kvw"); lkb = A.newlabel("kvb")
                self.needv("kvf")
                A.I("v_cmp_eq_u32", "vcc", 0, v(vDUM))
                A.I("s_and_b64", "vcc", "vcc", s(sNEED, 2))
                A.I("s_cbranch_scc1", lkv)
                A.label(lkb)
                def ool_kv():
                    A.label(lkv)
                    self.retry_head(sNRF, lkb)
                    A.I("s_sleep", 4)
                    A.I("buffer_load_dword", v(vDUM), v(vL4), s(S_WS, 4), s(sKVF), mods="offen sc1")
                    A.I("s_waitcnt", "vmcnt(0)")
                    A.I("v_cmp_eq_u32", "vcc", 0, v(vDUM))
                    A.I("s_and_b64", "vcc", "vcc", s(sNEED, 2))
                    A.I("s_cbranch_scc1", lkv)
                    A.I("s_branch", lkb)
                self.ool.append(ool_kv)
            pad16(opt('wpad', 20) - (7 if self.flog else 0))
            A.I("s_waitcnt", "lgkmcnt(0)")
            A.I("s_branch", LTOP)
            return
        def rloads(mod, track=True, RL=RL, t="r"):
            for m in range(4):
                (self.vm if track else untracked)(f"{t}{m}", "buffer_load_dwordx4", v(RL[m], 4), v(vL16), s(S_WS, 4), s(sPBLD2 if m & 1 else sPBLD),
                        mods=self.mods("offen", self.off((m & 2) * 1024), mod))
        rp = self.rp[w - WE] - (25 if self.flog else 0)
        npf = len(pf) - 16 + opt('rpf', 0 if self.kreg else 16)
        junk = pf[:npf] + junk
        junk += [valu("v_mov_b32", v(tc), 0)] * max(0, rp + 1 - len(junk))
        junk = junk[:rp] + pf[npf:] + junk[rp:]
        RB = [vQK + 4 * m for m in range(4)]
        if rg: junk += [valu("v_mov_b32", v(tc), 0)] * max(0, rp + rg[w - WE] + 1 - len(junk))
        for i, x in enumerate(junk):
            if i == rp: self.fl("h6"); rloads(self.pollmod)
            if rg and i == rp + rg[w - WE]: rloads(opt('bmod', "sc1"), True, RB, "b")
            x()
        lrl = A.newlabel("rl"); lrs = A.newlabel("rslow"); lrg = A.newlabel("rgo")
        if early3:
            for _ in range(opt('e3pad', 0)): A.I("v_mov_b32", v(tc), 0)
            if opt('e3pos', 0) == 0: self.fl("h7"); mload(0, self.pollmod, "f0n")
        if rg: A.label(lrl)
        for m in range(4):
            self.needv(f"r{m}")
            if m == 0 and early3 and opt('e3pos', 0) == 1: self.fl("h7"); mload(0, self.pollmod, "f0n")
            if m == 0 and not rg: A.label(lrl)
            A.I(MF, v(RD, 4), v(RL[m], 4), v(SEL, 4), 0 if m == 0 else v(RD, 4))
            A.I("v_xor_b32", v(tc + (m > 0)), s(sTAG), v(RL[m]))
            if m: A.I("v_or_b32", v(tc), v(tc), v(tc + 1))
        self.fl("h8")
        A.I("v_and_b32", v(tc), 1, v(tc))
        A.I("v_cmp_ne_u32", "vcc", 0, v(tc))
        if not nochk: A.I("s_cbranch_vccnz", lrs)
        A.label(lrg)
        A.I("v_permlane32_swap_b32", v(RD), v(RD + 2))
        A.I("v_permlane32_swap_b32", v(RD + 1), v(RD + 3))
        A.I("v_pk_add_f32", v(RD, 2), v(RD, 2), v(RD + 2, 2))
        A.I("s_mov_b64", "exec", s(sRMASK, 2))
        A.I("v_cvt_pk_bf16_f32", v(SEL), v(RD), v(RD + 1))
        A.I("v_min_u32", v(SEL), "0xfffffffe", v(SEL))
        A.I("buffer_store_dword", v(SEL), v(vMST), s(S_WS, 4), s(sMBST), mods=self.mods("offen", sc or opt('mmod', '')))
        A.I("s_mov_b64", "exec", -1)
        self.fl(15)
        def ool_r():
            A.label(lrs)
            rloads("sc1", False)
            self.retry_head(sNRR, lrg)
            if rg:
                for m in range(4):
                    A.I("s_waitcnt", f"vmcnt({7 - m})")
                    A.I(MF, v(RD, 4), v(RB[m], 4), v(SEL, 4), 0 if m == 0 else v(RD, 4))
                    A.I("v_xor_b32", v(tc + (m > 0)), s(sTAG), v(RB[m]))
                    if m: A.I("v_or_b32", v(tc), v(tc), v(tc + 1))
                self.fl("h8")
                A.I("v_and_b32", v(tc), 1, v(tc))
                A.I("v_cmp_ne_u32", "vcc", 0, v(tc))
                A.I("s_cbranch_vccz", lrg)
                rloads("sc1", False, RB)
                A.I("s_add_u32", s(sNRR), s(sNRR), 1)
                A.I("s_branch", lrl)
                return
            A.I("s_waitcnt", "vmcnt(0)")
            A.I("s_branch", lrl)
        self.ool.append(ool_r)
        tail()
        A.I("s_waitcnt", "lgkmcnt(0)")
        A.I("s_branch", LTOP)

    def dump_timing(self):
        A = self.A
        A.I("s_lshl_b32", s(sT0), s(sH), 2)
        A.I("s_add_u32", s(sT0), s(sT0), s(sWV))
        A.I("s_lshl_b32", s(sT0), s(sT0), 7)
        A.I("s_add_u32", s(sT0), s(sT0), hex(WS_TS))
        regs = [sACC + i for i in range(16)] + [sNRM, sNRR, sNRF, self.sNRX]
        for i, r in enumerate(regs):
            A.I("v_mov_b32", v(1), s(r))
            A.I("buffer_store_dword", v(1), "off", s(S_WS, 4), s(sT0), mods=f"offset:{4*i}")

    def emit_ool(self):
        for f in self.ool:
            self.A.reset_haz()
            f()
        self.ool = []
```

```python
import struct
from asmgen import *

def f2h(x):
    return hex(struct.unpack("<I", struct.pack("<f", x))[0])

def kernel_header(A, name):
    A.raw(f".globl {name}\n.p2align 8\n.type {name},@function")
    A.label(name)
    A.reset_haz()

def kernel_desc(name, vgpr=512, accum=256, sgpr=102):
    return f""".p2align 6
.amdhsa_kernel {name}
  .amdhsa_next_free_vgpr {vgpr}
  .amdhsa_next_free_sgpr {sgpr}
  .amdhsa_accum_offset {accum}
  .amdhsa_group_segment_fixed_size 0
  .amdhsa_kernarg_size 120
  .amdhsa_user_sgpr_count 2
  .amdhsa_user_sgpr_kernarg_segment_ptr 1
  .amdhsa_system_sgpr_workgroup_id_x 1
  .amdhsa_float_denorm_mode_32 3
.end_amdhsa_kernel
"""

def srd(A, sd, karg_off, nbytes):
    A.I("s_load_dwordx2", s(sd, 2), s(0, 2), karg_off)
    A.I("s_waitcnt", "lgkmcnt(0)")
    A.I("s_and_b32", s(sd + 1), s(sd + 1), "0xffff")
    A.I("s_mov_b32", s(sd + 2), hex(nbytes))
    A.I("s_mov_b32", s(sd + 3), "0x20000")

def code_touch(A, start, sp, voff, vdst, back=False, extra=None):
    l = A.newlabel("pc")
    A.I("s_getpc_b64", s(sp, 2))
    A.label(l)
    A.I("s_sub_u32" if back else "s_add_u32", s(sp), s(sp), f"{l}-{start}" if back else f"{start}-{l}")
    A.I("s_subb_u32" if back else "s_addc_u32", s(sp + 1), s(sp + 1), 0)
    if extra is not None: A.I("v_add_u32", v(voff), extra, v(voff))
    A.I("v_min_u32", v(voff), f"L_code_end-{start}-4", v(voff))
    A.I("global_load_dword", v(vdst), v(voff), s(sp, 2))

def code_end(A):
    A.label("L_code_end")

def mark(A, n):
    if PROF[0]: A.I("s_memrealtime", s((68, 70, 72, 74, 80)[n], 2))

def off(o):
    return f"offset:{o}" if o else ""

def mods(*m):
    return " ".join(x for x in m if x)

def bf16r(A, d, x):
    A.I("v_cvt_pk_bf16_f32", v(d), v(x), v(x))
    A.I("v_and_b32", v(d), "0xffff0000", v(d))

def xor_reduce(A, op, x, t, bits=(32, 16)):
    for b in bits:
        A.I("v_mov_b32", v(t), v(x))
        A.I(f"v_permlane{b}_swap_b32", v(t), v(x))
        A.I(op, v(x), v(t), v(x))

def row_reduce16(A, op, x):
    for r in (1, 2, 4, 8):
        A.I(op + "_dpp", v(x), v(x), v(x), mods=f"row_ror:{r} row_mask:0xf bank_mask:0xf")

def ln_mean(A, S, mbf, dm):
    A.I("v_mul_f32", v(S), f2h(1.0 / 512), v(S))
    bf16r(A, mbf, S)
    A.I("v_sub_f32", v(dm), v(S), v(mbf))

def ln_rinv(A, Q, dm, t):
    A.I("v_mul_f32", v(t), v(dm), v(dm))
    A.I("v_mul_f32", v(Q), f2h(1.0 / 512), v(Q))
    A.I("v_sub_f32", v(Q), v(Q), v(t))
    A.I("v_max_f32", v(Q), 0, v(Q))
    bf16r(A, Q, Q)
    A.I("v_add_f32", v(Q), f2h(1e-5), v(Q))
    bf16r(A, Q, Q)
    A.I("v_sqrt_f32", v(Q), v(Q))
    bf16r(A, Q, Q)
    A.I("v_rcp_f32", v(Q), v(Q))

S_DBGG = 92
sGW = 100
sGB = 101
sPT0, sPT1 = 96, 97
POLL_MAX = 1 << 16

def restore_tid(A):
    A.I("v_mbcnt_lo_u32_b32", v(0), -1, 0)
    A.I("v_mbcnt_hi_u32_b32", v(0), -1, v(0))
    A.I("s_lshl_b32", s(sPT0), s(sGW), 6)
    A.I("v_add_u32", v(0), s(sPT0), v(0))

def wait_words(A, srd_, voff, soff, nlanes, minval, vt, sleep=8, barrier=True, mask=None, paced=False, equal=False):
    lp = A.newlabel("poll"); ld = A.newlabel("polld"); ls = A.newlabel("polls")
    if barrier:
        A.I("s_cmp_lg_u32", s(sGW), 0)
        A.I("s_cbranch_scc1", ls)
    if mask is not None:
        A.I("s_mov_b32", "exec_lo", hex(mask))
        A.I("s_mov_b32", "exec_hi", 0)
    elif nlanes < 64:
        if nlanes <= 32:
            A.I("s_mov_b32", "exec_lo", hex((1 << nlanes) - 1))
            A.I("s_mov_b32", "exec_hi", 0)
        else:
            A.I("s_mov_b32", "exec_hi", hex((1 << (nlanes - 32)) - 1))
    A.I("s_mov_b32", s(sPT0), 0)
    A.label(lp)
    A.I("buffer_load_dword", v(vt), v(voff), s(srd_, 4), soff, mods="offen sc1")
    A.I("s_waitcnt", "vmcnt(0)")
    A.I("v_cmp_ne_u32" if equal else "v_cmp_gt_u32", "vcc", minval, v(vt))
    A.I("s_cbranch_vccz", ld)
    if paced:
        l1 = A.newlabel("near")
        A.I("v_readfirstlane_b32", s(sPT1), v(vt))
        A.I("s_sub_u32", s(sPT1), minval, s(sPT1))
        A.I("s_cmp_lt_i32", s(sPT1), 3)
        A.I("s_cbranch_scc1", l1)
        A.I("s_sleep", 40)
        A.I("s_cmp_lt_i32", s(sPT1), 5)
        A.I("s_cbranch_scc1", l1)
        A.I("s_sleep", 100)
        A.label(l1)
    A.I("s_sleep", sleep)
    A.I("s_add_u32", s(sPT0), s(sPT0), 1)
    A.I("s_cmp_lt_u32", s(sPT0), hex(POLL_MAX))
    A.I("s_cbranch_scc1", lp)
    A.label(ld)
    A.I("s_mov_b64", "exec", -1)
    if barrier:
        A.label(ls)
        A.I("s_barrier")
    A.reset_haz()

def set_flag(A, srd_, soff, vt, val=1, how=lambda st: st("sc1")):
    ls = A.newlabel("flag")
    A.I("s_cmp_lg_u32", s(sGW), 0)
    A.I("s_cbranch_scc1", ls)
    A.I("v_mov_b32", v(vt), val)
    A.I("s_mov_b64", "exec", 1)
    how(lambda m: A.I("buffer_store_dword", v(vt), "off", s(srd_, 4), soff, mods=m))
    A.I("s_mov_b64", "exec", -1)
    A.label(ls)

PROF = [False]
DBGTS = [None]
sPID = 88
def ts(A, slot, vt=255, dyn=None):
    if DBGTS[0] and dyn is None and slot in DBGTS[0]:
        pid, word = DBGTS[0][slot]
        l = A.newlabel("dts")
        A.I("s_cmp_lg_u32", s(sGW), 0)
        A.I("s_cbranch_scc1", l)
        A.I("s_cmp_lg_u32", s(sPID), pid)
        A.I("s_cbranch_scc1", l)
        A.I("s_memrealtime", s(90, 2))
        A.I("s_waitcnt", "lgkmcnt(0)")
        A.I("v_mov_b32", v(vt), s(90))
        A.I("s_mov_b64", "exec", 1)
        A.I("buffer_store_dword", v(vt), "off", s(S_DBGG, 4), 0, mods=f"offset:{4 * word}")
        A.I("s_mov_b64", "exec", -1)
        A.label(l)
    if not PROF[0]: return
    from layout import WS_TS
    l = A.newlabel("ts")
    A.I("s_cmp_lg_u32", s(sGW), 0)
    A.I("s_cbranch_scc1", l)
    A.I("s_memrealtime", s(90, 2))
    A.I("s_lshl_b32", s(89), s(sPID), 8)
    A.I("s_add_u32", s(89), s(89), hex(WS_TS + 4 * slot))
    if dyn is not None:
        A.I("s_lshl_b32", s(sPT1), s(dyn), 2)
        A.I("s_add_u32", s(89), s(89), s(sPT1))
    A.I("s_waitcnt", "lgkmcnt(0)")
    A.I("v_mov_b32", v(vt), s(90))
    A.I("s_mov_b64", "exec", 1)
    A.I("buffer_store_dword", v(vt), "off", s(8, 4), s(89))
    A.I("s_mov_b64", "exec", -1)
    A.label(l)
```

```python
from asmgen import *
from layout import *
from common import *

S_WS = 8; S_X = 12; S_W = 16
sRB, sWV, sCG, sU = 20, 21, 22, 23
sDH = 24
sOUT = 25
sT0, sT1, sT2 = 26, 27, 28
sW1K = 29
sPK, sPV, sPQ = 30, 32, 34
sNU, sSTR = 36, 37
sM = 38
sMD = 39
sPF = 40
sPO = 42
sPASS = 41

vACC = 0; vWB = 64; vTR = 128; vDMA = 136; vL16 = 137; vT = 138; vXO = 139
MF = "v_mfma_f32_16x16x32_bf16"

class Phase1:
    def __init__(self, A, tag="p1", wearly=False, xdrop=None):
        self.A = A; self.tag = tag; self.wearly = wearly; self.xdrop = xdrop

    def setup(self):
        A = self.A
        L, G, C, T, U, R = 144, 145, 146, 147, 148, 149
        A.I("s_load_dwordx2", s(sPQ, 2), s(0, 2), 16)
        A.I("s_load_dwordx2", s(sPK, 2), s(0, 2), 24)
        A.I("s_load_dwordx2", s(sPV, 2), s(0, 2), 32)
        A.I("s_load_dwordx2", s(sPO, 2), s(0, 2), 40)
        srd(A, S_X, 0, 2 << 20)
        A.I("v_lshrrev_b32", v(T), 6, v(0))
        A.I("v_readfirstlane_b32", s(sWV), v(T))
        A.I("v_and_b32", v(L), 63, v(0))
        A.I("v_lshrrev_b32", v(G), 4, v(L))
        A.I("v_and_b32", v(C), 15, v(L))
        A.I("v_lshrrev_b32", v(R), 2, v(C))
        A.I("v_lshlrev_b32", v(vL16), 4, v(L))
        A.I("s_lshl_b32", s(sW1K), s(sWV), 10)
        A.I("s_lshl_b32", s(sT0), s(sRB), 7)
        A.I("s_lshl_b32", s(sT1), s(sWV), 5)
        A.I("s_add_u32", s(sT0), s(sT0), s(sT1))
        A.I("v_add_u32", v(T), s(sT0), v(C))
        A.I("v_lshlrev_b32", v(T), 10, v(T))
        A.I("v_lshl_add_u32", v(vXO), v(G), 4, v(T))
        for tt in range(2):
            A.I("s_mov_b32", s(sT0), hex(tt * 16 * 1024))
            for ks in range(16):
                A.I("buffer_load_dwordx4", v(64 * tt + 4 * ks, 4), v(vXO), s(S_X, 4), s(sT0), mods=mods("offen", off(64 * ks)))
        A.I("s_lshr_b32", s(sT0), s(sWV), 1)
        A.I("s_lshl_b32", s(sT0), s(sT0), 2)
        A.I("v_or_b32", v(U), s(sT0), v(G))
        A.I("v_lshlrev_b32", v(U), 1, v(U))
        A.I("v_xor_b32", v(U), v(U), v(C))
        A.I("v_lshlrev_b32", v(U), 4, v(U))
        A.I("s_lshl_b32", s(sT0), s(sWV), 2)
        A.I("v_add_u32", v(T), s(sT0), v(G))
        A.I("v_lshl_add_u32", v(vDMA), v(T), 13, v(U))
        A.I("v_lshl_add_u32", v(T), v(G), 3, v(R))
        A.I("v_lshlrev_b32", v(T), 8, v(T))
        A.I("v_and_b32", v(U), 1, v(G))
        A.I("v_lshl_or_b32", v(U), v(U), 2, v(R))
        A.I("v_lshl_add_u32", v(T), v(U), 5, v(T))
        A.I("v_and_b32", v(U), 3, v(C))
        A.I("v_lshl_add_u32", v(vTR), v(U), 3, v(T))
        for p in range(1, 8):
            A.I("v_xor_b32", v(vTR + p), p << 5, v(vTR))
        A.I("s_mov_b32", s(S_W + 3), "0x20000")

    def warm(self, when):
        A = self.A
        if when not in self.warmat: return 0
        sid = self.warm_id
        A.I("v_lshlrev_b32", v(vT), 2, v(vL16))
        A.I("s_mul_i32", s(sT0), s(sid), 18752)
        A.I("s_mul_i32", s(sT1), s(sWV), 4736)
        A.I("s_add_u32", s(sT0), s(sT0), s(sT1))
        A.I("s_add_u32", s(sT1), s(sT0), 4096)
        A.I("s_cmp_eq_u32", s(sPASS), 0)
        A.I("s_cselect_b32", s(6), hex(4 << 20), 0)
        A.I("s_mov_b32", s(7), "0x20000")
        for m in self.warmat[when]:
            pp = (sPQ, sPK, sPV, sPO)[m]
            A.I("s_mov_b32", s(4), s(pp))
            A.I("s_and_b32", s(5), s(pp + 1), "0xffff")
            A.I("buffer_load_dword", v(143), v(vT), s(4, 4), s(sT0), mods="offen")
            A.I("s_mov_b32", "exec_lo", "0x3ff")
            A.I("s_mov_b32", "exec_hi", 0)
            A.I("buffer_load_dword", v(143), v(vT), s(4, 4), s(sT1), mods="offen")
            A.I("s_mov_b64", "exec", -1)
        return 2 * len(self.warmat[when])

    def dma_unit(self):
        A = self.A
        A.I("s_lshr_b32", s(sT0), s(sMD), 5)
        A.I("s_cmp_eq_u32", s(sT0), 0)
        A.I("s_cselect_b64", s(S_W, 2), s(sPK, 2), s(sPQ, 2))
        A.I("s_cmp_eq_u32", s(sT0), 1)
        A.I("s_cselect_b64", s(S_W, 2), s(sPV, 2), s(S_W, 2))
        A.I("s_and_b32", s(S_W + 1), s(S_W + 1), "0xffff")
        A.I("s_cmp_lt_u32", s(sMD), 96)
        A.I("s_cselect_b32", s(S_W + 2), hex(4 << 20), 0)
        A.I("s_and_b32", s(sDH), s(sMD), 31)
        A.I("s_lshl_b32", s(sDH), s(sDH), 8)

    def dma_one(self, a_, i):
        A = self.A
        A.I("s_add_u32", s(sT0), s(sDH), hex((128 * a_ + 16 * i) * 8192))
        A.I("s_add_u32", "m0", s(sW1K), hex(a_ * 32768 + 4 * i * 1024))
        A.I("buffer_load_dwordx4", v(vDMA), s(S_W, 4), s(sT0), mods="offen lds")

    def dma_chunk(self, a_):
        for i in range(8): self.dma_one(a_, i)

    def layernorm(self, between):
        A = self.A
        S_, Q, MB, DMn, T, ONE = 150, 152, 154, 156, 157, 158
        F = 160
        A.I("v_mov_b32", v(ONE), "0x3f803f80")
        if self.wearly: between()
        n = self.warm(0)
        for tt in range(2):
            RAW = 64 * tt
            A.I("s_waitcnt", f"vmcnt({16 * (1 - tt) + (24 if self.wearly else 0) + n})")
            if tt == 0: ts(A, 12, dyn=sPASS); n += self.warm(1)
            if tt == 1: self.warm(2)
            if tt == 1 and not self.wearly: between()
            A.I("v_pk_mov_b32", v(S_, 2), 0, 0)
            A.I("v_pk_mov_b32", v(Q, 2), 0, 0)
            for i in range(64):
                A.I("v_dot2_f32_bf16", v(S_ + (i & 1)), v(RAW + i), v(ONE), v(S_ + (i & 1)))
                A.I("v_dot2_f32_bf16", v(Q + (i & 1)), v(RAW + i), v(RAW + i), v(Q + (i & 1)))
            A.I("v_add_f32", v(S_), v(S_), v(S_ + 1))
            A.I("v_add_f32", v(Q), v(Q), v(Q + 1))
            xor_reduce(A, "v_add_f32", S_, T)
            xor_reduce(A, "v_add_f32", Q, T)
            ln_mean(A, S_, MB, DMn)
            ln_rinv(A, Q, S_, T)
            for i0 in range(0, 64, 8):
                R8 = range(i0, i0 + 8)
                for i in R8:
                    f = F + 2 * (i - i0)
                    A.I("v_lshlrev_b32", v(f), 16, v(RAW + i))
                    A.I("v_and_b32", v(f + 1), "0xffff0000", v(RAW + i))
                for i in R8:
                    f = F + 2 * (i - i0)
                    A.I("v_pk_add_f32", v(f, 2), v(f, 2), v(MB, 2), mods="op_sel_hi:[1,0] neg_lo:[0,1] neg_hi:[0,1]")
                for i in R8:
                    f = F + 2 * (i - i0)
                    A.I("v_cvt_pk_bf16_f32", v(RAW + i), v(f), v(f + 1))
                for i in R8:
                    f = F + 2 * (i - i0)
                    A.I("v_lshlrev_b32", v(f), 16, v(RAW + i))
                    A.I("v_and_b32", v(f + 1), "0xffff0000", v(RAW + i))
                for i in R8:
                    f = F + 2 * (i - i0)
                    A.I("v_pk_mul_f32", v(f, 2), v(f, 2), v(Q, 2), mods="op_sel_hi:[1,0]")
                for i in R8:
                    f = F + 2 * (i - i0)
                    A.I("v_cvt_pk_bf16_f32", v(f), v(f), v(f + 1))
                for i in R8:
                    A.I("v_accvgpr_write_b32", a(tt * 64 + i), v(F + 2 * (i - i0)))

    def wread(self, a_, ksl, buf, n):
        p, q = n >> 1, n & 1
        self.A.I("ds_read_b64_tr_b16", v(vWB + buf * 32 + 4 * p + 2 * q, 2), v(vTR + p),
                 mods=off((a_ & 1) * 32768 + ksl * 8192 + q * 1024))

    def unit(self, isV):
        A = self.A
        for a_ in range(4):
            A.I("s_waitcnt", "vmcnt(16)")
            A.I("s_barrier")
            for n in range(14):
                self.wread(a_, 0, 0, n)
            if a_ == 2 and self.flags:
                self.pending_flag()
            if a_ == 1:
                A.I("s_add_u32", s(sMD), s(sMD), s(sSTR))
                self.dma_unit()
            stream = [(k, n) for k in range(4) for n in range(16)][14:]
            for ksl in range(4):
                ks = a_ * 4 + ksl
                for p in range(8):
                    done_needed = ksl * 16 + 2 * p + 2
                    issued = 64 - len(stream)
                    A.I("s_waitcnt", f"lgkmcnt({issued - done_needed})")
                    for tau in range(2):
                        acc = v(vACC + (p * 2 + tau) * 4, 4)
                        W = v(vWB + (ksl & 1) * 32 + 4 * p, 4); X = a((tau * 16 + ks) * 4, 4)
                        A.I(MF, acc, X if isV else W, W if isV else X, 0 if ks == 0 else acc)
                        if stream:
                            k2, n2 = stream.pop(0)
                            self.wread(a_, k2, k2 & 1, n2)
                    if ksl == 0:
                        self.dma_one((a_ + 3) & 3, p)
            if a_ & 1:
                for p in range(8):
                    A.I("v_xor_b32", v(vTR + p), hex(0x10000), v(vTR + p))
        G = 144
        for x in range(8):
            g = G + 4 * (x & 3)
            if isV:
                t0 = vACC + (x * 2) * 4; t1 = t0 + 4
            else:
                tau, kk = x >> 2, x & 3
                t0 = vACC + ((2 * kk) * 2 + tau) * 4; t1 = t0 + 8
            if isV:
                A.I("v_cvt_pk_bf16_f32", v(g), v(t0), v(t0 + 1))
                A.I("v_cvt_pk_bf16_f32", v(g + 1), v(t0 + 2), v(t0 + 3))
                A.I("v_cvt_pk_bf16_f32", v(g + 2), v(t1), v(t1 + 1))
                A.I("v_cvt_pk_bf16_f32", v(g + 3), v(t1 + 2), v(t1 + 3))
            else:
                for i in range(4): A.I("v_cvt_pk_bf16_f32", v(g + i), v(t0 + i), v(t1 + i))
            if x == 4: A.I("s_add_u32", s(sOUT), s(sOUT), 4096)
            A.I("buffer_store_dwordx4", v(g, 4), v(vL16), s(S_WS, 4), s(sOUT), mods=mods("offen", off((x & 3) * 1024), self.stmod))

    def pending_flag(self):
        A = self.A
        l = A.newlabel("nopf")
        A.I("s_cmp_eq_u32", s(sPF), 0)
        A.I("s_cbranch_scc1", l)
        if self.pre_flag: self.pre_flag()
        set_flag(A, S_WS, s(sPF), vT)
        A.I("s_mov_b32", s(sPF), 0)
        A.label(l)

    def out_base(self):
        A = self.A
        A.I("s_lshr_b32", s(sT0), s(sM), 5)
        A.I("s_add_u32", s(sT1), s(sT0), 1)
        A.I("s_lshl_b32", s(sOUT), s(sT1), 24)
        A.I("s_lshl_b32", s(sT1), s(sRB), 2)
        A.I("s_add_u32", s(sT1), s(sT1), s(sWV))
        A.I("s_lshl_b32", s(sT1), s(sT1), 5)
        A.I("s_and_b32", s(sT2), s(sM), 31)
        A.I("s_add_u32", s(sT1), s(sT1), s(sT2))
        A.I("s_lshl_b32", s(sT1), s(sT1), 13)
        A.I("s_add_u32", s(sOUT), s(sOUT), s(sT1))
        if self.xdrop is not None:
            A.I("s_cmp_ge_u32", s(sRB), self.xdrop)
            A.I("s_cselect_b32", s(sT1), "0x7ff00000", s(sOUT))
            A.I("s_cmp_eq_u32", s(sPASS), 0)
            A.I("s_cselect_b32", s(sOUT), s(sT1), s(sOUT))

    def body(self, stmod="", flags=False, pre_flag=None, warm_id=None, next_pass=None, warm={}):
        A = self.A
        self.stmod = stmod
        self.flags = flags
        self.pre_flag = pre_flag
        self.warm_id = warm_id; self.warmat = warm
        assert WS_KX == 1 << 24 and WS_VX == 2 << 24 and WS_QX == 3 << 24
        A.I("s_mov_b32", s(sPF), 0)
        A.I("s_mov_b32", s(80), 0)
        A.I("s_mov_b32", s(sU), 0)
        LP = f"L_{self.tag}_pass"
        A.label(LP)
        A.reset_haz()
        if next_pass: restore_tid(A)
        self.setup()
        A.I("s_mov_b32", s(sM), s(sCG))
        A.I("s_mov_b32", s(sMD), s(sCG))
        def between():
            self.dma_unit()
            for a_ in range(3):
                self.dma_chunk(a_)
        self.layernorm(between)
        ts(A, 10, dyn=sPASS)
        LU = f"L_{self.tag}_unit"; LV = f"L_{self.tag}_v"; LN = f"L_{self.tag}_next"; LE = f"L_{self.tag}_end"
        A.barrier_haz()
        A.label(LU)
        A.reset_haz()
        A.I("s_cmp_ge_u32", s(sM), 96)
        A.I("s_cbranch_scc1", LE)
        self.out_base()
        A.I("s_lshr_b32", s(sT0), s(sM), 5)
        A.I("s_cmp_eq_u32", s(sT0), 1)
        A.I("s_cbranch_scc1", LV)
        self.unit(False)
        A.I("s_branch", LN)
        A.label(LV)
        A.reset_haz()
        self.unit(True)
        A.label(LN)
        ts(A, 40, dyn=80)
        A.I("s_add_u32", s(80), s(80), 1)
        if flags:
            A.I("s_lshl_b32", s(sPF), s(sM), 4)
            A.I("s_add_u32", s(sPF), s(sPF), s(sRB))
            A.I("s_lshl_b32", s(sPF), s(sPF), 2)
            A.I("s_add_u32", s(sPF), s(sPF), hex(WS_CTRL + CT_F1))
        A.I("s_add_u32", s(sM), s(sM), s(sSTR))
        A.I("s_branch", LU)
        A.label(LE)
        A.reset_haz()
        A.I("s_waitcnt", "vmcnt(0)")
        A.I("s_barrier")
        if flags:
            self.pending_flag()
        ts(A, 14, dyn=sPASS)
        if next_pass: next_pass(LP)
```

```python
import sys
from asmgen import *
from layout import *
from common import *
import chain6 as C
import phase1 as P1
import phase2 as P2
import tail as TL

HEAD = open("sequential_preLN__memory_aug_recurrent_mem_tr__moe_arch_mod__prompt.s.ref").read().split("; Override launch")[0]

KNAME = "sequential_preLN__memory_aug_recurrent_mem_tr__moe_arch_mod__prompt_kernel"
DB_GARR, DB_MODE, DB_CTRL, DB_TICK, DB_XCD = 32, 36, 40, 44, 64
FB_OFF = 0x7000000

def entry_warm(A, mats=(0, 1, 2, 3)):
    A.I("s_load_dwordx4", s(20, 4), s(0, 2), 16)
    A.I("s_load_dwordx4", s(24, 4), s(0, 2), 32)
    A.I("v_lshlrev_b32", v(3), 6, v(0))
    A.I("s_lshl_b32", s(28), s(2), 14)
    A.I("s_cmp_eq_u32", s(84), 0)
    A.I("s_cselect_b32", s(14), 0, hex(4 << 20))
    A.I("s_mov_b32", s(15), "0x20000")
    A.I("s_waitcnt", "lgkmcnt(0)")
    for i in mats:
        A.I("s_mov_b32", s(12), s(20 + 2 * i))
        A.I("s_and_b32", s(13), s(21 + 2 * i), "0xffff")
        A.I("buffer_load_dword", v(255), v(3), s(12, 4), s(28), mods="offen")
    return len(mats)

def staged_warm(A, stages, depth, first=96):
    l = A.newlabel("nowarm")
    A.I("s_sub_u32", s(28), s(sGB), first)
    A.I("s_cmp_ge_u32", s(28), 128)
    A.I("s_cbranch_scc1", l)
    A.I("s_load_dwordx4", s(20, 4), s(0, 2), 16)
    A.I("s_load_dwordx4", s(24, 4), s(0, 2), 32)
    restore_tid(A)
    A.I("v_lshlrev_b32", v(3), 6, v(0))
    A.I("s_lshr_b32", s(29), s(28), 5)
    A.I("s_lshl_b32", s(29), s(29), 19)
    A.I("s_lshl_b32", s(28), s(28), 14)
    A.I("s_add_u32", s(29), s(29), s(28))
    A.I("s_mov_b32", s(14), hex(4 << 20))
    A.I("s_mov_b32", s(15), "0x20000")
    A.I("s_waitcnt", "lgkmcnt(0)")
    for n, x in enumerate(stages.split()):
        m, b = "qkvo".index(x[0]), int(x[1])
        A.I("s_mov_b32", s(12), s(20 + 2 * m))
        A.I("s_and_b32", s(13), s(21 + 2 * m), "0xffff")
        A.I("s_add_u32", s(30), s(28 if m == 3 else 29), hex(b << (21 if m == 3 else 19)))
        if n >= depth: A.I("s_waitcnt", f"vmcnt({depth - 1})")
        A.I("buffer_load_dword", v(255), v(3), s(12, 4), s(30), mods="offen")
    A.label(l)
    A.reset_haz()

def entry_code(A):
    A.I("v_lshlrev_b32", v(3), 6, v(0))
    A.I("s_lshr_b32", s(28), s(2), 3)
    A.I("s_mul_i32", s(29), s(28), 52)
    A.I("s_lshr_b32", s(29), s(29), 8)
    A.I("s_mul_i32", s(29), s(29), 5)
    A.I("s_sub_u32", s(28), s(28), s(29))
    A.I("s_min_u32", s(28), s(28), 4)
    A.I("s_lshl_b32", s(28), s(28), 14)
    code_touch(A, KNAME, 30, 3, 254, back=True, extra=s(28))
    return 1

def bcast_atomic(A, off_s_or_imm, sdst, lds_slot, mid=None):
    l = A.newlabel("at")
    A.I("s_cmp_lg_u32", s(sGW), 0)
    A.I("s_cbranch_scc1", l)
    A.I("s_mov_b64", "exec", 1)
    A.I("v_mov_b32", v(2), 1)
    A.I("buffer_atomic_add", v(2), "off", s(S_DBGG, 4), off_s_or_imm, mods="sc0")
    A.I("s_mov_b64", "exec", -1)
    A.label(l)
    l = A.newlabel("at2")
    nm = sum(m(A) for m in mid or [])
    A.I("s_cmp_lg_u32", s(sGW), 0)
    A.I("s_cbranch_scc1", l)
    A.I("s_mov_b64", "exec", 1)
    A.I("v_mov_b32", v(1), lds_slot)
    A.I("s_waitcnt", f"vmcnt({nm})")
    A.I("ds_write_b32", v(1), v(2))
    A.I("s_waitcnt", "lgkmcnt(0)")
    A.I("s_mov_b64", "exec", -1)
    A.label(l)
    A.I("s_barrier")
    A.I("v_mov_b32", v(1), lds_slot)
    A.I("ds_read_b32", v(2), v(1))
    A.I("s_waitcnt", "lgkmcnt(0)")
    A.I("v_readfirstlane_b32", s(sdst), v(2))

def wait_mode(A, sdst, vt):
    lp = A.newlabel("mode"); ld = A.newlabel("moded"); lf = A.newlabel("modef")
    A.I("s_mov_b32", s(sPT0), 0)
    A.label(lp)
    A.I("buffer_load_dwordx2", v(vt, 2), "off", s(S_DBGG, 4), 0, mods=f"offset:{DB_MODE} sc1")
    A.I("s_waitcnt", "vmcnt(0)")
    A.I("v_readfirstlane_b32", s(sdst), v(vt))
    A.I("v_readfirstlane_b32", s(sPT1), v(vt + 1))
    A.I("s_min_u32", s(sPT1), s(sPT1), s(sdst))
    A.I("s_cmp_lg_u32", s(sPT1), 0)
    A.I("s_cbranch_scc1", ld)
    A.I("s_sleep", 4)
    A.I("s_add_u32", s(sPT0), s(sPT0), 1)
    A.I("s_cmp_lg_u32", s(sPT0), hex(1 << 8))
    A.I("s_cbranch_scc1", lf)
    A.I("v_mov_b32", v(vt), 2)
    A.I("v_mov_b32", v(vt + 1), 0)
    A.I("s_mov_b64", "exec", 1)
    A.I("buffer_atomic_cmpswap", v(vt, 2), "off", s(S_DBGG, 4), 0, mods=f"offset:{DB_MODE}")
    A.I("s_mov_b64", "exec", -1)
    A.label(lf)
    A.I("s_cmp_lt_u32", s(sPT0), hex(POLL_MAX))
    A.I("s_cbranch_scc1", lp)
    A.label(ld)
    A.reset_haz()

def k_mega(A, force_fb=False, **kw):
    name = KNAME
    kernel_header(A, name)
    sX, sR, sG, sMODE = 84, 85, 86, 87
    A.I("s_cmp_ge_u32", s(2), 256)
    A.I("s_cbranch_scc1", "L_exit")
    if PROF[0]: A.I("s_memrealtime", s(82, 2))
    A.I("s_load_dwordx2", s(8, 2), s(0, 2), 112)
    A.I("s_load_dwordx2", s(S_DBGG, 2), s(0, 2), 104)
    A.I("s_load_dwordx8", s(60, 8), s(0, 2), 16)
    A.I("v_lshrrev_b32", v(1), 6, v(0))
    A.I("v_readfirstlane_b32", s(sGW), v(1))
    A.I("s_getreg_b32", s(sX), "hwreg(HW_REG_XCC_ID)")
    A.I("s_and_b32", s(sX), s(sX), 7)
    A.I("s_lshr_b32", s(sR), s(2), 3)
    A.I("s_mov_b32", s(sMODE), 0)
    A.I("s_lshl_b32", s(sPT1), s(sX), 4)
    A.I("s_lshl_b32", s(sPT0), 1, s(sR))
    A.I("v_mov_b32", v(2), s(sPT0))
    A.I("v_mov_b32", v(3), 256)
    A.I("s_waitcnt", "lgkmcnt(0)")
    for sd, n in ((8, 0x10000000), (S_DBGG, 256)):
        A.I("s_and_b32", s(sd + 1), s(sd + 1), "0xffff")
        A.I("s_mov_b32", s(sd + 2), hex(n))
        A.I("s_mov_b32", s(sd + 3), "0x20000")
    mark(A, 0)
    A.I("s_cmp_lg_u32", s(sGW), 0)
    A.I("s_cbranch_scc1", "L_reg")
    A.I("s_mov_b64", "exec", 1)
    A.I("buffer_atomic_add_x2", v(2, 2), "off", s(S_DBGG, 4), s(sPT1), mods=f"offset:{DB_XCD}")
    A.I("s_mov_b64", "exec", -1)
    A.label("L_reg")
    if kw.get('ecode'): entry_code(A)
    if kw.get('ewarm'): entry_warm(A, kw.get('ewm', (0, 1, 2, 3)))
    mark(A, 1)
    A.I("s_cmp_eq_u32", s(2), kw.get('zwg', 7))
    A.I("s_cbranch_scc1", "L_zero")
    A.label("L_noz")
    A.reset_haz()
    A.I("s_cmp_lg_u32", s(sX), 0)
    A.I("s_cbranch_scc1", "L_other")

    def zero_block():
        A.label("L_zero")
        A.reset_haz()
        for i in range(4):
            A.I("v_mov_b32", v(4 + i), 0)
        A.I("v_lshlrev_b32", v(1), 4, v(0))
        for i in range(CT_SIZE // 4096):
            A.I("s_mov_b32", s(sPT1), hex(WS_CTRL + i * 4096))
            A.I("buffer_store_dwordx4", v(4, 4), v(1), s(8, 4), s(sPT1), mods="offen sc1")
        A.I("s_waitcnt", "vmcnt(0)")
        A.I("s_barrier")
        set_flag(A, S_DBGG, DB_CTRL, 2)
        A.I("s_cmp_lg_u32", s(sGW), 0)
        A.I("s_cbranch_scc1", "L_noz")
        A.I("s_mov_b64", "exec", "0xff")
        A.I("s_mov_b32", s(sPT0), 0)
        A.label("L_count")
        A.I("buffer_load_dwordx2", v(2, 2), v(1), s(S_DBGG, 4), 0, mods=f"offen offset:{DB_XCD} sc1")
        A.I("s_waitcnt", "vmcnt(0)")
        A.I("v_cmp_le_u32", "vcc", 32 << 8, v(3))
        A.I("v_add_u32", v(2), 1, v(2))
        A.I("v_xor_b32", v(3), (33 if force_fb else 32) << 8, v(3))
        A.I("v_or_b32", v(2), v(2), v(3))
        A.I("s_mov_b32", s(4), "vcc_lo")
        A.I("v_cmp_eq_u32", "vcc", 0, v(2))
        A.I("v_mov_b32", v(2), 1)
        A.I("s_nop", 1)
        A.I("s_cmp_eq_u32", "vcc_lo", "0xff")
        A.I("s_cbranch_scc1", "L_propose")
        A.I("v_mov_b32", v(2), 2)
        A.I("s_andn2_b32", s(4), s(4), "vcc_lo")
        A.I("s_cbranch_scc1", "L_propose")
        A.I("s_sleep", 2)
        A.I("s_add_u32", s(sPT0), s(sPT0), 1)
        A.I("s_cmp_lt_u32", s(sPT0), hex(1 << 8))
        A.I("s_cbranch_scc1", "L_count")
        A.label("L_propose")
        A.I("v_mov_b32", v(3), 0)
        A.I("s_mov_b64", "exec", 1)
        A.I("buffer_atomic_cmpswap", v(2, 2), "off", s(S_DBGG, 4), 0, mods=f"offset:{DB_MODE}")
        A.I("s_mov_b64", "exec", -1)
        A.I("s_branch", "L_noz")

    def kv_wait(ch, first=True, mask=0x00010001):
        t0, t1 = (1, 2) if first else (8, 9)
        A.I("v_lshrrev_b32", v(t0), 4, v(C.vL16))
        A.I("v_and_b32", v(t1), 15, v(t0))
        A.I("v_lshrrev_b32", v(t0), 4, v(t0))
        A.I("v_lshlrev_b32", v(t0), 11, v(t0))
        A.I("v_lshl_add_u32", v(t0), v(t1), 2, v(t0))
        A.I("s_lshl_b32", s(C.sT0), s(C.sH), 6)
        A.I("s_add_u32", s(C.sT0), s(C.sT0), hex(WS_CTRL + CT_F1))
        wait_words(A, C.S_WS, t0, s(C.sT0), 32, 1, t1, sleep=8, barrier=False, mask=mask)

    def chain_role(fast):
        for i in range(4):
            A.I("s_mov_b32", s(C.S_DBG + i), s(S_DBGG + i))
        A.I("s_mov_b32", s(sPID), s(C.sH))
        ts(A, 0, 3)
        if PROF[0]:
            A.I("s_lshl_b32", s(89), s(sPID), 8)
            A.I("s_add_u32", s(89), s(89), hex(WS_TS + 4 * 5))
            A.I("v_mov_b32", v(3), s(82))
            A.I("buffer_store_dword", v(3), "off", s(8, 4), s(89))
            A.I("v_mov_b32", v(4), s(2))
            A.I("buffer_store_dword", v(4), "off", s(8, 4), s(89), mods="offset:4")
        def pre(ch):
            ts(A, 1, 3)
            if fast:
                wait_mode(A, sMODE, 2)
                A.I("s_cmp_lg_u32", s(sMODE), 1)
                A.I("s_cbranch_scc1", "L_fallback")
            kv_wait(ch)
            ts(A, 2, 3)
        ch = C.Chain(A, sc="" if fast else "sc1", tag="f" if fast else "s", wsoff=0 if fast else FB_OFF, cbar=4 if fast else 8, pre_start=pre, kvcheck=True, gate=DB_MODE, wptr=fast, **kw)
        ch.lane_consts()
        ch.load_weights()
        if PROF[0]:
            A.I("s_lshl_b32", s(89), s(sPID), 8)
            A.I("s_lshl_b32", s(78), s(sGW), 5)
            A.I("s_add_u32", s(89), s(89), s(78))
            A.I("s_add_u32", s(89), s(89), hex(WS_TS + 4 * 32))
            for i in range(5):
                A.I("v_mov_b32", v(3), s((68, 70, 72, 74, 80)[i]))
                A.I("buffer_store_dword", v(3), "off", s(8, 4), s(89), mods=f"offset:{4 * i}")
            A.I("v_mov_b32", v(3), s(82))
            A.I("buffer_store_dword", v(3), "off", s(8, 4), s(89), mods=f"offset:{4 * 5}")
        ch.prologue()
        ts(A, 3, 3)
        if PROF[0]:
            A.I("s_memtime", s(78, 2))
            A.I("s_waitcnt", "lgkmcnt(0)")
        ch.step_loop()
        if PROF[0]: A.I("s_mov_b32", s(sPID), s(C.sH))
        ts(A, 4, 3)
        if PROF[0]:
            A.I("s_memtime", s(80, 2))
            A.I("s_lshl_b32", s(C.sT0), s(C.sH), 2)
            A.I("s_add_u32", s(C.sT0), s(C.sT0), s(C.sWV))
            A.I("s_lshl_b32", s(C.sT0), s(C.sT0), 5)
            A.I("s_add_u32", s(C.sT0), s(C.sT0), hex(WS_TS + 0x100000))
            A.I("s_waitcnt", "lgkmcnt(0)")
            A.I("s_sub_u32", s(80), s(80), s(78))
            for i, r in enumerate((80, C.sNRM, C.sNRR, C.sNRF)):
                A.I("v_mov_b32", v(1), s(r))
                A.I("buffer_store_dword", v(1), "off", s(C.S_WS, 4), s(C.sT0), mods=f"offset:{4 * i}")
        if kw.get("wb"):
            l = A.newlabel("nowb")
            A.I("s_add_u32", s(C.sT0), s(C.sH), s(C.sWV))
            A.I("s_cmp_lg_u32", s(C.sT0), 0)
            A.I("s_cbranch_scc1", l)
            A.I("buffer_wbl2", mods="sc1")
            A.I("s_waitcnt", "vmcnt(0)")
            A.label(l)
        A.I("s_endpgm")
        return ch

    A.I("s_mov_b32", s(C.sH), s(sR))
    chf = chain_role(True)
    chf.emit_ool()
    A.label("L_other")
    A.reset_haz()
    A.I("s_sub_u32", s(sGB), s(sX), 1)
    A.I("s_lshl_b32", s(sGB), s(sGB), 5)
    A.I("s_add_u32", s(sGB), s(sGB), s(sR))
    A.I("s_branch", "L_bulk")
    zero_block()
    A.label("L_fallback")
    A.reset_haz()
    A.I("s_waitcnt", "vmcnt(0) lgkmcnt(0)")
    A.I("s_barrier")
    restore_tid(A)
    A.I("s_mov_b32", s(sPT1), DB_TICK)
    bcast_atomic(A, s(sPT1), sR, 8)
    A.I("s_barrier")
    A.I("s_sub_u32", s(sGB), s(sR), 32)
    A.I("s_cmp_ge_u32", s(sR), 32)
    A.I("s_cbranch_scc1", "L_bulk")
    A.I("s_mov_b32", s(C.sH), s(sR))
    chs = chain_role(False)
    chs.emit_ool()
    A.label("L_bulk")
    A.reset_haz()
    A.I("s_add_u32", s(sPID), s(sGB), 32)
    ts(A, 0)
    if kw.get('sw'): staged_warm(A, *kw['sw'])
    NURG = 3
    def pass_b():
        A.I("s_mov_b32", s(P1.sPASS), 1)
        A.I("s_and_b32", s(P1.sRB), s(sGB), 15)
        A.I("s_lshr_b32", s(P1.sCG), s(sGB), 4)
        A.I("s_mov_b32", s(P1.sSTR), 14)
        A.I("s_add_u32", s(P1.sT0), s(P1.sCG), 70)
        A.I("s_add_u32", s(P1.sT1), s(P1.sCG), 56)
        A.I("s_cmp_ge_u32", s(P1.sT1), 64)
        A.I("s_cselect_b32", s(P1.sT0), s(P1.sT1), s(P1.sT0))
        A.I("s_add_u32", s(P1.sT1), s(P1.sCG), 42)
        A.I("s_add_u32", s(P1.sT2), s(P1.sCG), 28)
        A.I("s_cmp_ge_u32", s(P1.sT2), 32)
        A.I("s_cselect_b32", s(P1.sT1), s(P1.sT2), s(P1.sT1))
        A.I("s_cmp_eq_u32", s(P1.sRB), NURG)
        A.I("s_cselect_b32", s(P1.sCG), s(P1.sT1), s(P1.sCG))
        A.I("s_cmp_lt_u32", s(P1.sRB), NURG)
        A.I("s_cselect_b32", s(P1.sCG), s(P1.sT0), s(P1.sCG))
    A.I("s_mov_b32", s(P1.sPASS), 0)
    A.I("s_lshr_b32", s(P1.sRB), s(sGB), 6)
    A.I("s_and_b32", s(P1.sCG), s(sGB), 63)
    A.I("s_movk_i32", s(P1.sSTR), 1000)
    A.label("L_p1go")
    def next_pass(LP):
        A.I("s_cmp_lg_u32", s(P1.sPASS), 0)
        A.I("s_cbranch_scc1", "L_p1done")
        if kw.get('pbw'):
            A.I("v_mov_b32", v(1), 4 if kw['pbw'] > 0 else 0)
            A.I("s_and_b32", s(P1.sT0), s(sGB), 15)
            A.I("s_lshl_b32", s(P1.sT0), s(P1.sT0), 7)
            A.I("s_add_u32", s(P1.sT0), s(P1.sT0), hex(WS_CTRL + CT_PROG))
            wait_words(A, 8, 1, s(P1.sT0), 1, 1, 2, sleep=abs(kw['pbw']))
        pass_b()
        A.I("s_branch", LP)
        A.label("L_p1done")
        A.reset_haz()
    def pre_flag():
        l = A.newlabel("modeok")
        A.I("s_cmp_lg_u32", s(sMODE), 0)
        A.I("s_cbranch_scc1", l)
        wait_mode(A, sMODE, 140)
        A.I("s_cmp_lg_u32", s(sMODE), 1)
        A.I("s_cbranch_scc1", "L_fallback")
        A.label(l)
    P1.Phase1(A, wearly=kw.get('wearly', False), xdrop=kw.get('xdrop')).body(stmod="sc1", flags=True, pre_flag=pre_flag, warm_id=sGB, next_pass=next_pass, warm=kw.get('pwm', {}))
    ts(A, 2)
    restore_tid(A)
    A.I("s_and_b32", s(P2.sHP), s(sGB), 15)
    A.I("s_lshr_b32", s(P2.sSEG), s(sGB), 4)
    A.I("s_mov_b32", s(P2.sSTR), 14)
    fin = TL.Finisher(A, stmod="sc1", home=(P2.vL16, 252, 236, 88))
    ffn = TL.FFN(A, stmod="sc1", poll=True)
    def stage():
        l = A.newlabel("nostage")
        A.I("s_sub_u32", s(ffn.sJ), s(sGB), 128)
        A.I("s_cmp_ge_u32", s(ffn.sJ), NFW)
        A.I("s_cbranch_scc1", l)
        if not kw.get('nostage'): ffn.stage()
        A.label(l)
        A.reset_haz()
    P2.Phase2(A, stmod="sc1", progmask=0x11 if kw.get("flag0") else 0xff, sl=kw.get("sl", (8, 2))).mega(fin, after_setup=stage, lag=kw.get('lag'))
    A.I("s_cmp_ge_u32", s(ffn.sJ), NFW)
    A.I("s_cbranch_scc1", "L_exit")
    ts(A, 5)
    sID, sRND = 74, 75
    A.I("s_mov_b32", s(sID), 0)
    A.I("s_mov_b32", s(sRND), 0)
    A.I("v_mov_b32", v(202), "0x7ffffff0")
    if kw.get('tcode'):
        restore_tid(A)
        A.I("v_lshlrev_b32", v(1), 6, v(0))
        code_touch(A, "L_ffn_round", 70, 1, 3)
    A.I("v_mov_b32", v(1), 0)
    A.I("s_and_b32", s(ffn.sT0), s(sGB), 15)
    A.I("s_lshl_b32", s(ffn.sT0), s(ffn.sT0), 7)
    A.I("s_add_u32", s(ffn.sT0), s(ffn.sT0), hex(WS_CTRL + CT_PROG))
    A.I("s_mov_b32", s(ffn.sT1), 61)
    wait_words(A, 8, 1, s(ffn.sT0), 1, s(ffn.sT1), 2, sleep=16, paced=True)
    A.label("L_ffn_round")
    A.reset_haz()
    restore_tid(A)
    A.I("s_cmp_lg_u32", s(sRND), 0)
    A.I("s_cbranch_scc1", "L_ffn_re")
    ffn.select(sRND)
    A.I("s_branch", "L_ffn_sel")
    A.label("L_ffn_re")
    A.reset_haz()
    ffn.reselect()
    A.label("L_ffn_sel")
    A.reset_haz()
    A.I("s_and_b32", s(ffn.sT0), s(ffn.sK1), 2047)
    A.I("s_lshl_b32", s(ffn.sT0), s(ffn.sT0), 11)
    A.I("s_and_b32", s(ffn.sT1), s(ffn.sK2), 2047)
    A.I("s_or_b32", s(ffn.sT0), s(ffn.sT0), s(ffn.sT1))
    A.I("s_add_u32", s(ffn.sT0), s(ffn.sT0), 1)
    A.I("s_cmp_eq_u32", s(ffn.sT0), s(sID))
    A.I("s_cbranch_scc1", "L_ffn_same")
    A.I("s_mov_b32", s(sID), s(ffn.sT0))
    ffn.compute()
    A.I("s_waitcnt", "vmcnt(0)")
    A.I("s_barrier")
    A.I("s_lshl_b32", s(ffn.sT0), s(ffn.sJ), 2)
    A.I("s_lshl_b32", s(ffn.sT1), s(sRND), 8)
    A.I("s_add_u32", s(ffn.sT0), s(ffn.sT0), s(ffn.sT1))
    A.I("s_add_u32", s(ffn.sT0), s(ffn.sT0), hex(WS_CTRL + CT_F4))
    set_flag(A, 8, s(ffn.sT0), 2, val=s(sID))
    A.I("s_cmp_ge_u32", s(ffn.sJ), TL.Final.NWG)
    A.I("s_cbranch_scc1", "L_ffn_same")
    fnl = TL.Final(A)
    fnl.pre(ffn.sJ)
    A.I("v_lshlrev_b32", v(1), 2, v(0))
    A.I("s_lshl_b32", s(ffn.sT0), s(sRND), 8)
    A.I("s_add_u32", s(ffn.sT0), s(ffn.sT0), hex(WS_CTRL + CT_F4))
    wait_words(A, 8, 1, s(ffn.sT0), NFW, s(sID), 2, sleep=2, equal=True)
    fnl.post()
    A.label("L_ffn_same")
    A.reset_haz()
    ts(A, 6, dyn=sRND)
    A.I("s_add_u32", s(sRND), s(sRND), 1)
    A.I("s_cmp_lt_u32", s(sRND), 2)
    A.I("s_cbranch_scc1", "L_ffn_round")
    A.I("s_cmp_ge_u32", s(ffn.sJ), TL.Final.NWG)
    A.I("s_cbranch_scc1", "L_exit")
    fnl.store()
    A.I("s_waitcnt", "vmcnt(0)")
    ts(A, 8)
    A.label("L_exit")
    A.I("s_endpgm")
    code_end(A)
    return name, 256, 163840

def build_single(k):
    A = Asm()
    name, grid, lds = k(A)[:3]
    out = HEAD + f"; @launch grid=({grid},1,1) block=(256,1,1) lds={lds}\n"
    out += '.amdgcn_target "amdgcn-amd-amdhsa--gfx950"\n.text\n' + A.text()
    out += '.section .rodata,"a"\n' + kernel_desc(name)
    return out

def build(kernels):
    A = Asm()
    infos = []
    for k in kernels:
        infos.append(k(A))
    body = A.text()
    out = HEAD
    for info in infos:
        name, grid, lds = info[:3]
        out += f"; @launch kernel={name} grid=({grid},1,1) block=(256,1,1) lds={lds}\n"
    out += '.amdgcn_target "amdgcn-amd-amdhsa--gfx950"\n.text\n' + body
    out += '.section .rodata,"a"\n'
    for info in infos:
        out += kernel_desc(info[0], *info[3:])
    return out

CH = dict(ewarm=True, flag0=True, rp=(50, 80), rg=(40, 30), wpad=31, kreg=False, lag=(17, 10))
if __name__ == "__main__":
    which = sys.argv[1] if len(sys.argv) > 1 else "mega"
    if len(sys.argv) > 2: CH.update(eval(sys.argv[2]))
    OUT = sys.argv[3] if len(sys.argv) > 3 else None
    if which == "mega":
        txt = build_single(lambda A: k_mega(A, **CH))
        open("sequential_preLN__memory_aug_recurrent_mem_tr__moe_arch_mod__prompt.s", "w").write(txt)
        open("mega.s", "w").write(build([lambda A: k_mega(A, **CH)]))
        open("megafb.s", "w").write(build([lambda A: k_mega(A, force_fb=True, **CH)]))
    if which == "var":
        open(OUT, "w").write(build_single(lambda A: k_mega(A, **CH)))
    if which == "prof":
        PROF[0] = True
        open(OUT or "prof.s", "w").write(build([lambda A: k_mega(A, **CH)]))
    if which == "dbgts":
        DBGTS[0] = {0: (0, 12), 3: (0, 13), 4: (0, 14), 8: (160, 15)}
        open(OUT or "dbgts.s", "w").write(build_single(lambda A: k_mega(A, **CH)))
```

```python
import math, struct
from asmgen import *
from layout import *
from common import ts, f2h, code_touch, mark

MBUF, KXB, VXB, WV = 0x0, 0x2000, 0x6000, 0x8000
XI, OI, FLG, ZRO = 0x4000, 0x5000, 0x5800, 0x5c00
PBPAR = 0x40000

S_WS = 8; S_W = 12; S_DBG = 16
sH, sWV, sSTEP = 20, 21, 22
sMBLD, sMBST = 23, 24
sPBST = 25
sTHR = 27
sKVF = 28
sPBLD = 29
sKXN, sVXN, sKM, sTAG = 30, 31, 32, 33
sC1, sBIG = 34, 35
sOMASK = 36
sRMASK = 38
sT1, sT2, sT3, sT0 = 40, 41, 42, 43
sFLAGOFF = 44
sNRM, sNRR = 45, 46
sNRF = 47
sNRX = 76
sMBLD2 = 48
sRETRY = 49
sONES = 50
sW1K, sW2K = 51, 52
sPBLD2 = 53
sLOGO = 54
sRST = 55
sSENT = 56
sOK = 57
sNEED = 58
sSEL = 92
sACC = 60

vM = 0; vQK = 32; vVA = 48; vWB = 56; vWA = 96; vPUB = 112
vIDX, vL16, vPBST, vMST, vXW, vXR, vOW, vWL, vWL2, vDUM, vFLG, vOR = range(116, 128)
vL4 = vMST; vSEL = vDUM
vWVR = 128; vWOR = 192
RETRY_MAX = 1 << 16
WE, WL_ = 2, 3

SMF = "v_smfmac_f32_16x16x64_bf16"; MF = "v_mfma_f32_16x16x32_bf16"; MF16 = "v_mfma_f32_16x16x16_bf16"

def home(mat, phi, slot):
    a_, fi = slot & 3, (slot >> 2) * 2 + phi
    if mat < 2:
        if a_ == 0: return ("lds", mat * 32768 + fi * 2048)
        return ("a", ((mat * 3 + a_ - 1) * 4 + fi) * 8)
    if a_ < 2: return ("a", 192 + (a_ * 4 + fi) * 8)
    return ("v", vWVR + ((a_ - 2) * 4 + fi) * 8)
def wo_home(T, j):
    if T < 2: return ("v", vWOR + (T * 4 + j) * 8)
    return ("lds", T * 32768 + j * 2048)
def reg8(h):
    return a(h[1], 8) if h[0] == "a" else v(h[1], 8)

class Chain:
    def __init__(self, A, sc, tag="f", **kw):
        self.A = A; self.sc = sc; self.tag = tag
        self.ool = []
        self.kw = kw
        self.x = kw.get('x', '')
        self.la = 4
        self.pollmod = kw.get('pollmod', 'nt') if not sc else 'sc1'
        self.align = kw.get('align', 0)
        self.cbar = kw.get('cbar', 4)
        self.flog = kw.get('flog', False)
        self.pubmod = 'sc1'
        self.wo = kw.get('wsoff', 0)
        self.pre_start = kw.get('pre_start')
        self.kvcheck = kw.get('kvcheck', False)
        self.skew = kw.get('skew', True)
        self.ring = kw.get('ring', True)
        self.merge = kw.get('merge', False)
        self.z = kw.get('z', (8, 24, 4, 24, 0))
        self.rp = kw.get('rp', (40, 65))
        self.lq = []; self.vq = []
        self.nfl = 0
        self.sSEL = sSEL if self.flog else 68
        self.sNRX = sNRF if self.flog else sNRX
        od = kw.get('order', 1)
        if od == 1: self.ORDER = [(0, 2), (0, 3), (1, 2), (1, 3), (2, 0), (2, 1), (2, 2), (2, 3), (3, 0), (3, 1), (1, 1), (0, 1), (0, 0), (1, 0), (3, 2), (3, 3)]
        if od == 2: self.ORDER = [(0, 2), (0, 3), (1, 2), (1, 3), (2, 0), (2, 1), (2, 2), (2, 3), (3, 0), (3, 1), (0, 1), (1, 1), (0, 0), (1, 0), (3, 2), (3, 3)]
        self.full = kw.get('full', True)
        if self.full: self.ORDER = [(0, 2), (0, 3), (1, 2), (1, 3), (2, 0), (2, 1), (2, 2), (2, 3), (0, 0), (1, 0), (3, 0), (3, 1), (0, 1), (1, 1), (3, 2), (3, 3)]
        self.wfull = kw.get('wfull', True) and self.full
        if kw.get('seq'):
            self.ORDER = [("qkvo".index(x[0]), int(x[1])) for x in kw['seq'].split()]
            o = self.ORDER
            assert sorted(o) == [(m, a_) for m in range(4) for a_ in range(4)] and o[14:] == [(3, 2), (3, 3)] and o[12][0] < 3 and o[13][0] < 3
            assert max(o.index((0, 0)), o.index((0, 1))) <= 12 and all(x[0] < 3 for x in o[:4])
        self.kreg = kw.get('kreg', True)
        if self.kreg:
            self.STG = {(0, 0, 0): 24, (0, 1, 0): 88, (1, 0, 0): 96, (1, 1, 0): 104, (1, 1, 4): 24, (0, 0, 4): 88, (0, 1, 4): 96, (1, 0, 4): 104}

    def mods(self, *m): return " ".join(x for x in m if x)
    def off(self, o): return f"offset:{o}" if o else ""

    def fl(self, i):
        if not isinstance(i, str): self.A.comment(f"@{i}")
        if self.flog == 2:
            if i == self.kw.get('probe2', 'h5'): i = 5
            elif i == 'h5': return
            elif isinstance(i, str): i = int(i[1:])
            elif i == self.kw.get('probe', 3): i = 3
            elif i not in (0, 1, 14, 15): return
        elif self.flog == 3:
            if i == 1:
                cnt = [0]
                def hook():
                    k = cnt[0]; cnt[0] += 1
                    if k == self.kw['poff']: self.A.raw(f"    s_memtime {s(sACC + 4, 2)}")
                self.A.mfhook = hook
            elif i == 14: self.A.mfhook = None
            elif i != 0: return
        elif isinstance(i, str): return
        if self.flog:
            self.A.I("s_memtime", s(sACC + 2 * i, 2)); self.nfl = max(self.nfl, i + 1)

    def fl_collect(self, vt):
        if not self.flog: return
        A = self.A
        if self.flog == 2: A.I("s_memrealtime", s(sACC + 4, 2))
        A.I("s_waitcnt", "lgkmcnt(0)")
        for i in range(16):
            if self.flog == 2 and i in (9, 10, 11): A.I("v_writelane_b32", v(vt), s((sNRM, sNRR, sNRF)[i - 9]), i)
            elif self.flog != 2 or i in (0, 1, 2, 3, 5, 6, 7, 8, 14, 15): A.I("v_writelane_b32", v(vt), s(sACC + 2 * i), i)
        A.I("v_lshrrev_b32", v(vt + 1), 2, v(vL16))
        A.I("s_mov_b64", "exec", "0xffff")
        A.I("buffer_store_dword", v(vt), v(vt + 1), s(S_WS, 4), s(sLOGO), mods="offen")
        A.I("s_mov_b64", "exec", -1)
        A.I("s_add_u32", s(sLOGO), s(sLOGO), 64)

    def ds(self, tag, op, *ops, mods=""):
        self.A.I(op, *ops, mods=mods)
        if tag is None: return
        self.lq.append(tag)
    def vm(self, tag, op, *ops, mods=""):
        self.A.I(op, *ops, mods=mods); self.vq.append(tag)
    def needl(self, tag):
        if tag not in self.lq: return
        i = len(self.lq) - 1 - self.lq[::-1].index(tag)
        self.lq = self.lq[i + 1:]
        assert len(self.lq) <= 15, self.lq
        self.A.I("s_waitcnt", f"lgkmcnt({len(self.lq)})")
    def needv(self, tag):
        if tag not in self.vq: return
        i = len(self.vq) - 1 - self.vq[::-1].index(tag)
        self.vq = self.vq[i + 1:]
        if "n" in self.x and tag in ("f0", "f1", "fd", "r0", "r1", "r2", "r3"): return
        self.A.I("s_waitcnt", f"vmcnt({len(self.vq)})")

    def needvl(self, vt, lt):
        n = len(self.A.out); t = self.A.t
        self.needv(vt); self.needl(lt)
        if len(self.A.out) == n + 2:
            b = self.A.out.pop(); self.A.out[-1] += " " + b.split()[-1]; self.A.t = t + 1

    def wread(self, tag, dst, ldsoff):
        base, o = (vWL, ldsoff) if ldsoff < 65536 else (vWL2, ldsoff - 65536)
        self.ds(tag, "ds_read_b128", v(dst, 4), v(base), mods=self.off(o))

    def lane_consts(self):
        A = self.A
        L, G, C, T, U, R = 1, 2, 3, 4, 5, 6
        A.I("v_lshrrev_b32", v(T), 6, v(0))
        A.I("v_readfirstlane_b32", s(sWV), v(T))
        A.I("v_and_b32", v(L), 63, v(0))
        A.I("v_lshrrev_b32", v(G), 4, v(L))
        A.I("v_and_b32", v(C), 15, v(L))
        A.I("v_lshrrev_b32", v(R), 2, v(C))
        A.I("v_lshlrev_b32", v(vL16), 4, v(L))
        A.I("s_lshl_b32", s(sW1K), s(sWV), 10)
        A.I("s_lshl_b32", s(sW2K), s(sWV), 11)

    def lane_consts2(self):
        A = self.A
        L, G, C, T, U, R = 1, 2, 3, 4, 5, 6
        A.I("v_and_b32", v(T), 2, v(C))
        A.I("v_cmp_ne_u32", "vcc", 0, v(T))
        A.I("v_mov_b32", v(T), "0x4444")
        A.I("v_mov_b32", v(U), "0xeeee")
        A.I("v_cndmask_b32", v(vIDX), v(T), v(U), "vcc")
        A.I("v_lshrrev_b32", v(U), 1, v(G))
        A.I("v_lshl_add_u32", v(T), v(R), 3, v(U))
        A.I("s_lshl_b32", s(sT0), s(sWV), 1)
        A.I("v_add_u32", v(T), s(sT0), v(T))
        if self.skew:
            A.I("v_add_u32", v(U), s(sH), v(T))
            A.I("v_and_b32", v(U), 31, v(U))
        else:
            A.I("v_mov_b32", v(U), s(sH))
        A.I("v_lshl_add_u32", v(T), v(T), 6, v(U))
        A.I("v_and_b32", v(U), 1, v(G))
        A.I("v_lshl_add_u32", v(T), v(T), 1, v(U))
        A.I("v_and_b32", v(U), 3, v(C))
        A.I("v_lshl_add_u32", v(T), v(T), 2, v(U))
        A.I("v_lshlrev_b32", v(vPBST), 4, v(T))
        A.I("v_and_b32", v(T), 1, v(G))
        A.I("v_lshlrev_b32", v(T), 2, v(T))
        A.I("v_and_b32", v(7), 2, v(G))
        A.I("v_add_u32", v(T), v(T), v(7))
        A.I("v_and_b32", v(7), 1, v(R))
        A.I("v_add_u32", v(T), v(T), v(7))
        A.I("v_lshl_add_u32", v(T), v(T), 2, v(U))
        A.I("v_lshlrev_b32", v(T), 2, v(T))
        A.I("s_and_b32", s(sT0), s(sWV), 1)
        A.I("s_lshl_b32", s(sT0), s(sT0), 12)
        A.I("s_lshl_b32", s(sT1), s(sH), 7)
        A.I("s_add_u32", s(sT0), s(sT0), s(sT1))
        A.I("v_add_u32", v(vMST), s(sT0), v(T))
        A.I("v_sub_u32", v(7), 0, v(G))
        A.I("v_and_b32", v(7), 3, v(7))
        A.I("v_xor_b32", v(7), v(7), v(R))
        A.I("v_lshl_add_u32", v(T), v(G), 4, v(7))
        A.I("v_and_b32", v(U), 3, v(C))
        A.I("v_lshl_add_u32", v(T), v(T), 2, v(U))
        A.I("s_add_u32", s(sT0), s(sW1K), XI)
        A.I("v_lshl_add_u32", v(vXW), v(T), 2, s(sT0))
        A.I("v_sub_u32", v(7), 0, v(R))
        A.I("v_and_b32", v(7), 3, v(7))
        A.I("v_xor_b32", v(7), v(7), v(G))
        A.I("v_lshl_add_u32", v(T), v(C), 2, v(7))
        A.I("v_lshlrev_b32", v(vXR), 4, v(T))
        A.I("v_and_b32", v(U), 1, v(C))
        A.I("v_lshl_add_u32", v(T), v(R), 1, v(U))
        A.I("v_lshl_add_u32", v(T), v(G), 3, v(T))
        A.I("v_lshlrev_b32", v(vOR), 4, v(T))
        A.I("v_and_or_b32", v(vOW), v(vIDX), 8, v(vOR))
        A.I("s_lshl_b32", s(sT0), s(sWV), 13)
        A.I("s_add_u32", s(sT0), s(sT0), WV)
        A.I("v_add_u32", v(vWL), s(sT0), v(vL16))
        A.I("v_add_u32", v(vWL2), hex(0x10000), v(vWL))
        A.I("s_mov_b32", s(sOMASK), "0xcccccccc")
        A.I("s_mov_b32", s(sOMASK + 1), "0xcccccccc")
        A.I("s_mov_b32", s(sRMASK), "0x00ff00ff")
        A.I("s_mov_b32", s(sRMASK + 1), "0x00ff00ff")
        A.I("s_mov_b32", s(sC1), f2h((DH ** -0.5) * math.log2(math.e)))
        A.I("s_mov_b32", s(sBIG), f2h(2.0 ** self.kw.get('bigexp', 20)))
        A.I("s_mov_b32", s(sONES), "0x3f803f80")

    def set_wsrd(self, mat):
        A = self.A
        A.I("s_mov_b32", s(S_W), s(60 + 2 * mat))
        A.I("s_and_b32", s(S_W + 1), s(61 + 2 * mat), "0xffff")

    ORDER = [(0, 1), (0, 2), (0, 3), (1, 1), (1, 2), (1, 3), (2, 0), (2, 1), (2, 2), (2, 3), (3, 0), (3, 1),
             (0, 0), (1, 0), (3, 2), (3, 3)]

    def dma_chunk(self, idx, lo=None, hi=8):
        A = self.A
        mat, a_ = self.ORDER[idx]
        slot = idx & 3
        if lo is None and (idx == 0 or self.ORDER[idx - 1][0] != mat):
            self.set_wsrd(mat)
        if lo is None and mat < 3:
            A.I("v_xor_b32", v(15), a_ & 2 if self.full else a_, v(14))
            A.I("v_lshl_add_u32", v(15), v(15), 15, v(8))
        for i in range(lo or 0, hi):
            if mat < 3:
                vo = 15
                row = 128 * (i >> 1) + 64 * (a_ & 1) + 4 * (i & 1) if self.full else i << 6
                A.I("s_add_u32", s(sT0), s(sT2), hex(row * 8192))
            else:
                vo = 9 if i & 1 else 10
                o = (64 * ((i >> 2) ^ (a_ & 1)) + 16 * (i & 3)) * 1024 + (i >> 2) * 512 + (a_ >> 1) * 128 if self.wfull else 16 * i * 1024 + a_ * 64
                A.I("s_add_u32", s(sT0), s(sT3), hex(o))
            A.I("s_add_u32", "m0", s(sW1K), hex(WV + slot * 32768 + 4 * i * 1024))
            A.I("buffer_load_dwordx4", v(vo), s(S_W, 4), s(sT0), mods=self.mods("offen", self.kw.get('wmod', ''), "lds"))

    def read_chunk(self, idx, tmp=None):
        A = self.A
        mat, a_ = self.ORDER[idx]
        slot = idx & 3
        VT = 13
        def dst(h, fi, q):
            if tmp is not None: return v(tmp + fi * 8 + 2 * q, 2)
            return (a if h[0] == "a" else v)(h[1] + 2 * q, 2)
        if mat < 3 and self.full:
            hi = a_ & 1
            for e in range(2):
                for phi in range(2):
                    A.I("v_xor_b32", v(VT), hex(phi << 5 | e << 12), v(11))
                    A.I("v_add_u32", v(VT), hex(slot * 32768), v(VT))
                    h = home(mat, phi, (a_ & 2) + e + 4 * hi)
                    if h[0] == "lds": h = ("v", 32 + 32 * mat + (hi * 2 + phi) * 8)
                    for q in range(4):
                        o = (64 * (q >> 1) + 4 * (q & 1)) * 256
                        A.I("ds_read_b64_tr_b16", (a if h[0] == "a" else v)(h[1] + 2 * q, 2), v(VT), mods=self.off(o))
        elif mat < 3:
            for phi in range(2):
                A.I("v_xor_b32", v(VT), phi << 5, v(11))
                A.I("v_add_u32", v(VT), hex(slot * 32768), v(VT))
                for hi in range(2):
                    for q in range(4):
                        o = (64 * (q >> 1) + 16 * hi + 4 * (q & 1)) * 256
                        A.I("ds_read_b64_tr_b16", dst(home(mat, phi, a_ + 4 * hi), hi * 2 + phi, q), v(VT), mods=self.off(o))
                A.I("s_waitcnt", "lgkmcnt(0)")
        elif self.wfull:
            for t in range(2):
                for jj in range(2):
                    A.I("v_xor_b32", v(VT), hex(jj << 13 | t << 6), v(12))
                    A.I("v_add_u32", v(VT), hex(slot * 32768), v(VT))
                    j = 2 * (a_ & 1) + jj
                    h = wo_home((a_ & 2) + t, j)
                    if h[0] == "lds": h = ("v", 32 + 32 * t + 8 * j)
                    for q in range(4):
                        o = (8 * (q >> 1) + 2 * (q & 1)) * 256
                        A.I("ds_read_b64_tr_b16", v(h[1] + 2 * q, 2), v(VT), mods=self.off(o))
        else:
            for j in range(4):
                A.I("v_xor_b32", v(VT), hex(j << 13), v(12))
                A.I("v_add_u32", v(VT), hex(slot * 32768), v(VT))
                for q in range(4):
                    o = (8 * (q >> 1) + 2 * (q & 1)) * 256
                    A.I("ds_read_b64_tr_b16", dst(wo_home(a_, j), j, q), v(VT), mods=self.off(o))

    def load_weights(self):
        A = self.A
        L, G, C, T, U, R = 1, 2, 3, 4, 5, 6
        if not self.kw.get('wptr'): A.I("s_load_dwordx8", s(60, 8), s(0, 2), 16)
        A.I("s_mov_b32", s(S_W + 2), hex(4 << 20))
        A.I("s_mov_b32", s(S_W + 3), "0x20000")
        A.I("s_lshl_b32", s(sT2), s(sH), 8)
        A.I("s_lshl_b32", s(sT3), s(sH), 17)
        A.I("s_lshr_b32", s(sT0), s(sWV), 1)
        A.I("s_lshl_b32", s(sT0), s(sT0), 2)
        A.I("v_or_b32", v(U), s(sT0), v(G))
        A.I("v_lshlrev_b32", v(U), 1, v(U))
        A.I("v_xor_b32", v(U), v(U), v(C))
        A.I("v_lshrrev_b32", v(14), 2, v(U))
        if self.full: A.I("v_and_b32", v(14), 2, v(14))
        A.I("v_lshlrev_b32", v(U), 4, v(U))
        A.I("s_lshl_b32", s(sT0), s(sWV), 4)
        A.I("v_add_u32", v(T), s(sT0), v(G))
        A.I("v_lshl_add_u32", v(8), v(T), 13, v(U))
        LA = self.la
        hf, hold = self.kw.get('hold', (0, 0))
        if self.sc: hold = hf
        sFAR = sTHR
        if hold != hf or self.kw.get('help'): A.I("s_and_b32", s(sFAR), s(sH), 3)
        if self.kw.get('only') is not None:
            A.I("s_lshr_b32", s(sT0), self.kw['only'], s(sH))
            A.I("s_and_b32", s(sT0), s(sT0), 1)
            A.I("s_lshl_b32", s(S_W + 2), s(sT0), 22)
        q = []; qn = []
        def span(lo, hi, Q):
            for n in range(max(lo, 0), min(hi, 128)):
                self.dma_chunk(n >> 3, (n & 7) or None, (n & 7) + 1)
                for x in Q: x.append(n >> 3)
        def issue(lo, hi):
            if hold == hf: return span(lo - hf, hi - hf, (q, qn))
            l = A.newlabel("far"); l2 = A.newlabel("near")
            A.I("s_cmp_eq_u32", s(sFAR), self.kw.get('far', 1))
            A.I("s_cbranch_scc1", l)
            span(lo - hold, hi - hold, (qn,))
            A.I("s_branch", l2)
            A.label(l)
            span(lo - hf, hi - hf, (q,))
            A.label(l2)
        HELP = self.kw.get('help', {}) if not self.sc else {}
        def helper(when):
            if when not in HELP: return
            A.I("s_sub_u32", s(sT0), s(sFAR), self.kw.get('far', 1))
            A.I("s_and_b32", s(sT0), s(sT0), 3)
            A.I("s_sub_u32", s(sT1), s(sH), s(sT0))
            A.I("s_and_b32", s(sT1), s(sT1), 31)
            A.I("s_lshl_b32", s(sT1), s(sT1), 8)
            A.I("s_mov_b32", s(7), "0x20000")
            le = A.newlabel("helped")
            for k in (1, 2, 3, 0):
                c = HELP[when][k - 1] if k else None
                if k and c is None: continue
                l = A.newlabel("help")
                if k:
                    A.I("s_cmp_lg_u32", s(sT0), k)
                    A.I("s_cbranch_scc1", l)
                mat, a_ = self.ORDER[c or 0]
                assert mat < 3
                A.I("s_mov_b32", s(4), s(60 + 2 * mat))
                A.I("s_and_b32", s(5), s(61 + 2 * mat), "0xffff")
                A.I("s_mov_b32", s(6), hex(4 << 20) if k else 0)
                A.I("v_xor_b32", v(25), a_ & 2, v(14))
                A.I("v_lshl_add_u32", v(25), v(25), 15, v(8))
                for i in range(8):
                    A.I("s_add_u32", s(sT0), s(sT1), hex((128 * (i >> 1) + 64 * (a_ & 1) + 4 * (i & 1)) * 8192))
                    A.I("buffer_load_dwordx4", v(28, 4), v(25), s(4, 4), s(sT0), mods="offen")
                if k: A.I("s_branch", le)
                A.label(l)
            A.label(le)
            for x in (q, qn): x += [-1] * 8
        VH = self.kw.get('vhelp', {}) if not self.sc else {}
        L128 = self.kw.get('vh128', False)
        NR = 14 if L128 else 7
        def vh_setup():
            A.I("v_mul_u32_u24", v(22), 114 if L128 else 57, v(0))
            A.I("v_lshrrev_b32", v(22), 11, v(22))
            A.I("v_mul_u32_u24", v(23), 18 if L128 else 36, v(22))
            A.I("v_sub_u32", v(23), v(0), v(23))
            if L128: A.I("v_lshlrev_b32", v(23), 1, v(23))
            A.I("v_and_b32", v(25), 3, v(23))
            A.I("v_and_or_b32", v(23), v(23), 0x3c, 1)
            A.I("v_min_u32", v(23), 31, v(23))
            A.I("v_lshl_add_u32", v(23), v(23), 2, v(25))
            A.I("v_lshlrev_b32", v(31), 6, v(23))
            A.I("s_add_u32", s(sT0), s(sH), 2)
            A.I("s_lshr_b32", s(sT0), s(sT0), 2)
            A.I("s_sub_u32", s(sT0), s(sH), s(sT0))
            A.I("s_mul_i32", s(sT0), s(sT0), NR)
            A.I("v_add_u32", v(22), s(sT0), v(22))
        def vhelper(when):
            for mat, b, k in VH.get(when, ()):
                mat = "qkv".index(mat)
                A.I("s_mov_b32", s(4), s(60 + 2 * mat))
                A.I("s_and_b32", s(5), s(61 + 2 * mat), "0xffff")
                A.I("s_lshr_b32", s(6), "0x5ddddddd", s(sH))
                A.I("s_and_b32", s(6), s(6), 1)
                A.I("s_lshl_b32", s(6), s(6), 22)
                A.I("s_mov_b32", s(7), "0x20000")
                A.I("v_add_u32", v(23), k, v(22))
                A.I("v_and_b32", v(25), 0x1c0, v(23))
                A.I("v_add_u32", v(23), v(23), v(25))
                A.I("v_lshl_add_u32", v(23), v(23), 13, v(31))
                A.I("s_mov_b32", s(sT0), hex(b << 19))
                A.I("buffer_load_dword", v(30), v(23), s(4, 4), s(sT0), mods="offen")
                for x in (q, qn): x.append(-1)
        def ctouch(when):
            if self.sc or when not in self.kw.get('cc', {}): return
            hd, sh = self.kw['cc'][when]
            l = A.newlabel("nocc")
            A.I("s_cmp_lg_u32", s(sH), hd)
            A.I("s_cbranch_scc1", l)
            A.I("v_lshlrev_b32", v(25), sh - 4, v(vL16))
            A.I("s_lshl_b32", s(sT0), s(sWV), sh + 6)
            code_touch(A, l, 4, 25, 29, extra=s(sT0))
            A.label(l)
        ctouch(-1)
        if VH: vh_setup()
        A.I("s_waitcnt", "lgkmcnt(0)")
        mark(A, 2)
        vhelper(-1)
        if self.kw.get('fin'): self.kw['fin']()
        if self.kw.get('diag1'):
            self.dma_chunk(0, None, self.kw['diag1'])
            A.I("s_waitcnt", "vmcnt(0)")
            mark(A, 3)
        helper(-1)
        span(0, 8 * LA - hold, (q, qn))
        if not self.kw.get('diag1'): mark(A, 3)
        if hold != hf:
            l = A.newlabel("near")
            A.I("s_cmp_eq_u32", s(sFAR), self.kw.get('far', 1))
            A.I("s_cbranch_scc0", l)
            span(8 * LA - hold, 8 * LA - hf, (q,))
            A.label(l)
        self.lane_consts2()
        for odd, dst in ((0, 10), (1, 9)):
            A.I("v_and_b32", v(U), 1, v(G))
            A.I("v_or_b32", v(U), odd << 1, v(U))
            A.I("v_xor_b32", v(U), v(U), v(R))
            if self.wfull:
                A.I("v_and_b32", v(7), 2, v(U))
                A.I("v_add_u32", v(U), v(U), v(7))
            A.I("v_lshlrev_b32", v(U), 6 if self.wfull else 8, v(U))
            A.I("v_and_b32", v(7), 3, v(C))
            A.I("v_lshl_add_u32", v(7), v(7), 4, v(U))
            A.I("s_lshl_b32", s(sT0), s(sWV), 2)
            A.I("v_add_u32", v(T), s(sT0), v(G))
            A.I("v_lshl_add_u32", v(dst), v(T), 10, v(7))
        A.I("v_and_b32", v(U), 1, v(G))
        A.I("v_lshl_add_u32", v(T), v(U), 3, v(R))
        A.I("v_lshrrev_b32", v(7), 1, v(G))
        A.I("v_lshl_add_u32", v(T), v(7), 5, v(T))
        A.I("v_lshlrev_b32", v(T), 8, v(T))
        A.I("v_lshl_or_b32", v(U), v(U), 2, v(R))
        A.I("v_lshlrev_b32", v(U), 5, v(U))
        A.I("s_lshl_b32", s(sT0), s(sWV), 6)
        A.I("v_xor_b32", v(U), s(sT0), v(U))
        A.I("v_add_u32", v(T), v(T), v(U))
        A.I("v_and_b32", v(U), 3, v(C))
        A.I("v_lshl_add_u32", v(T), v(U), 3, v(T))
        A.I("v_add_u32", v(11), WV, v(T))
        if self.full:
            A.I("s_and_b32", s(sT0), s(sWV), 1)
            A.I("s_lshl_b32", s(sT0), s(sT0), 12)
            A.I("v_add_u32", v(11), s(sT0), v(11))
        A.I("v_and_b32", v(U), 1, v(G))
        A.I("v_lshlrev_b32", v(T), 4, v(U))
        A.I("v_lshl_add_u32", v(T), v(7), 2, v(T))
        A.I("v_and_b32", v(7), 1, v(R))
        A.I("v_add_u32", v(T), v(T), v(7))
        A.I("s_lshl_b32", s(sT0), s(sWV), 5)
        A.I("v_add_u32", v(T), s(sT0), v(T))
        A.I("v_lshlrev_b32", v(T), 8, v(T))
        A.I("v_lshl_or_b32", v(U), v(U), 1, v(7))
        A.I("s_lshl_b32", s(sT0), s(sWV), 1 if self.wfull else 0)
        A.I("s_and_b32", s(sT0), s(sT0), 3)
        A.I("v_xor_b32", v(U), s(sT0), v(U))
        A.I("v_lshl_add_u32", v(T), v(U), 6, v(T))
        A.I("v_lshrrev_b32", v(U), 1, v(R))
        A.I("v_lshl_add_u32", v(T), v(U), 5, v(T))
        A.I("v_and_b32", v(U), 3, v(C))
        A.I("v_lshl_add_u32", v(T), v(U), 3, v(T))
        A.I("v_add_u32", v(12), WV, v(T))
        T0 = self.kw.get('t0', 11) if self.kw.get('touch', True) and not self.sc else None
        TC = self.kw.get('tc', ()) if not self.sc else ()
        if TC:
            A.I("v_lshlrev_b32", v(T), 18, v(G))
            A.I("v_lshl_add_u32", v(T), v(C), 7, v(T))
            A.I("s_lshl_b32", s(sT0), s(sH), 13)
            A.I("s_add_u32", s(sT0), s(sT0), s(sW2K))
            A.I("s_add_u32", s(sT0), s(sT0), hex(WS_PB - WS_MB))
            A.I("v_add_u32", v(T), s(sT0), v(T))
            A.I("v_and_b32", v(U), 3, v(C))
            A.I("v_lshl_add_u32", v(U), v(U), 13, v(vMST))
            A.I("v_cmp_gt_u32", "vcc", 2, v(G))
            A.I("v_cndmask_b32", v(7), v(U), v(T), "vcc")
        def touch2(when):
            if when not in TC: return
            A.I("s_mov_b32", s(sT0), hex(WS_MB + self.wo))
            A.I("buffer_load_dword", v(30), v(7), s(S_WS, 4), s(sT0), mods=self.mods("offen", self.kw.get('tmod', 'sc1')))
            for x in (q, qn): x.append('t')
        touch2(-1)
        self.init_buffers()
        self.write_mem0()
        for x in (q, qn): x += [-1] * (self.n_init_vm + 1)
        EV = self.kw.get('ev', 14) if not self.sc else None
        RD_ = self.kw.get('rd', EV) if EV else 15
        EP = self.kw.get('ep') if EV and self.kw.get('gate') else None
        sKVD = sNEED
        def fprobe(r):
            A.I("v_lshlrev_b32", v(r), 3, v(vL16))
            A.I("v_and_b32", v(r), 0x800, v(r))
            A.I("s_lshl_b32", s(sT0), s(sH), 6)
            A.I("s_add_u32", s(sT0), s(sT0), hex(WS_CTRL + CT_F1))
            A.I("buffer_load_dword", v(r), v(r), s(S_WS, 4), s(sT0), mods="offen sc1")
        def feval(r, dst):
            A.I("v_readlane_b32", s(sT0), v(r), 0)
            A.I("v_readlane_b32", s(sT1), v(r), 16)
            A.I("s_min_u32", s(sT0), s(sT0), s(sT1))
            A.I("s_cmp_lg_u32", s(sT0), 0)
            A.I("s_cselect_b32", s(dst), s(sOK), 0)
        gate = self.kw.get('gate')
        A.I("s_mov_b32", s(sOK), 0)
        self.kv_addr()
        probed = False
        mark(A, 4)
        for idx in range(16):
            for x in (q, qn):
                if idx in x: del x[:len(x) - x[::-1].index(idx)]
                if idx == EV: del x[:len(x) - x[::-1].index('p')]
            if not (EV and idx > EV): A.I("s_waitcnt", f"vmcnt({max(len(q), len(qn))})")
            if len(qn) != len(q):
                l = A.newlabel("far")
                A.I("s_cmp_eq_u32", s(sFAR), self.kw.get('far', 1))
                A.I("s_cbranch_scc1" if len(qn) < len(q) else "s_cbranch_scc0", l)
                A.I("s_waitcnt", f"vmcnt({min(len(q), len(qn))})")
                A.label(l)
            if EV and gate and idx == 9:
                A.I("v_readfirstlane_b32", s(sOK), v(26))
                A.I("v_readfirstlane_b32", s(sT0), v(27))
                A.I("s_cmp_lg_u32", s(sT0), 0)
                A.I("s_cselect_b32", s(sOK), s(sOK), 0)
            if idx == EV:
                assert probed
                if gate: feval(26, sOK)
                else: A.I("s_mov_b32", s(sOK), 1)
                A.I("v_readfirstlane_b32", s(sT0), v(27))
                A.I("s_cmp_ge_u32", s(sT0), 32)
                A.I("s_cselect_b32", s(sOK), s(sOK), 0)
                l = A.newlabel("nokv")
                A.I("s_cmp_lg_u32", s(sOK), 1)
                A.I("s_cbranch_scc1", l)
                if EP:
                    A.I("s_cmp_eq_u32", s(sKVD), 1)
                    A.I("s_cbranch_scc1", l)
                self.kv_first()
                A.label(l)
            if idx == 4 or (T0 and idx == RD_): self.write_mem0_b()
            if T0 and idx == RD_ and self.kw.get('redo', True):
                assert 't' not in q
                self.init_buffers(True)
                for x in (q, qn): x += [-1] * (self.n_init_vm + 1)
            both = EV == 14 and self.full
            if not (both and idx == 15):
                A.I("s_barrier")
                if self.tag == "f" and idx <= self.kw.get('tsmax', 15): ts(A, 16 + idx, 24)
                if idx == self.kw.get('arr', 9): self.arrive()
                self.read_chunk(idx, tmp=(64 if self.full and idx & 1 else 32) if idx >= 12 else None)
                if both and idx == 14: self.read_chunk(15, tmp=64)
                if both or idx != 14 or not self.wfull or 8 * (idx + 4) - hold < 128:
                    A.I("s_waitcnt", "lgkmcnt(0)")
                    A.I("s_barrier")
            if idx == EP:
                assert idx > 9
                fprobe(28)
                for x in (q, qn): x.append('e')
            touch2(idx)
            ctouch(idx)
            if idx == T0: self.touch(); q += [-1] * 8; qn += [-1] * 8
            if idx in self.kw.get('ccode', ()) and not self.sc:
                A.I("v_lshlrev_b32", v(25), 2, v(vL16))
                A.I("s_lshl_b32", s(sT0), s(sWV), 12)
                code_touch(A, "L_chain_warm", 4, 25, 29, extra=s(sT0))
                q.append(-1); qn.append(-1)
            if idx == 12 and not self.sc: A.label("L_chain_warm")
            if EV and gate and idx == 5:
                A.I("buffer_load_dwordx2", v(26, 2), "off", s(S_DBG, 4), 0, mods=f"offset:{gate} sc1")
                q.append(-1); qn.append(-1)
            helper(idx)
            vhelper(idx)
            if 8 * (idx + 4) - hold < 128: issue(8 * (idx + 4), 8 * (idx + 5))
            if EV and not probed and 8 * (idx + 5) - hold >= 128:
                probed = True
                if gate: fprobe(26)
                A.I("buffer_load_dword", v(27), "off", s(S_DBG, 4), 0, mods=f"offset:{self.cbar} sc1")
                for x in (q, qn): x += ['p'] * (2 if gate else 1)
                if EP:
                    assert 'e' not in q
                    feval(28, sKVD)
                    A.I("s_cmp_eq_u32", s(sKVD), 1)
                    for r, x_, lds in ((sT2, sKXN, KXB), (sT3, sVXN, VXB)):
                        A.I("s_cselect_b32", s(r), s(x_), "0x7ff00000")
                    for r, x_, lds in ((sT2, sKXN, KXB), (sT3, sVXN, VXB)):
                        A.I("s_add_u32", "m0", s(sW2K), lds)
                        for i in range(2): A.I("buffer_load_dwordx4", v(vL16), s(S_WS, 4), s(r), mods=self.mods("offen", self.off(1024 * i), "lds"))
                    for x in (q, qn): x += [-1] * 4
            for slot in ((), (2, 3))[idx & 1] if self.wfull and idx >= 14 and not both else (idx & 3,) if idx >= 12 else ():
                tb = 64 if self.full and slot & 1 else 32
                for k in range(8):
                    A.I("ds_write_b128", v(vWL if slot < 2 else vWL2), v(tb + 4 * k, 4), mods=self.off((slot & 1) * 32768 + k * 1024))
        A.I("s_waitcnt", "lgkmcnt(0)")

    def kv_addr(self):
        A = self.A
        A.I("s_lshl_b32", s(sT0), s(sH), 13)
        A.I("s_add_u32", s(sT0), s(sT0), s(sW2K))
        A.I("s_add_u32", s(sKXN), s(sT0), hex(WS_KX))
        A.I("s_add_u32", s(sVXN), s(sT0), hex(WS_VX))
        A.I("s_lshr_b32", s(sT0), s(sT0), 1)
        A.I("s_add_u32", s(sKM), s(sT0), hex(WS_KM - 32 * 4096))

    def kv_first(self):
        self.A.I("s_add_u32", "m0", s(sW2K), KXB)
        for i in range(2): self.kdma(i)
        for i in range(2): self.vdma(i)

    def touch(self):
        A = self.A
        tm = self.kw.get('tmod', 'sc1')
        A.I("s_lshl_b32", s(sT0), s(sH), 13)
        A.I("s_add_u32", s(sT0), s(sT0), hex(WS_PB + self.wo))
        A.I("s_add_u32", s(sT0), s(sT0), s(sW2K))
        A.I("s_xor_b32", s(sT1), s(sT0), hex(PBPAR))
        for base in (sT0, sT1):
            for m in range(2):
                A.I("buffer_load_dwordx4", v(28, 4), v(vL16), s(S_WS, 4), s(base), mods=self.mods("offen", self.off(m * 1024), tm))
        for m in range(4):
            A.I("s_mov_b32", s(sT0), hex(WS_MB + self.wo + m * 8192))
            A.I("buffer_load_dword", v(28), v(vMST), s(S_WS, 4), s(sT0), mods=self.mods("offen", tm))

    def init_buffers(self, again=False):
        A = self.A
        sc = self.sc
        n = 0
        for i in range(4):
            A.I("v_mov_b32", v(16 + i), -1)
        A.I("s_lshl_b32", s(sT0), s(sH), 13)
        A.I("s_add_u32", s(sT0), s(sT0), hex(WS_PB + self.wo))
        A.I("s_and_b32", s(sT1), s(sWV), 1)
        A.I("s_lshl_b32", s(sT1), s(sT1), 12)
        A.I("s_add_u32", s(sPBLD), s(sT0), s(sT1))
        A.I("s_add_u32", s(sT0), s(sT0), s(sW2K))
        A.I("s_xor_b32", s(sT1), s(sT0), hex(PBPAR))
        for base in (sT0, sT1)[again:]:
            for m in range(2):
                A.I("buffer_store_dwordx4", v(16, 4), v(vL16), s(S_WS, 4), s(base), mods=self.mods("offen", self.off(m * 1024), sc))
                n += 1
        if self.ring:
            for m in range(1, 4):
                A.I("s_mov_b32", s(sT0), hex(WS_MB + self.wo + m * 8192))
                A.I("buffer_store_dword", v(16), v(vMST), s(S_WS, 4), s(sT0), mods=self.mods("offen", sc))
            self.n_init_vm = n + 3
            return
        A.I("s_lshl_b32", s(sT0), s(sH), 14)
        A.I("s_lshl_b32", s(sT1), s(sWV), 12)
        A.I("s_add_u32", s(sT0), s(sT0), s(sT1))
        A.I("s_cmp_lt_u32", s(sT0), 8192)
        A.I("s_cselect_b32", s(sT0), 8192, s(sT0))
        A.I("s_add_u32", s(sT0), s(sT0), hex(WS_MB + self.wo))
        for m in range(4):
            A.I("buffer_store_dwordx4", v(16, 4), v(vL16), s(S_WS, 4), s(sT0), mods=self.mods("offen", self.off(m * 1024), sc))
            n += 1
        self.n_init_vm = n

    def write_mem0(self):
        A = self.A
        G, C, R, T, U = 2, 3, 6, 20, 21
        S_W = 4
        A.I("s_load_dwordx2", s(S_W, 2), s(0, 2), 8)
        A.I("s_waitcnt", "lgkmcnt(0)")
        A.I("s_and_b32", s(S_W + 1), s(S_W + 1), "0xffff")
        A.I("s_mov_b32", s(S_W + 2), 8192)
        A.I("s_mov_b32", s(S_W + 3), "0x20000")
        A.I("v_and_b32", v(T), 1, v(G))
        A.I("v_and_b32", v(U), 1, v(R))
        A.I("v_lshl_add_u32", v(T), v(T), 1, v(U))
        A.I("v_lshlrev_b32", v(T), 9, v(T))
        A.I("v_and_b32", v(U), 3, v(C))
        A.I("v_lshl_add_u32", v(T), v(U), 4, v(T))
        A.I("v_and_b32", v(U), 2, v(G))
        A.I("v_add_u32", v(T), v(T), v(U))
        A.I("s_and_b32", s(sT0), s(sH), 1)
        A.I("s_lshl_b32", s(sT0), s(sT0), 11)
        A.I("s_bfe_u32", s(sT1), s(sH), hex(0x20001))
        A.I("s_lshl_b32", s(sT1), s(sT1), 7)
        A.I("s_add_u32", s(sT0), s(sT0), s(sT1))
        A.I("s_and_b32", s(sT1), s(sWV), 1)
        A.I("s_lshl_b32", s(sT1), s(sT1), 6)
        A.I("s_add_u32", s(sT0), s(sT0), s(sT1))
        A.I("s_lshr_b32", s(sT1), s(sH), 3)
        A.I("s_lshl_b32", s(sT1), s(sT1), 2)
        A.I("s_add_u32", s(sT0), s(sT0), s(sT1))
        A.I("v_add_u32", v(T), s(sT0), v(T))
        A.I("v_lshlrev_b32", v(T), 1, v(T))
        A.I("buffer_load_dword", v(U), v(T), s(S_W, 4), 0, mods="offen")

    def write_mem0_b(self):
        A = self.A
        U = 21
        A.I("v_min_u32", v(U), "0xfffffffe", v(U))
        A.I("s_mov_b32", s(sT0), hex(WS_MB + self.wo))
        A.I("s_mov_b64", "exec", s(sRMASK, 2))
        A.I("buffer_store_dword", v(U), v(vMST), s(S_WS, 4), s(sT0), mods=self.mods("offen", self.sc))
        A.I("s_mov_b64", "exec", -1)

    def arrive(self):
        A = self.A
        l = A.newlabel("arr")
        A.I("s_cmp_lg_u32", s(sWV), 0)
        A.I("s_cbranch_scc1", l)
        A.I("v_mov_b32", v(23), 1)
        A.I("s_mov_b64", "exec", 1)
        A.I("buffer_atomic_add", v(23), "off", s(S_DBG, 4), 0, mods=f"offset:{self.cbar}")
        A.I("s_mov_b64", "exec", -1)
        A.label(l)

    def walk(self):
        A = self.A; tg = self.tag
        A.I("s_mov_b64", "exec", 0)
        A.I("s_branch", f"L_chain_last_{tg}")
        A.label(f"L_chain_walked_{tg}")
        A.I("s_mov_b64", "exec", -1)

    def prologue(self):
        A = self.A
        if self.kw.get('lwarm') == 1: self.walk()
        lok = A.newlabel("started")
        A.I("s_cmp_eq_u32", s(sOK), 1)
        A.I("s_cbranch_scc1", lok)
        if self.pre_start: self.pre_start(self)
        self.kv_first()
        lp = A.newlabel("cb_poll"); ld = A.newlabel("cb_done")
        A.I("s_mov_b32", s(sRETRY), 0)
        A.label(lp)
        A.I("buffer_load_dword", v(3), "off", s(S_DBG, 4), 0, mods=f"offset:{self.cbar} sc1")
        A.I("s_waitcnt", "vmcnt(0)")
        A.I("v_readfirstlane_b32", s(sT0), v(3))
        A.I("s_cmp_ge_u32", s(sT0), 32)
        A.I("s_cbranch_scc1", lok)
        A.I("s_sleep", 8)
        A.I("s_add_u32", s(sRETRY), s(sRETRY), 1)
        A.I("s_cmp_lt_u32", s(sRETRY), hex(RETRY_MAX * 4))
        A.I("s_cbranch_scc1", lp)
        A.label(lok)
        A.reset_haz()
        A.I("s_lshr_b32", s(sT0), s(sH), 1)
        A.I("s_lshl_b32", s(sT0), s(sT0), 7)
        A.I("s_and_b32", s(sT1), s(sH), 1)
        A.I("s_lshl_b32", s(sT1), s(sT1), 4)
        A.I("s_add_u32", s(sT0), s(sT0), s(sT1))
        A.I("s_add_u32", s(sFLAGOFF), s(sT0), hex(WS_CTRL + CT_PROG))
        A.I("s_cmp_eq_u32", s(sWV), 0)
        A.I("s_cselect_b32", s(sFLAGOFF), s(sFLAGOFF), "0x7ff00000")
        if self.kw.get('pbw'):
            A.I("v_mov_b32", v(1), 1)
            A.I("buffer_store_dword", v(1), "off", s(S_WS, 4), s(sFLAGOFF), mods="offset:4 sc1")
        A.I("s_mov_b32", s(sSTEP), 0)
        A.I("s_mov_b32", s(sTAG), 0)
        if self.kw.get('rot') is not None:
            A.I("s_bfe_u32", s(sT0), s(sH), hex(0x10000 | self.kw['rot']))
            A.I("s_lshl_b32", s(sT0), s(sT0), 10)
            A.I("s_xor_b32", s(sPBLD), s(sPBLD), s(sT0))
        A.I("s_xor_b32", s(sPBLD2), s(sPBLD), 1024)
        A.I("s_add_u32", s(sMBLD), s(sW1K), hex(WS_MB + self.wo))
        A.I("s_add_u32", s(sMBLD2), s(sMBLD), 4096)
        A.I("s_mov_b32", s(sMBST), hex(WS_MB + 8192 + self.wo))
        A.I("s_add_u32", s(sRST), s(sMBST), 16384)
        for j in range(2):
            A.I("s_mov_b32", s(sPBST + j), hex(WS_PB + j * 4096 + self.wo))
        for i in range(4): A.I("v_mov_b32", v(vPUB + i), 0)
        A.I("s_add_u32", "m0", s(sW1K), MBUF + 4096)
        for o in (FLG, ZRO): A.I("ds_write_b128", v(vL16), v(vPUB, 4), mods=self.off(o))
        A.I("s_cmp_lg_u32", s(sWV), 0)
        A.I("s_cselect_b32", s(sT1), -1, 0)
        A.I("v_mov_b32", v(vFLG), s(sT1))
        if self.kw.get('pfk'):
            A.I("s_cmp_eq_u32", s(sWV), 1)
            A.I("s_cselect_b64", "vcc", -1, 0)
            A.I("s_mov_b32", s(sT1), hex(32 * 8192 - 2048))
            A.I("v_lshl_add_u32", v(1), v(vL16), self.kw.get('pfsh', 3), s(sT1))
            A.I("v_cndmask_b32", v(vFLG), v(vFLG), v(1), "vcc")
        A.I("v_bfe_u32", v(1), v(vL16), 4, 1)
        A.I("v_lshlrev_b32", v(1), 4, v(1))
        A.I("s_movk_i32", s(sT0), "0x3f80")
        A.I("v_lshlrev_b32", v(vSEL), v(1), s(sT0))
        A.I("v_bfe_u32", v(1), v(vL16), 5, 3)
        for d in range(4): A.I("v_cmp_eq_u32", s(self.sSEL + 2 * d, 2), d, v(1))
        A.I("v_lshrrev_b32", v(1), 2, v(vL16))
        A.I("s_cmp_lt_u32", s(sWV), WE)
        A.I("s_cselect_b64", "vcc", -1, 0)
        A.I("v_cndmask_b32", v(vL4), v(vMST), v(1), "vcc")
        for r in range(vQK, vQK + 24): A.I("v_mov_b32", v(r), 0)
        A.I("s_add_u32", s(sKXN), s(sKXN), hex(32 * 8192))
        A.I("s_add_u32", s(sVXN), s(sVXN), hex(32 * 8192))
        A.I("s_mov_b32", s(sNRM), 0)
        A.I("s_mov_b32", s(sNRR), 0)
        A.I("s_mov_b32", s(sNRF), 0)
        A.I("s_mov_b32", s(self.sNRX), 0)
        A.I("s_and_b32", s(sT0), s(sWV), 1)
        A.I("s_lshl_b32", s(sT0), s(sT0), 5)
        A.I("s_add_u32", s(sT0), s(sT0), s(sH))
        A.I("s_lshl_b32", s(sT0), s(sT0), 6)
        A.I("s_add_u32", s(sKVF), s(sT0), hex(WS_CTRL + CT_F1))
        A.I("s_mov_b32", s(sNEED + 1), 0)
        if self.flog:
            A.I("s_lshl_b32", s(sT0), s(sH), 2)
            A.I("s_add_u32", s(sT0), s(sT0), s(sWV))
            A.I("s_lshl_b32", s(sT0), s(sT0), 12)
            A.I("s_add_u32", s(sLOGO), s(sT0), hex(WS_TS + 0x10000))
        for it in self.prefetch_items(): it()
        A.I("s_mov_b32", s(sRETRY), 0)
        A.I("s_waitcnt", "vmcnt(0) lgkmcnt(0)")
        A.I("s_barrier")
        self.lq = []; self.vq = []

    STG = {(0, 0, 0): 80, (0, 1, 0): 56, (1, 0, 0): 64, (1, 1, 0): 72, (0, 0, 4): 88, (0, 1, 4): 96, (1, 0, 4): 104, (1, 1, 4): 24}
    MR = {0: 0, 4: 4, 1: 8, 5: 12, 2: 16, 3: 20, 6: 24, 7: 28}

    def prefetch_items(self, late=False, tag=None):
        A = self.A
        L = []
        for f, r in self.STG.items():
            if self.kreg and (f[2] == 4) != late: continue
            for hf in range(2):
                L.append(lambda f=f, r=r, hf=hf: self.wread(tag and (tag, f), r + 4 * hf, home(*f)[1] + 1024 * hf))
        return L

    def kreads(self, tag=None):
        return [lambda i=i: self.ds(tag, "ds_read_b128", v(56 + 4 * i, 4), v(vL16), mods=self.off(KXB + i * 1024)) for i in (6, 7, 0, 1, 2, 3, 4, 5)]

    def kdma(self, i):
        if "g" in self.x:
            self.vm("kk", "buffer_load_dwordx4", v(240 + 4 * i, 4), v(vL16), s(S_WS, 4), s(sKXN), mods=self.mods("offen", self.off(1024 * i), self.kw.get('kmod', '')))
            return
        self.vm("kk", "buffer_load_dwordx4", v(vL16), s(S_WS, 4), s(sKXN), mods=self.mods("offen", self.off(1024 * i), self.kw.get('kmod', ''), "lds"))
        if i: self.A.I("s_add_u32", "m0", s(sW2K), hex(VXB))
    def vdma(self, i, nxt=None):
        if "g" in self.x:
            self.vm("kd", "buffer_load_dwordx4", v(248 + 4 * i, 4), v(vL16), s(S_WS, 4), s(sVXN), mods=self.mods("offen", self.off(1024 * i), self.kw.get('kmod', '')))
            if nxt is not None: self.A.I("s_mov_b32", "m0", nxt)
            return
        self.vm("kd", "buffer_load_dwordx4", v(vL16), s(S_WS, 4), s(sVXN), mods=self.mods("offen", self.off(1024 * i), self.kw.get('kmod', ''), "lds"))
        if nxt is not None: self.A.I("s_mov_b32", "m0", nxt)

    def retry_head(self, cnt, lgo):
        A = self.A
        A.I("s_add_u32", s(cnt), s(cnt), 1)
        A.I("s_add_u32", s(sRETRY), s(sRETRY), 1)
        A.I("s_cmp_ge_u32", s(sRETRY), hex(RETRY_MAX))
        A.I("s_cbranch_scc1", lgo)

    def step_loop(self):
        A = self.A; tg = self.tag
        A.barrier_haz()
        if self.kw.get('early3'): A.I("buffer_load_dwordx4", v(self.MR[0], 4), v(vL16), s(S_WS, 4), s(sMBLD), mods="offen sc1")
        if self.kreg:
            for x in self.kreads(): x()
        lw = self.kw.get('lwarm')
        A.I("s_waitcnt", "vmcnt(0) lgkmcnt(0)")
        for w in range(1, 4):
            A.I("s_cmp_eq_u32", s(sWV), w)
            A.I("s_cbranch_scc1", f"L_chain_top{w}_{tg}")
        for w in range(4): self.wave_loop(w)
        A.label(f"L_chain_last_{tg}")
        A.reset_haz()
        hop = [0]
        def line(last=False):
            if not lw: return
            if hop[0]: A.label(f"L_chain_hop{hop[0]}_{tg}")
            hop[0] += 1
            A.I("s_cbranch_execz", f"L_chain_walked_{tg}" if last else f"L_chain_hop{hop[0]}_{tg}")
        line()
        A.nop(2)
        for i, x in enumerate(self.last):
            if i % 6 == 5: line()
            x()
        line(True)
        A.I("s_add_u32", s(sKM), s(sKM), hex(32 * 4096))
        A.I("buffer_store_dwordx4", v(vPUB, 4), v(vL16), s(S_WS, 4), s(sKM), mods="offen " + self.pubmod)
        A.I("v_mov_b32", v(94), NSEG)
        A.I("s_waitcnt", "vmcnt(0) lgkmcnt(0)")
        A.I("s_barrier")
        A.I("s_mov_b64", "exec", 1)
        A.I("buffer_store_dword", v(94), "off", s(S_WS, 4), s(sFLAGOFF), mods="sc1")
        A.I("s_mov_b64", "exec", -1)

    def wave_loop(self, w):
        A = self.A
        sc = self.sc; tg = self.tag; X_ = self.x
        def opt(k, d):
            x = self.kw.get(k, d)
            return x[w] if isinstance(x, list) else x
        LTOP = f"L_chain_top{w}_{tg}"; LLAST = f"L_chain_last_{tg}"
        nochk = "n" in X_
        Mr = lambda sl: self.MR[sl]
        acc = lambda mat, phi: (vQK + 8 * mat + 4 * phi) if mat < 2 else (vVA + 4 * phi)
        def smf(mat, phi, sl):
            h = home(mat, phi, sl)
            self.needl(f"m{sl}")
            B = v(self.STG[(mat, phi, sl)], 8) if h[0] == "lds" else reg8(h)
            A.I(SMF, v(acc(mat, phi), 4), v(Mr(sl), 4), B, v(vIDX))
        def valu(*x, **k): return lambda: A.I(*x, **k)
        untracked = lambda t_, *a_, **k: A.I(*a_, **k)

        A.raw(".p2align 6")
        for _ in range(self.align): A.raw("    s_nop 0")
        A.label(LTOP)
        A.reset_haz()
        self.lq = []; self.vq = []
        self.fl(0)
        t0 = 15
        RL = [4, 8, 16, 20]; SEL = 12; RD = vVA; tc = vVA + 4
        zr = list(range(vVA, vVA + 6)) if w >= WE else []
        def zero(n, pad=False):
            for _ in range(n):
                if zr: A.I("v_mov_b32", v(zr.pop(0)), 0)
                elif pad: A.I("v_mov_b32", v(t0), 0)
        def mload(half, mod, tag=None):
            (self.vm if tag else untracked)(tag, "buffer_load_dwordx4", v(Mr(4 * half), 4), v(vL16), s(S_WS, 4),
                    s(sMBLD2 if half else sMBLD), mods="offen " + mod)
        def mdma(mod, tag=None):
            (self.vm if tag else untracked)(tag, "buffer_load_dwordx4", v(vL16), s(S_WS, 4), s(sMBLD2), mods=f"offen {mod} lds")
            A.I("s_mov_b32", "m0", KXB + 2048 * w)
        self.mload0 = lambda: mload(0, self.pollmod)
        z = opt('z', (0, 16, 16))
        early3 = w == WL_ and opt('early3', False)
        if early3:
            self.vq += ["f0", "st"]
        else:
            zero(z[0], True)
            self.fl("h7")
            mload(0, self.pollmod, "f0")
        rg = self.kw.get('rg')
        for i, n in enumerate(z[1:]):
            if i: mload(0, "sc1", "fx")
            if i == len(z) - 2 and rg and w >= WE:
                A.I("s_waitcnt", f"vmcnt({len(self.vq) + 1})")
                zr += list(range(vQK + 4, vQK + 16))
            if not (early3 and i == 0): zero(n, True)
        zero(20)
        chk = lambda r: [valu("v_max3_u32", v(t0), v(r), v(r + 1), v(r + 2)), valu("v_max_u32", v(t0), v(t0), v(r + 3)),
                         valu("v_cmp_lt_u32", "vcc", s(sSENT), v(t0))]
        def mwrite(): self.ds("mw0", "ds_write_b128", v(vL16), v(Mr(0), 4), mods=self.off(MBUF + 1024 * w))
        def mread(sl): self.ds(f"m{sl}", "ds_read_b128", v(Mr(sl), 4), v(vL16), mods=self.off(MBUF + (sl ^ w) * 1024))
        nw = opt('nw', '')
        own0 = [(0, 0, 0), (0, 1, 0), (1, 0, 0), (1, 1, 0), (2, 0, 0), (2, 1, 0)]
        spec = opt('spec', 2)
        lret0 = A.newlabel("mret")
        if opt('lal', None) is not None:
            A.raw(".p2align 6")
            for _ in range(opt('lal', 0)): A.raw("    s_nop 0")
        A.label(lret0)
        mload(0, "sc1", "fx")
        A.I("s_add_u32", s(sNRM), s(sNRM), 1)
        A.I("s_cmp_lt_u32", s(sNRM), hex(RETRY_MAX))
        A.I("s_cselect_b32", s(sSENT), -2, -1)
        if spec:
            A.nop(4)
            for i in range(4): A.I("v_mov_b32", v(acc(0, 0) + i), 0)
        for _ in range(opt('zl', 0)): A.I("v_mov_b32", v(t0), 0)
        self.needv("f0")
        self.fl(1)
        c = chk(Mr(0))
        c[0](); c[1]()
        if spec == 3: mwrite()
        if spec >= 2: c[2]()
        if spec: smf(*own0[0])
        if opt('wspec', False): mwrite()
        if spec < 2: c[2]()
        if not nochk: A.I("s_cbranch_vccnz", lret0)

        q0, q1, k0, k1 = vQK, vQK + 4, vQK + 8, vQK + 12
        K0, K1, VX, X, VA = 56, 72, 88, 32, vVA
        D0, D1, DM_, PX, PM, ONES, OA, LA, ri = 56, 60, 64, 68, 52, 48, 72, 80, 84
        OF = [60, 92, 80, 84]
        G = [72, 76]
        WS_ = {(2, 0): 0, (3, 0): 8, (2, 1): 16, (2, 2): 24, (2, 3): 32, (3, 1): 40, (3, 2): 56, (3, 3): 64}
        def woread(T, j, hf): self.wread(("o", T, j), WS_[(T, j)] + 4 * hf, wo_home(T, j)[1] + 1024 * hf)
        def W(T, j, hf): return lambda: woread(T, j, hf)
        def vread(i): return lambda: self.ds("vx", "ds_read_b128", v(VX + 4 * i, 4), v(vL16), mods=self.off(VXB + w * 2048 + i * 1024))
        def kread(i): return lambda: self.ds("k", "ds_read_b128", v(K0 + 4 * i, 4), v(vL16), mods=self.off(KXB + i * 1024))
        def zread(r, tag="z"): return lambda: self.ds(tag, "ds_read_b128", v(r, 4), v(vL16), mods=self.off(ZRO))
        def j_pub(): self.vm("pub", "buffer_store_dwordx4", v(vPUB, 4), v(vL16), s(S_WS, 4), s(sKM), mods="offen " + self.pubmod)
        def j_kvf(): self.vm("kvf", "buffer_load_dword", v(vDUM), v(vL4), s(S_WS, 4), s(sKVF), mods="offen sc1")
        add2 = lambda r: [valu("v_add_f32", v(r), v(r), v(r + 2)), valu("v_add_f32", v(r + 1), v(r + 1), v(r + 3))]
        mul2 = lambda r: [valu("v_mul_f32", v(r), s(sC1), v(r)), valu("v_mul_f32", v(r + 1), s(sC1), v(r + 1))]
        cvp = lambda d, x, y: valu("v_cvt_pk_bf16_f32", v(d), v(x), v(y))
        def xwrite(t):
            d = (vPUB + 1, vPUB + 3) if t else (q0 + 2, q0 + 3)
            o = 0 if t else 32
            self.ds(f"xw{t}", "ds_write2_b32", v(vXW), v(d[0]), v(d[1]), mods=f"offset0:{o} offset1:{o + 16}")
        def xread(i): return lambda: self.ds(f"x{i}", "ds_read_b128", v(X + 4 * i, 4), v(vXR), mods=self.off(XI + 1024 * i))
        def oread(j): return lambda: self.ds(f"of{j}", "ds_read_b128", v(OF[j], 4), v(vOR), mods=self.off(OI + (w ^ j) * 512))
        bar = valu("s_barrier")
        nl = lambda t: (lambda: self.needl(t))
        FL = lambda i: (lambda: self.fl(i))
        none = lambda: None
        E_ = lambda m, p: [(m, p, 1), (m, p, 2), (m, p, 3)]
        L_ = lambda m, p: [(m, p, 5), (m, p, 6), (m, p, 7)]
        ve = [(2, 0, 1), (2, 1, 1), (2, 0, 2), (2, 0, 3), (2, 1, 2), (2, 1, 3)][:opt('ve', 0)]
        es = [(0, 0, 1), (0, 1, 1), (0, 0, 2), (0, 1, 2), (0, 0, 3), (0, 1, 3)] + E_(1, 0) + E_(1, 1) + ve
        ne = opt('ne', len(es)); rest = es[ne:]; assert ne <= len(es) and not [f for f in rest if f[0] == 2]
        own1 = [(1, 1, 4), (0, 0, 4), (0, 1, 4), (1, 0, 4), (2, 0, 4), (2, 1, 4)]
        o1v = opt('o1v', 0); vdef = own1[4 + o1v:]; own1 = own1[:4 + o1v]
        R_ = lambda m, p: [f for f in rest if f[:2] == (m, p)]
        vl = vdef + [(2, p, sl) for p, sl in [(0, 1), (1, 1), (0, 5), (1, 5), (0, 2), (0, 3), (0, 6), (0, 7), (1, 2), (1, 3), (1, 6), (1, 7)] if (2, p, sl) not in ve]
        vm_ = opt('vmid', 2)
        frs = own0 + es[:ne] + own1 + R_(0, 0) + R_(0, 1) + L_(0, 0) + L_(0, 1) + R_(1, 0) + L_(1, 0) + vl[:vm_] + R_(1, 1) + L_(1, 1)
        NQ = len(frs)
        frs += vl[vm_:]
        NS = len(frs); assert NS == 48
        O1 = 6 + ne
        last = lambda m, p: max(i for i, f in enumerate(frs) if f[:2] == (m, p))
        def smf_(f):
            h = home(*f)
            return valu(SMF, v(acc(*f[:2]), 4), v(Mr(f[2]), 4), v(self.STG[f], 8) if h[0] == "lds" else reg8(h), v(vIDX))
        ST = [(smf_(f), [f"m{f[2]}", ("k", f)]) for f in frs]
        for D, Areg in ((D0, K0), (D1, K1), (DM_, X)):
            ST += [(valu(MF, v(D, 4), v(Areg + 4 * ks, 4), v(X + 4 * ks, 4), 0 if ks == 0 else v(D, 4)), [f"x{ks}"]) for ks in range(4)]
        pvx = {"a": valu(MF, v(OA, 4), v(VX, 4), v(PX, 4), 0), "b": valu(MF, v(OA + 4, 4), v(VX + 4, 4), v(PX, 4), 0), "l": valu(MF, v(LA, 4), v(ONES, 4), v(PX, 4), 0)}
        pvm = {"a": valu(MF16, v(OA, 4), v(vPUB, 2), v(PM, 2), v(OA, 4)), "b": valu(MF16, v(OA + 4, 4), v(vPUB + 2, 2), v(PM, 2), v(OA + 4, 4)),
               "l": valu(MF16, v(LA, 4), v(ONES, 2), v(PM, 2), v(LA, 4))}
        nrm = opt('nrm', 0)
        pvo = "abl" if nrm == 0 else "lab"
        ST += [(pvx[k], ["vx"]) for k in pvo] + [(pvm[k], []) for k in pvo]
        worder = [(T, 0) for T in range(4)] + [(T, j) for T in range(4) for j in (1, 2, 3)]
        for T, j in worder:
            h = wo_home(T, j)
            ST.append((valu(SMF, v(vWA + 4 * T, 4), v(OF[j], 4), v(WS_[(T, j)], 8) if h[0] == "lds" else reg8(h), v(vIDX)),
                       ["z", ("o", T, j), f"of{j}"]))
        SC, PV, WO, N = 48, 60, 66, 82
        assert len(ST) == N
        mems = [[] for _ in range(N)]; vals = [[] for _ in range(N)]; post = [[] for _ in range(N)]
        def place(L, ops, first, step=1):
            i = first
            while ops:
                if not L[i]:
                    L[i].append(ops.pop(0)); i += step - 1
                i += 1
            return i - step
        ab = opt('abar', 3); ar = opt('ard', 3)
        mems[0] += [none if opt('wspec', False) or spec == 3 else mwrite]
        pp = opt('pubpos', [7, 9, 11, 13])
        if "p" not in X_: mems[pp] += [j_pub]
        def j_flag():
            if w == 0: self.vm("j", "buffer_store_dword", v(vFLG), "off", s(S_WS, 4), s(sFLAGOFF), mods=self.pubmod)
            if w >= WE: self.vm("j", "buffer_store_dword", v(vFLG), v(vMST), s(S_WS, 4), s(sRST), mods=self.mods("offen", sc))
        keep = lambda n: [valu("v_mov_b32", v(vPBST), v(vPBST))] * n
        mems[ab] += keep(opt('ka', 0)) + [none if 'A' in nw else nl("mw0"), bar, FL(2)]
        a1 = opt('ard1', 1)
        rdA = [lambda: mread(1), lambda: mread(2), lambda: mread(3)]
        mems[ar] += rdA[:a1]; mems[ar + 1] += rdA[a1:]
        f1p = opt('f1pos', 1)
        mems[f1p].insert(int(f1p == 0), lambda: mload(1, self.pollmod, "f1")); mems[f1p + 1].insert(0, lambda: mdma(self.pollmod, "fd"))
        def kplace():
            if self.kreg and "k" not in X_:
                for i, j in enumerate(opt('kdpos', [(5, 6), (7, 8), (9, 10), (11, 12)])):
                    assert j > ab and j > f1p + 1
                    mems[j] += [lambda i=i: self.kdma(i)]
            kl = place(mems, self.prefetch_items(True, "k") if self.kreg else self.kreads("k"), opt('kfirst', 4))
            assert kl < O1 - (1 if self.kreg else 2)
        if self.kreg: kplace()
        lret1 = A.newlabel("mret"); lgo1 = A.newlabel("mgo")
        def ool1():
            A.label(lret1)
            A.I("s_mov_b32", s(sT0), "m0")
            A.I("s_mov_b32", "m0", MBUF + 4096 + 1024 * w)
            mload(1, "sc1")
            mdma("sc1")
            A.I("s_mov_b32", "m0", s(sT0))
            A.I("s_waitcnt", "vmcnt(0)")
            for x in chk(Mr(4)): x()
            self.retry_head(sNRF, lgo1)
            A.I("s_cbranch_vccnz", lret1)
            A.I("s_branch", lgo1)
        self.ool.append(ool1)
        c = chk(Mr(4))
        ckn = opt('ckn', 3)
        cplan = {1: [c], 2: [c[:2], c[2:]], 3: [c[:1], c[1:2], c[2:]]}[ckn]
        fw = O1 - 1 - ckn
        mems[fw] += [lambda: self.needv("f1"), FL(3)]
        for i in range(ckn): vals[fw + i] = cplan[i]
        def xb():
            if not nochk: A.I("s_cbranch_vccnz", lret1)
            A.label(lgo1)
        bb = O1 - 1 + opt('bbar', 1); br = bb + opt('brd', 0)
        mems[O1 - 2] += [lambda: self.needvl("fd", "k")]
        mems[O1 - 1] += [xb]
        mems[bb] += [bar, FL(4)]
        mems[br] += [lambda: mread(5)]
        place(mems, [lambda: mread(6), lambda: mread(7)], max(br + 1, O1))
        if not self.kreg: kplace()
        place(mems, [vread(0), vread(1)], O1 + 1)
        i = place(vals, add2(q0) + mul2(q0), last(0, 0) + 2)
        i = place(vals, add2(q1) + mul2(q1) + [cvp(q0 + 2, q0, q1), cvp(q0 + 3, q0 + 1, q1 + 1)], max(i, last(0, 1) + 2))
        xq = i + 1
        xk = NQ + 1
        kf = add2(k0)
        for j in range(last(1, 0) + 2, xk):
            if kf and (not vals[j] or xk - j <= len(kf)): vals[j].append(kf.pop(0))
        if xq == xk: xq += 1
        assert not kf and xq <= xk + 1
        mems[xq] += [lambda: xwrite(0)]
        kt = add2(k1) + [cvp(vPUB + 1, k0, k1), cvp(vPUB + 3, k0 + 1, k1 + 1)]
        ks_ = opt('ksp', 1)
        for j in range(ks_): vals[xk + j] += kt[j * 4 // ks_:(j + 1) * 4 // ks_]
        xk += ks_ - 1
        cb = xk + 1 + opt('cbar_', 4); cr = cb + opt('crd', 1)
        mems[NQ] += [FL(5)]
        mems[xk + 1] += [lambda: xwrite(1), FL(6)]
        vf0, vf1 = add2(VA) + [cvp(vPUB, VA, VA + 1)], add2(VA + 4) + [cvp(vPUB + 2, VA + 4, VA + 5)]
        assert xk + 2 < cb and xk + 2 < last(2, 0) + 2
        mems[xk + 2] += [valu("s_cmp_eq_u32", s(sSTEP), NSEG - 1), valu("s_cbranch_scc1", LLAST)]
        self.last = [x[0] for x in ST[xk + 3:NS]] + vf0 + vf1
        if opt('cw', 0): mems[cb - 1] += [none if 'C' in nw else nl("xw1")]
        assert pp <= NQ
        fp = xk + opt('fpos', [2, 2, 3, 4]); assert fp > ab
        if w != 1: mems[fp] += [j_flag]
        mems[cb] += keep(opt('kc', 0)) + [none if 'C' in nw else nl("xw1")] + [FL(21)] + keep(opt('kc2', 0)) + [bar, FL(7)]
        xp = opt('xpre', 2); xr = opt('xrate', 2)
        rdC = [xread(i) for i in range(4)]
        mems[cr] += rdC[:xp]; rdC = rdC[xp:]; j = cr + 1
        while rdC: mems[j] += rdC[:xr]; rdC = rdC[xr:]; j += 1
        xe = j
        vf0l = list(vf0)
        for j in range(last(2, 0) + 2, NS):
            if vf0l and not vals[j]: vals[j].append(vf0l.pop(0))
        vals[NS - 1] += vf0l
        post[NS - 1] += [FL(8)]
        for j in range(xk + 1, cr): mems[j].append(none)
        vms = [lambda: self.kdma(0), lambda: self.kdma(1), lambda: (self.needl("vx"), self.vdma(0)), lambda: self.vdma(1, MBUF + 4096 + 1024 * w)]
        if self.kreg: vms = vms[2:]
        if "k" in X_: vms = [valu("s_mov_b32", "m0", MBUF + 4096 + 1024 * w)]
        if "v" in X_: vms = vms[:-2] + [valu("s_mov_b32", "m0", MBUF + 4096 + 1024 * w)]
        if "1" in X_: vms = vms[:1] + [valu("s_mov_b32", "m0", MBUF + 4096 + 1024 * w)]
        if self.kvcheck and w < WE: vms.insert(opt('kvfi', 2), j_kvf)
        place(mems, vms, bb + 1 + opt('vbase', [2, 3, 4, 5]), opt('vstep', 3))
        if opt('pfk', 0) and w == 1:
            pfl = [(sKXN, 0), (sVXN, 0)] if opt('pfsh', 3) == 3 else [(sKXN, 0), (sKXN, 4095), (sVXN, 0), (sVXN, 4095)]
            for i, (r, o) in enumerate(pfl):
                mems[opt('pfk', 0) + i * opt('pfstep', 1)] += [lambda r=r, o=o: self.vm("pf", "buffer_load_ubyte" if o else "buffer_load_dword", v(vDUM), v(vFLG), s(S_WS, 4), s(r),
                                                                   mods=self.mods("offen", self.off(o), self.kw.get('pfmod', '')))]
        if opt('kprobe', 0): mems[opt('kprobe', 0)] += [lambda: self.needv(opt('ktag', "kd")), FL(20)]
        ex = lambda r: valu("v_exp_f32", v(r), v(r))
        cv = lambda d, r: valu("v_cvt_pk_bf16_f32", v(d), v(r), v(r + 1))
        one = lambda i: valu("v_mov_b32", v(ONES + i), s(sONES))
        sv = [[one(0), one(1)], [one(2), one(3)], vf1[:1], vf1[1:2], vf1[2:] + [valu("v_mov_b32", v(PM + 1), 0)],
              [ex(D0)], [ex(D0 + 1)], [ex(D0 + 2)], [ex(D0 + 3), cv(PX, D0)], [ex(D1), cv(PX + 1, D0 + 2)], [ex(D1 + 1)],
              [ex(D1 + 2), ex(D1 + 3), cv(PX + 2, D1), cv(PX + 3, D1 + 2)], [ex(DM_)], [ex(DM_ + 1)], [cv(PM, DM_)]]
        for j, x in enumerate(sv): vals[SC + j] = x
        post[PV - 1] += [FL(9)]
        mfree = lambda r: max(i for i, f in enumerate(frs) if Mr(f[2]) == r)
        wfirst = {(2, 0, 0): mfree(0), (2, 0, 1): mfree(4), (3, 0, 0): mfree(8), (3, 0, 1): mfree(12), (2, 1, 0): mfree(16), (2, 1, 1): mfree(20),
                  (2, 2, 0): mfree(24), (2, 2, 1): mfree(28), (2, 3, 0): SC + 8, (2, 3, 1): SC + 9, (3, 1, 0): SC + 10, (3, 1, 1): SC + 11,
                  (3, 2, 0): SC + 10, (3, 2, 1): WO + 4, (3, 3, 0): PV + 3, (3, 3, 1): PV + 2}
        place(mems, [zread(vWA + 4 * i) for i in range(4)], O1 + 4)
        lnorm = A.newlabel("norm"); lfb = A.newlabel("smax")
        QH = "quad_perm:[2,3,2,3] row_mask:0xf bank_mask:0xf"; QL = "quad_perm:[0,1,0,1] row_mask:0xf bank_mask:0xf"
        fb = opt('fbpos', 0)
        fbr = valu("s_nop", 0) if "f" in X_ else valu("s_cbranch_vccnz", lfb)
        if fb >= 0 and nrm == 0: mems[WO + fb] += [fbr]
        def norm():
            self.fl(10)
            A.label(lnorm)
            A.I("s_mov_b64", "vcc", s(sOMASK, 2))
            R_ = OA + 4
            for i in range(4):
                A.I("v_cndmask_b32_dpp", v(R_ + i), v(OA + i), v(R_ + i), "vcc", mods=QH)
            A.I("v_rcp_f32_dpp", v(ri), v(LA), mods=QH)
            for i in range(2): A.I("v_pk_mul_f32", v(R_ + 2 * i, 2), v(R_ + 2 * i, 2), v(ri, 2), mods="op_sel_hi:[1,0]")
            for i in range(2): A.I("v_cvt_pk_bf16_f32", v(OA + i), v(R_ + 2 * i), v(R_ + 2 * i + 1))
            self.ds("ow", "ds_write_b64", v(vOW), v(OA, 2), mods=self.off(OI + w * 512))
            self.fl(11)
            A.I("v_max_f32_dpp", v(ri + 2), v(LA), v(ri), mods=QH)
            for i in range(4):
                A.I("v_mov_b32_dpp", v(OF[0] + i), v(OA + (i & 1)), mods=QH if i >> 1 else QL)
                if i == 1: A.I("v_cmp_lt_f32", "vcc", s(sBIG), v(ri + 2))
            if fb < 0: fbr()
        def norm1():
            self.fl(10)
            A.label(lnorm)
            A.I("v_rcp_f32_dpp", v(ri), v(LA), mods=QH)
            for t in range(2):
                r = OA + 4 * t
                for i in range(4): A.I("v_mul_f32_dpp", v(r + i), v(r + i), v(ri), mods=QH)
                for i in range(2): A.I("v_cvt_pk_bf16_f32", v(OF[0] + 2 * t + i), v(r + 2 * i), v(r + 2 * i + 1))
                if nrm == 2: self.ds("ow", "ds_write_b64", v(vOR), v(OF[0] + 2 * t, 2), mods=self.off(OI + w * 512 + 8 * t))
            if nrm == 1: self.ds("ow", "ds_write_b128", v(vOR), v(OF[0], 4), mods=self.off(OI + w * 512))
            self.fl(11)
        def norm3():
            self.fl(10)
            A.label(lnorm)
            A.I("v_rcp_f32_dpp", v(ri), v(LA), mods=QH)
            for i in range(4): A.I("v_mul_f32_dpp", v(OA + i), v(OA + i), v(ri), mods=QH)
            for i in range(2): A.I("v_cvt_pk_bf16_f32", v(OA + i), v(OA + 2 * i), v(OA + 2 * i + 1))
            R_ = OA + 4
            for i in range(2): A.I("v_pk_mul_f32", v(R_ + 2 * i, 2), v(R_ + 2 * i, 2), v(ri, 2), mods="op_sel_hi:[1,0]")
            A.I("s_mov_b64", "exec", s(sOMASK, 2))
            for i in range(2): A.I("v_cvt_pk_bf16_f32", v(OA + i), v(R_ + 2 * i), v(R_ + 2 * i + 1))
            A.I("s_mov_b64", "exec", -1)
            self.ds("ow", "ds_write_b64", v(vOW), v(OA, 2), mods=self.off(OI + w * 512))
            self.fl(11)
            A.I("v_max_f32_dpp", v(ri + 2), v(LA), v(ri), mods=QH)
            A.I("v_cmp_lt_f32", "vcc", s(sBIG), v(ri + 2))
            for i in range(4): A.I("v_mov_b32_dpp", v(OF[0] + i), v(OA + (i & 1)), mods=QH if i >> 1 else QL)
            if "f" in X_: A.I("s_nop", 0)
            else: A.I("s_cbranch_vccnz", lfb)
        if nrm == 0: post[WO - 1] += [norm]
        elif nrm == 3: post[WO - 1] += [norm3]
        else:
            post[WO - 1] += [norm1]
            vals[WO] = [valu("v_max_f32_dpp", v(ri + 2), v(LA), v(ri), mods=QH)]
            vals[WO + 1] = [valu("v_cmp_lt_f32", "vcc", s(sBIG), v(ri + 2))]
            mems[WO + 2] += [valu("s_nop", 0) if "f" in X_ else valu("s_cbranch_vccnz", lfb)]
        def ool_smax():
            A.label(lfb)
            A.I("s_add_u32", s(sNRF), s(sNRF), 1)
            A.I("s_mov_b32", s(sBIG), "0x7f800000")
            A.I("s_waitcnt", "lgkmcnt(0)")
            A.I("s_sub_u32", s(sT0), s(sKXN), hex(32 * 8192 + 2048 * w))
            A.I("s_add_u32", s(sT1), s(sT0), 4096)
            A.nop(8)
            for i in range(8):
                A.I("buffer_load_dwordx4", v(K0 + 4 * i, 4), v(vL16), s(S_WS, 4), s(sT1 if i > 3 else sT0), mods=self.mods("offen", self.off((i & 3) * 1024)))
            for i in range(4):
                A.I("ds_read_b128", v(X + 4 * i, 4), v(vXR), mods=self.off(XI + 1024 * i))
            for i in range(16): A.I("v_mov_b32", v(vWA + i), 0)
            A.I("s_waitcnt", "vmcnt(0) lgkmcnt(0)")
            for x in ST[SC:PV]: x[0]()
            tm, tt = 84, 85
            A.I("v_max3_f32", v(tm), v(D0), v(D0 + 1), v(D0 + 2))
            A.I("v_max3_f32", v(tm), v(tm), v(D0 + 3), v(D1))
            A.I("v_max3_f32", v(tm), v(tm), v(D1 + 1), v(D1 + 2))
            A.I("v_max3_f32", v(tm), v(tm), v(D1 + 3), v(DM_))
            A.I("v_max_f32", v(tm), v(tm), v(DM_ + 1))
            for b in (32, 16):
                A.I("v_mov_b32", v(tt), v(tm))
                A.I(f"v_permlane{b}_swap_b32", v(tt), v(tm))
                A.I("v_max_f32", v(tm), v(tt), v(tm))
            rs = [D0, D0 + 1, D0 + 2, D0 + 3, D1, D1 + 1, D1 + 2, D1 + 3, DM_, DM_ + 1]
            for r in rs: A.I("v_sub_f32", v(r), v(r), v(tm))
            for r in rs: A.I("v_exp_f32", v(r), v(r))
            for i in range(5): A.I("v_cvt_pk_bf16_f32", v(PX + i if i < 4 else PM), v(rs[2 * i]), v(rs[2 * i + 1]))
            for x in ST[PV:WO]: x[0]()
            self.lq = []
            for f in ((2, 3, 0), (2, 3, 1), (3, 1, 0), (3, 1, 1), (3, 2, 0), (3, 3, 0), (3, 3, 1)): woread(*f)
            A.I("s_waitcnt", "lgkmcnt(0)")
            A.barrier_haz()
            A.I("s_branch", lnorm)
        self.ool.append(ool_smax)
        ob = WO + opt('obar', 1); od = ob + opt('ord', 0)
        if self.kreg and opt('kbd', False): mems[ob - 1] += [lambda: self.needv("kk")]
        mems[ob] += keep(opt('kd', 0)) + [none if 'D' in nw else nl("ow"), bar, FL(12)]
        o1 = opt('ord1', 3)
        rdD = [oread(j) for j in (1, 2, 3)]
        mems[od] += rdD[:o1]; mems[od + 1] += rdD[o1:]
        mems[WO + 4] += [FL(13)]
        for j in range(WO - 1, od): mems[j].append(none)
        def pack(T):
            g = G[T >> 1] + (T & 1); r = vWA + 4 * T
            L = [valu("v_cvt_pk_bf16_f32", v(g), v(r), v(r + 2)), valu("v_cvt_pk_bf16_f32", v(g + 2), v(r + 1), v(r + 3))]
            if not T & 1: L.insert(1, valu("v_and_or_b32", v(g), v(g), -2, s(sTAG)))
            return L
        def pstore(jj): self.vm("p", "buffer_store_dwordx4", v(G[jj], 4), v(vPBST), s(S_WS, 4), s(sPBST + jj), mods=self.mods("offen", sc or opt('pmod', '')))
        W4 = WO + 4
        place(vals, pack(0), W4 + 4)
        vals[W4 + 7] += pack(1)
        mems[W4 + 8] += [lambda: pstore(0), FL("h5")]
        p2 = pack(2)
        vals[W4 + 10] += p2[:1]; vals[W4 + 11] += p2[1:] + pack(3)
        post[N - 1] += [lambda: pstore(1)]
        wlo = opt('wlo', 0)
        for j in range(cr, xe + opt('xgap', 0)): mems[j].append(none)
        for j in opt('wno', tuple(range(SC + 5, PV + 3)) + (xq - 1, xk, NS - 1, SC)): mems[j].append(none)
        for f, fs in sorted(wfirst.items(), key=lambda x: x[1]):
            j = place(mems, [W(*f)], max(fs, O1 + 4))
            assert j + 3 <= WO + worder.index(f[:2]), (f, j)
        mems[WO + 3] += keep(opt('ke', 0))
        mems[5] += keep(opt('kb', 0))
        if opt('fill', True): A.fill = v(vOW)
        for i, (x, deps) in enumerate(ST):
            for d in deps: self.needl(d)
            if i or not spec: x()
            if self.kw.get('pslot') == i: self.fl("h3")
            for m in mems[i]: m()
            if i + 1 < N and i != WO - 1:
                for d in reversed(ST[i + 1][1]): self.needl(d)
            for x in vals[i]: x()
            for x in post[i]: x()
        A.fill = None
        self.fl(14)
        if self.flog:
            self.fl_collect(14); self.lq = []; self.vq.append("log")
        def pad16(n):
            for _ in range(n):
                A.I("v_mov_b32", v(t0), 0); A.nop(3)
        junk = []
        for r, inc in ((sKXN, 32 * 8192), (sVXN, 32 * 8192), (sKM, 32 * 4096)):
            junk.append(valu("s_add_u32", s(r), s(r), hex(inc)))
        junk.append(valu("s_add_u32", s(sMBLD), s(sMBST), 1024 * w))
        junk.append(valu("s_add_u32", s(sMBLD2), s(sMBLD), 4096))
        for j in range(2): junk.append(valu("s_xor_b32", s(sPBST + j), s(sPBST + j), hex(PBPAR)))
        junk.append(valu("s_mov_b32", s(sBIG), f2h(2.0 ** self.kw.get('bigexp', 20))))
        if w == 0: junk.append(valu("v_mov_b32", v(vFLG), s(sSTEP)))
        junk.append(valu("s_add_u32", s(sSTEP), s(sSTEP), 1))
        if w >= WE: junk += [valu("v_cndmask_b32", v(SEL + d), 0, v(vSEL), s(self.sSEL + 2 * d, 2)) for d in range(4)]
        junk += [valu("v_mov_b32", v(r), 0) for r in range(vQK, vQK + 24) if w < WE or not (vQK if rg else vVA) <= r < vVA + 6]
        pf = self.prefetch_items()
        if self.kreg:
            kb = [] if opt('kbd', False) else [lambda: self.needv("kk"), bar]
            pf = kb + pf + self.kreads() if opt('kb0', True) else pf + kb + self.kreads()
        def tail():
            A.I("s_add_u32", s(sMBST), s(sMBST), 8192)
            assert (WS_MB + self.wo) & 0xffff == 0
            A.I("s_bitset0_b32", s(sMBST), 15)
            A.I("s_xor_b32", s(sRST), s(sMBST), 16384)
            A.I("s_xor_b32", s(sPBLD), s(sPBLD), hex(PBPAR))
            A.I("s_xor_b32", s(sPBLD2), s(sPBLD), 1024)
            A.I("s_bfe_u32", s(sTAG), s(sSTEP), hex(0x10001))
        if w < WE:
            if opt('pf1', self.kreg): junk, pf = pf, junk
            for x in junk: x()
            pad16(opt('wpre', 0))
            for x in pf: x()
            tail()
            if self.kvcheck:
                A.I("s_add_u32", s(sT1), s(sSTEP), 6 if opt('pfk', 0) else 5)
                A.I("s_lshr_b32", s(sT1), s(sT1), 2)
                A.I("s_min_u32", s(sT1), s(sT1), 16)
                A.I("s_bfm_b32", s(sNEED), s(sT1), 0)
                lkv = A.newlabel("kvw"); lkb = A.newlabel("kvb")
                self.needv("kvf")
                A.I("v_cmp_eq_u32", "vcc", 0, v(vDUM))
                A.I("s_and_b64", "vcc", "vcc", s(sNEED, 2))
                A.I("s_cbranch_scc1", lkv)
                A.label(lkb)
                def ool_kv():
                    A.label(lkv)
                    self.retry_head(sNRF, lkb)
                    A.I("s_sleep", 4)
                    A.I("buffer_load_dword", v(vDUM), v(vL4), s(S_WS, 4), s(sKVF), mods="offen sc1")
                    A.I("s_waitcnt", "vmcnt(0)")
                    A.I("v_cmp_eq_u32", "vcc", 0, v(vDUM))
                    A.I("s_and_b64", "vcc", "vcc", s(sNEED, 2))
                    A.I("s_cbranch_scc1", lkv)
                    A.I("s_branch", lkb)
                self.ool.append(ool_kv)
            pad16(opt('wpad', 20) - (7 if self.flog else 0))
            A.I("s_waitcnt", "lgkmcnt(0)")
            A.I("s_branch", LTOP)
            return
        def rloads(mod, track=True, RL=RL, t="r"):
            for m in range(4):
                (self.vm if track else untracked)(f"{t}{m}", "buffer_load_dwordx4", v(RL[m], 4), v(vL16), s(S_WS, 4), s(sPBLD2 if m & 1 else sPBLD),
                        mods=self.mods("offen", self.off((m & 2) * 1024), mod))
        rp = self.rp[w - WE] - (25 if self.flog else 0)
        npf = len(pf) - 16 + opt('rpf', 0 if self.kreg else 16)
        junk = pf[:npf] + junk
        junk += [valu("v_mov_b32", v(tc), 0)] * max(0, rp + 1 - len(junk))
        junk = junk[:rp] + pf[npf:] + junk[rp:]
        RB = [vQK + 4 * m for m in range(4)]
        if rg: junk += [valu("v_mov_b32", v(tc), 0)] * max(0, rp + rg[w - WE] + 1 - len(junk))
        for i, x in enumerate(junk):
            if i == rp: self.fl("h6"); rloads(self.pollmod)
            if rg and i == rp + rg[w - WE]: rloads(opt('bmod', "sc1"), True, RB, "b")
            x()
        lrl = A.newlabel("rl"); lrs = A.newlabel("rslow"); lrg = A.newlabel("rgo")
        if early3:
            for _ in range(opt('e3pad', 0)): A.I("v_mov_b32", v(tc), 0)
            if opt('e3pos', 0) == 0: self.fl("h7"); mload(0, self.pollmod, "f0n")
        if rg: A.label(lrl)
        for m in range(4):
            self.needv(f"r{m}")
            if m == 0 and early3 and opt('e3pos', 0) == 1: self.fl("h7"); mload(0, self.pollmod, "f0n")
            if m == 0 and not rg: A.label(lrl)
            A.I(MF, v(RD, 4), v(RL[m], 4), v(SEL, 4), 0 if m == 0 else v(RD, 4))
            A.I("v_xor_b32", v(tc + (m > 0)), s(sTAG), v(RL[m]))
            if m: A.I("v_or_b32", v(tc), v(tc), v(tc + 1))
        self.fl("h8")
        A.I("v_and_b32", v(tc), 1, v(tc))
        A.I("v_cmp_ne_u32", "vcc", 0, v(tc))
        if not nochk: A.I("s_cbranch_vccnz", lrs)
        A.label(lrg)
        A.I("v_permlane32_swap_b32", v(RD), v(RD + 2))
        A.I("v_permlane32_swap_b32", v(RD + 1), v(RD + 3))
        A.I("v_pk_add_f32", v(RD, 2), v(RD, 2), v(RD + 2, 2))
        A.I("s_mov_b64", "exec", s(sRMASK, 2))
        A.I("v_cvt_pk_bf16_f32", v(SEL), v(RD), v(RD + 1))
        A.I("v_min_u32", v(SEL), "0xfffffffe", v(SEL))
        A.I("buffer_store_dword", v(SEL), v(vMST), s(S_WS, 4), s(sMBST), mods=self.mods("offen", sc or opt('mmod', '')))
        A.I("s_mov_b64", "exec", -1)
        self.fl(15)
        def ool_r():
            A.label(lrs)
            rloads("sc1", False)
            self.retry_head(sNRR, lrg)
            if rg:
                for m in range(4):
                    A.I("s_waitcnt", f"vmcnt({7 - m})")
                    A.I(MF, v(RD, 4), v(RB[m], 4), v(SEL, 4), 0 if m == 0 else v(RD, 4))
                    A.I("v_xor_b32", v(tc + (m > 0)), s(sTAG), v(RB[m]))
                    if m: A.I("v_or_b32", v(tc), v(tc), v(tc + 1))
                self.fl("h8")
                A.I("v_and_b32", v(tc), 1, v(tc))
                A.I("v_cmp_ne_u32", "vcc", 0, v(tc))
                A.I("s_cbranch_vccz", lrg)
                rloads("sc1", False, RB)
                A.I("s_add_u32", s(sNRR), s(sNRR), 1)
                A.I("s_branch", lrl)
                return
            A.I("s_waitcnt", "vmcnt(0)")
            A.I("s_branch", lrl)
        self.ool.append(ool_r)
        tail()
        A.I("s_waitcnt", "lgkmcnt(0)")
        A.I("s_branch", LTOP)

    def dump_timing(self):
        A = self.A
        A.I("s_lshl_b32", s(sT0), s(sH), 2)
        A.I("s_add_u32", s(sT0), s(sT0), s(sWV))
        A.I("s_lshl_b32", s(sT0), s(sT0), 7)
        A.I("s_add_u32", s(sT0), s(sT0), hex(WS_TS))
        regs = [sACC + i for i in range(16)] + [sNRM, sNRR, sNRF, self.sNRX]
        for i, r in enumerate(regs):
            A.I("v_mov_b32", v(1), s(r))
            A.I("buffer_store_dword", v(1), "off", s(S_WS, 4), s(sT0), mods=f"offset:{4*i}")

    def emit_ool(self):
        for f in self.ool:
            self.A.reset_haz()
            f()
        self.ool = []
```

```python
S, DM, H, DH, M, SEG, NSEG, FF = 2048, 512, 32, 128, 8, 32, 64, 1792

WS_CTRL = 0x0
CT_PROG = 0x1000
CT_F1   = 0x2000
CT_F2   = 0x4000
CT_KEY  = 0x6000
CT_F4   = 0x8000
CT_F2F  = 0x8800
CT_KEYE = 0x8C00
CT_THR  = 0x8F00
CT_SIZE = 0x9000
LATE    = 60
WS_MB   = 0x10000
WS_PB   = 0x100000
WS_KM   = 0x240000
WS_VM   = 0xA80000
WS_KX   = 0x1000000
WS_VX   = 0x2000000
WS_QX   = 0x3000000
WS_PO   = 0x4000000
WS_H    = 0x6000000
WS_HN   = 0x6200000
WS_KEY  = CT_KEY
WS_FY   = 0x6410000
NFW = 56
WS_TS   = 0x8000000

def tok_of_row(c):
    return 2 * (c >> 2) + (c & 1)
def half_of_row(c):
    return (c >> 1) & 1

def d_of(kappa, k):
    return 128 * (k >> 4) + 64 * (kappa >> 2) + 16 * ((k >> 2) & 3) + 4 * (kappa & 3) + (k & 3)

def e_of(kp, k):
    gA, p, gp, b = k >> 4, (k >> 2) & 3, (k >> 1) & 1, k & 1
    return 64 * kp + 32 * (gA >> 1) + 16 * (p >> 1) + 8 * (gA & 1) + 4 * gp + 2 * (p & 1) + b

def feat_of(ks, g, j):
    return 32 * ks + 16 * (j & 1) + 4 * g + (j >> 1)

def key_of(g, j):
    return 16 * (j >> 2) + 4 * g + (j & 3)
```

```python
from asmgen import *
from layout import *
from common import *

S_WS = 8; S_X = 12; S_W = 16
sRB, sWV, sCG, sU = 20, 21, 22, 23
sDH = 24
sOUT = 25
sT0, sT1, sT2 = 26, 27, 28
sW1K = 29
sPQ, sPK, sPV, sPO = 60, 62, 64, 66
sNU, sSTR = 36, 37
sM = 38
sMD = 39
sPF = 40
sPASS = 41
sOUTP = 44
sFW = 45
sROT, sDH4 = 30, 52

vACC = 0; vWB = 64; vTR = 128; vDMA = 136; vL16 = 137; vT = 138; vXO = 139
MF = "v_mfma_f32_16x16x32_bf16"

def pointers(A):
    A.I("s_load_dwordx8", s(sPQ, 8), s(0, 2), 16)
    A.I("s_load_dwordx2", s(S_X, 2), s(0, 2), 0)
    A.I("s_waitcnt", "lgkmcnt(0)")

class Phase1:
    def __init__(self, A, tag="p1", xt=False, rot=False, spread=None, wfrom=0, xdrop=None, rr=None, trickle=0):
        self.A = A; self.tag = tag; self.xt = xt; self.rot = rot; self.spread = spread; self.wfrom = wfrom; self.xdrop = xdrop; self.rr = rr; self.trickle = trickle

    def setup(self):
        A = self.A
        L, G, C, T, U, R = 144, 145, 146, 147, 148, 149
        A.I("s_and_b32", s(S_X + 1), s(S_X + 1), "0xffff")
        A.I("s_mov_b32", s(S_X + 2), hex(2 << 20))
        A.I("s_mov_b32", s(S_X + 3), "0x20000")
        A.I("v_lshrrev_b32", v(T), 6, v(0))
        A.I("v_readfirstlane_b32", s(sWV), v(T))
        A.I("v_and_b32", v(L), 63, v(0))
        A.I("v_lshrrev_b32", v(G), 4, v(L))
        A.I("v_and_b32", v(C), 15, v(L))
        A.I("v_lshrrev_b32", v(R), 2, v(C))
        A.I("v_lshlrev_b32", v(vL16), 4, v(L))
        A.I("s_lshl_b32", s(sW1K), s(sWV), 10)
        A.I("s_lshl_b32", s(sT0), s(sRB), 7)
        A.I("s_lshl_b32", s(sT1), s(sWV), 5)
        A.I("s_add_u32", s(sT0), s(sT0), s(sT1))
        A.I("v_add_u32", v(T), s(sT0), v(C))
        A.I("v_lshlrev_b32", v(T), 10, v(T))
        A.I("v_lshl_add_u32", v(vXO), v(G), 4, v(T))
        if self.xt:
            A.I("s_lshl_b32", s(sT0), s(sRB), 2)
            A.I("s_and_b32", s(sT1), s(sCG), 3)
            A.I("s_add_u32", s(sT0), s(sT0), s(sT1))
            A.I("s_lshl_b32", s(sT0), s(sT0), 15)
            A.I("v_lshlrev_b32", v(T), 7, v(0))
            A.I("buffer_load_dword", v(143), v(T), s(S_X, 4), s(sT0), mods="offen")
        if self.rot:
            for j in range(4):
                A.I("s_add_u32", s(sROT + j), s(sCG), j)
                A.I("s_and_b32", s(sROT + j), s(sROT + j), 3)
                A.I("s_lshl_b32", s(sROT + j), s(sROT + j), 8)
        for tt in range(2):
            if not self.rot: A.I("s_mov_b32", s(sT0), hex(tt * 16 * 1024))
            for ks in range(16):
                if self.rot and ks & 3 == 0: A.I("s_add_u32", s(sT0), s(sROT + (ks >> 2)), hex(tt * 16 * 1024))
                A.I("buffer_load_dwordx4", v(64 * tt + 4 * ks, 4), v(vXO), s(S_X, 4), s(sT0), mods=mods("offen", off(64 * (ks & 3 if self.rot else ks))))
        if self.rot:
            for j in range(4): A.I("s_lshl_b32", s(sROT + j), s(sROT + j), 12)
        A.I("s_lshr_b32", s(sT0), s(sWV), 1)
        A.I("s_lshl_b32", s(sT0), s(sT0), 2)
        A.I("v_or_b32", v(U), s(sT0), v(G))
        A.I("v_lshlrev_b32", v(U), 1, v(U))
        A.I("v_xor_b32", v(U), v(U), v(C))
        A.I("v_lshlrev_b32", v(U), 4, v(U))
        A.I("s_lshl_b32", s(sT0), s(sWV), 2)
        A.I("v_add_u32", v(T), s(sT0), v(G))
        A.I("v_lshl_add_u32", v(vDMA), v(T), 13, v(U))
        A.I("v_lshl_add_u32", v(T), v(G), 3, v(R))
        A.I("v_lshlrev_b32", v(T), 8, v(T))
        A.I("v_and_b32", v(U), 1, v(G))
        A.I("v_lshl_or_b32", v(U), v(U), 2, v(R))
        A.I("v_lshl_add_u32", v(T), v(U), 5, v(T))
        A.I("v_and_b32", v(U), 3, v(C))
        A.I("v_lshl_add_u32", v(vTR), v(U), 3, v(T))
        for p in range(1, 8):
            A.I("v_xor_b32", v(vTR + p), p << 5, v(vTR))
        A.I("s_mov_b32", s(S_W + 3), "0x20000")

    def warm(self, when):
        A = self.A
        if when not in self.warmat: return 0
        sid = self.warm_id
        A.I("v_lshlrev_b32", v(vT), 2, v(vL16))
        if self.wfrom:
            A.I("v_lshlrev_b32", v(vT), 3, v(vL16))
            A.I("s_sub_u32", s(sT0), s(sid), self.wfrom)
            A.I("s_lshl_b32", s(sT0), s(sT0), 2)
            A.I("s_add_u32", s(sT0), s(sT0), s(sWV))
            A.I("s_min_u32", s(sT0), s(sT0), 512)
            A.I("s_lshl_b32", s(sT0), s(sT0), 13)
            A.I("s_cmp_eq_u32", s(sPASS), 0)
            A.I("s_cselect_b32", s(6), hex(4 << 20), 0)
            A.I("s_mov_b32", s(7), "0x20000")
            for m in self.warmat[when]:
                pp = (sPQ, sPK, sPV, sPO)[m]
                A.I("s_mov_b32", s(4), s(pp))
                A.I("s_and_b32", s(5), s(pp + 1), "0xffff")
                A.I("buffer_load_dword", v(143), v(vT), s(4, 4), s(sT0), mods="offen")
            return len(self.warmat[when])
        A.I("s_mul_i32", s(sT0), s(sid), 18752)
        A.I("s_mul_i32", s(sT1), s(sWV), 4736)
        A.I("s_add_u32", s(sT0), s(sT0), s(sT1))
        A.I("s_add_u32", s(sT1), s(sT0), 4096)
        A.I("s_cmp_eq_u32", s(sPASS), 0)
        A.I("s_cselect_b32", s(6), hex(4 << 20), 0)
        A.I("s_mov_b32", s(7), "0x20000")
        for m in self.warmat[when]:
            pp = (sPQ, sPK, sPV, sPO)[m]
            A.I("s_mov_b32", s(4), s(pp))
            A.I("s_and_b32", s(5), s(pp + 1), "0xffff")
            A.I("buffer_load_dword", v(143), v(vT), s(4, 4), s(sT0), mods="offen")
            A.I("s_mov_b32", "exec_lo", "0x3ff")
            A.I("s_mov_b32", "exec_hi", 0)
            A.I("buffer_load_dword", v(143), v(vT), s(4, 4), s(sT1), mods="offen")
            A.I("s_mov_b64", "exec", -1)
        return 2 * len(self.warmat[when])

    def dma_unit(self):
        A = self.A
        A.I("s_lshr_b32", s(sT0), s(sMD), 5)
        A.I("s_cmp_eq_u32", s(sT0), 0)
        A.I("s_cselect_b64", s(S_W, 2), s(sPK, 2), s(sPQ, 2))
        A.I("s_cmp_eq_u32", s(sT0), 1)
        A.I("s_cselect_b64", s(S_W, 2), s(sPV, 2), s(S_W, 2))
        A.I("s_and_b32", s(S_W + 1), s(S_W + 1), "0xffff")
        A.I("s_cmp_lt_u32", s(sMD), 96)
        A.I("s_cselect_b32", s(S_W + 2), hex(4 << 20), 0)
        A.I("s_and_b32", s(sDH), s(sMD), 31)
        A.I("s_lshl_b32", s(sDH), s(sDH), 8)
        if self.rot:
            for j in range(4): A.I("s_add_u32", s(sDH4 + j), s(sDH), s(sROT + j))

    def dma_one(self, a_, i):
        A = self.A
        if self.rot: A.I("s_add_u32", s(sT0), s(sDH4 + a_), hex(16 * i * 8192))
        else: A.I("s_add_u32", s(sT0), s(sDH), hex((128 * a_ + 16 * i) * 8192))
        A.I("s_add_u32", "m0", s(sW1K), hex(a_ * 32768 + 4 * i * 1024))
        A.I("buffer_load_dwordx4", v(vDMA), s(S_W, 4), s(sT0), mods="offen lds")

    def dma_chunk(self, a_):
        for i in range(8): self.dma_one(a_, i)

    def layernorm(self, between):
        A = self.A
        S_, Q, MB, DMn, T, ONE = 150, 152, 154, 156, 157, 158
        F = 160
        A.I("v_mov_b32", v(ONE), "0x3f803f80")
        n = self.warm(0)
        todo = []; cnt = [0]; late = [0]
        if self.spread:
            self.dma_unit()
            todo = [(a_, i) for a_ in range(3) for i in range(8)]
        class V:
            def I(_, *x, **k):
                A.I(*x, **k)
                cnt[0] += 1
                if cnt[0] in self.warmat and cnt[0] > 2: late[0] += self.warm(cnt[0])
                if todo and cnt[0] >= self.spread[0] and (cnt[0] - self.spread[0]) % self.spread[1] == 0:
                    self.dma_one(*todo.pop(0)); late[0] += 1
        V = V()
        for tt in range(2):
            RAW = 64 * tt
            A.I("s_waitcnt", f"vmcnt({16 * (1 - tt) + n + late[0]})")
            if tt == 0: ts(A, 12, dyn=sPASS); n += self.warm(1)
            if tt == 1: self.warm(2)
            if tt == 1 and not self.spread: between()
            A.I("v_pk_mov_b32", v(S_, 2), 0, 0)
            A.I("v_pk_mov_b32", v(Q, 2), 0, 0)
            for i in range(64):
                V.I("v_dot2_f32_bf16", v(S_ + (i & 1)), v(RAW + i), v(ONE), v(S_ + (i & 1)))
                V.I("v_dot2_f32_bf16", v(Q + (i & 1)), v(RAW + i), v(RAW + i), v(Q + (i & 1)))
            A.I("v_add_f32", v(S_), v(S_), v(S_ + 1))
            A.I("v_add_f32", v(Q), v(Q), v(Q + 1))
            xor_reduce(A, "v_add_f32", S_, T)
            xor_reduce(A, "v_add_f32", Q, T)
            ln_mean(A, S_, MB, DMn)
            ln_rinv(A, Q, S_, T)
            for i0 in range(0, 64, 8):
                R8 = range(i0, i0 + 8)
                for i in R8:
                    f = F + 2 * (i - i0)
                    V.I("v_lshlrev_b32", v(f), 16, v(RAW + i))
                    V.I("v_and_b32", v(f + 1), "0xffff0000", v(RAW + i))
                for i in R8:
                    f = F + 2 * (i - i0)
                    V.I("v_pk_add_f32", v(f, 2), v(f, 2), v(MB, 2), mods="op_sel_hi:[1,0] neg_lo:[0,1] neg_hi:[0,1]")
                for i in R8:
                    f = F + 2 * (i - i0)
                    V.I("v_cvt_pk_bf16_f32", v(RAW + i), v(f), v(f + 1))
                for i in R8:
                    f = F + 2 * (i - i0)
                    V.I("v_lshlrev_b32", v(f), 16, v(RAW + i))
                    V.I("v_and_b32", v(f + 1), "0xffff0000", v(RAW + i))
                for i in R8:
                    f = F + 2 * (i - i0)
                    V.I("v_pk_mul_f32", v(f, 2), v(f, 2), v(Q, 2), mods="op_sel_hi:[1,0]")
                for i in R8:
                    f = F + 2 * (i - i0)
                    V.I("v_cvt_pk_bf16_f32", v(f), v(f), v(f + 1))
                for i in R8:
                    V.I("v_accvgpr_write_b32", a(tt * 64 + i), v(F + 2 * (i - i0)))
        assert not todo

    def wread(self, a_, ksl, buf, n):
        p, q = n >> 1, n & 1
        self.A.I("ds_read_b64_tr_b16", v(vWB + buf * 32 + 4 * p + 2 * q, 2), v(vTR + p),
                 mods=off((a_ & 1) * 32768 + ksl * 8192 + q * 1024))

    def unit(self, isV):
        A = self.A
        for a_ in range(4):
            A.I("s_waitcnt", "vmcnt(16)")
            A.I("s_barrier")
            for n in range(14):
                self.wread(a_, 0, 0, n)
            if self.trickle:
                A.I("buffer_load_dword", v(143), v(142), s(4, 4), s(sFW), mods="offen")
                A.I("s_add_u32", s(sFW), s(sFW), 64 * self.trickle)
            if a_ == 2 and self.flags:
                self.pending_flag()
            if a_ == 1:
                A.I("s_add_u32", s(sMD), s(sMD), s(sSTR))
                self.dma_unit()
            stream = [(k, n) for k in range(4) for n in range(16)][14:]
            for ksl in range(4):
                ks = a_ * 4 + ksl
                for p in range(8):
                    done_needed = ksl * 16 + 2 * p + 2
                    issued = 64 - len(stream)
                    A.I("s_waitcnt", f"lgkmcnt({issued - done_needed})")
                    for tau in range(2):
                        acc = v(vACC + (p * 2 + tau) * 4, 4)
                        W = v(vWB + (ksl & 1) * 32 + 4 * p, 4); X = a((tau * 16 + ks) * 4, 4)
                        A.I(MF, acc, X if isV else W, W if isV else X, 0 if ks == 0 else acc)
                        if stream:
                            k2, n2 = stream.pop(0)
                            self.wread(a_, k2, k2 & 1, n2)
                    if ksl == 0:
                        self.dma_one((a_ + 3) & 3, p)
            if a_ & 1:
                for p in range(8):
                    A.I("v_xor_b32", v(vTR + p), hex(0x10000), v(vTR + p))
        G = 144
        for x in range(8):
            g = G + 4 * (x & 3)
            if isV:
                t0 = vACC + (x * 2) * 4; t1 = t0 + 4
            else:
                tau, kk = x >> 2, x & 3
                t0 = vACC + ((2 * kk) * 2 + tau) * 4; t1 = t0 + 8
            if isV:
                A.I("v_cvt_pk_bf16_f32", v(g), v(t0), v(t0 + 1))
                A.I("v_cvt_pk_bf16_f32", v(g + 1), v(t0 + 2), v(t0 + 3))
                A.I("v_cvt_pk_bf16_f32", v(g + 2), v(t1), v(t1 + 1))
                A.I("v_cvt_pk_bf16_f32", v(g + 3), v(t1 + 2), v(t1 + 3))
            else:
                for i in range(4): A.I("v_cvt_pk_bf16_f32", v(g + i), v(t0 + i), v(t1 + i))
            if x == 4: A.I("s_add_u32", s(sOUT), s(sOUT), 4096)
            A.I("buffer_store_dwordx4", v(g, 4), v(vL16), s(S_WS, 4), s(sOUT), mods=mods("offen", off((x & 3) * 1024), self.stmod))

    def pending_flag(self):
        A = self.A
        l = A.newlabel("nopf")
        A.I("s_cmp_eq_u32", s(sPF), 0)
        A.I("s_cbranch_scc1", l)
        if self.pre_flag: self.pre_flag()
        set_flag(A, S_WS, s(sPF), vT)
        A.I("s_mov_b32", s(sPF), 0)
        if self.rr:
            sh, mod, lim = self.rr
            A.I("s_cmp_ge_u32", s(sOUTP), hex(lim << 24))
            A.I("s_cbranch_scc1", l)
            A.I("v_lshlrev_b32", v(vT), sh - 4, v(vL16))
            for i in range(128 >> sh): A.I("buffer_load_ubyte", v(143), v(vT), s(S_WS, 4), s(sOUTP), mods=mods("offen", off(4095 * i), mod))
        A.label(l)

    def out_base(self):
        A = self.A
        A.I("s_lshr_b32", s(sT0), s(sM), 5)
        A.I("s_add_u32", s(sT1), s(sT0), 1)
        A.I("s_lshl_b32", s(sOUT), s(sT1), 24)
        A.I("s_lshl_b32", s(sT1), s(sRB), 2)
        A.I("s_add_u32", s(sT1), s(sT1), s(sWV))
        A.I("s_lshl_b32", s(sT1), s(sT1), 5)
        A.I("s_and_b32", s(sT2), s(sM), 31)
        A.I("s_add_u32", s(sT1), s(sT1), s(sT2))
        A.I("s_lshl_b32", s(sT1), s(sT1), 13)
        A.I("s_add_u32", s(sOUT), s(sOUT), s(sT1))
        if self.xdrop is not None:
            A.I("s_cmp_ge_u32", s(sRB), self.xdrop)
            A.I("s_cselect_b32", s(sT1), "0x7ff00000", s(sOUT))
            A.I("s_cmp_eq_u32", s(sPASS), 0)
            A.I("s_cselect_b32", s(sOUT), s(sT1), s(sOUT))

    def body(self, stmod="", flags=False, pre_flag=None, warm_id=None, next_pass=None, warm={}, unit_top=None, after_ln=None, sent=False):
        A = self.A
        self.stmod = stmod
        self.flags = flags
        self.pre_flag = pre_flag
        self.warm_id = warm_id; self.warmat = warm
        assert WS_KX == 1 << 24 and WS_VX == 2 << 24 and WS_QX == 3 << 24
        A.I("s_mov_b32", s(sPF), 0)
        A.I("s_mov_b32", s(80), 0)
        A.I("s_mov_b32", s(sU), 0)
        LP = f"L_{self.tag}_pass"
        A.label(LP)
        A.reset_haz()
        if next_pass: restore_tid(A)
        self.setup()
        A.I("s_mov_b32", s(sM), s(sCG))
        A.I("s_mov_b32", s(sMD), s(sCG))
        def between():
            self.dma_unit()
            for a_ in range(3):
                self.dma_chunk(a_)
        self.layernorm(between)
        if after_ln: after_ln()
        if self.trickle:
            A.I("s_load_dwordx4", s(48, 4), s(0, 2), 72)
            A.I("s_load_dwordx2", s(4, 2), s(0, 2), 88)
            A.I("v_lshlrev_b32", v(142), 2, v(vL16))
            A.I("v_cmp_gt_u32", "vcc", 64 * self.trickle, v(142))
            A.I("v_mov_b32", v(141), "0x7ffffff0")
            A.I("v_cndmask_b32", v(142), v(141), v(142), "vcc")
            A.I("s_lshl_b32", s(sFW), s(warm_id), 13)
            A.I("s_waitcnt", "lgkmcnt(0)")
            for i in range(2):
                A.I("s_cmp_eq_u32", s(sWV), i)
                A.I("s_cselect_b64", s(4, 2), s(48 + 2 * i, 2), s(4, 2))
            A.I("s_and_b32", s(5), s(5), "0xffff")
            A.I("s_cmp_eq_u32", s(sWV), 3)
            A.I("s_cselect_b32", s(6), 0, 512 * 3584)
            A.I("s_cmp_eq_u32", s(sPASS), 0)
            A.I("s_cselect_b32", s(6), 0, s(6))
            A.I("s_mov_b32", s(7), "0x20000")
        ts(A, 10, dyn=sPASS)
        LU = f"L_{self.tag}_unit"; LV = f"L_{self.tag}_v"; LN = f"L_{self.tag}_next"; LE = f"L_{self.tag}_end"
        A.barrier_haz()
        A.label(LU)
        A.reset_haz()
        A.I("s_cmp_ge_u32", s(sM), 96)
        A.I("s_cbranch_scc1", LE)
        if unit_top: unit_top()
        self.out_base()
        A.I("s_lshr_b32", s(sT0), s(sM), 5)
        A.I("s_cmp_eq_u32", s(sT0), 1)
        A.I("s_cbranch_scc1", LV)
        self.unit(False)
        A.I("s_branch", LN)
        A.label(LV)
        A.reset_haz()
        self.unit(True)
        if sent:
            A.I("s_cmp_lg_u32", s(sRB), 15)
            A.I("s_cbranch_scc1", LN)
            for i in range(4): A.I("v_mov_b32", v(vACC + i), -1)
            A.I("s_sub_u32", s(sT0), s(sOUT), hex(WS_VX + 4096))
            A.I("s_lshr_b32", s(sT0), s(sT0), 1)
            A.I("s_add_u32", s(sT0), s(sT0), hex(WS_KM))
            for i in range(4): A.I("buffer_store_dwordx4", v(vACC, 4), v(vL16), s(S_WS, 4), s(sT0), mods=mods("offen", off(1024 * i), stmod))
            A.nop(2)
        A.label(LN)
        ts(A, 40, dyn=80)
        A.I("s_add_u32", s(80), s(80), 1)
        if flags:
            A.I("s_lshl_b32", s(sPF), s(sM), 4)
            A.I("s_add_u32", s(sPF), s(sPF), s(sRB))
            A.I("s_lshl_b32", s(sPF), s(sPF), 2)
            A.I("s_add_u32", s(sPF), s(sPF), hex(WS_CTRL + CT_F1))
            A.I("s_sub_u32", s(sOUTP), s(sOUT), 4095)
        A.I("s_add_u32", s(sM), s(sM), s(sSTR))
        A.I("s_branch", LU)
        A.label(LE)
        A.reset_haz()
        A.I("s_waitcnt", "vmcnt(0)")
        A.I("s_barrier")
        if flags:
            self.pending_flag()
        ts(A, 14, dyn=sPASS)
        if next_pass: next_pass(LP)
```

```python
import math
from asmgen import *
from layout import *
from common import *

S_WS = 8; S_W = 12
sHP, sWV, sSEG, sSTR = 20, 21, 22, 23
sT0, sT1, sT2 = 24, 25, 26
sW1K = 27
sC1 = 28
sMASK = 30
sQ, sK, sV, sKM, sVM, sPO = 46, 47, 48, 49, 50, 51
sF2 = 52
sNEG = 53
sK2, sV2 = 54, 55
sLATE, sFAST = 81, 83

vQ = 0; vK = 16; vKMf = 48; vV = 64; vKV = 220; vVMB = 104
KSCR = 0x22000
vS = 112
vP = 124
vLA = 132; vONE = 136
vO = 140
vOF = 0
vACC = 172
vL16, vL8, vPOo, vOXW, vOXR, vT, vT2, vT3 = 240, 241, 242, 243, 244, 246, 247, 248
vKSW, vKSR = 253, 254
vPF = 245; vXR = 96
sHALF = 82
MF = "v_mfma_f32_16x16x32_bf16"; MF16 = "v_mfma_f32_16x16x16_bf16"

class Phase2:
    def __init__(self, A, tag="p2", ldmod="", stmod="", progmask=0xff, sl=(8, 2), kms=None, pol=None, smode=None, um=False, half=False, xr=False):
        self.um = um; self.half = half; self.xr = xr
        self.sl = sl; self.kms = kms; self.pol = pol; self.smode = smode
        self.progmask = progmask
        self.A = A; self.tag = tag; self.ldmod = ldmod; self.stmod = stmod

    def setup(self):
        A = self.A
        L, G, C, T, U, R = 1, 2, 3, 4, 5, 6
        srd(A, S_W, 40, 4 << 20)
        A.I("v_lshrrev_b32", v(T), 6, v(0))
        A.I("v_readfirstlane_b32", s(sWV), v(T))
        A.I("v_and_b32", v(L), 63, v(0))
        A.I("v_lshrrev_b32", v(G), 4, v(L))
        A.I("v_and_b32", v(C), 15, v(L))
        A.I("v_lshrrev_b32", v(R), 2, v(C))
        A.I("v_lshlrev_b32", v(vL16), 4, v(L))
        A.I("v_lshlrev_b32", v(vL8), 3, v(L))
        A.I("s_lshl_b32", s(sW1K), s(sWV), 10)
        A.I("s_lshl_b32", s(sT0), s(sWV), 5)
        A.I("v_xor_b32", v(T), s(sT0), v(vL16))
        A.I("v_add_u32", v(8), s(sW1K), v(T))
        A.I("v_xor_b32", v(9), 128, v(8))
        A.I("v_lshl_add_u32", v(T), v(G), 2, v(R))
        A.I("v_and_b32", v(U), 7, v(T))
        A.I("v_lshlrev_b32", v(T), 10, v(T))
        A.I("v_lshl_add_u32", v(T), v(U), 5, v(T))
        A.I("v_and_b32", v(U), 3, v(C))
        A.I("v_lshlrev_b32", v(U), 4, v(U))
        A.I("v_xor_b32", v(T), v(U), v(T))
        A.I("s_lshl_b32", s(sT0), s(sWV), 8)
        A.I("v_add_u32", v(10), s(sT0), v(T))
        for hh in range(2):
            if hh: A.I("s_barrier")
            A.I("s_lshl_b32", s(sT1), s(sHP), 18)
            for ks in range(4):
                for i in range(8):
                    A.I("s_add_u32", s(sT0), s(sT1), hex(hh * 131072 + (32 * ks + 4 * i) * 1024))
                    A.I("s_add_u32", "m0", s(sW1K), hex(ks * 32768 + 4 * i * 1024))
                    A.I("buffer_load_dwordx4", v(9 if i & 1 else 8), s(S_W, 4), s(sT0), mods="offen lds")
            A.I("s_waitcnt", "vmcnt(0)")
            A.I("s_barrier")
            for half in range(2):
                for t in range(8):
                    A.I("v_xor_b32", v(11), hex((t >> 1) << 6 | (t & 1) << 3 | half << 16), v(10))
                    for k2 in range(2):
                        ks = 2 * half + k2
                        for q in range(2):
                            A.I("ds_read_b64_tr_b16", a(((hh * 4 + ks) * 8 + t) * 4 + 2 * q, 2), v(11), mods=off(k2 * 32768 + q * 16384))
                    if t & 1: A.I("s_waitcnt", "lgkmcnt(0)")
        A.I("s_barrier")
        A.I("s_and_b32", s(sT0), s(sWV), 1)
        A.I("s_lshl_b32", s(sT0), s(sT0), 4)
        A.I("v_add_u32", v(T), s(sT0), v(C))
        A.I("v_lshlrev_b32", v(U), 2, v(G))
        A.I("v_sub_u32", v(T), v(T), v(U))
        for tau in range(2):
            for r in range(4):
                A.I("v_cmp_le_i32", s(sMASK + 2 * (tau * 4 + r), 2), 16 * tau + r, v(T))
        c1 = f2h((DH ** -0.5) * math.log2(math.e))
        A.I("s_mov_b32", s(sC1), c1)
        A.I("s_mov_b32", s(sC1 + 1), c1)
        A.I("s_mov_b32", s(sNEG), "0xff000000")
        for i in range(4):
            A.I("v_mov_b32", v(vONE + i), "0x3f803f80")
        A.I("v_lshlrev_b32", v(T), 10, v(C))
        A.I("v_lshl_add_u32", v(T), v(G), 4, v(T))
        A.I("s_lshl_b32", s(sT0), s(sWV), 8)
        A.I("v_add_u32", v(vPOo), s(sT0), v(T))
        A.I("s_lshl_b32", s(sT0), s(sWV), 12)
        A.I("v_add_u32", v(vOXW), s(sT0), v(vL16))
        A.I("v_mov_b32", v(vOXR), v(vL16))
        A.I("s_add_u32", s(sT0), s(sT0), hex(KSCR))
        A.I("v_xor_b32", v(7), v(G), v(R))
        A.I("v_lshl_add_u32", v(T), v(G), 4, v(7))
        A.I("v_and_b32", v(U), 3, v(C))
        A.I("v_lshl_add_u32", v(T), v(T), 2, v(U))
        A.I("v_lshl_add_u32", v(vKSW), v(T), 2, s(sT0))
        A.I("v_lshl_add_u32", v(T), v(C), 2, v(7))
        A.I("v_lshl_add_u32", v(vKSR), v(T), 4, s(sT0))

    def seg_addrs(self):
        A = self.A
        A.I("s_lshl_b32", s(sT0), s(sSEG), 5)
        A.I("s_lshl_b32", s(sT1), s(sHP), 1)
        A.I("s_add_u32", s(sT0), s(sT0), s(sT1))
        A.I("s_lshr_b32", s(sT1), s(sWV), 1)
        A.I("s_add_u32", s(sT0), s(sT0), s(sT1))
        A.I("s_lshl_b32", s(sT1), s(sT0), 13)
        A.I("s_add_u32", s(sK), s(sT1), hex(WS_KX))
        A.I("s_add_u32", s(sK2), s(sK), 4096)
        A.I("s_add_u32", s(sV), s(sT1), hex(WS_VX))
        A.I("s_add_u32", s(sV2), s(sV), 4096)
        A.I("s_and_b32", s(sT2), s(sWV), 1)
        A.I("s_lshl_b32", s(sT2), s(sT2), 12)
        A.I("s_add_u32", s(sQ), s(sT1), s(sT2))
        A.I("s_add_u32", s(sQ), s(sQ), hex(WS_QX))
        A.I("s_lshl_b32", s(sT1), s(sT0), 12)
        A.I("s_add_u32", s(sKM), s(sT1), hex(WS_KM))
        A.I("s_lshl_b32", s(sT0), s(sSEG), 4)
        A.I("s_add_u32", s(sT0), s(sT0), s(sHP))
        A.I("s_lshl_b32", s(sT0), s(sT0), 15)
        A.I("s_add_u32", s(sPO), s(sT0), hex(WS_PO))

    def loads_x(self):
        A = self.A; m = self.ldmod
        for ks in range(4):
            A.I("buffer_load_dwordx4", v(vQ + 4 * ks, 4), v(vL16), s(S_WS, 4), s(sQ), mods=mods("offen", off(1024 * ks), m))
        for i in range(8):
            A.I("buffer_load_dwordx4", v(vK + 4 * i, 4), v(vL16), s(S_WS, 4), s(sK if i < 4 else sK2), mods=mods("offen", off(1024 * (i & 3)), m))
        for i in range(8):
            A.I("buffer_load_dwordx4", v(vV + 4 * i, 4), v(vL16), s(S_WS, 4), s(sV if i < 4 else sV2), mods=mods("offen", off(1024 * (i & 3)), m))

    def loads_m(self, m=None):
        A = self.A; m = m or self.ldmod
        for w in range(4):
            A.I("buffer_load_dwordx4", v(vKV + 4 * w, 4), v(vL16), s(S_WS, 4), s(sKM), mods=mods("offen", off(1024 * w), m))

    def segment(self, mid=None):
        A = self.A
        DM_, D0, D1 = vS, vS + 4, vS + 8
        PX, PM = vP, vP + 4
        tm, tt, mc, ri = vT, vT2, vT3, 250
        A.I("s_waitcnt", "vmcnt(8)" if mid else "vmcnt(12)")
        for tau, D in ((0, D0), (1, D1)):
            for ks in range(4):
                A.I(MF, v(D, 4), v(vK + 16 * tau + 4 * ks, 4), v(vQ + 4 * ks, 4), 0 if ks == 0 else v(D, 4))
        A.I("v_mov_b32", v(tt), s(sNEG))
        for tau, D in ((0, D0), (1, D1)):
            for r in range(4):
                A.I("v_cndmask_b32", v(D + r), v(tt), v(D + r), s(sMASK + 2 * (tau * 4 + r), 2))
        A.I("v_max3_f32", v(251), v(D0), v(D0 + 1), v(D0 + 2))
        A.I("v_max3_f32", v(251), v(251), v(D0 + 3), v(D1))
        A.I("v_max3_f32", v(251), v(251), v(D1 + 1), v(D1 + 2))
        if mid: mid()
        else: A.I("s_waitcnt", "vmcnt(0)")
        for w in range(4):
            for b in range(2):
                A.I("ds_write_b32", v(vKSW), v(vKV + 4 * w + 1 + 2 * b), mods=off(1024 * w + 64 * b))
        for ks in range(4):
            A.I("ds_read_b128", v(vKMf + 4 * ks, 4), v(vKSR), mods=off(1024 * ks))
        A.I("s_waitcnt", "lgkmcnt(0)")
        for ks in range(4):
            A.I(MF, v(DM_, 4), v(vKMf + 4 * ks, 4), v(vQ + 4 * ks, 4), 0 if ks == 0 else v(DM_, 4))
        A.I("v_mov_b32", v(tm), v(251))
        A.I("v_max3_f32", v(tm), v(tm), v(D1 + 3), v(DM_))
        A.I("v_max_f32", v(tm), v(tm), v(DM_ + 1))
        xor_reduce(A, "v_max_f32", tm, tt)
        A.I("v_mul_f32", v(mc), s(sC1), v(tm))
        prs = [D0, D0 + 2, D1, D1 + 2, DM_]
        for r in prs:
            A.I("v_pk_fma_f32", v(r, 2), v(r, 2), s(sC1, 2), v(mc, 2), mods="op_sel_hi:[1,1,0] neg_lo:[0,0,1] neg_hi:[0,0,1]")
        for r in prs:
            A.I("v_exp_f32", v(r), v(r))
            A.I("v_exp_f32", v(r + 1), v(r + 1))
        for i, r in enumerate(prs):
            A.I("v_cvt_pk_bf16_f32", v(PX + i), v(r), v(r + 1))
        A.I("v_mov_b32", v(PM + 1), 0)
        A.I(MF, v(vLA, 4), v(vONE, 4), v(PX, 4), 0)
        for phi in range(8):
            A.I(MF, v(vO + 4 * phi, 4), v(vV + 4 * phi, 4), v(PX, 4), 0)
        A.I(MF16, v(vLA, 4), v(vONE, 2), v(PM, 2), v(vLA, 4))
        for phi in range(8):
            src = vKV + 2 * phi
            A.I(MF16, v(vO + 4 * phi, 4), v(src, 2), v(PM, 2), v(vO + 4 * phi, 4))
        A.I("v_rcp_f32", v(ri), v(vLA))
        for i in range(16):
            A.I("v_pk_mul_f32", v(vO + 2 * i, 2), v(vO + 2 * i, 2), v(ri, 2), mods="op_sel_hi:[1,0]")
        for i in range(16):
            A.I("v_cvt_pk_bf16_f32", v(vO + i), v(vO + 2 * i), v(vO + 2 * i + 1))
        for ks in range(4):
            A.I("ds_write_b128", v(vOXW), v(vO + 4 * ks, 4), mods=off(1024 * ks))
        A.I("s_waitcnt", "lgkmcnt(0)")
        A.I("s_barrier")
        if self.um:
            self.outproj()
            return
        for f in range(16):
            A.I("ds_read_b128", v(vOF + 4 * f, 4), v(vOXR), mods=off(1024 * f))
            if f == 7: A.I("s_waitcnt", "lgkmcnt(4)")
        A.I("v_xor_b32", v(vOXW), hex(0x4000), v(vOXW))
        A.I("v_xor_b32", v(vOXR), hex(0x4000), v(vOXR))
        A.I("s_waitcnt", "vmcnt(0) lgkmcnt(0)")
        for qt in range(2):
            for hh in range(2):
                for ks in range(4):
                    for t in range(8):
                        acc = v(vACC + (qt * 8 + t) * 4, 4)
                        A.I(MF, acc, a(((hh * 4 + ks) * 8 + t) * 4, 4), v(vOF + ((hh * 2 + qt) * 4 + ks) * 4, 4),
                            0 if (hh == 0 and ks == 0) else acc)
                    if qt == 1 and hh == 0: self.store_u(0, ks)

    def outproj(self):
        A = self.A
        if self.half:
            A.I("s_lshr_b32", s(sT1), s(sHALF), 1)
            A.I("s_lshl_b32", s(sT0), s(sT1), 12)
            A.I("v_add_u32", v(vT), s(sT0), v(vOXR))
        ra = vT if self.half else vOXR
        fr = lambda qt: [(hh * 2 + qt) * 4 + ks for hh in range(2) for ks in range(4)]
        for f in fr(0): A.I("ds_read_b128", v(vOF + 4 * f, 4), v(ra), mods=off(1024 * f))
        if self.half:
            A.I("s_lshl_b32", s(sT1), s(sT1), 14)
            A.I("s_add_u32", s(sPO), s(sPO), s(sT1))
        A.I("v_xor_b32", v(vOXW), hex(0x4000), v(vOXW))
        later = fr(1)
        lh = A.newlabel("half"); le = A.newlabel("proj")
        for qt in range(2):
            for u in range(4):
                for i, f in enumerate(fr(qt)):
                    if qt == 0 and u == 0: A.I("s_waitcnt", f"lgkmcnt({7 - i})")
                    if qt == 1 and u == 2 and i == 0: A.I("s_waitcnt", "vmcnt(5)")
                    if qt == 1 and u == 0 and i == 0: A.I("s_waitcnt", "lgkmcnt(0)")
                    for t in (2 * u, 2 * u + 1):
                        acc = v(vACC + (qt * 8 + t) * 4, 4)
                        A.I(MF, acc, a((i * 8 + t) * 4, 4), v(vOF + 4 * f, 4), 0 if i == 0 else acc)
                    if qt == 0 and u == 1: A.I("ds_read_b128", v(vOF + 4 * later[i], 4), v(vOXR), mods=off(1024 * later[i]))
                    if i == 1 and qt + u: self.store_u(*divmod(4 * qt + u - 1, 4))
            if qt == 0:
                A.I("v_xor_b32", v(vOXR), hex(0x4000), v(vOXR))
                if self.half:
                    A.I("s_cmp_lg_u32", s(sHALF), 0)
                    A.I("s_cbranch_scc1", lh)
        self.store_u(1, 3)
        if self.half:
            A.I("s_branch", le)
            A.label(lh)
            A.reset_haz()
            A.nop(8)
            self.store_u(0, 3)
            A.I("s_waitcnt", "lgkmcnt(0)")
            A.label(le)

    def store_u(self, qt, u):
        A = self.A
        g = vO + 4 * u
        t0 = vACC + (qt * 8 + 2 * u) * 4
        for i in range(4):
            A.I("v_cvt_pk_bf16_f32", v(g + i), v(t0 + 2 * i), v(t0 + 2 * i + 1))
        if u == 0: A.I("s_add_u32", s(sT0), s(sPO), qt * 16384)
        self.either(lambda m: A.I("buffer_store_dwordx4", v(g, 4), v(vPOo), s(S_WS, 4), s(sT0), mods=mods("offen", off(64 * u), m)))

    def either(self, st):
        A = self.A
        if not self.pol: return st(self.stmod)
        l1 = A.newlabel("near"); l2 = A.newlabel("far")
        A.I("s_cmp_lg_u32", s(sFAST), 0)
        A.I("s_cbranch_scc1", l1)
        st(self.stmod)
        A.I("s_branch", l2)
        A.label(l1)
        st("")
        A.label(l2)

    def store_po(self):
        if self.um: return
        for u in range(4): self.store_u(1, u)

    def body(self):
        A = self.A
        self.setup()
        LP = f"L_{self.tag}_seg"; LE = f"L_{self.tag}_end"
        A.barrier_haz()
        A.label(LP)
        A.reset_haz()
        A.I("s_cmp_ge_u32", s(sSEG), NSEG)
        A.I("s_cbranch_scc1", LE)
        self.seg_addrs()
        self.loads_x()
        self.loads_m()
        self.segment()
        self.store_po()
        A.I("s_add_u32", s(sSEG), s(sSEG), s(sSTR))
        A.I("s_branch", LP)
        A.label(LE)
        A.reset_haz()

    def mega(self, fin, after_setup=None, lag=None, late_stage=None, slag=None):
        A = self.A
        if slag:
            A.I("v_mov_b32", v(1), 0)
            A.I("s_lshl_b32", s(sT0), s(sHP), 7)
            A.I("s_add_u32", s(sT0), s(sT0), hex(WS_CTRL + CT_PROG))
            A.I("s_mul_i32", s(sT1), s(sSEG), slag[1])
            A.I("s_lshr_b32", s(sT1), s(sT1), 4)
            A.I("s_add_u32", s(sT1), s(sT1), slag[0])
            wait_words(A, S_WS, 1, s(sT0), 1, s(sT1), 2, sleep=self.sl[0], paced=True)
        self.setup()
        fin.setup()
        if after_setup: after_setup()
        ts(A, 3)
        A.I("v_lshrrev_b32", v(vT), 2, v(vL16))
        for mat in range(3):
            A.I("s_lshl_b32", s(sT0), s(sHP), 7)
            A.I("s_add_u32", s(sT0), s(sT0), hex(WS_CTRL + CT_F1 + mat * 32 * 64))
            wait_words(A, S_WS, vT, s(sT0), 32, 1, vT2, sleep=32)
        ts(A, 4)
        A.I("s_mov_b32", s(80), 0)
        A.I("s_mov_b32", s(sHALF), 0)
        LP = f"L_{self.tag}_seg"; LE = f"L_{self.tag}_end"
        A.barrier_haz()
        A.label(LP)
        A.reset_haz()
        A.I("s_cmp_ge_u32", s(sSEG), NSEG)
        A.I("s_cbranch_scc1", LE)
        if lag:
            A.I("v_lshrrev_b32", v(vT), 2, v(vL16))
            A.I("s_lshl_b32", s(sT0), s(sHP), 7)
            A.I("s_add_u32", s(sT0), s(sT0), hex(WS_CTRL + CT_PROG))
            A.I("s_mul_i32", s(sT1), s(sSEG), lag[1])
            A.I("s_lshr_b32", s(sT1), s(sT1), 4)
            A.I("s_add_u32", s(sT1), s(sT1), lag[0])
            wait_words(A, S_WS, vT, s(sT0), 1, s(sT1), vT2, sleep=self.sl[0], paced=True)
        if late_stage: late_stage()
        self.seg_addrs()
        A.I("s_cmp_ge_u32", s(sSEG), LATE)
        A.I("s_cselect_b32", s(sLATE), 1, 0)
        A.I("s_lshl_b32", s(fin.sROW), s(sHP), 1)
        A.I("s_and_b32", s(sT0), s(sGW), 1)
        A.I("s_add_u32", s(fin.sROW), s(fin.sROW), s(sT0))
        if self.half:
            A.I("s_cmp_ge_u32", s(sSEG), NSEG - 2)
            A.I("s_cselect_b32", s(sT0), 1, 0)
            A.I("s_max_u32", s(sHALF), s(sHALF), s(sT0))
            A.I("s_lshl_b32", s(sT0), s(sHALF), 3)
            A.I("s_and_b32", s(sT0), s(sT0), 16)
            A.I("s_add_u32", s(sT0), s(sT0), s(sHP))
            A.I("s_cmp_lg_u32", s(sHALF), 0)
            A.I("s_cselect_b32", s(fin.sROW), s(sT0), s(fin.sROW))
        A.I("s_lshl_b32", s(sT0), s(sSEG), 5)
        A.I("s_add_u32", s(fin.sROW), s(fin.sROW), s(sT0))
        if self.xr: fin.xload(vXR)
        A.I("s_lshl_b32", s(sF2), s(sSEG), 6)
        A.I("s_add_u32", s(sF2), s(sF2), hex(WS_CTRL + CT_F2))
        A.I("s_lshl_b32", s(sT0), s(sSEG), 7)
        if self.half:
            A.I("s_and_b32", s(sT1), s(sHALF), 2)
            A.I("s_lshl_b32", s(sT1), s(sT1), 7)
            A.I("s_add_u32", s(sT0), s(sT0), s(sT1))
        A.I("s_add_u32", s(sT0), s(sT0), hex(WS_CTRL + CT_F2F - 128 * LATE))
        A.I("s_cmp_lg_u32", s(sLATE), 0)
        A.I("s_cselect_b32", s(sF2), s(sT0), s(sF2))
        if self.pol:
            A.I("s_cmp_ge_u32", s(sSEG), self.pol[0])
            A.I("s_cselect_b32", s(sFAST), s(self.smode), 0)
            A.I("s_and_b32", s(sFAST), s(sFAST), 1)
            l = A.newlabel("notouch")
            A.I("s_cbranch_scc0", l)
            A.I("buffer_load_dword", v(vPF), "off", s(S_WS, 4), s(sF2), mods="sc1")
            if self.pol[1]:
                A.I("v_lshlrev_b32", v(vT), 3, v(vL16))
                A.I("s_lshl_b32", s(sT0), s(sWV), 13)
                A.I("s_add_u32", s(sT0), s(sT0), s(sPO))
                A.I("buffer_load_dword", v(vPF), v(vT), s(S_WS, 4), s(sT0), mods="offen sc1")
            A.label(l)
        self.loads_x()
        def mid():
            A.I("v_lshrrev_b32", v(vT), 2, v(vL16))
            A.I("s_lshl_b32", s(sT0), s(sHP), 7)
            A.I("s_add_u32", s(sT0), s(sT0), hex(WS_CTRL + CT_PROG))
            A.I("s_add_u32", s(sT1), s(sSEG), 1)
            if self.kms:
                A.I("s_sub_u32", s(sT2), s(sSEG), 1)
                A.I("s_min_u32", s(sT2), s(sT2), NSEG - 3)
                A.I("s_cmp_lg_u32", s(sLATE), 0)
                A.I("s_cselect_b32", s(sT1), s(sT2), s(sT1))
            A.barrier_haz()
            wait_words(A, S_WS, vT, s(sT0), 8, s(sT1), vT2, sleep=self.sl[0], paced=True, mask=self.progmask)
            if not self.kms:
                ts(A, 16, dyn=80)
                self.loads_m()
                A.I("s_waitcnt", "vmcnt(0)")
                return
            nd, gap = self.kms[:2]
            lp = A.newlabel("kmp"); lf = A.newlabel("kmf"); lo = A.newlabel("kmo")
            A.I("s_cmp_eq_u32", s(sLATE), 0)
            A.I("s_cbranch_scc1", lf)
            A.I("s_lshr_b32", s(sT2), s(sWV), 1)
            A.I("s_lshl_b32", s(sT2), s(sT2), 4)
            A.I("s_add_u32", s(sT0), s(sT0), s(sT2))
            A.I("s_mov_b32", s(sPT0), 0)
            def probe():
                A.I("buffer_load_dword", v(vPF), "off", s(S_WS, 4), s(sT0), mods="sc1")
                self.loads_m("sc1")
            for i in range(nd - 1):
                probe()
                A.I("s_sleep", gap)
            A.label(lp)
            probe()
            A.I("s_add_u32", s(sPT0), s(sPT0), 1)
            A.I("s_waitcnt", f"vmcnt({5 * (nd - 1)})")
            A.I("v_max3_u32", v(vT), v(vKV), v(vKV + 1), v(vKV + 2))
            for i in range(3, 15, 2): A.I("v_max3_u32", v(vT), v(vT), v(vKV + i), v(vKV + i + 1))
            A.I("v_max_u32", v(vT), v(vT), v(vKV + 15))
            A.I("v_cmp_eq_u32", "vcc", -1 if len(self.kms) < 3 else v(vT), v(vT))
            A.I("v_readfirstlane_b32", s(sT2), v(vPF))
            A.I("s_cbranch_vccz", lo)
            A.I("s_cmp_gt_u32", s(sT2), s(sSEG))
            A.I("s_cbranch_scc1", lf)
            A.I("s_cmp_lt_u32", s(sPT0), hex(POLL_MAX))
            A.I("s_cbranch_scc1", lp)
            A.label(lf)
            self.loads_m("sc1")
            A.I("s_waitcnt", "vmcnt(0)")
            A.label(lo)
            A.reset_haz()
            if fin.thr: fin.tload()
            ts(A, 16, dyn=80)
        self.segment(mid)
        self.store_po()
        A.I("s_waitcnt", "vmcnt(0)")
        A.I("s_barrier")
        ts(A, 17, dyn=80)
        A.I("s_lshl_b32", s(sT0), s(sHP), 2)
        A.I("s_add_u32", s(sT0), s(sT0), s(sF2))
        set_flag(A, S_WS, s(sT0), vT, how=self.either)
        A.I("v_lshrrev_b32", v(vT), 2, v(vL16))
        wait_words(A, S_WS, vT, s(sF2), 16, 1, vT2, sleep=self.sl[1])
        ts(A, 18, dyn=80)
        lsk = A.newlabel("nofin")
        if self.half:
            A.I("s_cmp_lg_u32", s(sHALF), 0)
            A.I("s_cselect_b32", s(sT0), 1, 2)
        A.I("s_cmp_ge_u32", s(sGW), s(sT0) if self.half else 2)
        A.I("s_cbranch_scc1", lsk)
        fin.row(vXR if self.xr else None)
        A.barrier_haz()
        A.label(lsk)
        A.reset_haz()
        ts(A, 19, dyn=80)
        A.I("s_add_u32", s(80), s(80), 4)
        A.I("s_add_u32", s(sSEG), s(sSEG), s(sSTR))
        if self.half:
            A.I("s_sub_u32", s(sT0), s(sSEG), 68)
            A.I("s_cmp_lt_u32", s(sT0), 2)
            A.I("s_cselect_b32", s(sHALF), 2, 0)
            A.I("s_cselect_b32", s(sT0), 6, 0)
            A.I("s_sub_u32", s(sSEG), s(sSEG), s(sT0))
        A.I("s_branch", LP)
        A.label(LE)
        A.reset_haz()
```

```python
import math
from asmgen import *
from layout import *
from common import *

MF = "v_mfma_f32_16x16x32_bf16"
LOG2E = math.log2(math.e)

def full_reduce(A, op, x, t):
    row_reduce16(A, op, x)
    xor_reduce(A, op, x, t)

class Finisher:
    S_WS = 8; S_X = 12; S_OUT = 16; S_WR = 56
    sROW, sWV, sT0, sT1, sT2, sLO, sHI = 60, 61, 62, 63, 64, 65, 66
    def __init__(self, A, ldmod="", stmod="", base=0, home=(96, 97, 104, 88), early=False, thr=None):
        self.early = early; self.thr = thr; self.A = A; self.ldmod = ldmod; self.stmod = stmod; self.b = base; self.home = home

    def setup(self):
        A = self.A; b = self.b
        srd(A, self.S_X, 0, 2 << 20)
        srd(A, self.S_OUT, 96, 2 << 20)
        srd(A, self.S_WR, 64, 1024)
        L, T, U = b + 100, b + 101, b + 102
        self.vL16, self.vCOL, self.vWRP, self.vWR = self.home
        A.I("v_and_b32", v(L), 63, v(0))
        A.I("v_lshlrev_b32", v(self.vL16), 4, v(L))
        A.I("buffer_load_dwordx4", v(self.vWRP, 4), v(self.vL16), s(self.S_WR, 4), 0, mods="offen")
        A.I("s_mov_b32", s(self.sLO), "0x3f80")
        A.I("s_mov_b32", s(self.sHI), "0x3f800000")
        A.I("s_waitcnt", "vmcnt(0)")

    def xload(self, X):
        self.A.I("s_lshl_b32", s(self.sT2), s(self.sROW), 10)
        self.A.I("buffer_load_dwordx4", v(X, 4), v(self.vL16), s(self.S_X, 4), s(self.sT2), mods="offen")

    def tload(self):
        self.A.I("s_mov_b32", s(self.sT0), hex(WS_CTRL + CT_THR))
        self.A.I("buffer_load_dword", v(self.thr), "off", s(self.S_WS, 4), s(self.sT0), mods="sc1")

    def row(self, xr=None):
        A = self.A; b = self.b
        sROW, sT0, sT1, sT2 = self.sROW, self.sT0, self.sT1, self.sT2
        P = b; X = b + 64; Hh = b + 68; D = b + 76; S_, T, MB, DMn, Q = b + 84, b + 85, b + 86, b + 87, b + 100
        A.I("s_lshr_b32", s(sT0), s(sROW), 5)
        A.I("s_lshl_b32", s(sT0), s(sT0), 19)
        A.I("s_and_b32", s(sT1), s(sROW), 31)
        A.I("s_lshl_b32", s(sT1), s(sT1), 10)
        A.I("s_add_u32", s(sT0), s(sT0), s(sT1))
        A.I("s_add_u32", s(sT0), s(sT0), hex(WS_PO))
        if xr is None: self.xload(X)
        else: X = xr
        for hp in range(16):
            A.I("buffer_load_dwordx4", v(P + 4 * hp, 4), v(self.vL16), s(self.S_WS, 4), s(sT0), mods=mods("offen", self.ldmod))
            if hp < 15: A.I("s_add_u32", s(sT0), s(sT0), 32768)
        for i in range(8):
            A.I("v_mov_b32", v(Hh + i), 0)
        for hp in range(16):
            A.I("s_waitcnt", f"vmcnt({15 - hp})")
            for i in range(4):
                A.I("v_dot2_f32_bf16", v(Hh + 2 * i), v(P + 4 * hp + i), s(self.sLO), v(Hh + 2 * i))
                A.I("v_dot2_f32_bf16", v(Hh + 2 * i + 1), v(P + 4 * hp + i), s(self.sHI), v(Hh + 2 * i + 1))
        for i in range(4):
            A.I("v_cvt_pk_bf16_f32", v(P + i), v(Hh + 2 * i), v(Hh + 2 * i + 1))
        for i in range(4):
            A.I("v_lshlrev_b32", v(Hh + 2 * i), 16, v(P + i))
            A.I("v_and_b32", v(Hh + 2 * i + 1), "0xffff0000", v(P + i))
            A.I("v_lshlrev_b32", v(D + 2 * i), 16, v(X + i))
            A.I("v_and_b32", v(D + 2 * i + 1), "0xffff0000", v(X + i))
        for i in range(4):
            A.I("v_pk_add_f32", v(Hh + 2 * i, 2), v(Hh + 2 * i, 2), v(D + 2 * i, 2))
        HP_ = P + 4
        for i in range(4):
            A.I("v_cvt_pk_bf16_f32", v(HP_ + i), v(Hh + 2 * i), v(Hh + 2 * i + 1))
        for i in range(4):
            A.I("v_lshlrev_b32", v(Hh + 2 * i), 16, v(HP_ + i))
            A.I("v_and_b32", v(Hh + 2 * i + 1), "0xffff0000", v(HP_ + i))
        A.I("s_add_u32", s(sT0), s(sT2), hex(WS_H))
        A.I("buffer_store_dwordx4", v(HP_, 4), v(self.vL16), s(self.S_WS, 4), s(sT0), mods=mods("offen", self.stmod))
        A.I("v_add_f32", v(S_), v(Hh), v(Hh + 1))
        for i in range(2, 8):
            A.I("v_add_f32", v(S_), v(S_), v(Hh + i))
        full_reduce(A, "v_add_f32", S_, T)
        ln_mean(A, S_, MB, DMn)
        for i in range(8):
            A.I("v_sub_f32", v(D + i), v(Hh + i), v(MB))
        A.I("v_mul_f32", v(Q), v(D), v(D))
        for i in range(1, 8):
            A.I("v_fmac_f32", v(Q), v(D + i), v(D + i))
        full_reduce(A, "v_add_f32", Q, T)
        ln_rinv(A, Q, DMn, T)
        NP = P + 8
        for i in range(4):
            A.I("v_cvt_pk_bf16_f32", v(NP + i), v(D + 2 * i), v(D + 2 * i + 1))
        for i in range(4):
            A.I("v_lshlrev_b32", v(D + 2 * i), 16, v(NP + i))
            A.I("v_and_b32", v(D + 2 * i + 1), "0xffff0000", v(NP + i))
        for i in range(8):
            A.I("v_mul_f32", v(D + i), v(Q), v(D + i))
        for i in range(4):
            A.I("v_cvt_pk_bf16_f32", v(NP + i), v(D + 2 * i), v(D + 2 * i + 1))
        for i in range(4):
            A.I("v_lshlrev_b32", v(D + 2 * i), 16, v(NP + i))
            A.I("v_and_b32", v(D + 2 * i + 1), "0xffff0000", v(NP + i))
        A.I("s_add_u32", s(sT0), s(sT2), hex(WS_HN))
        A.I("buffer_store_dwordx4", v(NP, 4), v(self.vL16), s(self.S_WS, 4), s(sT0), mods=mods("offen", self.stmod))
        OP = P + 12
        for i in range(4):
            A.I("v_pk_add_f32", v(Hh + 2 * i, 2), v(Hh + 2 * i, 2), v(D + 2 * i, 2))
        for i in range(4):
            A.I("v_cvt_pk_bf16_f32", v(OP + i), v(Hh + 2 * i), v(Hh + 2 * i + 1))
        A.I("buffer_store_dwordx4", v(OP, 4), v(self.vL16), s(self.S_OUT, 4), s(sT2), mods=mods("offen", self.stmod))
        for i in range(4):
            A.I("v_lshlrev_b32", v(self.vWR + 2 * i), 16, v(self.vWRP + i))
            A.I("v_and_b32", v(self.vWR + 2 * i + 1), "0xffff0000", v(self.vWRP + i))
        A.I("v_mul_f32", v(S_), v(D), v(self.vWR))
        for i in range(1, 8):
            A.I("v_fmac_f32", v(S_), v(D + i), v(self.vWR + i))
        full_reduce(A, "v_add_f32", S_, T)
        bf16r(A, S_, S_)
        A.I("v_ashrrev_i32", v(T), 31, v(S_))
        A.I("v_or_b32", v(T), "0x80000000", v(T))
        A.I("v_xor_b32", v(S_), v(S_), v(T))
        A.I("v_and_b32", v(S_), "0xffff0000", v(S_))
        A.I("s_sub_u32", s(sT0), hex(0x8000 + 2047), s(sROW))
        A.I("v_or_b32", v(S_), s(sT0), v(S_))
        A.I("s_lshl_b32", s(sT0), s(sROW), 2)
        A.I("s_mov_b64", "exec", 1)
        if self.early:
            A.I("s_add_u32", s(sT1), s(sT0), hex(WS_CTRL + CT_KEYE - 128 * LATE))
            A.I("s_cmp_ge_u32", s(sROW), 32 * LATE)
            A.I("s_cselect_b32", s(sT1), s(sT1), "0x7ff00000")
            A.I("buffer_store_dword", v(S_), "off", s(self.S_WS, 4), s(sT1), mods=self.stmod)
        ln = A.newlabel("nokey")
        if self.thr:
            A.I("v_cmp_ge_u32", "vcc", v(self.thr), v(S_))
            A.I("s_cselect_b32", s(sT1), 1, 0)
            A.I("s_and_b32", s(sT1), s(sT1), "vcc_lo")
            A.I("s_cbranch_scc1", ln)
        A.I("s_add_u32", s(sT0), s(sT0), hex(WS_KEY))
        A.I("s_waitcnt", "vmcnt(0)")
        A.I("buffer_store_dword", v(S_), "off", s(self.S_WS, 4), s(sT0), mods=self.stmod)
        A.label(ln)
        A.I("s_mov_b64", "exec", -1)


def top2(A, S_WS, sK1, sK2, ldmod, lds_off, tb=0, poll=False, srnd=None, lim=240):
    K, T, U, AD = tb + 4, tb + 12, tb + 13, tb + 14
    A.I("v_lshlrev_b32", v(AD), 5, v(0))
    A.I("s_mov_b32", s(sK1), hex(WS_KEY))
    if srnd is not None:
        A.I("v_cmp_le_u32", "vcc", lim, v(0))
        A.I("v_mov_b32", v(U), s(srnd))
        A.I("v_add_u32", v(U), -1, v(U))
        A.I("v_cndmask_b32", v(tb + 3), 0, v(U), "vcc")
    if poll:
        lp = A.newlabel("kpoll"); ld = A.newlabel("kpolld")
        A.I("s_mov_b32", s(sK2), 0)
        A.label(lp)
        ldmod = "sc1"
    A.I("buffer_load_dwordx4", v(K, 4), v(AD), s(S_WS, 4), s(sK1), mods=mods("offen", ldmod))
    A.I("buffer_load_dwordx4", v(K + 4, 4), v(AD), s(S_WS, 4), s(sK1), mods=mods("offen offset:16", ldmod))
    if poll:
        A.I("s_waitcnt", "vmcnt(0)")
        A.I("v_min3_u32", v(T), v(K), v(K + 1), v(K + 2))
        A.I("v_min3_u32", v(T), v(T), v(K + 3), v(K + 4))
        A.I("v_min3_u32", v(T), v(T), v(K + 5), v(K + 6))
        A.I("v_min_u32", v(T), v(T), v(K + 7))
        if srnd is not None:
            A.I("v_or_b32", v(T), v(T), v(tb + 3))
        A.I("v_cmp_eq_u32", "vcc", 0, v(T))
        A.I("s_cbranch_vccz", ld)
        A.I("s_sleep", 6)
        A.I("s_add_u32", s(sK2), s(sK2), 1)
        A.I("s_cmp_lt_u32", s(sK2), hex(POLL_MAX))
        A.I("s_cbranch_scc1", lp)
        A.label(ld)
        if srnd is not None:
            for i in range(8):
                A.I("v_bfi_b32", v(K + i), v(tb + 3), 0, v(K + i))
    A.I("v_lshrrev_b32", v(AD), 6, v(0))
    A.I("v_lshlrev_b32", v(AD), 2, v(AD))
    A.I("v_add_u32", v(AD), hex(lds_off), v(AD))
    A.I("v_mov_b32", v(tb + 15), hex(lds_off))
    A.I("s_waitcnt", "vmcnt(0)")
    for rnd, sK in ((0, sK1), (1, sK2)):
        if rnd:
            for i in range(8):
                A.I("v_cmp_ne_u32", "vcc", s(sK1), v(K + i))
                A.I("v_cndmask_b32", v(K + i), 0, v(K + i), "vcc")
        A.I("v_max3_u32", v(T), v(K), v(K + 1), v(K + 2))
        A.I("v_max3_u32", v(T), v(T), v(K + 3), v(K + 4))
        A.I("v_max3_u32", v(T), v(T), v(K + 5), v(K + 6))
        A.I("v_max_u32", v(T), v(T), v(K + 7))
        full_reduce(A, "v_max_u32", T, U)
        A.I("ds_write_b32", v(AD), v(T), mods=off(16 * rnd))
        A.I("s_waitcnt", "lgkmcnt(0)")
        A.I("s_barrier")
        A.I("ds_read_b128", v(tb, 4), v(tb + 15), mods=off(16 * rnd))
        A.I("s_waitcnt", "lgkmcnt(0)")
        A.I("v_max3_u32", v(T), v(tb), v(tb + 1), v(tb + 2))
        A.I("v_max_u32", v(T), v(T), v(tb + 3))
        A.I("v_readfirstlane_b32", s(sK), v(T))

def sigmoid(A, d, x, t):
    A.I("v_mul_f32", v(t), f2h(-LOG2E), v(x))
    A.I("v_exp_f32", v(t), v(t))
    A.I("v_add_f32", v(t), 1.0, v(t))
    A.I("v_rcp_f32", v(d), v(t))

class FFN:
    S_WS = 8; S_W = 76
    sJ, sWV, sK1, sK2, sT0, sT1, sW1K = 67, 68, 69, 70, 71, 72, 73
    LG, LU, LD, LX = 32768, 65536, 98304, 131072
    def __init__(self, A, ldmod="", stmod="", poll=False):
        self.A = A; self.ldmod = ldmod; self.stmod = stmod; self.poll = poll

    def stage(self, spart=None, parts=(0, 4, 8)):
        A = self.A
        L, T, U = 1, 2, 3
        ls = [A.newlabel("part") for _ in range(3)]
        def part(i):
            if spart is None: return
            if i: A.label(ls[i - 1])
            if i < 3:
                A.I("s_cmp_lg_u32", s(spart), parts[i])
                A.I("s_cbranch_scc1", ls[i])
        A.I("v_lshrrev_b32", v(T), 6, v(0))
        A.I("v_readfirstlane_b32", s(self.sWV), v(T))
        A.I("v_and_b32", v(L), 63, v(0))
        A.I("s_lshl_b32", s(self.sW1K), s(self.sWV), 10)
        A.I("v_lshrrev_b32", v(T), 2, v(L))
        A.I("s_lshl_b32", s(self.sT0), s(self.sWV), 4)
        A.I("v_add_u32", v(T), s(self.sT0), v(T))
        A.I("s_movk_i32", s(self.sT0), 3584)
        A.I("v_mul_lo_u32", v(T), v(T), s(self.sT0))
        A.I("v_and_b32", v(U), 3, v(L))
        A.I("v_lshl_add_u32", v(4), v(U), 4, v(T))
        for karg, lds in ((72, self.LG), (80, self.LU)):
            part((karg - 72) // 8)
            srd(A, self.S_W, karg, 512 * 3584)
            for i in range(8):
                A.I("s_lshl_b32", s(self.sT0), s(self.sJ), 6)
                A.I("s_add_u32", s(self.sT0), s(self.sT0), hex(64 * i * 3584))
                A.I("s_add_u32", "m0", s(self.sW1K), hex(lds + 4096 * i))
                A.I("buffer_load_dwordx4", v(4), s(self.S_W, 4), s(self.sT0), mods="offen lds")
        part(2)
        srd(A, self.S_W, 88, 1792 * 1024)
        A.I("v_lshlrev_b32", v(5), 4, v(L))
        A.I("v_add_u32", v(5), s(self.sW1K), v(5))
        for i in range(8):
            A.I("s_lshl_b32", s(self.sT0), s(self.sJ), 15)
            A.I("s_add_u32", s(self.sT0), s(self.sT0), 4096 * i)
            A.I("s_add_u32", "m0", s(self.sW1K), hex(self.LD + 4096 * i))
            A.I("buffer_load_dwordx4", v(5), s(self.S_W, 4), s(self.sT0), mods="offen lds")
        part(3)

    def select(self, srnd=None, lim=240):
        top2(self.A, self.S_WS, self.sK1, self.sK2, self.ldmod, self.LX + 1024, tb=16, poll=self.poll, srnd=srnd, lim=lim)
        self.A.I("s_barrier")

    def reselect(self, srnd=None, one=False, sleep=3, thr=False):
        A = self.A
        sK1, sK2, sT0, sT1 = self.sK1, self.sK2, self.sT0, self.sT1
        K, T, U, AD = 20, 22, 23, 24
        lp = A.newlabel("rsel"); ld = A.newlabel("rseld"); le = A.newlabel("rsele")
        A.I("v_and_b32", v(AD), 63, v(0))
        A.I("v_lshlrev_b32", v(AD), 3, v(AD))
        if one:
            lw = A.newlabel("rselw")
            A.I("v_mov_b32", v(U), hex(self.LX + 1024))
            A.I("s_cmp_lg_u32", s(sGW), 0)
            A.I("s_cbranch_scc1", lw)
        A.I("s_mov_b32", s(sT0), hex(WS_KEY + 1920 * 4))
        if srnd is not None:
            A.I("s_mov_b32", s(sT0), hex(WS_KEY + 1792 * 4))
            A.I("s_cmp_eq_u32", s(srnd), 1)
            A.I("s_cselect_b32", s(sT0), s(sT0), hex(WS_CTRL + CT_KEYE))
        A.I("s_mov_b32", s(sT1), 0)
        A.label(lp)
        A.I("buffer_load_dwordx2", v(K, 2), v(AD), s(self.S_WS, 4), s(sT0), mods="offen sc1")
        A.I("s_waitcnt", "vmcnt(0)")
        A.I("v_min_u32", v(T), v(K), v(K + 1))
        A.I("v_cmp_eq_u32", "vcc", 0, v(T))
        A.I("s_cbranch_vccz", ld)
        A.I("s_sleep", sleep)
        A.I("s_add_u32", s(sT1), s(sT1), 1)
        A.I("s_cmp_lt_u32", s(sT1), hex(POLL_MAX))
        A.I("s_cbranch_scc1", lp)
        A.label(ld)
        A.reset_haz()
        A.I("v_max_u32", v(T), v(K), v(K + 1))
        A.I("v_cmp_lt_u32", "vcc", s(sK2), v(T))
        A.I("s_cbranch_vccz", le)
        if thr:
            l2 = A.newlabel("rack"); l3 = A.newlabel("rackd")
            A.I("s_cmp_lg_u32", s(sT0), hex(WS_CTRL + CT_KEYE))
            A.I("s_cbranch_scc1", l3)
            A.I("s_mov_b32", s(sT0), hex(WS_KEY + 1920 * 4))
            A.label(l2)
            A.I("buffer_load_dwordx2", v(26, 2), v(AD), s(self.S_WS, 4), s(sT0), mods="offen sc1")
            A.I("s_add_u32", s(sT1), s(sT1), 1)
            A.I("s_waitcnt", "vmcnt(0)")
            for i in range(2): A.I("v_sub_u32", v(26 + i), v(K + i), v(26 + i))
            A.I("v_max_u32", v(26), v(26), v(27))
            A.I("v_cmp_lt_u32", "vcc", s(sK2), v(26))
            A.I("s_cbranch_vccz", l3)
            A.I("s_cmp_lt_u32", s(sT1), hex(POLL_MAX))
            A.I("s_cbranch_scc1", l2)
            A.label(l3)
            A.reset_haz()
        elif srnd is not None:
            A.I("s_cmp_eq_u32", s(sT0), hex(WS_CTRL + CT_KEYE))
            A.I("s_mov_b32", s(sT0), hex(WS_KEY + 1920 * 4))
            A.I("s_cbranch_scc1", lp)
        full_reduce(A, "v_max_u32", T, U)
        A.I("v_readfirstlane_b32", s(sT0), v(T))
        for i in range(2):
            A.I("v_cmp_ne_u32", "vcc", s(sT0), v(K + i))
            A.I("v_cndmask_b32", v(K + i), 0, v(K + i), "vcc")
        A.I("v_max_u32", v(T), v(K), v(K + 1))
        full_reduce(A, "v_max_u32", T, U)
        A.I("v_readfirstlane_b32", s(sT1), v(T))
        A.I("s_max_u32", s(sK2), s(sK2), s(sT1))
        A.I("s_min_u32", s(sT1), s(sT0), s(sK1))
        A.I("s_max_u32", s(sK2), s(sK2), s(sT1))
        A.I("s_max_u32", s(sK1), s(sK1), s(sT0))
        A.label(le)
        A.reset_haz()
        if one:
            A.I("v_mov_b32", v(U), hex(self.LX + 1024))
            A.I("v_mov_b32", v(K), s(sK1))
            A.I("v_mov_b32", v(K + 1), s(sK2))
            A.I("ds_write_b64", v(U), v(K, 2))
            A.I("s_waitcnt", "lgkmcnt(0)")
            A.label(lw)
            A.I("s_barrier")
            A.I("ds_read_b64", v(K, 2), v(U))
            A.I("s_waitcnt", "lgkmcnt(0)")
            A.I("v_readfirstlane_b32", s(sK1), v(K))
            A.I("v_readfirstlane_b32", s(sK2), v(K + 1))
            A.I("s_barrier")
            A.nop(4)

    def compute(self):
        A = self.A
        sK1, sK2, sT0, sT1 = self.sK1, self.sK2, self.sT0, self.sT1
        L, G, C, T, U, R = 1, 2, 3, 4, 5, 6
        A.I("v_and_b32", v(L), 63, v(0))
        A.I("v_lshrrev_b32", v(G), 4, v(L))
        A.I("v_and_b32", v(C), 15, v(L))
        A.I("v_lshrrev_b32", v(R), 2, v(C))
        A.I("s_and_b32", s(sT0), s(sK1), 2047)
        A.I("s_sub_u32", s(sT0), 2047, s(sT0))
        A.I("s_and_b32", s(sT1), s(sK2), 2047)
        A.I("s_sub_u32", s(sT1), 2047, s(sT1))
        A.I("v_and_b32", v(T), 1, v(C))
        A.I("v_cmp_eq_u32", "vcc", 0, v(T))
        A.I("v_mov_b32", v(T), s(sT0))
        A.I("v_mov_b32", v(U), s(sT1))
        A.I("v_cndmask_b32", v(T), v(U), v(T), "vcc")
        A.I("v_lshlrev_b32", v(T), 10, v(T))
        A.I("v_lshl_add_u32", v(T), v(G), 4, v(T))
        XA = 32
        A.I("s_mov_b32", s(sT0), hex(WS_HN))
        for ks in range(16):
            A.I("buffer_load_dwordx4", v(XA + 4 * ks, 4), v(T), s(self.S_WS, 4), s(sT0), mods=mods("offen", off(64 * ks), self.ldmod))
        A.I("v_lshl_add_u32", v(T), v(G), 3, v(R))
        A.I("v_lshlrev_b32", v(T), 6, v(T))
        A.I("v_and_b32", v(U), 3, v(C))
        A.I("v_lshl_add_u32", v(T), v(U), 3, v(T))
        A.I("s_lshr_b32", s(sT0), s(self.sWV), 1)
        A.I("s_lshl_b32", s(sT0), s(sT0), 15)
        A.I("s_and_b32", s(sT1), s(self.sWV), 1)
        A.I("s_lshl_b32", s(sT1), s(sT1), 5)
        A.I("s_add_u32", s(sT0), s(sT0), s(sT1))
        A.I("s_add_u32", s(sT0), s(sT0), hex(self.LG))
        A.I("v_add_u32", v(7), s(sT0), v(T))
        WB = 96
        for ks in range(16):
            for q in range(2):
                A.I("ds_read_b64_tr_b16", v(WB + 4 * ks + 2 * q, 2), v(7), mods=off(ks * 2048 + q * 256))
            if ks % 4 == 3: A.I("s_waitcnt", "lgkmcnt(0)")
        A.I("s_waitcnt", "vmcnt(0)")
        D = 8
        for ks in range(16):
            A.I(MF, v(D, 4), v(XA + 4 * ks, 4), v(WB + 4 * ks, 4), 0 if ks == 0 else v(D, 4))
        for r in range(2):
            bf16r(A, D + r, D + r)
        lu = A.newlabel("ffn_up")
        A.I("s_cmp_ge_u32", s(self.sWV), 2)
        A.I("s_cbranch_scc1", lu)
        for r in range(2):
            sigmoid(A, 12, D + r, 13)
            A.I("v_mul_f32", v(D + r), v(12), v(D + r))
            bf16r(A, D + r, D + r)
        A.barrier_haz()
        A.label(lu)
        A.I("s_lshr_b32", s(sT0), s(self.sWV), 1)
        A.I("s_lshl_b32", s(sT0), s(sT0), 8)
        A.I("s_and_b32", s(sT1), s(self.sWV), 1)
        A.I("s_lshl_b32", s(sT1), s(sT1), 6)
        A.I("s_add_u32", s(sT0), s(sT0), s(sT1))
        A.I("s_add_u32", s(sT0), s(sT0), hex(self.LX))
        A.I("v_lshlrev_b32", v(T), 2, v(C))
        A.I("v_add_u32", v(T), s(sT0), v(T))
        A.I("ds_write_b32", v(T), v(D))
        A.I("ds_write_b32", v(T), v(D + 1), mods="offset:128")
        A.I("s_waitcnt", "lgkmcnt(0)")
        A.I("s_barrier")
        A.I("v_and_b32", v(T), 1, v(C))
        A.I("v_lshlrev_b32", v(T), 7, v(T))
        A.I("v_lshl_add_u32", v(T), v(G), 5, v(T))
        A.I("v_add_u32", v(T), hex(self.LX), v(T))
        GG, UU = 32, 40
        A.I("ds_read_b128", v(GG, 4), v(T))
        A.I("ds_read_b128", v(GG + 4, 4), v(T), mods="offset:16")
        A.I("ds_read_b128", v(UU, 4), v(T), mods="offset:256")
        A.I("ds_read_b128", v(UU + 4, 4), v(T), mods="offset:272")
        A.I("v_lshl_add_u32", v(U), v(G), 3, v(R))
        A.I("v_lshlrev_b32", v(U), 10, v(U))
        A.I("v_and_b32", v(7), 3, v(C))
        A.I("v_lshl_add_u32", v(U), v(7), 3, v(U))
        A.I("s_lshl_b32", s(sT0), s(self.sWV), 8)
        A.I("s_add_u32", s(sT0), s(sT0), hex(self.LD))
        A.I("v_add_u32", v(7), s(sT0), v(U))
        A.I("s_waitcnt", "lgkmcnt(0)")
        for t in range(8):
            for q in range(2):
                A.I("ds_read_b64_tr_b16", v(WB + 4 * t + 2 * q, 2), v(7), mods=off(t * 32 + q * 4096))
            if t == 3: A.I("s_waitcnt", "lgkmcnt(0)")
        for i in range(8):
            A.I("v_mul_f32", v(GG + i), v(GG + i), v(UU + i))
        HA = 48
        for i in range(4):
            A.I("v_cvt_pk_bf16_f32", v(HA + i), v(GG + 2 * i), v(GG + 2 * i + 1))
        A.I("s_waitcnt", "lgkmcnt(0)")
        Y = 56
        for t in range(8):
            A.I(MF, v(Y + 4 * t, 4), v(HA, 4), v(WB + 4 * t, 4), 0)
        A.I("v_cmp_eq_u32", "vcc", 0, v(G))
        A.I("v_lshlrev_b32", v(T), 11, v(G))
        A.I("v_lshl_add_u32", v(T), v(C), 2, v(T))
        A.I("s_lshl_b32", s(sT0), s(self.sJ), 12)
        A.I("s_lshl_b32", s(sT1), s(self.sWV), 9)
        A.I("s_add_u32", s(sT0), s(sT0), s(sT1))
        A.I("s_add_u32", s(sT0), s(sT0), hex(WS_FY))
        for t in range(8):
            A.I("v_cndmask_b32", v(Y + 4 * t), v(Y + 4 * t + 1), v(Y + 4 * t), "vcc")
        A.I("s_mov_b32", "exec_hi", 0)
        for t in range(8):
            A.I("buffer_store_dword", v(Y + 4 * t), v(T), s(self.S_WS, 4), s(sT0), mods=mods("offen", off(64 * t), self.stmod))
        A.I("s_mov_b64", "exec", -1)

class Final:
    S_WS = 8; S_OUT = 16
    NWG = 8
    sK1, sK2, sT0, sT1 = 69, 70, 71, 72
    def __init__(self, A, ldmod="sc1"):
        self.A = A; self.ldmod = ldmod

    def pre(self, sI):
        A = self.A
        sK1, sK2, sT0, sT1 = self.sK1, self.sK2, self.sT0, self.sT1
        srd(A, self.S_OUT, 96, 2 << 20)
        L, U, KEY, RO, FO = 3, 4, 5, 6, 7
        A.I("v_and_b32", v(L), 63, v(0))
        A.I("s_cmp_lt_u32", s(sGW), 2)
        A.I("s_cselect_b32", s(sT0), s(sK1), s(sK2))
        A.I("v_mov_b32", v(KEY), s(sT0))
        A.I("s_and_b32", s(sT0), s(sT0), 2047)
        A.I("s_sub_u32", s(sT0), 2047, s(sT0))
        A.I("s_lshl_b32", s(sT0), s(sT0), 10)
        A.I("s_lshl_b32", s(sT1), s(sI), 1)
        A.I("s_and_b32", s(sPT0), s(sGW), 1)
        A.I("s_add_u32", s(sT1), s(sT1), s(sPT0))
        A.I("s_lshl_b32", s(sPT0), s(sT1), 6)
        A.I("s_add_u32", s(sT0), s(sT0), s(sPT0))
        A.I("v_and_b32", v(U), 7, v(L))
        A.I("v_lshlrev_b32", v(RO), 3, v(U))
        A.I("v_add_u32", v(RO), s(sT0), v(RO))
        A.I("v_lshrrev_b32", v(FO), 3, v(L))
        A.I("v_lshlrev_b32", v(FO), 12, v(FO))
        A.I("v_lshl_add_u32", v(FO), v(U), 4, v(FO))
        A.I("s_lshl_b32", s(sT1), s(sT1), 7)
        A.I("s_lshr_b32", s(sPT0), s(sGW), 1)
        A.I("s_lshl_b32", s(sPT0), s(sPT0), 11)
        A.I("s_add_u32", s(sT1), s(sT1), s(sPT0))
        A.I("v_add_u32", v(FO), s(sT1), v(FO))
        A.I("s_mov_b32", s(sT0), hex(WS_H))
        A.I("s_mov_b32", s(sT1), hex(WS_HN))
        A.I("buffer_load_dwordx2", v(8, 2), v(RO), s(self.S_WS, 4), s(sT0), mods=mods("offen", self.ldmod))
        A.I("buffer_load_dwordx2", v(10, 2), v(RO), s(self.S_WS, 4), s(sT1), mods=mods("offen", self.ldmod))
        A.I("v_and_b32", v(KEY), "0xffff0000", v(KEY))
        A.I("v_ashrrev_i32", v(U), 31, v(KEY))
        A.I("v_not_b32", v(U), v(U))
        A.I("v_or_b32", v(U), "0x80000000", v(U))
        A.I("v_xor_b32", v(KEY), v(KEY), v(U))
        A.I("v_and_b32", v(KEY), "0xffff0000", v(KEY))
        sigmoid(A, 22, KEY, 23)
        bf16r(A, 22, 22)

    def post(self):
        A = self.A
        sT0 = self.sT0
        RO, FO, P = 6, 7, 32
        A.I("s_mov_b32", s(sT0), hex(WS_FY))
        for j in range(NFW // 8):
            A.I("buffer_load_dwordx4", v(P + 4 * j, 4), v(FO), s(self.S_WS, 4), s(sT0), mods=mods("offen", self.ldmod))
            A.I("s_add_u32", s(sT0), s(sT0), 32768)
        Hh, N = 12, 16
        A.I("s_waitcnt", f"vmcnt({NFW // 8})")
        for i in range(2):
            A.I("v_lshlrev_b32", v(Hh + 2 * i), 16, v(8 + i))
            A.I("v_and_b32", v(Hh + 2 * i + 1), "0xffff0000", v(8 + i))
            A.I("v_lshlrev_b32", v(N + 2 * i), 16, v(10 + i))
            A.I("v_and_b32", v(N + 2 * i + 1), "0xffff0000", v(10 + i))
        A.I("s_waitcnt", "vmcnt(0)")
        for j in range(1, NFW // 8):
            A.I("v_pk_add_f32", v(P, 2), v(P, 2), v(P + 4 * j, 2))
            A.I("v_pk_add_f32", v(P + 2, 2), v(P + 2, 2), v(P + 4 * j + 2, 2))
        for i in range(4):
            A.I("v_add_f32_dpp", v(P + i), v(P + i), v(P + i), mods="row_ror:8 row_mask:0xf bank_mask:0xf")
        for i in range(4):
            xor_reduce(A, "v_add_f32", P + i, 24)
        for i in range(4):
            bf16r(A, P + i, P + i)
            A.I("v_mul_f32", v(P + i), v(22), v(P + i))
            bf16r(A, P + i, P + i)
            A.I("v_add_f32", v(P + i), v(N + i), v(P + i))
            bf16r(A, P + i, P + i)
            A.I("v_add_f32", v(P + i), v(Hh + i), v(P + i))
        A.I("v_cvt_pk_bf16_f32", v(200), v(P), v(P + 1))
        A.I("v_cvt_pk_bf16_f32", v(201), v(P + 2), v(P + 3))
        A.I("v_mov_b32", v(202), v(RO))

    def store(self):
        A = self.A
        A.I("s_mov_b32", "exec_lo", "0xff")
        A.I("s_mov_b32", "exec_hi", 0)
        A.I("buffer_store_dwordx2", v(200, 2), v(202), s(self.S_OUT, 4), 0, mods="offen")
        A.I("s_mov_b64", "exec", -1)
```

```python
import sys
from asmgen import *
from layout import *
from common import *
import chain6 as C
import phase1 as P1
import phase2 as P2
import tail as TL

HEAD = open("sequential_preLN__memory_aug_recurrent_mem_tr__moe_arch_mod__prompt.s.ref").read().split("; Override launch")[0]

KNAME = "sequential_preLN__memory_aug_recurrent_mem_tr__moe_arch_mod__prompt_kernel"
DB_GARR, DB_MODE, DB_CTRL, DB_TICK, DB_XCD = 32, 36, 40, 44, 64
FB_OFF = 0x7000000

def entry_warm(A, mats=(0, 1, 2, 3)):
    A.I("s_load_dwordx4", s(20, 4), s(0, 2), 16)
    A.I("s_load_dwordx4", s(24, 4), s(0, 2), 32)
    A.I("v_lshlrev_b32", v(3), 6, v(0))
    A.I("s_lshl_b32", s(28), s(2), 14)
    A.I("s_cmp_eq_u32", s(84), 0)
    A.I("s_cselect_b32", s(14), 0, hex(4 << 20))
    A.I("s_mov_b32", s(15), "0x20000")
    A.I("s_waitcnt", "lgkmcnt(0)")
    for i in mats:
        A.I("s_mov_b32", s(12), s(20 + 2 * i))
        A.I("s_and_b32", s(13), s(21 + 2 * i), "0xffff")
        A.I("buffer_load_dword", v(255), v(3), s(12, 4), s(28), mods="offen")
    return len(mats)

def staged_warm(A, stages, depth, first=96):
    l = A.newlabel("nowarm")
    A.I("s_sub_u32", s(28), s(sGB), first)
    A.I("s_cmp_ge_u32", s(28), 128)
    A.I("s_cbranch_scc1", l)
    A.I("s_load_dwordx4", s(20, 4), s(0, 2), 16)
    A.I("s_load_dwordx4", s(24, 4), s(0, 2), 32)
    restore_tid(A)
    A.I("v_lshlrev_b32", v(3), 6, v(0))
    A.I("s_lshr_b32", s(29), s(28), 5)
    A.I("s_lshl_b32", s(29), s(29), 19)
    A.I("s_lshl_b32", s(28), s(28), 14)
    A.I("s_add_u32", s(29), s(29), s(28))
    A.I("s_mov_b32", s(14), hex(4 << 20))
    A.I("s_mov_b32", s(15), "0x20000")
    A.I("s_waitcnt", "lgkmcnt(0)")
    for n, x in enumerate(stages.split()):
        m, b = "qkvo".index(x[0]), int(x[1])
        A.I("s_mov_b32", s(12), s(20 + 2 * m))
        A.I("s_and_b32", s(13), s(21 + 2 * m), "0xffff")
        A.I("s_add_u32", s(30), s(28 if m == 3 else 29), hex(b << (21 if m == 3 else 19)))
        if n >= depth: A.I("s_waitcnt", f"vmcnt({depth - 1})")
        A.I("buffer_load_dword", v(255), v(3), s(12, 4), s(30), mods="offen")
    A.label(l)
    A.reset_haz()

def entry_code(A):
    A.I("v_lshlrev_b32", v(3), 6, v(0))
    A.I("s_lshr_b32", s(28), s(2), 3)
    A.I("s_mul_i32", s(29), s(28), 52)
    A.I("s_lshr_b32", s(29), s(29), 8)
    A.I("s_mul_i32", s(29), s(29), 5)
    A.I("s_sub_u32", s(28), s(28), s(29))
    A.I("s_min_u32", s(28), s(28), 4)
    A.I("s_lshl_b32", s(28), s(28), 14)
    code_touch(A, KNAME, 30, 3, 254, back=True, extra=s(28))
    return 1

def bcast_atomic(A, off_s_or_imm, sdst, lds_slot, mid=None):
    l = A.newlabel("at")
    A.I("s_cmp_lg_u32", s(sGW), 0)
    A.I("s_cbranch_scc1", l)
    A.I("s_mov_b64", "exec", 1)
    A.I("v_mov_b32", v(2), 1)
    A.I("buffer_atomic_add", v(2), "off", s(S_DBGG, 4), off_s_or_imm, mods="sc0")
    A.I("s_mov_b64", "exec", -1)
    A.label(l)
    l = A.newlabel("at2")
    nm = sum(m(A) for m in mid or [])
    A.I("s_cmp_lg_u32", s(sGW), 0)
    A.I("s_cbranch_scc1", l)
    A.I("s_mov_b64", "exec", 1)
    A.I("v_mov_b32", v(1), lds_slot)
    A.I("s_waitcnt", f"vmcnt({nm})")
    A.I("ds_write_b32", v(1), v(2))
    A.I("s_waitcnt", "lgkmcnt(0)")
    A.I("s_mov_b64", "exec", -1)
    A.label(l)
    A.I("s_barrier")
    A.I("v_mov_b32", v(1), lds_slot)
    A.I("ds_read_b32", v(2), v(1))
    A.I("s_waitcnt", "lgkmcnt(0)")
    A.I("v_readfirstlane_b32", s(sdst), v(2))

def wait_mode(A, sdst, vt):
    lp = A.newlabel("mode"); ld = A.newlabel("moded"); lf = A.newlabel("modef")
    A.I("s_mov_b32", s(sPT0), 0)
    A.label(lp)
    A.I("buffer_load_dwordx2", v(vt, 2), "off", s(S_DBGG, 4), 0, mods=f"offset:{DB_MODE} sc1")
    A.I("s_waitcnt", "vmcnt(0)")
    A.I("v_readfirstlane_b32", s(sdst), v(vt))
    A.I("v_readfirstlane_b32", s(sPT1), v(vt + 1))
    A.I("s_min_u32", s(sPT1), s(sPT1), s(sdst))
    A.I("s_cmp_lg_u32", s(sPT1), 0)
    A.I("s_cbranch_scc1", ld)
    A.I("s_sleep", 4)
    A.I("s_add_u32", s(sPT0), s(sPT0), 1)
    A.I("s_cmp_lg_u32", s(sPT0), hex(1 << 8))
    A.I("s_cbranch_scc1", lf)
    A.I("v_mov_b32", v(vt), 2)
    A.I("v_mov_b32", v(vt + 1), 0)
    A.I("s_mov_b64", "exec", 1)
    A.I("buffer_atomic_cmpswap", v(vt, 2), "off", s(S_DBGG, 4), 0, mods=f"offset:{DB_MODE}")
    A.I("s_mov_b64", "exec", -1)
    A.label(lf)
    A.I("s_cmp_lt_u32", s(sPT0), hex(POLL_MAX))
    A.I("s_cbranch_scc1", lp)
    A.label(ld)
    A.reset_haz()

def k_mega(A, force_fb=False, **kw):
    name = KNAME
    kernel_header(A, name)
    sX, sR, sG, sMODE = 84, 85, 86, 87
    A.I("s_cmp_ge_u32", s(2), 256)
    A.I("s_cbranch_scc1", "L_exit")
    if PROF[0]: A.I("s_memrealtime", s(82, 2))
    A.I("s_load_dwordx2", s(8, 2), s(0, 2), 112)
    A.I("s_load_dwordx2", s(S_DBGG, 2), s(0, 2), 104)
    A.I("s_load_dwordx8", s(60, 8), s(0, 2), 16)
    A.I("s_load_dwordx2", s(P1.S_X, 2), s(0, 2), 0)
    A.I("v_lshrrev_b32", v(1), 6, v(0))
    A.I("v_readfirstlane_b32", s(sGW), v(1))
    A.I("s_getreg_b32", s(sX), "hwreg(HW_REG_XCC_ID)")
    A.I("s_and_b32", s(sX), s(sX), 7)
    A.I("s_lshr_b32", s(sR), s(2), 3)
    A.I("s_mov_b32", s(sG), s(sGW))
    A.I("s_cmp_eq_u32", s(2), kw.get('zwg', 7))
    A.I("s_cbranch_scc1", "L_zero")
    A.label("L_noz")
    A.reset_haz()
    A.I("s_cmp_lg_u32", s(sX), 0)
    A.I("s_cbranch_scc1", "L_other")

    def entry_fin():
        for sd, n in ((8, 0x10000000), (S_DBGG, 256)):
            A.I("s_and_b32", s(sd + 1), s(sd + 1), "0xffff")
            A.I("s_mov_b32", s(sd + 2), hex(n))
            A.I("s_mov_b32", s(sd + 3), "0x20000")
        A.I("s_mov_b32", s(sMODE), 0)
        l = A.newlabel("reg")
        A.I("s_cmp_lg_u32", s(sG), 0)
        A.I("s_cbranch_scc1", l)
        A.I("s_lshl_b32", s(sPT1), s(sX), 4)
        A.I("s_lshl_b32", s(sPT0), 1, s(sR))
        A.I("v_mov_b32", v(250), s(sPT0))
        A.I("v_mov_b32", v(251), 256)
        A.I("s_mov_b64", "exec", 1)
        A.I("buffer_atomic_add_x2", v(250, 2), "off", s(S_DBGG, 4), s(sPT1), mods=f"offset:{DB_XCD}")
        A.I("s_mov_b64", "exec", -1)
        A.I("s_mov_b32", s(sG), 1)
        A.label(l)

    def zero_block():
        A.label("L_zero")
        A.reset_haz()
        A.I("s_waitcnt", "lgkmcnt(0)")
        entry_fin()
        for i in range(4):
            A.I("v_mov_b32", v(4 + i), 0)
        A.I("v_lshlrev_b32", v(1), 4, v(0))
        for i in range(CT_SIZE // 4096):
            A.I("s_mov_b32", s(sPT1), hex(WS_CTRL + i * 4096))
            A.I("buffer_store_dwordx4", v(4, 4), v(1), s(8, 4), s(sPT1), mods="offen sc1")
        A.I("s_waitcnt", "vmcnt(0)")
        A.I("s_barrier")
        set_flag(A, S_DBGG, DB_CTRL, 2)
        A.I("s_cmp_lg_u32", s(sGW), 0)
        A.I("s_cbranch_scc1", "L_noz")
        A.I("s_mov_b64", "exec", "0xff")
        A.I("s_mov_b32", s(sPT0), 0)
        A.label("L_count")
        A.I("buffer_load_dwordx2", v(2, 2), v(1), s(S_DBGG, 4), 0, mods=f"offen offset:{DB_XCD} sc1")
        A.I("s_waitcnt", "vmcnt(0)")
        A.I("v_cmp_le_u32", "vcc", 32 << 8, v(3))
        A.I("v_add_u32", v(2), 1, v(2))
        A.I("v_xor_b32", v(3), (33 if force_fb else 32) << 8, v(3))
        A.I("v_or_b32", v(2), v(2), v(3))
        A.I("s_mov_b32", s(4), "vcc_lo")
        A.I("v_cmp_eq_u32", "vcc", 0, v(2))
        A.I("v_mov_b32", v(2), 1)
        A.I("s_nop", 1)
        A.I("s_cmp_eq_u32", "vcc_lo", "0xff")
        A.I("s_cbranch_scc1", "L_propose")
        A.I("v_mov_b32", v(2), 2)
        A.I("s_andn2_b32", s(4), s(4), "vcc_lo")
        A.I("s_cbranch_scc1", "L_propose")
        A.I("s_sleep", 2)
        A.I("s_add_u32", s(sPT0), s(sPT0), 1)
        A.I("s_cmp_lt_u32", s(sPT0), hex(1 << 8))
        A.I("s_cbranch_scc1", "L_count")
        A.label("L_propose")
        A.I("v_mov_b32", v(3), 0)
        A.I("s_mov_b64", "exec", 1)
        A.I("buffer_atomic_cmpswap", v(2, 2), "off", s(S_DBGG, 4), 0, mods=f"offset:{DB_MODE}")
        A.I("s_mov_b64", "exec", -1)
        A.I("s_branch", "L_noz")

    def kv_wait(ch, first=True, mask=0x00010001):
        t0, t1 = (1, 2) if first else (8, 9)
        A.I("v_lshrrev_b32", v(t0), 4, v(C.vL16))
        A.I("v_and_b32", v(t1), 15, v(t0))
        A.I("v_lshrrev_b32", v(t0), 4, v(t0))
        A.I("v_lshlrev_b32", v(t0), 11, v(t0))
        A.I("v_lshl_add_u32", v(t0), v(t1), 2, v(t0))
        A.I("s_lshl_b32", s(C.sT0), s(C.sH), 6)
        A.I("s_add_u32", s(C.sT0), s(C.sT0), hex(WS_CTRL + CT_F1))
        wait_words(A, C.S_WS, t0, s(C.sT0), 32, 1, t1, sleep=8, barrier=False, mask=mask)

    def chain_role(fast):
        def fin():
            if fast: entry_fin()
            for i in range(4):
                A.I("s_mov_b32", s(C.S_DBG + i), s(S_DBGG + i))
            A.I("s_mov_b32", s(sPID), s(C.sH))
            ts(A, 0, 24)
            if PROF[0]:
                A.I("s_lshl_b32", s(89), s(sPID), 8)
                A.I("s_add_u32", s(89), s(89), hex(WS_TS + 4 * 5))
                A.I("v_mov_b32", v(24), s(82))
                A.I("buffer_store_dword", v(24), "off", s(8, 4), s(89))
                A.I("v_mov_b32", v(24), s(2))
                A.I("buffer_store_dword", v(24), "off", s(8, 4), s(89), mods="offset:4")
        def pre(ch):
            ts(A, 1, 3)
            if fast:
                wait_mode(A, sMODE, 2)
                A.I("s_cmp_lg_u32", s(sMODE), 1)
                A.I("s_cbranch_scc1", "L_fallback")
            kv_wait(ch)
            ts(A, 2, 3)
        ch = C.Chain(A, sc="" if fast else "sc1", tag="f" if fast else "s", wsoff=0 if fast else FB_OFF, cbar=4 if fast else 8, pre_start=pre, kvcheck=True, gate=DB_MODE, wptr=fast, fin=fin, **kw)
        ch.lane_consts()
        ch.load_weights()
        if PROF[0] and kw.get('marks'):
            A.I("s_lshl_b32", s(89), s(sPID), 8)
            A.I("s_lshl_b32", s(78), s(sGW), 5)
            A.I("s_add_u32", s(89), s(89), s(78))
            A.I("s_add_u32", s(89), s(89), hex(WS_TS + 4 * 32))
            for i in range(5):
                A.I("v_mov_b32", v(3), s((68, 70, 72, 74, 80)[i]))
                A.I("buffer_store_dword", v(3), "off", s(8, 4), s(89), mods=f"offset:{4 * i}")
            A.I("v_mov_b32", v(3), s(82))
            A.I("buffer_store_dword", v(3), "off", s(8, 4), s(89), mods=f"offset:{4 * 5}")
        ch.prologue()
        ts(A, 3, 3)
        if PROF[0]:
            A.I("s_memtime", s(78, 2))
            A.I("s_waitcnt", "lgkmcnt(0)")
        ch.step_loop()
        if PROF[0]: A.I("s_mov_b32", s(sPID), s(C.sH))
        ts(A, 4, 3)
        if PROF[0]:
            A.I("s_memtime", s(80, 2))
            A.I("s_lshl_b32", s(C.sT0), s(C.sH), 2)
            A.I("s_add_u32", s(C.sT0), s(C.sT0), s(C.sWV))
            A.I("s_lshl_b32", s(C.sT0), s(C.sT0), 5)
            A.I("s_add_u32", s(C.sT0), s(C.sT0), hex(WS_TS + 0x100000))
            A.I("s_waitcnt", "lgkmcnt(0)")
            A.I("s_sub_u32", s(80), s(80), s(78))
            for i, r in enumerate((80, C.sNRM, C.sNRR, C.sNRF)):
                A.I("v_mov_b32", v(1), s(r))
                A.I("buffer_store_dword", v(1), "off", s(C.S_WS, 4), s(C.sT0), mods=f"offset:{4 * i}")
        if kw.get("wb"):
            l = A.newlabel("nowb")
            A.I("s_add_u32", s(C.sT0), s(C.sH), s(C.sWV))
            A.I("s_cmp_lg_u32", s(C.sT0), 0)
            A.I("s_cbranch_scc1", l)
            A.I("buffer_wbl2", mods="sc1")
            A.I("s_waitcnt", "vmcnt(0)")
            A.label(l)
        A.I("s_endpgm")
        return ch

    A.I("s_xor_b32", s(C.sH), s(sR), kw.get('hx', 0))
    chf = chain_role(True)
    chf.emit_ool()
    zero_block()
    A.label("L_fallback")
    A.reset_haz()
    A.I("s_mov_b32", s(sMODE), 2)
    A.I("s_waitcnt", "vmcnt(0) lgkmcnt(0)")
    A.I("s_barrier")
    restore_tid(A)
    A.I("s_mov_b32", s(sPT1), DB_TICK)
    bcast_atomic(A, s(sPT1), sR, 8)
    A.I("s_barrier")
    A.I("s_sub_u32", s(sGB), s(sR), 32)
    A.I("s_cmp_ge_u32", s(sR), 32)
    A.I("s_cbranch_scc1", "L_bulk")
    A.I("s_mov_b32", s(C.sH), s(sR))
    chs = chain_role(False)
    chs.emit_ool()
    A.label("L_bulk")
    A.reset_haz()
    P1.pointers(A)
    A.I("s_branch", "L_bulk2")
    A.raw(".p2align 7")
    A.label("L_other")
    A.reset_haz()
    A.I("s_sub_u32", s(sGB), s(sX), 1)
    A.I("s_lshl_b32", s(sGB), s(sGB), 5)
    A.I("s_add_u32", s(sGB), s(sGB), s(sR))
    if kw.get('bcode'):
        A.I("s_cmp_ge_u32", s(sR), kw['bcode'][0])
        A.I("s_cbranch_scc1", "L_nobc")
        A.I("v_lshlrev_b32", v(1), kw['bcode'][1], v(0))
        A.I("s_lshl_b32", s(sPT0), s(sR), 8 + kw['bcode'][1])
        code_touch(A, "L_bulk2", 4, 1, 255, extra=s(sPT0))
        A.label("L_nobc")
    A.I("s_waitcnt", "lgkmcnt(0)")
    entry_fin()
    A.label("L_bulk2")
    A.reset_haz()
    A.I("s_add_u32", s(sPID), s(sGB), 32)
    ts(A, 0)
    if kw.get('sw'): staged_warm(A, *kw['sw'])
    NURG = 3
    def pass_b():
        A.I("s_mov_b32", s(P1.sPASS), 1)
        A.I("s_and_b32", s(P1.sRB), s(sGB), 15)
        A.I("s_lshr_b32", s(P1.sCG), s(sGB), 4)
        A.I("s_mov_b32", s(P1.sSTR), 14)
        A.I("s_add_u32", s(P1.sT0), s(P1.sCG), 70)
        A.I("s_add_u32", s(P1.sT1), s(P1.sCG), 56)
        A.I("s_cmp_ge_u32", s(P1.sT1), 64)
        A.I("s_cselect_b32", s(P1.sT0), s(P1.sT1), s(P1.sT0))
        A.I("s_add_u32", s(P1.sT1), s(P1.sCG), 42)
        A.I("s_add_u32", s(P1.sT2), s(P1.sCG), 28)
        A.I("s_cmp_ge_u32", s(P1.sT2), 32)
        A.I("s_cselect_b32", s(P1.sT1), s(P1.sT2), s(P1.sT1))
        A.I("s_cmp_eq_u32", s(P1.sRB), NURG)
        A.I("s_cselect_b32", s(P1.sCG), s(P1.sT1), s(P1.sCG))
        A.I("s_cmp_lt_u32", s(P1.sRB), NURG)
        A.I("s_cselect_b32", s(P1.sCG), s(P1.sT0), s(P1.sCG))
    def pass_b2():
        A.I("s_mov_b32", s(P1.sPASS), 1)
        A.I("s_mul_i32", s(P1.sCG), s(sGB), 171)
        A.I("s_lshr_b32", s(P1.sCG), s(P1.sCG), 11)
        A.I("s_mul_i32", s(P1.sT0), s(P1.sCG), 12)
        A.I("s_sub_u32", s(P1.sRB), s(sGB), s(P1.sT0))
        A.I("s_add_u32", s(P1.sRB), s(P1.sRB), 4)
        A.I("s_mul_i32", s(P1.sT1), s(sGB), 683)
        A.I("s_lshr_b32", s(P1.sT1), s(P1.sT1), 11)
        A.I("s_mul_i32", s(P1.sT0), s(P1.sT1), 3)
        A.I("s_sub_u32", s(P1.sT0), s(sGB), s(P1.sT0))
        A.I("s_cmp_eq_u32", s(P1.sT0), 2)
        A.I("s_cselect_b32", s(P1.sT2), 10, 11)
        A.I("s_cmp_ge_u32", s(sGB), 192)
        A.I("s_cselect_b32", s(P1.sRB), s(P1.sT0), s(P1.sRB))
        A.I("s_cselect_b32", s(P1.sCG), s(P1.sT1), s(P1.sCG))
        A.I("s_cselect_b32", s(P1.sSTR), s(P1.sT2), 16)
        cover = set()
        for g in range(224):
            cg = g * 171 >> 11; rb = g - 12 * cg + 4; st = 16
            if g >= 192:
                cg = g * 683 >> 11; rb = g - 3 * cg; st = 10 if rb == 2 else 11
            for u in list(range(cg, 96, st)) + [(g >> 6, m) for m in range(g & 63, 96, 32 if g >= 192 else 1000)]:
                u = u if isinstance(u, tuple) else (rb, u)
                assert u not in cover
                cover.add(u)
        assert len(cover) == 16 * 96
    if kw.get('bal', True): pass_b = pass_b2
    A.I("s_mov_b32", s(P1.sPASS), 0)
    A.I("s_lshr_b32", s(P1.sRB), s(sGB), 6)
    A.I("s_and_b32", s(P1.sCG), s(sGB), 63)
    A.I("s_cmp_ge_u32", s(sGB), 192 if kw.get('bal', True) else 1000)
    A.I("s_cselect_b32", s(P1.sSTR), 32, 1000)
    A.label("L_p1go")
    def next_pass(LP):
        A.I("s_cmp_lg_u32", s(P1.sPASS), 0)
        A.I("s_cbranch_scc1", "L_p1done")
        if kw.get('pbw'):
            A.I("v_mov_b32", v(1), 4 if kw['pbw'] > 0 else 0)
            A.I("s_and_b32", s(P1.sT0), s(sGB), 15)
            A.I("s_lshl_b32", s(P1.sT0), s(P1.sT0), 7)
            A.I("s_add_u32", s(P1.sT0), s(P1.sT0), hex(WS_CTRL + CT_PROG))
            wait_words(A, 8, 1, s(P1.sT0), 1, 1, 2, sleep=abs(kw['pbw']))
        pass_b()
        A.I("s_branch", LP)
        A.label("L_p1done")
        A.reset_haz()
    def ffn_warm():
        l = A.newlabel("nofw")
        A.I("s_and_b32", s(P1.sT0), s(sGB), 3)
        A.I("s_add_u32", s(P1.sT0), s(P1.sT0), kw['fw'])
        A.I("s_cmp_lg_u32", s(P1.sT0), s(80))
        A.I("s_cbranch_scc1", l)
        A.I("s_load_dwordx4", s(48, 4), s(0, 2), 72)
        A.I("s_load_dwordx2", s(4, 2), s(0, 2), 88)
        A.I("v_lshlrev_b32", v(P1.vT), 3, v(P1.vL16))
        A.I("s_lshl_b32", s(P1.sT0), s(sGB), 13)
        A.I("s_waitcnt", "lgkmcnt(0)")
        for i in range(2):
            A.I("s_cmp_eq_u32", s(sGW), i)
            A.I("s_cselect_b64", s(4, 2), s(48 + 2 * i, 2), s(4, 2))
        A.I("s_and_b32", s(5), s(5), "0xffff")
        A.I("s_cmp_eq_u32", s(sGW), 3)
        A.I("s_cselect_b32", s(6), 0, 512 * 3584)
        A.I("s_mov_b32", s(7), "0x20000")
        for i in range(2): A.I("buffer_load_dword", v(143), v(P1.vT), s(4, 4), s(P1.sT0), mods=mods("offen", off(64 * i)))
        A.label(l)
    def pre_flag():
        l = A.newlabel("modeok")
        A.I("s_cmp_lg_u32", s(sMODE), 0)
        A.I("s_cbranch_scc1", l)
        if kw.get('mpre'):
            A.I("v_readfirstlane_b32", s(sPT0), v(140))
            A.I("v_readfirstlane_b32", s(sPT1), v(141))
            A.I("s_cmp_lg_u32", s(sPT1), 0)
            A.I("s_cselect_b32", s(sMODE), s(sPT0), 0)
            A.I("s_cmp_eq_u32", s(sMODE), 1)
            A.I("s_cbranch_scc1", l)
        wait_mode(A, sMODE, 140)
        A.I("s_cmp_lg_u32", s(sMODE), 1)
        A.I("s_cbranch_scc1", "L_fallback")
        A.label(l)
    P1.Phase1(A, xt=kw.get('xt'), rot=kw.get('krot'), spread=kw.get('spread'), wfrom=kw.get('wfrom', 0), xdrop=kw.get('xdrop'), rr=kw.get('rr'), trickle=kw.get('tr', 0)).body(stmod="sc1", flags=True, pre_flag=pre_flag, warm_id=sGB, next_pass=next_pass, warm=kw.get('pwm', {}), unit_top=ffn_warm if kw.get('fw') else None,
        after_ln=(lambda: A.I("buffer_load_dwordx2", v(140, 2), "off", s(S_DBGG, 4), 0, mods=f"offset:{DB_MODE} sc1")) if kw.get('mpre') else None, sent=kw.get('kms'))
    ts(A, 2)
    restore_tid(A)
    if kw.get('gm') == 2:
        A.I("s_lshr_b32", s(sPT0), s(sGB), 4)
        A.I("s_lshl_b32", s(sPT0), s(sPT0), 2)
        A.I("s_mov_b32", s(4), hex(kw['gtab'] & 0xffffffff))
        A.I("s_mov_b32", s(5), hex(kw['gtab'] >> 32))
        A.I("s_lshr_b64", s(4, 2), s(4, 2), s(sPT0))
        A.I("s_and_b32", s(sPT0), s(4), 15)
        A.I("s_lshl_b32", s(sPT0), s(sPT0), 4)
        A.I("s_and_b32", s(sGB), s(sGB), 15)
        A.I("s_or_b32", s(sGB), s(sGB), s(sPT0))
        A.I("s_add_u32", s(sPID), s(sGB), 32)
        assert sorted(kw['gtab'] >> 4 * i & 15 for i in range(14)) == list(range(14))
    if kw.get('gm') == 1:
        A.I("s_bfe_u32", s(sPT0), s(sGB), hex(0x10004))
        A.I("s_mul_i32", s(sPT0), s(sPT0), 7)
        A.I("s_lshr_b32", s(sPT1), s(sGB), 5)
        A.I("s_add_u32", s(sPT0), s(sPT0), s(sPT1))
        A.I("s_lshl_b32", s(sPT0), s(sPT0), 4)
        A.I("s_and_b32", s(sGB), s(sGB), 15)
        A.I("s_or_b32", s(sGB), s(sGB), s(sPT0))
        A.I("s_add_u32", s(sPID), s(sGB), 32)
    A.I("s_and_b32", s(P2.sHP), s(sGB), 15)
    A.I("s_lshr_b32", s(P2.sSEG), s(sGB), 4)
    A.I("s_mov_b32", s(P2.sSTR), 14)
    fin = TL.Finisher(A, stmod="sc1", home=(P2.vL16, 252, 236, 88), early=kw.get('ek'), thr=104 if kw.get('thr') else None)
    ffn = TL.FFN(A, stmod="sc1", poll=True)
    def stage():
        l = A.newlabel("nostage")
        A.I("s_sub_u32", s(ffn.sJ), s(sGB), 128)
        A.I("s_cmp_ge_u32", s(ffn.sJ), NFW)
        A.I("s_cbranch_scc1", l)
        if not kw.get('nostage') and not kw.get('lst'): ffn.stage()
        A.label(l)
        A.reset_haz()
    def late_stage():
        l = A.newlabel("nostage")
        A.I("s_cmp_ge_u32", s(ffn.sJ), NFW)
        A.I("s_cbranch_scc1", l)
        restore_tid(A)
        ffn.stage(80)
        A.label(l)
        A.reset_haz()
    P2.Phase2(A, stmod="sc1", progmask=0x11 if kw.get("flag0") else 0xff, sl=kw.get("sl", (8, 2)), kms=kw.get('kms'), pol=kw.get('pol'), smode=sMODE, um=kw.get('um'), half=kw.get('half'), xr=kw.get('xr')).mega(fin, after_setup=stage, lag=kw.get('lag'), slag=kw.get('slag'), late_stage=late_stage if kw.get('lst') else None)
    A.I("s_cmp_ge_u32", s(ffn.sJ), NFW)
    A.I("s_cbranch_scc1", "L_exit")
    ts(A, 5)
    sID, sRND = 74, 75
    A.I("s_mov_b32", s(sID), 0)
    A.I("s_mov_b32", s(sRND), 0)
    A.I("v_mov_b32", v(202), "0x7ffffff0")
    if kw.get('tcode'):
        restore_tid(A)
        A.I("v_lshlrev_b32", v(1), 6, v(0))
        code_touch(A, "L_ffn_round", 70, 1, 3)
    A.I("v_mov_b32", v(1), 0)
    A.I("s_and_b32", s(ffn.sT0), s(sGB), 15)
    A.I("s_lshl_b32", s(ffn.sT0), s(ffn.sT0), 7)
    A.I("s_add_u32", s(ffn.sT0), s(ffn.sT0), hex(WS_CTRL + CT_PROG))
    A.I("s_mov_b32", s(ffn.sT1), 57 if kw.get('ek') else 61)
    wait_words(A, 8, 1, s(ffn.sT0), 1, s(ffn.sT1), 2, sleep=16, paced=True)
    A.label("L_ffn_round")
    A.reset_haz()
    restore_tid(A)
    A.I("s_cmp_lg_u32", s(sRND), 0)
    A.I("s_cbranch_scc1", "L_ffn_re")
    ffn.select(sRND, 224 if kw.get('ek') else 240)
    if kw.get('thr'):
        A.I("s_cmp_lg_u32", s(ffn.sJ), NFW - 1)
        A.I("s_cbranch_scc1", "L_ffn_sel")
        A.I("s_mov_b32", s(ffn.sT0), hex(WS_CTRL + CT_THR))
        set_flag(A, 8, s(ffn.sT0), 2, val=s(ffn.sK2))
    A.I("s_branch", "L_ffn_sel")
    A.label("L_ffn_re")
    A.reset_haz()
    ffn.reselect(sRND if kw.get('ek') else None, one=kw.get('one'), sleep=kw.get('rsl', 3), thr=kw.get('thr'))
    A.label("L_ffn_sel")
    A.reset_haz()
    A.I("s_and_b32", s(ffn.sT0), s(ffn.sK1), 2047)
    A.I("s_lshl_b32", s(ffn.sT0), s(ffn.sT0), 11)
    A.I("s_and_b32", s(ffn.sT1), s(ffn.sK2), 2047)
    A.I("s_or_b32", s(ffn.sT0), s(ffn.sT0), s(ffn.sT1))
    A.I("s_add_u32", s(ffn.sT0), s(ffn.sT0), 1)
    A.I("s_cmp_eq_u32", s(ffn.sT0), s(sID))
    A.I("s_cbranch_scc1", "L_ffn_same")
    A.I("s_mov_b32", s(sID), s(ffn.sT0))
    ffn.compute()
    A.I("s_waitcnt", "vmcnt(0)")
    A.I("s_barrier")
    A.I("s_lshl_b32", s(ffn.sT0), s(ffn.sJ), 2)
    A.I("s_lshl_b32", s(ffn.sT1), s(sRND), 8)
    A.I("s_add_u32", s(ffn.sT0), s(ffn.sT0), s(ffn.sT1))
    A.I("s_add_u32", s(ffn.sT0), s(ffn.sT0), hex(WS_CTRL + CT_F4))
    set_flag(A, 8, s(ffn.sT0), 2, val=s(sID))
    A.I("s_cmp_ge_u32", s(ffn.sJ), TL.Final.NWG)
    A.I("s_cbranch_scc1", "L_ffn_same")
    fnl = TL.Final(A)
    fnl.pre(ffn.sJ)
    A.I("v_lshlrev_b32", v(1), 2, v(0))
    A.I("s_lshl_b32", s(ffn.sT0), s(sRND), 8)
    A.I("s_add_u32", s(ffn.sT0), s(ffn.sT0), hex(WS_CTRL + CT_F4))
    wait_words(A, 8, 1, s(ffn.sT0), NFW, s(sID), 2, sleep=2, equal=True)
    fnl.post()
    A.label("L_ffn_same")
    A.reset_haz()
    ts(A, 5 if kw.get('ek') else 6, dyn=sRND)
    A.I("s_add_u32", s(sRND), s(sRND), 1)
    A.I("s_cmp_lt_u32", s(sRND), 3 if kw.get('ek') else 2)
    A.I("s_cbranch_scc1", "L_ffn_round")
    A.I("s_cmp_ge_u32", s(ffn.sJ), TL.Final.NWG)
    A.I("s_cbranch_scc1", "L_exit")
    fnl.store()
    A.I("s_waitcnt", "vmcnt(0)")
    ts(A, 8)
    A.label("L_exit")
    A.I("s_endpgm")
    code_end(A)
    return name, 256, 163840

def build_single(k):
    A = Asm()
    name, grid, lds = k(A)[:3]
    out = HEAD + f"; @launch grid=({grid},1,1) block=(256,1,1) lds={lds}\n"
    out += '.amdgcn_target "amdgcn-amd-amdhsa--gfx950"\n.text\n' + A.text()
    out += '.section .rodata,"a"\n' + kernel_desc(name)
    return out

def build(kernels):
    A = Asm()
    infos = []
    for k in kernels:
        infos.append(k(A))
    body = A.text()
    out = HEAD
    for info in infos:
        name, grid, lds = info[:3]
        out += f"; @launch kernel={name} grid=({grid},1,1) block=(256,1,1) lds={lds}\n"
    out += '.amdgcn_target "amdgcn-amd-amdhsa--gfx950"\n.text\n' + body
    out += '.section .rodata,"a"\n'
    for info in infos:
        out += kernel_desc(info[0], *info[3:])
    return out

CH = dict(sl=(4, 1), ek=1, one=1, kms=(2, 14), pol=(62, 1), um=1, xr=1, half=1, thr=1, rsl=1, flag0=True, rp=(50, 80), rg=(40, 30), wpad=31, kreg=False, lag=(17, 10), slag=(12, 14), lst=True, tcode=True, cc={-1: (0, 7), 12: (2, 6)}, hold=(12, 12),
          spread=(100, 50), wfrom=96, pwm={1300: (3,)}, bcode=(2, 6), mpre=True, seq='q0 q2 q1 q3 k0 k2 k1 k3 v0 v2 o0 o1 v1 v3 o2 o3', tc=(13,), t0=99, vhelp={-1: [('q', 1, 0), ('q', 1, 161)], 0: [('k', 0, 0)]})
if __name__ == "__main__":
    which = sys.argv[1] if len(sys.argv) > 1 else "mega"
    if len(sys.argv) > 2: CH.update(eval(sys.argv[2]))
    OUT = sys.argv[3] if len(sys.argv) > 3 else None
    if which == "mega":
        txt = build_single(lambda A: k_mega(A, **CH))
        open("sequential_preLN__memory_aug_recurrent_mem_tr__moe_arch_mod__prompt.s", "w").write(txt)
        open("mega.s", "w").write(build([lambda A: k_mega(A, **CH)]))
        open("megafb.s", "w").write(build([lambda A: k_mega(A, force_fb=True, **CH)]))
    if which == "dev":
        open(OUT, "w").write(build([lambda A: k_mega(A, **CH)]))
    if which == "var":
        open(OUT, "w").write(build_single(lambda A: k_mega(A, **CH)))
    if which == "prof":
        PROF[0] = True
        open(OUT or "prof.s", "w").write(build([lambda A: k_mega(A, **CH)]))
    if which == "dbgts":
        DBGTS[0] = {0: (0, 12), 3: (0, 13), 4: (0, 14), 8: (160, 15)}
        open(OUT or "dbgts.s", "w").write(build_single(lambda A: k_mega(A, **CH)))
```

```python
import math, struct
from asmgen import *
from layout import *
from common import ts, f2h, code_touch, mark

MBUF, KXB, VXB, WV = 0x0, 0x2000, 0x6000, 0x8000
XI, OI, FLG, ZRO = 0x4000, 0x5000, 0x5800, 0x5c00
PBPAR = 0x40000

S_WS = 8; S_W = 12; S_DBG = 16
sH, sWV, sSTEP = 20, 21, 22
sMBLD, sMBST = 23, 24
sPBST = 25
sTHR = 27
sKVF = 28
sPBLD = 29
sKXN, sVXN, sKM, sTAG = 30, 31, 32, 33
sC1, sBIG = 34, 35
sOMASK = 36
sRMASK = 38
sT1, sT2, sT3, sT0 = 40, 41, 42, 43
sFLAGOFF = 44
sNRM, sNRR = 45, 46
sNRF = 47
sNRX = 76
sMBLD2 = 48
sRETRY = 49
sONES = 50
sW1K, sW2K = 51, 52
sPBLD2 = 53
sLOGO = 54
sRST = 55
sSENT = 56
sOK = 57
sNEED = 58
sSEL = 92
sACC = 60

vM = 0; vQK = 32; vVA = 48; vWB = 56; vWA = 96; vPUB = 112
vIDX, vL16, vPBST, vMST, vXW, vXR, vOW, vWL, vWL2, vDUM, vFLG, vOR = range(116, 128)
vL4 = vMST; vSEL = vDUM
vWVR = 128; vWOR = 192
RETRY_MAX = 1 << 16
WE, WL_ = 2, 3

SMF = "v_smfmac_f32_16x16x64_bf16"; MF = "v_mfma_f32_16x16x32_bf16"; MF16 = "v_mfma_f32_16x16x16_bf16"

def home(mat, phi, slot):
    a_, fi = slot & 3, (slot >> 2) * 2 + phi
    if mat < 2:
        if a_ == 0: return ("lds", mat * 32768 + fi * 2048)
        return ("a", ((mat * 3 + a_ - 1) * 4 + fi) * 8)
    if a_ < 2: return ("a", 192 + (a_ * 4 + fi) * 8)
    return ("v", vWVR + ((a_ - 2) * 4 + fi) * 8)
def wo_home(T, j):
    if T < 2: return ("v", vWOR + (T * 4 + j) * 8)
    return ("lds", T * 32768 + j * 2048)
def reg8(h):
    return a(h[1], 8) if h[0] == "a" else v(h[1], 8)

class Chain:
    def __init__(self, A, sc, tag="f", **kw):
        self.A = A; self.sc = sc; self.tag = tag
        self.ool = []
        self.kw = kw
        self.x = kw.get('x', '')
        self.la = 4
        self.pollmod = kw.get('pollmod', 'nt') if not sc else 'sc1'
        self.align = kw.get('align', 0)
        self.cbar = kw.get('cbar', 4)
        self.flog = kw.get('flog', False)
        self.pubmod = 'sc1'
        self.wo = kw.get('wsoff', 0)
        self.pre_start = kw.get('pre_start')
        self.kvcheck = kw.get('kvcheck', False)
        self.skew = kw.get('skew', True)
        self.ring = kw.get('ring', True)
        self.merge = kw.get('merge', False)
        self.z = kw.get('z', (8, 24, 4, 24, 0))
        self.rp = kw.get('rp', (40, 65))
        self.lq = []; self.vq = []
        self.nfl = 0
        self.sSEL = sSEL if self.flog else 68
        self.sNRX = sNRF if self.flog else sNRX
        od = kw.get('order', 1)
        if od == 1: self.ORDER = [(0, 2), (0, 3), (1, 2), (1, 3), (2, 0), (2, 1), (2, 2), (2, 3), (3, 0), (3, 1), (1, 1), (0, 1), (0, 0), (1, 0), (3, 2), (3, 3)]
        if od == 2: self.ORDER = [(0, 2), (0, 3), (1, 2), (1, 3), (2, 0), (2, 1), (2, 2), (2, 3), (3, 0), (3, 1), (0, 1), (1, 1), (0, 0), (1, 0), (3, 2), (3, 3)]
        self.full = kw.get('full', True)
        if self.full: self.ORDER = [(0, 2), (0, 3), (1, 2), (1, 3), (2, 0), (2, 1), (2, 2), (2, 3), (0, 0), (1, 0), (3, 0), (3, 1), (0, 1), (1, 1), (3, 2), (3, 3)]
        self.wfull = kw.get('wfull', True) and self.full
        self.lr = False
        if kw.get('seq'):
            self.ORDER = [("qkvo".index(x[0]), int(x[1])) for x in kw['seq'].split()]
            o = self.ORDER
            self.lr = o[10:12] == [(3, 2), (3, 3)]
            assert sorted(o) == [(m, a_) for m in range(4) for a_ in range(4)]
            assert (3, 0) in o[12:] and (3, 1) in o[12:] if self.lr else o[14:] == [(3, 2), (3, 3)] and o[12][0] < 3 and o[13][0] < 3
            assert max(o.index((0, 0)), o.index((0, 1))) <= 12 and all(x[0] < 3 for x in o[:4])
        self.kreg = kw.get('kreg', True)
        if self.kreg:
            self.STG = {(0, 0, 0): 24, (0, 1, 0): 88, (1, 0, 0): 96, (1, 1, 0): 104, (1, 1, 4): 24, (0, 0, 4): 88, (0, 1, 4): 96, (1, 0, 4): 104}

    def mods(self, *m): return " ".join(x for x in m if x)
    def off(self, o): return f"offset:{o}" if o else ""

    def fl(self, i):
        if not isinstance(i, str): self.A.comment(f"@{i}")
        if self.flog == 2:
            if i == self.kw.get('probe2', 'h5'): i = 5
            elif i == 'h5': return
            elif isinstance(i, str): i = int(i[1:])
            elif i == self.kw.get('probe', 3): i = 3
            elif i not in (0, 1, 14, 15): return
        elif self.flog == 3:
            if i == 1:
                cnt = [0]
                def hook():
                    k = cnt[0]; cnt[0] += 1
                    if k == self.kw['poff']: self.A.raw(f"    s_memtime {s(sACC + 4, 2)}")
                self.A.mfhook = hook
            elif i == 14: self.A.mfhook = None
            elif i != 0: return
        elif isinstance(i, str): return
        if self.flog:
            self.A.I("s_memtime", s(sACC + 2 * i, 2)); self.nfl = max(self.nfl, i + 1)

    def fl_collect(self, vt):
        if not self.flog: return
        A = self.A
        if self.flog == 2: A.I("s_memrealtime", s(sACC + 4, 2))
        A.I("s_waitcnt", "lgkmcnt(0)")
        for i in range(16):
            if self.flog == 2 and i in (9, 10, 11): A.I("v_writelane_b32", v(vt), s((sNRM, sNRR, sNRF)[i - 9]), i)
            elif self.flog != 2 or i in (0, 1, 2, 3, 5, 6, 7, 8, 14, 15): A.I("v_writelane_b32", v(vt), s(sACC + 2 * i), i)
        A.I("v_lshrrev_b32", v(vt + 1), 2, v(vL16))
        A.I("s_mov_b64", "exec", "0xffff")
        A.I("buffer_store_dword", v(vt), v(vt + 1), s(S_WS, 4), s(sLOGO), mods="offen")
        A.I("s_mov_b64", "exec", -1)
        A.I("s_add_u32", s(sLOGO), s(sLOGO), 64)

    def ds(self, tag, op, *ops, mods=""):
        self.A.I(op, *ops, mods=mods)
        if tag is None: return
        self.lq.append(tag)
    def vm(self, tag, op, *ops, mods=""):
        self.A.I(op, *ops, mods=mods); self.vq.append(tag)
    def needl(self, tag):
        if tag not in self.lq: return
        i = len(self.lq) - 1 - self.lq[::-1].index(tag)
        self.lq = self.lq[i + 1:]
        assert len(self.lq) <= 15, self.lq
        self.A.I("s_waitcnt", f"lgkmcnt({len(self.lq)})")
    def needv(self, tag):
        if tag not in self.vq: return
        i = len(self.vq) - 1 - self.vq[::-1].index(tag)
        self.vq = self.vq[i + 1:]
        if "n" in self.x and tag in ("f0", "f1", "fd", "r0", "r1", "r2", "r3"): return
        self.A.I("s_waitcnt", f"vmcnt({len(self.vq)})")

    def needvl(self, vt, lt):
        n = len(self.A.out); t = self.A.t
        self.needv(vt); self.needl(lt)
        if len(self.A.out) == n + 2:
            b = self.A.out.pop(); self.A.out[-1] += " " + b.split()[-1]; self.A.t = t + 1

    def wread(self, tag, dst, ldsoff):
        base, o = (vWL, ldsoff) if ldsoff < 65536 else (vWL2, ldsoff - 65536)
        self.ds(tag, "ds_read_b128", v(dst, 4), v(base), mods=self.off(o))

    def lane_consts(self):
        A = self.A
        L, G, C, T, U, R = 1, 2, 3, 4, 5, 6
        A.I("v_lshrrev_b32", v(T), 6, v(0))
        A.I("v_readfirstlane_b32", s(sWV), v(T))
        A.I("v_and_b32", v(L), 63, v(0))
        A.I("v_lshrrev_b32", v(G), 4, v(L))
        A.I("v_and_b32", v(C), 15, v(L))
        A.I("v_lshrrev_b32", v(R), 2, v(C))
        A.I("v_lshlrev_b32", v(vL16), 4, v(L))
        A.I("s_lshl_b32", s(sW1K), s(sWV), 10)
        A.I("s_lshl_b32", s(sW2K), s(sWV), 11)

    def lane_consts2(self):
        A = self.A
        L, G, C, T, U, R = 1, 2, 3, 4, 5, 6
        A.I("v_and_b32", v(T), 2, v(C))
        A.I("v_cmp_ne_u32", "vcc", 0, v(T))
        A.I("v_mov_b32", v(T), "0x4444")
        A.I("v_mov_b32", v(U), "0xeeee")
        A.I("v_cndmask_b32", v(vIDX), v(T), v(U), "vcc")
        A.I("v_lshrrev_b32", v(U), 1, v(G))
        A.I("v_lshl_add_u32", v(T), v(R), 3, v(U))
        A.I("s_lshl_b32", s(sT0), s(sWV), 1)
        A.I("v_add_u32", v(T), s(sT0), v(T))
        if self.skew:
            A.I("v_add_u32", v(U), s(sH), v(T))
            A.I("v_and_b32", v(U), 31, v(U))
        else:
            A.I("v_mov_b32", v(U), s(sH))
        A.I("v_lshl_add_u32", v(T), v(T), 6, v(U))
        A.I("v_and_b32", v(U), 1, v(G))
        A.I("v_lshl_add_u32", v(T), v(T), 1, v(U))
        A.I("v_and_b32", v(U), 3, v(C))
        A.I("v_lshl_add_u32", v(T), v(T), 2, v(U))
        A.I("v_lshlrev_b32", v(vPBST), 4, v(T))
        A.I("v_and_b32", v(T), 1, v(G))
        A.I("v_lshlrev_b32", v(T), 2, v(T))
        A.I("v_and_b32", v(7), 2, v(G))
        A.I("v_add_u32", v(T), v(T), v(7))
        A.I("v_and_b32", v(7), 1, v(R))
        A.I("v_add_u32", v(T), v(T), v(7))
        A.I("v_lshl_add_u32", v(T), v(T), 2, v(U))
        A.I("v_lshlrev_b32", v(T), 2, v(T))
        A.I("s_and_b32", s(sT0), s(sWV), 1)
        A.I("s_lshl_b32", s(sT0), s(sT0), 12)
        A.I("s_lshl_b32", s(sT1), s(sH), 7)
        A.I("s_add_u32", s(sT0), s(sT0), s(sT1))
        A.I("v_add_u32", v(vMST), s(sT0), v(T))
        A.I("v_sub_u32", v(7), 0, v(G))
        A.I("v_and_b32", v(7), 3, v(7))
        A.I("v_xor_b32", v(7), v(7), v(R))
        A.I("v_lshl_add_u32", v(T), v(G), 4, v(7))
        A.I("v_and_b32", v(U), 3, v(C))
        A.I("v_lshl_add_u32", v(T), v(T), 2, v(U))
        A.I("s_add_u32", s(sT0), s(sW1K), XI)
        A.I("v_lshl_add_u32", v(vXW), v(T), 2, s(sT0))
        A.I("v_sub_u32", v(7), 0, v(R))
        A.I("v_and_b32", v(7), 3, v(7))
        A.I("v_xor_b32", v(7), v(7), v(G))
        A.I("v_lshl_add_u32", v(T), v(C), 2, v(7))
        A.I("v_lshlrev_b32", v(vXR), 4, v(T))
        A.I("v_and_b32", v(U), 1, v(C))
        A.I("v_lshl_add_u32", v(T), v(R), 1, v(U))
        A.I("v_lshl_add_u32", v(T), v(G), 3, v(T))
        A.I("v_lshlrev_b32", v(vOR), 4, v(T))
        A.I("v_and_or_b32", v(vOW), v(vIDX), 8, v(vOR))
        A.I("s_lshl_b32", s(sT0), s(sWV), 13)
        A.I("s_add_u32", s(sT0), s(sT0), WV)
        A.I("v_add_u32", v(vWL), s(sT0), v(vL16))
        A.I("v_add_u32", v(vWL2), hex(0x10000), v(vWL))
        A.I("s_mov_b32", s(sOMASK), "0xcccccccc")
        A.I("s_mov_b32", s(sOMASK + 1), "0xcccccccc")
        A.I("s_mov_b32", s(sRMASK), "0x00ff00ff")
        A.I("s_mov_b32", s(sRMASK + 1), "0x00ff00ff")
        A.I("s_mov_b32", s(sC1), f2h((DH ** -0.5) * math.log2(math.e)))
        A.I("s_mov_b32", s(sBIG), f2h(2.0 ** self.kw.get('bigexp', 20)))
        A.I("s_mov_b32", s(sONES), "0x3f803f80")

    def set_wsrd(self, mat):
        A = self.A
        A.I("s_mov_b32", s(S_W), s(60 + 2 * mat))
        A.I("s_and_b32", s(S_W + 1), s(61 + 2 * mat), "0xffff")

    ORDER = [(0, 1), (0, 2), (0, 3), (1, 1), (1, 2), (1, 3), (2, 0), (2, 1), (2, 2), (2, 3), (3, 0), (3, 1),
             (0, 0), (1, 0), (3, 2), (3, 3)]

    def dma_chunk(self, idx, lo=None, hi=8):
        A = self.A
        mat, a_ = self.ORDER[idx]
        slot = idx & 1 if self.lr and idx >= 14 else idx & 3
        if lo is None and (idx == 0 or self.ORDER[idx - 1][0] != mat):
            self.set_wsrd(mat)
        if lo is None and mat < 3:
            A.I("v_xor_b32", v(15), a_ & 2 if self.full else a_, v(14))
            A.I("v_lshl_add_u32", v(15), v(15), 15, v(8))
        for i in range(lo or 0, hi):
            if mat < 3:
                vo = 15
                row = 128 * (i >> 1) + 64 * (a_ & 1) + 4 * (i & 1) if self.full else i << 6
                A.I("s_add_u32", s(sT0), s(sT2), hex(row * 8192))
            else:
                vo = 9 if i & 1 else 10
                o = (64 * ((i >> 2) ^ (a_ & 1)) + 16 * (i & 3)) * 1024 + (i >> 2) * 512 + (a_ >> 1) * 128 if self.wfull else 16 * i * 1024 + a_ * 64
                A.I("s_add_u32", s(sT0), s(sT3), hex(o))
            A.I("s_add_u32", "m0", s(sW1K), hex(WV + slot * 32768 + 4 * i * 1024))
            A.I("buffer_load_dwordx4", v(vo), s(S_W, 4), s(sT0), mods=self.mods("offen", self.kw.get('wmod', ''), "lds"))

    def park(self, mat, fi):
        if not self.lr: return 32 + 32 * mat + fi * 8
        r = self.STG[(mat, fi & 1, 4 * (fi >> 1))]
        return r if r >= 56 else 32

    def unpark(self, mat):
        for k in range(8):
            self.A.I("ds_write_b128", v(vWL), v(self.park(mat, k >> 1) + 4 * (k & 1), 4), mods=self.off(mat * 32768 + k * 1024))

    def read_chunk(self, idx, tmp=None):
        A = self.A
        mat, a_ = self.ORDER[idx]
        slot = idx & 1 if self.lr and idx >= 14 else idx & 3
        VT = 13
        def dst(h, fi, q):
            if tmp is not None: return v(tmp + fi * 8 + 2 * q, 2)
            return (a if h[0] == "a" else v)(h[1] + 2 * q, 2)
        if mat < 3 and self.full:
            hi = a_ & 1
            for e in range(2):
                for phi in range(2):
                    A.I("v_xor_b32", v(VT), hex(phi << 5 | e << 12), v(11))
                    A.I("v_add_u32", v(VT), hex(slot * 32768), v(VT))
                    h = home(mat, phi, (a_ & 2) + e + 4 * hi)
                    if h[0] == "lds": h = ("v", self.park(mat, hi * 2 + phi))
                    for q in range(4):
                        o = (64 * (q >> 1) + 4 * (q & 1)) * 256
                        A.I("ds_read_b64_tr_b16", (a if h[0] == "a" else v)(h[1] + 2 * q, 2), v(VT), mods=self.off(o))
        elif mat < 3:
            for phi in range(2):
                A.I("v_xor_b32", v(VT), phi << 5, v(11))
                A.I("v_add_u32", v(VT), hex(slot * 32768), v(VT))
                for hi in range(2):
                    for q in range(4):
                        o = (64 * (q >> 1) + 16 * hi + 4 * (q & 1)) * 256
                        A.I("ds_read_b64_tr_b16", dst(home(mat, phi, a_ + 4 * hi), hi * 2 + phi, q), v(VT), mods=self.off(o))
                A.I("s_waitcnt", "lgkmcnt(0)")
        elif self.wfull:
            for t in range(2):
                for jj in range(2):
                    A.I("v_xor_b32", v(VT), hex(jj << 13 | t << 6), v(12))
                    A.I("v_add_u32", v(VT), hex(slot * 32768), v(VT))
                    j = 2 * (a_ & 1) + jj
                    h = wo_home((a_ & 2) + t, j)
                    if h[0] == "lds": h = ("v", (vWOR if self.lr else 32) + 32 * t + 8 * j)
                    for q in range(4):
                        o = (8 * (q >> 1) + 2 * (q & 1)) * 256
                        A.I("ds_read_b64_tr_b16", v(h[1] + 2 * q, 2), v(VT), mods=self.off(o))
        else:
            for j in range(4):
                A.I("v_xor_b32", v(VT), hex(j << 13), v(12))
                A.I("v_add_u32", v(VT), hex(slot * 32768), v(VT))
                for q in range(4):
                    o = (8 * (q >> 1) + 2 * (q & 1)) * 256
                    A.I("ds_read_b64_tr_b16", dst(wo_home(a_, j), j, q), v(VT), mods=self.off(o))

    def load_weights(self):
        A = self.A
        L, G, C, T, U, R = 1, 2, 3, 4, 5, 6
        if not self.kw.get('wptr'): A.I("s_load_dwordx8", s(60, 8), s(0, 2), 16)
        A.I("s_mov_b32", s(S_W + 2), hex(4 << 20))
        A.I("s_mov_b32", s(S_W + 3), "0x20000")
        A.I("s_lshl_b32", s(sT2), s(sH), 8)
        A.I("s_lshl_b32", s(sT3), s(sH), 17)
        A.I("s_lshr_b32", s(sT0), s(sWV), 1)
        A.I("s_lshl_b32", s(sT0), s(sT0), 2)
        A.I("v_or_b32", v(U), s(sT0), v(G))
        A.I("v_lshlrev_b32", v(U), 1, v(U))
        A.I("v_xor_b32", v(U), v(U), v(C))
        A.I("v_lshrrev_b32", v(14), 2, v(U))
        if self.full: A.I("v_and_b32", v(14), 2, v(14))
        A.I("v_lshlrev_b32", v(U), 4, v(U))
        A.I("s_lshl_b32", s(sT0), s(sWV), 4)
        A.I("v_add_u32", v(T), s(sT0), v(G))
        A.I("v_lshl_add_u32", v(8), v(T), 13, v(U))
        LA = self.la
        hf, hold = self.kw.get('hold', (0, 0))
        if self.sc: hold = hf
        sFAR = sTHR
        if hold != hf or self.kw.get('help'): A.I("s_and_b32", s(sFAR), s(sH), 3)
        if self.kw.get('only') is not None:
            A.I("s_lshr_b32", s(sT0), self.kw['only'], s(sH))
            A.I("s_and_b32", s(sT0), s(sT0), 1)
            A.I("s_lshl_b32", s(S_W + 2), s(sT0), 22)
        q = []; qn = []
        def span(lo, hi, Q):
            for n in range(max(lo, 0), min(hi, 128)):
                self.dma_chunk(n >> 3, (n & 7) or None, (n & 7) + 1)
                for x in Q: x.append(n >> 3)
        def issue(lo, hi):
            if hold == hf: return span(lo - hf, hi - hf, (q, qn))
            l = A.newlabel("far"); l2 = A.newlabel("near")
            A.I("s_cmp_eq_u32", s(sFAR), self.kw.get('far', 1))
            A.I("s_cbranch_scc1", l)
            span(lo - hold, hi - hold, (qn,))
            A.I("s_branch", l2)
            A.label(l)
            span(lo - hf, hi - hf, (q,))
            A.label(l2)
        HELP = self.kw.get('help', {}) if not self.sc else {}
        def helper(when):
            if when not in HELP: return
            A.I("s_sub_u32", s(sT0), s(sFAR), self.kw.get('far', 1))
            A.I("s_and_b32", s(sT0), s(sT0), 3)
            A.I("s_sub_u32", s(sT1), s(sH), s(sT0))
            A.I("s_and_b32", s(sT1), s(sT1), 31)
            A.I("s_lshl_b32", s(sT1), s(sT1), 8)
            A.I("s_mov_b32", s(7), "0x20000")
            le = A.newlabel("helped")
            for k in (1, 2, 3, 0):
                c = HELP[when][k - 1] if k else None
                if k and c is None: continue
                l = A.newlabel("help")
                if k:
                    A.I("s_cmp_lg_u32", s(sT0), k)
                    A.I("s_cbranch_scc1", l)
                mat, a_ = self.ORDER[c or 0]
                assert mat < 3
                A.I("s_mov_b32", s(4), s(60 + 2 * mat))
                A.I("s_and_b32", s(5), s(61 + 2 * mat), "0xffff")
                A.I("s_mov_b32", s(6), hex(4 << 20) if k else 0)
                A.I("v_xor_b32", v(25), a_ & 2, v(14))
                A.I("v_lshl_add_u32", v(25), v(25), 15, v(8))
                for i in range(8):
                    A.I("s_add_u32", s(sT0), s(sT1), hex((128 * (i >> 1) + 64 * (a_ & 1) + 4 * (i & 1)) * 8192))
                    A.I("buffer_load_dwordx4", v(28, 4), v(25), s(4, 4), s(sT0), mods="offen")
                if k: A.I("s_branch", le)
                A.label(l)
            A.label(le)
            for x in (q, qn): x += [-1] * 8
        VH = self.kw.get('vhelp', {}) if not self.sc else {}
        L128 = self.kw.get('vh128', False)
        NR = 14 if L128 else 7
        def vh_setup():
            A.I("v_mul_u32_u24", v(22), 114 if L128 else 57, v(0))
            A.I("v_lshrrev_b32", v(22), 11, v(22))
            A.I("v_mul_u32_u24", v(23), 18 if L128 else 36, v(22))
            A.I("v_sub_u32", v(23), v(0), v(23))
            if L128: A.I("v_lshlrev_b32", v(23), 1, v(23))
            A.I("v_and_b32", v(25), 3, v(23))
            A.I("v_and_or_b32", v(23), v(23), 0x3c, 1)
            A.I("v_min_u32", v(23), 31, v(23))
            A.I("v_lshl_add_u32", v(23), v(23), 2, v(25))
            A.I("v_lshlrev_b32", v(31), 6, v(23))
            A.I("s_add_u32", s(sT0), s(sH), 2)
            A.I("s_lshr_b32", s(sT0), s(sT0), 2)
            A.I("s_sub_u32", s(sT0), s(sH), s(sT0))
            A.I("s_mul_i32", s(sT0), s(sT0), NR)
            A.I("v_add_u32", v(22), s(sT0), v(22))
        def vhelper(when):
            for mat, b, k, *who in VH.get(when, ()):
                mat = "qkv".index(mat)
                A.I("s_mov_b32", s(4), s(60 + 2 * mat))
                A.I("s_and_b32", s(5), s(61 + 2 * mat), "0xffff")
                A.I("s_lshr_b32", s(6), hex(who[0] if who else 0x5ddddddd), s(sH))
                A.I("s_and_b32", s(6), s(6), 1)
                A.I("s_lshl_b32", s(6), s(6), 22)
                A.I("s_mov_b32", s(7), "0x20000")
                A.I("v_add_u32", v(23), k, v(22))
                A.I("v_and_b32", v(25), 0x1c0, v(23))
                A.I("v_add_u32", v(23), v(23), v(25))
                A.I("v_lshl_add_u32", v(23), v(23), 13, v(31))
                A.I("s_mov_b32", s(sT0), hex(b << 19))
                A.I("buffer_load_dword", v(30), v(23), s(4, 4), s(sT0), mods="offen")
                for x in (q, qn): x.append(-1)
        def ctouch(when):
            if self.sc or when not in self.kw.get('cc', {}): return
            hd, sh = self.kw['cc'][when]
            l = A.newlabel("nocc")
            A.I("s_cmp_lg_u32", s(sH), hd)
            A.I("s_cbranch_scc1", l)
            A.I("v_lshlrev_b32", v(25), sh - 4, v(vL16))
            A.I("s_lshl_b32", s(sT0), s(sWV), sh + 6)
            code_touch(A, l, 4, 25, 29, extra=s(sT0))
            A.label(l)
        ctouch(-1)
        if VH: vh_setup()
        A.I("s_waitcnt", "lgkmcnt(0)")
        mark(A, 2)
        vhelper(-1)
        if self.kw.get('fin'): self.kw['fin']()
        if self.kw.get('diag1'):
            self.dma_chunk(0, None, self.kw['diag1'])
            A.I("s_waitcnt", "vmcnt(0)")
            mark(A, 3)
        helper(-1)
        span(0, 8 * LA - hold, (q, qn))
        if not self.kw.get('diag1'): mark(A, 3)
        if hold != hf:
            l = A.newlabel("near")
            A.I("s_cmp_eq_u32", s(sFAR), self.kw.get('far', 1))
            A.I("s_cbranch_scc0", l)
            span(8 * LA - hold, 8 * LA - hf, (q,))
            A.label(l)
        self.lane_consts2()
        for odd, dst in ((0, 10), (1, 9)):
            A.I("v_and_b32", v(U), 1, v(G))
            A.I("v_or_b32", v(U), odd << 1, v(U))
            A.I("v_xor_b32", v(U), v(U), v(R))
            if self.wfull:
                A.I("v_and_b32", v(7), 2, v(U))
                A.I("v_add_u32", v(U), v(U), v(7))
            A.I("v_lshlrev_b32", v(U), 6 if self.wfull else 8, v(U))
            A.I("v_and_b32", v(7), 3, v(C))
            A.I("v_lshl_add_u32", v(7), v(7), 4, v(U))
            A.I("s_lshl_b32", s(sT0), s(sWV), 2)
            A.I("v_add_u32", v(T), s(sT0), v(G))
            A.I("v_lshl_add_u32", v(dst), v(T), 10, v(7))
        A.I("v_and_b32", v(U), 1, v(G))
        A.I("v_lshl_add_u32", v(T), v(U), 3, v(R))
        A.I("v_lshrrev_b32", v(7), 1, v(G))
        A.I("v_lshl_add_u32", v(T), v(7), 5, v(T))
        A.I("v_lshlrev_b32", v(T), 8, v(T))
        A.I("v_lshl_or_b32", v(U), v(U), 2, v(R))
        A.I("v_lshlrev_b32", v(U), 5, v(U))
        A.I("s_lshl_b32", s(sT0), s(sWV), 6)
        A.I("v_xor_b32", v(U), s(sT0), v(U))
        A.I("v_add_u32", v(T), v(T), v(U))
        A.I("v_and_b32", v(U), 3, v(C))
        A.I("v_lshl_add_u32", v(T), v(U), 3, v(T))
        A.I("v_add_u32", v(11), WV, v(T))
        if self.full:
            A.I("s_and_b32", s(sT0), s(sWV), 1)
            A.I("s_lshl_b32", s(sT0), s(sT0), 12)
            A.I("v_add_u32", v(11), s(sT0), v(11))
        A.I("v_and_b32", v(U), 1, v(G))
        A.I("v_lshlrev_b32", v(T), 4, v(U))
        A.I("v_lshl_add_u32", v(T), v(7), 2, v(T))
        A.I("v_and_b32", v(7), 1, v(R))
        A.I("v_add_u32", v(T), v(T), v(7))
        A.I("s_lshl_b32", s(sT0), s(sWV), 5)
        A.I("v_add_u32", v(T), s(sT0), v(T))
        A.I("v_lshlrev_b32", v(T), 8, v(T))
        A.I("v_lshl_or_b32", v(U), v(U), 1, v(7))
        A.I("s_lshl_b32", s(sT0), s(sWV), 1 if self.wfull else 0)
        A.I("s_and_b32", s(sT0), s(sT0), 3)
        A.I("v_xor_b32", v(U), s(sT0), v(U))
        A.I("v_lshl_add_u32", v(T), v(U), 6, v(T))
        A.I("v_lshrrev_b32", v(U), 1, v(R))
        A.I("v_lshl_add_u32", v(T), v(U), 5, v(T))
        A.I("v_and_b32", v(U), 3, v(C))
        A.I("v_lshl_add_u32", v(T), v(U), 3, v(T))
        A.I("v_add_u32", v(12), WV, v(T))
        T0 = self.kw.get('t0', 11) if self.kw.get('touch', True) and not self.sc else None
        TC = self.kw.get('tc', ()) if not self.sc else ()
        if TC:
            A.I("v_lshlrev_b32", v(T), 18, v(G))
            A.I("v_lshl_add_u32", v(T), v(C), 7, v(T))
            A.I("s_lshl_b32", s(sT0), s(sH), 13)
            A.I("s_add_u32", s(sT0), s(sT0), s(sW2K))
            A.I("s_add_u32", s(sT0), s(sT0), hex(WS_PB - WS_MB))
            A.I("v_add_u32", v(T), s(sT0), v(T))
            A.I("v_and_b32", v(U), 3, v(C))
            A.I("v_lshl_add_u32", v(U), v(U), 13, v(vMST))
            A.I("v_cmp_gt_u32", "vcc", 2, v(G))
            A.I("v_cndmask_b32", v(7), v(U), v(T), "vcc")
        def touch2(when):
            if when not in TC: return
            A.I("s_mov_b32", s(sT0), hex(WS_MB + self.wo))
            A.I("buffer_load_dword", v(30), v(7), s(S_WS, 4), s(sT0), mods=self.mods("offen", self.kw.get('tmod', 'sc1')))
            for x in (q, qn): x.append('t')
        touch2(-1)
        self.init_buffers()
        self.write_mem0()
        for x in (q, qn): x += [-1] * (self.n_init_vm + 1)
        LR = self.lr; nxt = 8 * LA
        assert not LR or hold == hf and not self.kreg and self.wfull
        EV = (15 if LR else self.kw.get('ev', 14)) if not self.sc else None
        RD_ = self.kw.get('rd', EV) if EV else 15
        EP = self.kw.get('ep') if EV and self.kw.get('gate') else None
        sKVD = sNEED
        def fprobe(r):
            A.I("v_lshlrev_b32", v(r), 3, v(vL16))
            A.I("v_and_b32", v(r), 0x800, v(r))
            A.I("s_lshl_b32", s(sT0), s(sH), 6)
            A.I("s_add_u32", s(sT0), s(sT0), hex(WS_CTRL + CT_F1))
            A.I("buffer_load_dword", v(r), v(r), s(S_WS, 4), s(sT0), mods="offen sc1")
        def feval(r, dst):
            A.I("v_readlane_b32", s(sT0), v(r), 0)
            A.I("v_readlane_b32", s(sT1), v(r), 16)
            A.I("s_min_u32", s(sT0), s(sT0), s(sT1))
            A.I("s_cmp_lg_u32", s(sT0), 0)
            A.I("s_cselect_b32", s(dst), s(sOK), 0)
        def early_kv():
            assert 'e' not in q
            feval(28, sKVD)
            A.I("s_cmp_eq_u32", s(sKVD), 1)
            for r, x_, lds in ((sT2, sKXN, KXB), (sT3, sVXN, VXB)):
                A.I("s_cselect_b32", s(r), s(x_), "0x7ff00000")
            for r, x_, lds in ((sT2, sKXN, KXB), (sT3, sVXN, VXB)):
                A.I("s_add_u32", "m0", s(sW2K), lds)
                for i in range(2): A.I("buffer_load_dwordx4", v(vL16), s(S_WS, 4), s(r), mods=self.mods("offen", self.off(1024 * i), "lds"))
            for x in (q, qn): x += [-1] * 4
        gate = self.kw.get('gate')
        A.I("s_mov_b32", s(sOK), 0)
        self.kv_addr()
        probed = False
        mark(A, 4)
        for idx in range(16):
            for x in (q, qn):
                if idx in x: del x[:len(x) - x[::-1].index(idx)]
                if idx == EV: del x[:len(x) - x[::-1].index('p')]
            if not (EV and idx > EV): A.I("s_waitcnt", f"vmcnt({max(len(q), len(qn))})" + (" lgkmcnt(0)" if LR and idx == 15 else ""))
            if len(qn) != len(q):
                l = A.newlabel("far")
                A.I("s_cmp_eq_u32", s(sFAR), self.kw.get('far', 1))
                A.I("s_cbranch_scc1" if len(qn) < len(q) else "s_cbranch_scc0", l)
                A.I("s_waitcnt", f"vmcnt({min(len(q), len(qn))})")
                A.label(l)
            if EV and gate and idx == 9:
                A.I("v_readfirstlane_b32", s(sOK), v(26))
                A.I("v_readfirstlane_b32", s(sT0), v(27))
                A.I("s_cmp_lg_u32", s(sT0), 0)
                A.I("s_cselect_b32", s(sOK), s(sOK), 0)
            if LR and EP and idx == 14: early_kv()
            if idx == EV:
                assert probed
                if gate: feval(26, sOK)
                else: A.I("s_mov_b32", s(sOK), 1)
                A.I("v_readfirstlane_b32", s(sT0), v(27))
                A.I("s_cmp_ge_u32", s(sT0), 32)
                A.I("s_cselect_b32", s(sOK), s(sOK), 0)
                l = A.newlabel("nokv")
                A.I("s_cmp_lg_u32", s(sOK), 1)
                A.I("s_cbranch_scc1", l)
                if EP:
                    A.I("s_cmp_eq_u32", s(sKVD), 1)
                    A.I("s_cbranch_scc1", l)
                self.kv_first()
                A.label(l)
            if idx == 4 or (T0 and idx == RD_): self.write_mem0_b()
            if T0 and idx == RD_ and self.kw.get('redo', True):
                assert not LR or idx <= 14
                assert 't' not in q
                self.init_buffers(True)
                for x in (q, qn): x += [-1] * (self.n_init_vm + 1)
            both = EV == 14 and self.full
            if not (both and idx == 15):
                A.I("s_barrier")
                if self.tag == "f" and idx <= self.kw.get('tsmax', 15): ts(A, 16 + idx, 24)
                if idx == self.kw.get('arr', 9): self.arrive()
                self.read_chunk(idx, tmp=(64 if self.full and idx & 1 else 32) if idx >= 12 else None)
                if both and idx == 14: self.read_chunk(15, tmp=64)
                if idx < 14 if LR else both or idx != 14 or not self.wfull or 8 * (idx + 4) - hold < 128:
                    A.I("s_waitcnt", "lgkmcnt(0)")
                    A.I("s_barrier")
            if idx == EP:
                assert idx > 9
                fprobe(28)
                for x in (q, qn): x.append('e')
            touch2(idx)
            ctouch(idx)
            if idx == T0: self.touch(); q += [-1] * 8; qn += [-1] * 8
            if idx in self.kw.get('ccode', ()) and not self.sc:
                A.I("v_lshlrev_b32", v(25), 2, v(vL16))
                A.I("s_lshl_b32", s(sT0), s(sWV), 12)
                code_touch(A, "L_chain_warm", 4, 25, 29, extra=s(sT0))
                q.append(-1); qn.append(-1)
            if idx == 12 and not self.sc: A.label("L_chain_warm")
            if EV and gate and idx == 5:
                A.I("buffer_load_dwordx2", v(26, 2), "off", s(S_DBG, 4), 0, mods=f"offset:{gate} sc1")
                q.append(-1); qn.append(-1)
            helper(idx)
            vhelper(idx)
            if LR:
                hi_ = min(8 * (idx + 5), (112 if idx < 12 else 120) + hold) if idx < 13 else 128 + hold
                issue(nxt, hi_); nxt = max(nxt, hi_)
            elif 8 * (idx + 4) - hold < 128: issue(8 * (idx + 4), 8 * (idx + 5))
            if EV and not probed and (idx == 13 if LR else 8 * (idx + 5) - hold >= 128):
                probed = True
                if gate: fprobe(26)
                A.I("buffer_load_dword", v(27), "off", s(S_DBG, 4), 0, mods=f"offset:{self.cbar} sc1")
                for x in (q, qn): x += ['p'] * (2 if gate else 1)
                if EP and not LR: early_kv()
            if LR:
                for k in range(16 if idx == 11 else 0):
                    A.I("ds_write_b128", v(vWL2), v(vWOR + 4 * k, 4), mods=self.off((k >> 3) * 32768 + (k & 7) * 1024))
                if idx == 14: self.prologue_a()
                if idx == 15: self.unpark(0)
                continue
            for slot in ((), (2, 3))[idx & 1] if self.wfull and idx >= 14 and not both else (idx & 3,) if idx >= 12 else ():
                tb = 64 if self.full and slot & 1 else 32
                for k in range(8):
                    A.I("ds_write_b128", v(vWL if slot < 2 else vWL2), v(tb + 4 * k, 4), mods=self.off((slot & 1) * 32768 + k * 1024))
        if not LR: A.I("s_waitcnt", "lgkmcnt(0)")

    def kv_addr(self):
        A = self.A
        A.I("s_lshl_b32", s(sT0), s(sH), 13)
        A.I("s_add_u32", s(sT0), s(sT0), s(sW2K))
        A.I("s_add_u32", s(sKXN), s(sT0), hex(WS_KX))
        A.I("s_add_u32", s(sVXN), s(sT0), hex(WS_VX))
        A.I("s_lshr_b32", s(sT0), s(sT0), 1)
        A.I("s_add_u32", s(sKM), s(sT0), hex(WS_KM - 32 * 4096))

    def kv_first(self):
        self.A.I("s_add_u32", "m0", s(sW2K), KXB)
        for i in range(2): self.kdma(i)
        for i in range(2): self.vdma(i)

    def touch(self):
        A = self.A
        tm = self.kw.get('tmod', 'sc1')
        A.I("s_lshl_b32", s(sT0), s(sH), 13)
        A.I("s_add_u32", s(sT0), s(sT0), hex(WS_PB + self.wo))
        A.I("s_add_u32", s(sT0), s(sT0), s(sW2K))
        A.I("s_xor_b32", s(sT1), s(sT0), hex(PBPAR))
        for base in (sT0, sT1):
            for m in range(2):
                A.I("buffer_load_dwordx4", v(28, 4), v(vL16), s(S_WS, 4), s(base), mods=self.mods("offen", self.off(m * 1024), tm))
        for m in range(4):
            A.I("s_mov_b32", s(sT0), hex(WS_MB + self.wo + m * 8192))
            A.I("buffer_load_dword", v(28), v(vMST), s(S_WS, 4), s(sT0), mods=self.mods("offen", tm))

    def init_buffers(self, again=False):
        A = self.A
        sc = self.sc
        n = 0
        for i in range(4):
            A.I("v_mov_b32", v(16 + i), -1)
        A.I("s_lshl_b32", s(sT0), s(sH), 13)
        A.I("s_add_u32", s(sT0), s(sT0), hex(WS_PB + self.wo))
        A.I("s_and_b32", s(sT1), s(sWV), 1)
        A.I("s_lshl_b32", s(sT1), s(sT1), 12)
        A.I("s_add_u32", s(sPBLD), s(sT0), s(sT1))
        A.I("s_add_u32", s(sT0), s(sT0), s(sW2K))
        A.I("s_xor_b32", s(sT1), s(sT0), hex(PBPAR))
        for base in (sT0, sT1)[again:]:
            for m in range(2):
                A.I("buffer_store_dwordx4", v(16, 4), v(vL16), s(S_WS, 4), s(base), mods=self.mods("offen", self.off(m * 1024), sc))
                n += 1
        if self.ring:
            for m in range(1, 4):
                A.I("s_mov_b32", s(sT0), hex(WS_MB + self.wo + m * 8192))
                A.I("buffer_store_dword", v(16), v(vMST), s(S_WS, 4), s(sT0), mods=self.mods("offen", sc))
            self.n_init_vm = n + 3
            return
        A.I("s_lshl_b32", s(sT0), s(sH), 14)
        A.I("s_lshl_b32", s(sT1), s(sWV), 12)
        A.I("s_add_u32", s(sT0), s(sT0), s(sT1))
        A.I("s_cmp_lt_u32", s(sT0), 8192)
        A.I("s_cselect_b32", s(sT0), 8192, s(sT0))
        A.I("s_add_u32", s(sT0), s(sT0), hex(WS_MB + self.wo))
        for m in range(4):
            A.I("buffer_store_dwordx4", v(16, 4), v(vL16), s(S_WS, 4), s(sT0), mods=self.mods("offen", self.off(m * 1024), sc))
            n += 1
        self.n_init_vm = n

    def write_mem0(self):
        A = self.A
        G, C, R, T, U = 2, 3, 6, 20, 21
        S_W = 4
        A.I("s_load_dwordx2", s(S_W, 2), s(0, 2), 8)
        A.I("s_waitcnt", "lgkmcnt(0)")
        A.I("s_and_b32", s(S_W + 1), s(S_W + 1), "0xffff")
        A.I("s_mov_b32", s(S_W + 2), 8192)
        A.I("s_mov_b32", s(S_W + 3), "0x20000")
        A.I("v_and_b32", v(T), 1, v(G))
        A.I("v_and_b32", v(U), 1, v(R))
        A.I("v_lshl_add_u32", v(T), v(T), 1, v(U))
        A.I("v_lshlrev_b32", v(T), 9, v(T))
        A.I("v_and_b32", v(U), 3, v(C))
        A.I("v_lshl_add_u32", v(T), v(U), 4, v(T))
        A.I("v_and_b32", v(U), 2, v(G))
        A.I("v_add_u32", v(T), v(T), v(U))
        A.I("s_and_b32", s(sT0), s(sH), 1)
        A.I("s_lshl_b32", s(sT0), s(sT0), 11)
        A.I("s_bfe_u32", s(sT1), s(sH), hex(0x20001))
        A.I("s_lshl_b32", s(sT1), s(sT1), 7)
        A.I("s_add_u32", s(sT0), s(sT0), s(sT1))
        A.I("s_and_b32", s(sT1), s(sWV), 1)
        A.I("s_lshl_b32", s(sT1), s(sT1), 6)
        A.I("s_add_u32", s(sT0), s(sT0), s(sT1))
        A.I("s_lshr_b32", s(sT1), s(sH), 3)
        A.I("s_lshl_b32", s(sT1), s(sT1), 2)
        A.I("s_add_u32", s(sT0), s(sT0), s(sT1))
        A.I("v_add_u32", v(T), s(sT0), v(T))
        A.I("v_lshlrev_b32", v(T), 1, v(T))
        A.I("buffer_load_dword", v(U), v(T), s(S_W, 4), 0, mods="offen")

    def write_mem0_b(self):
        A = self.A
        U = 21
        A.I("v_min_u32", v(U), "0xfffffffe", v(U))
        A.I("s_mov_b32", s(sT0), hex(WS_MB + self.wo))
        A.I("s_mov_b64", "exec", s(sRMASK, 2))
        A.I("buffer_store_dword", v(U), v(vMST), s(S_WS, 4), s(sT0), mods=self.mods("offen", self.sc))
        A.I("s_mov_b64", "exec", -1)

    def arrive(self):
        A = self.A
        l = A.newlabel("arr")
        A.I("s_cmp_lg_u32", s(sWV), 0)
        A.I("s_cbranch_scc1", l)
        A.I("v_mov_b32", v(23), 1)
        A.I("s_mov_b64", "exec", 1)
        A.I("buffer_atomic_add", v(23), "off", s(S_DBG, 4), 0, mods=f"offset:{self.cbar}")
        A.I("s_mov_b64", "exec", -1)
        A.label(l)

    def walk(self):
        A = self.A; tg = self.tag
        A.I("s_mov_b64", "exec", 0)
        A.I("s_branch", f"L_chain_last_{tg}")
        A.label(f"L_chain_walked_{tg}")
        A.I("s_mov_b64", "exec", -1)

    def prologue(self):
        A = self.A
        if self.kw.get('lwarm') == 1: self.walk()
        lok = A.newlabel("started")
        A.I("s_cmp_eq_u32", s(sOK), 1)
        A.I("s_cbranch_scc1", lok)
        if self.pre_start: self.pre_start(self)
        self.kv_first()
        lp = A.newlabel("cb_poll"); ld = A.newlabel("cb_done")
        A.I("s_mov_b32", s(sRETRY), 0)
        A.label(lp)
        A.I("buffer_load_dword", v(3), "off", s(S_DBG, 4), 0, mods=f"offset:{self.cbar} sc1")
        A.I("s_waitcnt", "vmcnt(0)")
        A.I("v_readfirstlane_b32", s(sT0), v(3))
        A.I("s_cmp_ge_u32", s(sT0), 32)
        A.I("s_cbranch_scc1", lok)
        A.I("s_sleep", 8)
        A.I("s_add_u32", s(sRETRY), s(sRETRY), 1)
        A.I("s_cmp_lt_u32", s(sRETRY), hex(RETRY_MAX * 4))
        A.I("s_cbranch_scc1", lp)
        A.label(lok)
        A.reset_haz()
        if not self.lr: self.prologue_a()
        if self.flog: self.sel_masks()
        A.I("s_add_u32", "m0", s(sW1K), MBUF + 4096)
        if self.lr:
            for i in range(8): A.I("v_mov_b32", v(24 + i), v(32 + i))
        else:
            for r in range(vQK, vQK + 8): A.I("v_mov_b32", v(r), 0)
        A.I("s_add_u32", s(sKXN), s(sKXN), hex(32 * 8192))
        A.I("s_add_u32", s(sVXN), s(sVXN), hex(32 * 8192))
        if not self.lr:
            for it in self.prefetch_items(): it()
        A.I("s_mov_b32", s(sRETRY), 0)
        A.I("s_waitcnt", "vmcnt(0) lgkmcnt(0)")
        A.I("s_barrier")
        if self.lr:
            self.unpark(1)
            for r in range(vQK, vQK + 8): A.I("v_mov_b32", v(r), 0)
        self.lq = []; self.vq = []

    def sel_masks(self):
        self.A.I("v_bfe_u32", v(1), v(vL16), 5, 3)
        for d in range(4): self.A.I("v_cmp_eq_u32", s(self.sSEL + 2 * d, 2), d, v(1))

    def prologue_a(self):
        A = self.A
        A.I("s_lshr_b32", s(sT0), s(sH), 1)
        A.I("s_lshl_b32", s(sT0), s(sT0), 7)
        A.I("s_and_b32", s(sT1), s(sH), 1)
        A.I("s_lshl_b32", s(sT1), s(sT1), 4)
        A.I("s_add_u32", s(sT0), s(sT0), s(sT1))
        A.I("s_add_u32", s(sFLAGOFF), s(sT0), hex(WS_CTRL + CT_PROG))
        A.I("s_cmp_eq_u32", s(sWV), 0)
        A.I("s_cselect_b32", s(sFLAGOFF), s(sFLAGOFF), "0x7ff00000")
        if self.kw.get('pbw'):
            A.I("v_mov_b32", v(1), 1)
            A.I("buffer_store_dword", v(1), "off", s(S_WS, 4), s(sFLAGOFF), mods="offset:4 sc1")
        A.I("s_mov_b32", s(sSTEP), 0)
        A.I("s_mov_b32", s(sTAG), 0)
        if self.kw.get('rot') is not None:
            A.I("s_bfe_u32", s(sT0), s(sH), hex(0x10000 | self.kw['rot']))
            A.I("s_lshl_b32", s(sT0), s(sT0), 10)
            A.I("s_xor_b32", s(sPBLD), s(sPBLD), s(sT0))
        A.I("s_xor_b32", s(sPBLD2), s(sPBLD), 1024)
        A.I("s_add_u32", s(sMBLD), s(sW1K), hex(WS_MB + self.wo))
        A.I("s_add_u32", s(sMBLD2), s(sMBLD), 4096)
        A.I("s_mov_b32", s(sMBST), hex(WS_MB + 8192 + self.wo))
        A.I("s_add_u32", s(sRST), s(sMBST), 16384)
        for j in range(2):
            A.I("s_mov_b32", s(sPBST + j), hex(WS_PB + j * 4096 + self.wo))
        for i in range(4): A.I("v_mov_b32", v(vPUB + i), 0)
        for o in (FLG, ZRO): A.I("ds_write_b128", v(vL16), v(vPUB, 4), mods=self.off(o))
        A.I("s_cmp_lg_u32", s(sWV), 0)
        A.I("s_cselect_b32", s(sT1), -1, 0)
        A.I("v_mov_b32", v(vFLG), s(sT1))
        if self.kw.get('pfk'):
            A.I("s_cmp_eq_u32", s(sWV), 1)
            A.I("s_cselect_b64", "vcc", -1, 0)
            A.I("s_mov_b32", s(sT1), hex(32 * 8192 - 2048))
            A.I("v_lshl_add_u32", v(1), v(vL16), self.kw.get('pfsh', 3), s(sT1))
            A.I("v_cndmask_b32", v(vFLG), v(vFLG), v(1), "vcc")
        A.I("v_bfe_u32", v(1), v(vL16), 4, 1)
        A.I("v_lshlrev_b32", v(1), 4, v(1))
        A.I("s_movk_i32", s(sT0), "0x3f80")
        A.I("v_lshlrev_b32", v(vSEL), v(1), s(sT0))
        if not self.flog: self.sel_masks()
        A.I("v_lshrrev_b32", v(1), 2, v(vL16))
        A.I("s_cmp_lt_u32", s(sWV), WE)
        A.I("s_cselect_b64", "vcc", -1, 0)
        A.I("v_cndmask_b32", v(vL4), v(vMST), v(1), "vcc")
        for r in range(vQK + 8, vQK + 24): A.I("v_mov_b32", v(r), 0)
        A.I("s_mov_b32", s(sNRM), 0)
        A.I("s_mov_b32", s(sNRR), 0)
        A.I("s_mov_b32", s(sNRF), 0)
        A.I("s_mov_b32", s(self.sNRX), 0)
        A.I("s_and_b32", s(sT0), s(sWV), 1)
        A.I("s_lshl_b32", s(sT0), s(sT0), 5)
        A.I("s_add_u32", s(sT0), s(sT0), s(sH))
        A.I("s_lshl_b32", s(sT0), s(sT0), 6)
        A.I("s_add_u32", s(sKVF), s(sT0), hex(WS_CTRL + CT_F1))
        A.I("s_mov_b32", s(sNEED + 1), 0)
        if self.flog:
            A.I("s_lshl_b32", s(sT0), s(sH), 2)
            A.I("s_add_u32", s(sT0), s(sT0), s(sWV))
            A.I("s_lshl_b32", s(sT0), s(sT0), 12)
            A.I("s_add_u32", s(sLOGO), s(sT0), hex(WS_TS + 0x10000))

    STG = {(0, 0, 0): 80, (0, 1, 0): 56, (1, 0, 0): 64, (1, 1, 0): 72, (0, 0, 4): 88, (0, 1, 4): 96, (1, 0, 4): 104, (1, 1, 4): 24}
    MR = {0: 0, 4: 4, 1: 8, 5: 12, 2: 16, 3: 20, 6: 24, 7: 28}

    def prefetch_items(self, late=False, tag=None):
        A = self.A
        L = []
        for f, r in self.STG.items():
            if self.kreg and (f[2] == 4) != late: continue
            for hf in range(2):
                L.append(lambda f=f, r=r, hf=hf: self.wread(tag and (tag, f), r + 4 * hf, home(*f)[1] + 1024 * hf))
        return L

    def kreads(self, tag=None):
        return [lambda i=i: self.ds(tag, "ds_read_b128", v(56 + 4 * i, 4), v(vL16), mods=self.off(KXB + i * 1024)) for i in (6, 7, 0, 1, 2, 3, 4, 5)]

    def kdma(self, i):
        if "g" in self.x:
            self.vm("kk", "buffer_load_dwordx4", v(240 + 4 * i, 4), v(vL16), s(S_WS, 4), s(sKXN), mods=self.mods("offen", self.off(1024 * i), self.kw.get('kmod', '')))
            return
        self.vm("kk", "buffer_load_dwordx4", v(vL16), s(S_WS, 4), s(sKXN), mods=self.mods("offen", self.off(1024 * i), self.kw.get('kmod', ''), "lds"))
        if i: self.A.I("s_add_u32", "m0", s(sW2K), hex(VXB))
    def vdma(self, i, nxt=None):
        if "g" in self.x:
            self.vm("kd", "buffer_load_dwordx4", v(248 + 4 * i, 4), v(vL16), s(S_WS, 4), s(sVXN), mods=self.mods("offen", self.off(1024 * i), self.kw.get('kmod', '')))
            if nxt is not None: self.A.I("s_mov_b32", "m0", nxt)
            return
        self.vm("kd", "buffer_load_dwordx4", v(vL16), s(S_WS, 4), s(sVXN), mods=self.mods("offen", self.off(1024 * i), self.kw.get('kmod', ''), "lds"))
        if nxt is not None: self.A.I("s_mov_b32", "m0", nxt)

    def retry_head(self, cnt, lgo):
        A = self.A
        A.I("s_add_u32", s(cnt), s(cnt), 1)
        A.I("s_add_u32", s(sRETRY), s(sRETRY), 1)
        A.I("s_cmp_ge_u32", s(sRETRY), hex(RETRY_MAX))
        A.I("s_cbranch_scc1", lgo)

    def step_loop(self):
        A = self.A; tg = self.tag
        A.barrier_haz()
        if self.kw.get('early3'): A.I("buffer_load_dwordx4", v(self.MR[0], 4), v(vL16), s(S_WS, 4), s(sMBLD), mods="offen sc1")
        if self.kreg:
            for x in self.kreads(): x()
        lw = self.kw.get('lwarm')
        if not self.lr: A.I("s_waitcnt", "vmcnt(0) lgkmcnt(0)")
        for w in range(1, 4):
            A.I("s_cmp_eq_u32", s(sWV), w)
            A.I("s_cbranch_scc1", f"L_chain_top{w}_{tg}")
        for w in range(4): self.wave_loop(w)
        A.label(f"L_chain_last_{tg}")
        A.reset_haz()
        hop = [0]
        def line(last=False):
            if not lw: return
            if hop[0]: A.label(f"L_chain_hop{hop[0]}_{tg}")
            hop[0] += 1
            A.I("s_cbranch_execz", f"L_chain_walked_{tg}" if last else f"L_chain_hop{hop[0]}_{tg}")
        line()
        A.nop(2)
        for i, x in enumerate(self.last):
            if i % 6 == 5: line()
            x()
        line(True)
        A.I("s_add_u32", s(sKM), s(sKM), hex(32 * 4096))
        A.I("buffer_store_dwordx4", v(vPUB, 4), v(vL16), s(S_WS, 4), s(sKM), mods="offen " + self.pubmod)
        A.I("v_mov_b32", v(94), NSEG)
        A.I("s_waitcnt", "vmcnt(0) lgkmcnt(0)")
        A.I("s_barrier")
        A.I("s_mov_b64", "exec", 1)
        A.I("buffer_store_dword", v(94), "off", s(S_WS, 4), s(sFLAGOFF), mods="sc1")
        A.I("s_mov_b64", "exec", -1)
        if self.kw.get('pbc') and not self.sc:
            A.I("s_lshl_b32", s(sT0), s(sH), 13)
            A.I("s_add_u32", s(sT0), s(sT0), hex(WS_PB + self.wo))
            A.I("s_add_u32", s(sT0), s(sT0), s(sW2K))
            A.I("s_xor_b32", s(sT1), s(sT0), hex(PBPAR))
            for base in (sT0, sT1):
                for m in range(2):
                    A.I("buffer_store_dwordx4", v(vPUB, 4), v(vL16), s(S_WS, 4), s(base), mods=self.mods("offen", self.off(m * 1024), self.kw['pbc']))

    def wave_loop(self, w):
        A = self.A
        sc = self.sc; tg = self.tag; X_ = self.x
        def opt(k, d):
            x = self.kw.get(k, d)
            return x[w] if isinstance(x, list) else x
        LTOP = f"L_chain_top{w}_{tg}"; LLAST = f"L_chain_last_{tg}"
        nochk = "n" in X_
        Mr = lambda sl: self.MR[sl]
        acc = lambda mat, phi: (vQK + 8 * mat + 4 * phi) if mat < 2 else (vVA + 4 * phi)
        def smf(mat, phi, sl):
            h = home(mat, phi, sl)
            self.needl(f"m{sl}")
            B = v(self.STG[(mat, phi, sl)], 8) if h[0] == "lds" else reg8(h)
            A.I(SMF, v(acc(mat, phi), 4), v(Mr(sl), 4), B, v(vIDX))
        def valu(*x, **k): return lambda: A.I(*x, **k)
        untracked = lambda t_, *a_, **k: A.I(*a_, **k)

        A.raw(".p2align 6")
        for _ in range(self.align): A.raw("    s_nop 0")
        A.label(LTOP)
        A.reset_haz()
        self.lq = []; self.vq = []
        self.fl(0)
        t0 = 15
        RL = [4, 8, 16, 20]; SEL = 12; RD = vVA; tc = vVA + 4
        zr = list(range(vVA, vVA + 6)) if w >= WE else []
        def zero(n, pad=False):
            for _ in range(n):
                if zr: A.I("v_mov_b32", v(zr.pop(0)), 0)
                elif pad: A.I("v_mov_b32", v(t0), 0)
        def mload(half, mod, tag=None):
            (self.vm if tag else untracked)(tag, "buffer_load_dwordx4", v(Mr(4 * half), 4), v(vL16), s(S_WS, 4),
                    s(sMBLD2 if half else sMBLD), mods="offen " + mod)
        def mdma(mod, tag=None):
            (self.vm if tag else untracked)(tag, "buffer_load_dwordx4", v(vL16), s(S_WS, 4), s(sMBLD2), mods=f"offen {mod} lds")
            A.I("s_mov_b32", "m0", KXB + 2048 * w)
        self.mload0 = lambda: mload(0, self.pollmod)
        z = opt('z', (0, 16, 16))
        early3 = w == WL_ and opt('early3', False)
        if early3:
            self.vq += ["f0", "st"]
        else:
            zero(z[0], True)
            self.fl("h7")
            mload(0, self.pollmod, "f0")
        rg = self.kw.get('rg')
        for i, n in enumerate(z[1:]):
            if i: mload(0, "sc1", "fx")
            if i == len(z) - 2 and rg and w >= WE:
                A.I("s_waitcnt", f"vmcnt({len(self.vq) + 1})")
                zr += list(range(vQK + 4, vQK + 16))
            if not (early3 and i == 0): zero(n, True)
        zero(20)
        chk = lambda r: [valu("v_max3_u32", v(t0), v(r), v(r + 1), v(r + 2)), valu("v_max_u32", v(t0), v(t0), v(r + 3)),
                         valu("v_cmp_lt_u32", "vcc", s(sSENT), v(t0))]
        def mwrite(): self.ds("mw0", "ds_write_b128", v(vL16), v(Mr(0), 4), mods=self.off(MBUF + 1024 * w))
        def mread(sl): self.ds(f"m{sl}", "ds_read_b128", v(Mr(sl), 4), v(vL16), mods=self.off(MBUF + (sl ^ w) * 1024))
        nw = opt('nw', '')
        own0 = [(0, 0, 0), (0, 1, 0), (1, 0, 0), (1, 1, 0), (2, 0, 0), (2, 1, 0)]
        spec = opt('spec', 2)
        lret0 = A.newlabel("mret")
        if opt('lal', None) is not None:
            A.raw(".p2align 6")
            for _ in range(opt('lal', 0)): A.raw("    s_nop 0")
        A.label(lret0)
        mload(0, "sc1", "fx")
        A.I("s_add_u32", s(sNRM), s(sNRM), 1)
        A.I("s_cmp_lt_u32", s(sNRM), hex(RETRY_MAX))
        A.I("s_cselect_b32", s(sSENT), -2, -1)
        if spec:
            A.nop(4)
            for i in range(4): A.I("v_mov_b32", v(acc(0, 0) + i), 0)
        for _ in range(opt('zl', 0)): A.I("v_mov_b32", v(t0), 0)
        self.needv("f0")
        self.fl(1)
        c = chk(Mr(0))
        c[0](); c[1]()
        if spec == 3: mwrite()
        if spec >= 2: c[2]()
        if spec: smf(*own0[0])
        if opt('wspec', False): mwrite()
        if spec < 2: c[2]()
        if not nochk: A.I("s_cbranch_vccnz", lret0)

        q0, q1, k0, k1 = vQK, vQK + 4, vQK + 8, vQK + 12
        K0, K1, VX, X, VA = 56, 72, 88, 32, vVA
        D0, D1, DM_, PX, PM, ONES, OA, LA, ri = 56, 60, 64, 68, 52, 48, 72, 80, 84
        OF = [60, 92, 80, 84]
        G = [72, 76]
        WS_ = {(2, 0): 0, (3, 0): 8, (2, 1): 16, (2, 2): 24, (2, 3): 32, (3, 1): 40, (3, 2): 56, (3, 3): 64}
        def woread(T, j, hf): self.wread(("o", T, j), WS_[(T, j)] + 4 * hf, wo_home(T, j)[1] + 1024 * hf)
        def W(T, j, hf): return lambda: woread(T, j, hf)
        def vread(i): return lambda: self.ds("vx", "ds_read_b128", v(VX + 4 * i, 4), v(vL16), mods=self.off(VXB + w * 2048 + i * 1024))
        def kread(i): return lambda: self.ds("k", "ds_read_b128", v(K0 + 4 * i, 4), v(vL16), mods=self.off(KXB + i * 1024))
        def zread(r, tag="z"): return lambda: self.ds(tag, "ds_read_b128", v(r, 4), v(vL16), mods=self.off(ZRO))
        def j_pub(): self.vm("pub", "buffer_store_dwordx4", v(vPUB, 4), v(vL16), s(S_WS, 4), s(sKM), mods="offen " + self.pubmod)
        def j_kvf(): self.vm("kvf", "buffer_load_dword", v(vDUM), v(vL4), s(S_WS, 4), s(sKVF), mods="offen sc1")
        add2 = lambda r: [valu("v_add_f32", v(r), v(r), v(r + 2)), valu("v_add_f32", v(r + 1), v(r + 1), v(r + 3))]
        mul2 = lambda r: [valu("v_mul_f32", v(r), s(sC1), v(r)), valu("v_mul_f32", v(r + 1), s(sC1), v(r + 1))]
        cvp = lambda d, x, y: valu("v_cvt_pk_bf16_f32", v(d), v(x), v(y))
        def xwrite(t):
            d = (vPUB + 1, vPUB + 3) if t else (q0 + 2, q0 + 3)
            o = 0 if t else 32
            self.ds(f"xw{t}", "ds_write2_b32", v(vXW), v(d[0]), v(d[1]), mods=f"offset0:{o} offset1:{o + 16}")
        def xread(i): return lambda: self.ds(f"x{i}", "ds_read_b128", v(X + 4 * i, 4), v(vXR), mods=self.off(XI + 1024 * i))
        def oread(j): return lambda: self.ds(f"of{j}", "ds_read_b128", v(OF[j], 4), v(vOR), mods=self.off(OI + (w ^ j) * 512))
        bar = valu("s_barrier")
        nl = lambda t: (lambda: self.needl(t))
        FL = lambda i: (lambda: self.fl(i))
        none = lambda: None
        E_ = lambda m, p: [(m, p, 1), (m, p, 2), (m, p, 3)]
        L_ = lambda m, p: [(m, p, 5), (m, p, 6), (m, p, 7)]
        ve = [(2, 0, 1), (2, 1, 1), (2, 0, 2), (2, 0, 3), (2, 1, 2), (2, 1, 3)][:opt('ve', 0)]
        es = [(0, 0, 1), (0, 1, 1), (0, 0, 2), (0, 1, 2), (0, 0, 3), (0, 1, 3)] + E_(1, 0) + E_(1, 1) + ve
        ne = opt('ne', len(es)); rest = es[ne:]; assert ne <= len(es) and not [f for f in rest if f[0] == 2]
        own1 = [(1, 1, 4), (0, 0, 4), (0, 1, 4), (1, 0, 4), (2, 0, 4), (2, 1, 4)]
        o1v = opt('o1v', 0); vdef = own1[4 + o1v:]; own1 = own1[:4 + o1v]
        R_ = lambda m, p: [f for f in rest if f[:2] == (m, p)]
        vl = vdef + [(2, p, sl) for p, sl in [(0, 1), (1, 1), (0, 5), (1, 5), (0, 2), (0, 3), (0, 6), (0, 7), (1, 2), (1, 3), (1, 6), (1, 7)] if (2, p, sl) not in ve]
        vm_ = opt('vmid', 2)
        frs = own0 + es[:ne] + own1 + R_(0, 0) + R_(0, 1) + L_(0, 0) + L_(0, 1) + R_(1, 0) + L_(1, 0) + vl[:vm_] + R_(1, 1) + L_(1, 1)
        NQ = len(frs)
        frs += vl[vm_:]
        NS = len(frs); assert NS == 48
        O1 = 6 + ne
        last = lambda m, p: max(i for i, f in enumerate(frs) if f[:2] == (m, p))
        def smf_(f):
            h = home(*f)
            return valu(SMF, v(acc(*f[:2]), 4), v(Mr(f[2]), 4), v(self.STG[f], 8) if h[0] == "lds" else reg8(h), v(vIDX))
        ST = [(smf_(f), [f"m{f[2]}", ("k", f)]) for f in frs]
        for D, Areg in ((D0, K0), (D1, K1), (DM_, X)):
            ST += [(valu(MF, v(D, 4), v(Areg + 4 * ks, 4), v(X + 4 * ks, 4), 0 if ks == 0 else v(D, 4)), [f"x{ks}"]) for ks in range(4)]
        pvx = {"a": valu(MF, v(OA, 4), v(VX, 4), v(PX, 4), 0), "b": valu(MF, v(OA + 4, 4), v(VX + 4, 4), v(PX, 4), 0), "l": valu(MF, v(LA, 4), v(ONES, 4), v(PX, 4), 0)}
        pvm = {"a": valu(MF16, v(OA, 4), v(vPUB, 2), v(PM, 2), v(OA, 4)), "b": valu(MF16, v(OA + 4, 4), v(vPUB + 2, 2), v(PM, 2), v(OA + 4, 4)),
               "l": valu(MF16, v(LA, 4), v(ONES, 2), v(PM, 2), v(LA, 4))}
        nrm = opt('nrm', 0)
        pvo = "abl" if nrm == 0 else "lab"
        ST += [(pvx[k], ["vx"]) for k in pvo] + [(pvm[k], []) for k in pvo]
        worder = [(T, 0) for T in range(4)] + [(T, j) for T in range(4) for j in (1, 2, 3)]
        for T, j in worder:
            h = wo_home(T, j)
            ST.append((valu(SMF, v(vWA + 4 * T, 4), v(OF[j], 4), v(WS_[(T, j)], 8) if h[0] == "lds" else reg8(h), v(vIDX)),
                       ["z", ("o", T, j), f"of{j}"]))
        SC, PV, WO, N = 48, 60, 66, 82
        assert len(ST) == N
        mems = [[] for _ in range(N)]; vals = [[] for _ in range(N)]; post = [[] for _ in range(N)]
        def place(L, ops, first, step=1):
            i = first
            while ops:
                if not L[i]:
                    L[i].append(ops.pop(0)); i += step - 1
                i += 1
            return i - step
        ab = opt('abar', 3); ar = opt('ard', 3)
        mems[0] += [none if opt('wspec', False) or spec == 3 else mwrite]
        pp = opt('pubpos', [7, 9, 11, 13])
        if "p" not in X_: mems[pp] += [j_pub]
        def j_flag():
            if w == 0: self.vm("j", "buffer_store_dword", v(vFLG), "off", s(S_WS, 4), s(sFLAGOFF), mods=self.pubmod)
            if w >= WE: self.vm("j", "buffer_store_dword", v(vFLG), v(vMST), s(S_WS, 4), s(sRST), mods=self.mods("offen", sc))
        keep = lambda n: [valu("v_mov_b32", v(vPBST), v(vPBST))] * n
        mems[ab] += keep(opt('ka', 0)) + [none if 'A' in nw else nl("mw0"), bar, FL(2)]
        a1 = opt('ard1', 1)
        rdA = [lambda: mread(1), lambda: mread(2), lambda: mread(3)]
        mems[ar] += rdA[:a1]; mems[ar + 1] += rdA[a1:]
        f1p = opt('f1pos', 1)
        mems[f1p].insert(int(f1p == 0), lambda: mload(1, self.pollmod, "f1")); mems[f1p + 1].insert(0, lambda: mdma(self.pollmod, "fd"))
        def kplace():
            if self.kreg and "k" not in X_:
                for i, j in enumerate(opt('kdpos', [(5, 6), (7, 8), (9, 10), (11, 12)])):
                    assert j > ab and j > f1p + 1
                    mems[j] += [lambda i=i: self.kdma(i)]
            kl = place(mems, self.prefetch_items(True, "k") if self.kreg else self.kreads("k"), opt('kfirst', 4))
            assert kl < O1 - (1 if self.kreg else 2)
        if self.kreg: kplace()
        lret1 = A.newlabel("mret"); lgo1 = A.newlabel("mgo")
        def ool1():
            A.label(lret1)
            A.I("s_mov_b32", s(sT0), "m0")
            A.I("s_mov_b32", "m0", MBUF + 4096 + 1024 * w)
            mload(1, "sc1")
            mdma("sc1")
            A.I("s_mov_b32", "m0", s(sT0))
            A.I("s_waitcnt", "vmcnt(0)")
            for x in chk(Mr(4)): x()
            self.retry_head(sNRF, lgo1)
            A.I("s_cbranch_vccnz", lret1)
            A.I("s_branch", lgo1)
        self.ool.append(ool1)
        c = chk(Mr(4))
        ckn = opt('ckn', 3)
        cplan = {1: [c], 2: [c[:2], c[2:]], 3: [c[:1], c[1:2], c[2:]]}[ckn]
        fw = O1 - 1 - ckn
        mems[fw] += [lambda: self.needv("f1"), FL(3)]
        for i in range(ckn): vals[fw + i] = cplan[i]
        def xb():
            if not nochk: A.I("s_cbranch_vccnz", lret1)
            A.label(lgo1)
        bb = O1 - 1 + opt('bbar', 1); br = bb + opt('brd', 0)
        mems[O1 - 2] += [lambda: self.needvl("fd", "k")]
        mems[O1 - 1] += [xb]
        mems[bb] += [bar, FL(4)]
        mems[br] += [lambda: mread(5)]
        place(mems, [lambda: mread(6), lambda: mread(7)], max(br + 1, O1))
        if not self.kreg: kplace()
        place(mems, [vread(0), vread(1)], O1 + 1)
        i = place(vals, add2(q0) + mul2(q0), last(0, 0) + 2)
        i = place(vals, add2(q1) + mul2(q1) + [cvp(q0 + 2, q0, q1), cvp(q0 + 3, q0 + 1, q1 + 1)], max(i, last(0, 1) + 2))
        xq = i + 1
        xk = NQ + 1
        kf = add2(k0)
        for j in range(last(1, 0) + 2, xk):
            if kf and (not vals[j] or xk - j <= len(kf)): vals[j].append(kf.pop(0))
        if xq == xk: xq += 1
        assert not kf and xq <= xk + 1
        mems[xq] += [lambda: xwrite(0)]
        kt = add2(k1) + [cvp(vPUB + 1, k0, k1), cvp(vPUB + 3, k0 + 1, k1 + 1)]
        ks_ = opt('ksp', 1)
        for j in range(ks_): vals[xk + j] += kt[j * 4 // ks_:(j + 1) * 4 // ks_]
        xk += ks_ - 1
        cb = xk + 1 + opt('cbar_', 4); cr = cb + opt('crd', 1)
        mems[NQ] += [FL(5)]
        mems[xk + 1] += [lambda: xwrite(1), FL(6)]
        vf0, vf1 = add2(VA) + [cvp(vPUB, VA, VA + 1)], add2(VA + 4) + [cvp(vPUB + 2, VA + 4, VA + 5)]
        assert xk + 2 < cb and xk + 2 < last(2, 0) + 2
        mems[xk + 2] += [valu("s_cmp_eq_u32", s(sSTEP), NSEG - 1), valu("s_cbranch_scc1", LLAST)]
        self.last = [x[0] for x in ST[xk + 3:NS]] + vf0 + vf1
        if opt('cw', 0): mems[cb - 1] += [none if 'C' in nw else nl("xw1")]
        assert pp <= NQ
        fp = xk + opt('fpos', [2, 2, 3, 4]); assert fp > ab
        if w != 1: mems[fp] += [j_flag]
        mems[cb] += keep(opt('kc', 0)) + [none if 'C' in nw else nl("xw1")] + [FL(21)] + keep(opt('kc2', 0)) + [bar, FL(7)]
        xp = opt('xpre', 2); xr = opt('xrate', 2)
        rdC = [xread(i) for i in range(4)]
        mems[cr] += rdC[:xp]; rdC = rdC[xp:]; j = cr + 1
        while rdC: mems[j] += rdC[:xr]; rdC = rdC[xr:]; j += 1
        xe = j
        vf0l = list(vf0)
        for j in range(last(2, 0) + 2, NS):
            if vf0l and not vals[j]: vals[j].append(vf0l.pop(0))
        vals[NS - 1] += vf0l
        post[NS - 1] += [FL(8)]
        for j in range(xk + 1, cr): mems[j].append(none)
        vms = [lambda: self.kdma(0), lambda: self.kdma(1), lambda: (self.needl("vx"), self.vdma(0)), lambda: self.vdma(1, MBUF + 4096 + 1024 * w)]
        if self.kreg: vms = vms[2:]
        if "k" in X_: vms = [valu("s_mov_b32", "m0", MBUF + 4096 + 1024 * w)]
        if "v" in X_: vms = vms[:-2] + [valu("s_mov_b32", "m0", MBUF + 4096 + 1024 * w)]
        if "1" in X_: vms = vms[:1] + [valu("s_mov_b32", "m0", MBUF + 4096 + 1024 * w)]
        if self.kvcheck and w < WE: vms.insert(opt('kvfi', 2), j_kvf)
        place(mems, vms, bb + 1 + opt('vbase', [2, 3, 4, 5]), opt('vstep', 3))
        if opt('pfk', 0) and w == 1:
            pfl = [(sKXN, 0), (sVXN, 0)] if opt('pfsh', 3) == 3 else [(sKXN, 0), (sKXN, 4095), (sVXN, 0), (sVXN, 4095)]
            for i, (r, o) in enumerate(pfl):
                mems[opt('pfk', 0) + i * opt('pfstep', 1)] += [lambda r=r, o=o: self.vm("pf", "buffer_load_ubyte" if o else "buffer_load_dword", v(vDUM), v(vFLG), s(S_WS, 4), s(r),
                                                                   mods=self.mods("offen", self.off(o), self.kw.get('pfmod', '')))]
        if opt('kprobe', 0): mems[opt('kprobe', 0)] += [lambda: self.needv(opt('ktag', "kd")), FL(20)]
        ex = lambda r: valu("v_exp_f32", v(r), v(r))
        cv = lambda d, r: valu("v_cvt_pk_bf16_f32", v(d), v(r), v(r + 1))
        one = lambda i: valu("v_mov_b32", v(ONES + i), s(sONES))
        sv = [[one(0), one(1)], [one(2), one(3)], vf1[:1], vf1[1:2], vf1[2:] + [valu("v_mov_b32", v(PM + 1), 0)],
              [ex(D0)], [ex(D0 + 1)], [ex(D0 + 2)], [ex(D0 + 3), cv(PX, D0)], [ex(D1), cv(PX + 1, D0 + 2)], [ex(D1 + 1)],
              [ex(D1 + 2), ex(D1 + 3), cv(PX + 2, D1), cv(PX + 3, D1 + 2)], [ex(DM_)], [ex(DM_ + 1)], [cv(PM, DM_)]]
        for j, x in enumerate(sv): vals[SC + j] = x
        post[PV - 1] += [FL(9)]
        mfree = lambda r: max(i for i, f in enumerate(frs) if Mr(f[2]) == r)
        wfirst = {(2, 0, 0): mfree(0), (2, 0, 1): mfree(4), (3, 0, 0): mfree(8), (3, 0, 1): mfree(12), (2, 1, 0): mfree(16), (2, 1, 1): mfree(20),
                  (2, 2, 0): mfree(24), (2, 2, 1): mfree(28), (2, 3, 0): SC + 8, (2, 3, 1): SC + 9, (3, 1, 0): SC + 10, (3, 1, 1): SC + 11,
                  (3, 2, 0): SC + 10, (3, 2, 1): WO + 4, (3, 3, 0): PV + 3, (3, 3, 1): PV + 2}
        place(mems, [zread(vWA + 4 * i) for i in range(4)], O1 + 4)
        lnorm = A.newlabel("norm"); lfb = A.newlabel("smax")
        QH = "quad_perm:[2,3,2,3] row_mask:0xf bank_mask:0xf"; QL = "quad_perm:[0,1,0,1] row_mask:0xf bank_mask:0xf"
        fb = opt('fbpos', 0)
        fbr = valu("s_nop", 0) if "f" in X_ else valu("s_cbranch_vccnz", lfb)
        if fb >= 0 and nrm == 0: mems[WO + fb] += [fbr]
        def norm():
            self.fl(10)
            A.label(lnorm)
            A.I("s_mov_b64", "vcc", s(sOMASK, 2))
            R_ = OA + 4
            for i in range(4):
                A.I("v_cndmask_b32_dpp", v(R_ + i), v(OA + i), v(R_ + i), "vcc", mods=QH)
            A.I("v_rcp_f32_dpp", v(ri), v(LA), mods=QH)
            for i in range(2): A.I("v_pk_mul_f32", v(R_ + 2 * i, 2), v(R_ + 2 * i, 2), v(ri, 2), mods="op_sel_hi:[1,0]")
            for i in range(2): A.I("v_cvt_pk_bf16_f32", v(OA + i), v(R_ + 2 * i), v(R_ + 2 * i + 1))
            self.ds("ow", "ds_write_b64", v(vOW), v(OA, 2), mods=self.off(OI + w * 512))
            self.fl(11)
            A.I("v_max_f32_dpp", v(ri + 2), v(LA), v(ri), mods=QH)
            for i in range(4):
                A.I("v_mov_b32_dpp", v(OF[0] + i), v(OA + (i & 1)), mods=QH if i >> 1 else QL)
                if i == 1: A.I("v_cmp_lt_f32", "vcc", s(sBIG), v(ri + 2))
            if fb < 0: fbr()
        def norm1():
            self.fl(10)
            A.label(lnorm)
            A.I("v_rcp_f32_dpp", v(ri), v(LA), mods=QH)
            for t in range(2):
                r = OA + 4 * t
                for i in range(4): A.I("v_mul_f32_dpp", v(r + i), v(r + i), v(ri), mods=QH)
                for i in range(2): A.I("v_cvt_pk_bf16_f32", v(OF[0] + 2 * t + i), v(r + 2 * i), v(r + 2 * i + 1))
                if nrm == 2: self.ds("ow", "ds_write_b64", v(vOR), v(OF[0] + 2 * t, 2), mods=self.off(OI + w * 512 + 8 * t))
            if nrm == 1: self.ds("ow", "ds_write_b128", v(vOR), v(OF[0], 4), mods=self.off(OI + w * 512))
            self.fl(11)
        def norm3():
            self.fl(10)
            A.label(lnorm)
            A.I("v_rcp_f32_dpp", v(ri), v(LA), mods=QH)
            for i in range(4): A.I("v_mul_f32_dpp", v(OA + i), v(OA + i), v(ri), mods=QH)
            for i in range(2): A.I("v_cvt_pk_bf16_f32", v(OA + i), v(OA + 2 * i), v(OA + 2 * i + 1))
            R_ = OA + 4
            for i in range(2): A.I("v_pk_mul_f32", v(R_ + 2 * i, 2), v(R_ + 2 * i, 2), v(ri, 2), mods="op_sel_hi:[1,0]")
            A.I("s_mov_b64", "exec", s(sOMASK, 2))
            for i in range(2): A.I("v_cvt_pk_bf16_f32", v(OA + i), v(R_ + 2 * i), v(R_ + 2 * i + 1))
            A.I("s_mov_b64", "exec", -1)
            self.ds("ow", "ds_write_b64", v(vOW), v(OA, 2), mods=self.off(OI + w * 512))
            self.fl(11)
            A.I("v_max_f32_dpp", v(ri + 2), v(LA), v(ri), mods=QH)
            A.I("v_cmp_lt_f32", "vcc", s(sBIG), v(ri + 2))
            for i in range(4): A.I("v_mov_b32_dpp", v(OF[0] + i), v(OA + (i & 1)), mods=QH if i >> 1 else QL)
            if "f" in X_: A.I("s_nop", 0)
            else: A.I("s_cbranch_vccnz", lfb)
        if nrm == 0: post[WO - 1] += [norm]
        elif nrm == 3: post[WO - 1] += [norm3]
        else:
            post[WO - 1] += [norm1]
            vals[WO] = [valu("v_max_f32_dpp", v(ri + 2), v(LA), v(ri), mods=QH)]
            vals[WO + 1] = [valu("v_cmp_lt_f32", "vcc", s(sBIG), v(ri + 2))]
            mems[WO + 2] += [valu("s_nop", 0) if "f" in X_ else valu("s_cbranch_vccnz", lfb)]
        def ool_smax():
            A.label(lfb)
            A.I("s_add_u32", s(sNRF), s(sNRF), 1)
            A.I("s_mov_b32", s(sBIG), "0x7f800000")
            A.I("s_waitcnt", "lgkmcnt(0)")
            A.I("s_sub_u32", s(sT0), s(sKXN), hex(32 * 8192 + 2048 * w))
            A.I("s_add_u32", s(sT1), s(sT0), 4096)
            A.nop(8)
            for i in range(8):
                A.I("buffer_load_dwordx4", v(K0 + 4 * i, 4), v(vL16), s(S_WS, 4), s(sT1 if i > 3 else sT0), mods=self.mods("offen", self.off((i & 3) * 1024)))
            for i in range(4):
                A.I("ds_read_b128", v(X + 4 * i, 4), v(vXR), mods=self.off(XI + 1024 * i))
            for i in range(16): A.I("v_mov_b32", v(vWA + i), 0)
            A.I("s_waitcnt", "vmcnt(0) lgkmcnt(0)")
            for x in ST[SC:PV]: x[0]()
            tm, tt = 84, 85
            A.I("v_max3_f32", v(tm), v(D0), v(D0 + 1), v(D0 + 2))
            A.I("v_max3_f32", v(tm), v(tm), v(D0 + 3), v(D1))
            A.I("v_max3_f32", v(tm), v(tm), v(D1 + 1), v(D1 + 2))
            A.I("v_max3_f32", v(tm), v(tm), v(D1 + 3), v(DM_))
            A.I("v_max_f32", v(tm), v(tm), v(DM_ + 1))
            for b in (32, 16):
                A.I("v_mov_b32", v(tt), v(tm))
                A.I(f"v_permlane{b}_swap_b32", v(tt), v(tm))
                A.I("v_max_f32", v(tm), v(tt), v(tm))
            rs = [D0, D0 + 1, D0 + 2, D0 + 3, D1, D1 + 1, D1 + 2, D1 + 3, DM_, DM_ + 1]
            for r in rs: A.I("v_sub_f32", v(r), v(r), v(tm))
            for r in rs: A.I("v_exp_f32", v(r), v(r))
            for i in range(5): A.I("v_cvt_pk_bf16_f32", v(PX + i if i < 4 else PM), v(rs[2 * i]), v(rs[2 * i + 1]))
            for x in ST[PV:WO]: x[0]()
            self.lq = []
            for f in ((2, 3, 0), (2, 3, 1), (3, 1, 0), (3, 1, 1), (3, 2, 0), (3, 3, 0), (3, 3, 1)): woread(*f)
            A.I("s_waitcnt", "lgkmcnt(0)")
            A.barrier_haz()
            A.I("s_branch", lnorm)
        self.ool.append(ool_smax)
        ob = WO + opt('obar', 1); od = ob + opt('ord', 0)
        if self.kreg and opt('kbd', False): mems[ob - 1] += [lambda: self.needv("kk")]
        mems[ob] += keep(opt('kd', 0)) + [none if 'D' in nw else nl("ow"), bar, FL(12)]
        o1 = opt('ord1', 3)
        rdD = [oread(j) for j in (1, 2, 3)]
        mems[od] += rdD[:o1]; mems[od + 1] += rdD[o1:]
        mems[WO + 4] += [FL(13)]
        for j in range(WO - 1, od): mems[j].append(none)
        def pack(T):
            g = G[T >> 1] + (T & 1); r = vWA + 4 * T
            L = [valu("v_cvt_pk_bf16_f32", v(g), v(r), v(r + 2)), valu("v_cvt_pk_bf16_f32", v(g + 2), v(r + 1), v(r + 3))]
            if not T & 1: L.insert(1, valu("v_and_or_b32", v(g), v(g), -2, s(sTAG)))
            return L
        def pstore(jj): self.vm("p", "buffer_store_dwordx4", v(G[jj], 4), v(vPBST), s(S_WS, 4), s(sPBST + jj), mods=self.mods("offen", sc or opt('pmod', '')))
        W4 = WO + 4
        place(vals, pack(0), W4 + 4)
        vals[W4 + 7] += pack(1)
        mems[W4 + 8] += [lambda: pstore(0), FL("h5")]
        p2 = pack(2)
        vals[W4 + 10] += p2[:1]; vals[W4 + 11] += p2[1:] + pack(3)
        post[N - 1] += [lambda: pstore(1)]
        wlo = opt('wlo', 0)
        for j in range(cr, xe + opt('xgap', 0)): mems[j].append(none)
        for j in opt('wno', tuple(range(SC + 5, PV + 3)) + (xq - 1, xk, NS - 1, SC)): mems[j].append(none)
        for f, fs in sorted(wfirst.items(), key=lambda x: x[1]):
            j = place(mems, [W(*f)], max(fs, O1 + 4))
            assert j + 3 <= WO + worder.index(f[:2]), (f, j)
        mems[WO + 3] += keep(opt('ke', 0))
        mems[5] += keep(opt('kb', 0))
        if opt('fill', True): A.fill = v(vOW)
        for i, (x, deps) in enumerate(ST):
            for d in deps: self.needl(d)
            if i or not spec: x()
            if self.kw.get('pslot') == i: self.fl("h3")
            for m in mems[i]: m()
            if i + 1 < N and i != WO - 1:
                for d in reversed(ST[i + 1][1]): self.needl(d)
            for x in vals[i]: x()
            for x in post[i]: x()
        A.fill = None
        self.fl(14)
        if self.flog:
            self.fl_collect(14); self.lq = []; self.vq.append("log")
        def pad16(n):
            for _ in range(n):
                A.I("v_mov_b32", v(t0), 0); A.nop(3)
        junk = []
        for r, inc in ((sKXN, 32 * 8192), (sVXN, 32 * 8192), (sKM, 32 * 4096)):
            junk.append(valu("s_add_u32", s(r), s(r), hex(inc)))
        junk.append(valu("s_add_u32", s(sMBLD), s(sMBST), 1024 * w))
        junk.append(valu("s_add_u32", s(sMBLD2), s(sMBLD), 4096))
        for j in range(2): junk.append(valu("s_xor_b32", s(sPBST + j), s(sPBST + j), hex(PBPAR)))
        junk.append(valu("s_mov_b32", s(sBIG), f2h(2.0 ** self.kw.get('bigexp', 20))))
        if w == 0: junk.append(valu("v_mov_b32", v(vFLG), s(sSTEP)))
        junk.append(valu("s_add_u32", s(sSTEP), s(sSTEP), 1))
        if w >= WE: junk += [valu("v_cndmask_b32", v(SEL + d), 0, v(vSEL), s(self.sSEL + 2 * d, 2)) for d in range(4)]
        junk += [valu("v_mov_b32", v(r), 0) for r in range(vQK, vQK + 24) if w < WE or not (vQK if rg else vVA) <= r < vVA + 6]
        pf = self.prefetch_items()
        if self.kreg:
            kb = [] if opt('kbd', False) else [lambda: self.needv("kk"), bar]
            pf = kb + pf + self.kreads() if opt('kb0', True) else pf + kb + self.kreads()
        def tail():
            A.I("s_add_u32", s(sMBST), s(sMBST), 8192)
            assert (WS_MB + self.wo) & 0xffff == 0
            A.I("s_bitset0_b32", s(sMBST), 15)
            A.I("s_xor_b32", s(sRST), s(sMBST), 16384)
            A.I("s_xor_b32", s(sPBLD), s(sPBLD), hex(PBPAR))
            A.I("s_xor_b32", s(sPBLD2), s(sPBLD), 1024)
            A.I("s_bfe_u32", s(sTAG), s(sSTEP), hex(0x10001))
        if w < WE:
            if opt('pf1', self.kreg): junk, pf = pf, junk
            for x in junk: x()
            pad16(opt('wpre', 0))
            for x in pf: x()
            tail()
            if self.kvcheck:
                A.I("s_add_u32", s(sT1), s(sSTEP), 6 if opt('pfk', 0) else 5)
                A.I("s_lshr_b32", s(sT1), s(sT1), 2)
                A.I("s_min_u32", s(sT1), s(sT1), 16)
                A.I("s_bfm_b32", s(sNEED), s(sT1), 0)
                lkv = A.newlabel("kvw"); lkb = A.newlabel("kvb")
                self.needv("kvf")
                A.I("v_cmp_eq_u32", "vcc", 0, v(vDUM))
                A.I("s_and_b64", "vcc", "vcc", s(sNEED, 2))
                A.I("s_cbranch_scc1", lkv)
                A.label(lkb)
                def ool_kv():
                    A.label(lkv)
                    self.retry_head(sNRF, lkb)
                    A.I("s_sleep", 4)
                    A.I("buffer_load_dword", v(vDUM), v(vL4), s(S_WS, 4), s(sKVF), mods="offen sc1")
                    A.I("s_waitcnt", "vmcnt(0)")
                    A.I("v_cmp_eq_u32", "vcc", 0, v(vDUM))
                    A.I("s_and_b64", "vcc", "vcc", s(sNEED, 2))
                    A.I("s_cbranch_scc1", lkv)
                    A.I("s_branch", lkb)
                self.ool.append(ool_kv)
            pad16(opt('wpad', 20) - (7 if self.flog else 0))
            A.I("s_waitcnt", "lgkmcnt(0)")
            A.I("s_branch", LTOP)
            return
        def rloads(mod, track=True, RL=RL, t="r"):
            for m in range(4):
                (self.vm if track else untracked)(f"{t}{m}", "buffer_load_dwordx4", v(RL[m], 4), v(vL16), s(S_WS, 4), s(sPBLD2 if m & 1 else sPBLD),
                        mods=self.mods("offen", self.off((m & 2) * 1024), mod))
        rp = self.rp[w - WE] - (25 if self.flog else 0)
        npf = len(pf) - 16 + opt('rpf', 0 if self.kreg else 16)
        junk = pf[:npf] + junk
        junk += [valu("v_mov_b32", v(tc), 0)] * max(0, rp + 1 - len(junk))
        junk = junk[:rp] + pf[npf:] + junk[rp:]
        RB = [vQK + 4 * m for m in range(4)]
        if rg: junk += [valu("v_mov_b32", v(tc), 0)] * max(0, rp + rg[w - WE] + 1 - len(junk))
        for i, x in enumerate(junk):
            if i == rp: self.fl("h6"); rloads(self.pollmod)
            if rg and i == rp + rg[w - WE]: rloads(opt('bmod', "sc1"), True, RB, "b")
            x()
        lrl = A.newlabel("rl"); lrs = A.newlabel("rslow"); lrg = A.newlabel("rgo")
        if early3:
            for _ in range(opt('e3pad', 0)): A.I("v_mov_b32", v(tc), 0)
            if opt('e3pos', 0) == 0: self.fl("h7"); mload(0, self.pollmod, "f0n")
        if rg: A.label(lrl)
        for m in range(4):
            self.needv(f"r{m}")
            if m == 0 and early3 and opt('e3pos', 0) == 1: self.fl("h7"); mload(0, self.pollmod, "f0n")
            if m == 0 and not rg: A.label(lrl)
            A.I(MF, v(RD, 4), v(RL[m], 4), v(SEL, 4), 0 if m == 0 else v(RD, 4))
            A.I("v_xor_b32", v(tc + (m > 0)), s(sTAG), v(RL[m]))
            if m: A.I("v_or_b32", v(tc), v(tc), v(tc + 1))
        self.fl("h8")
        A.I("v_and_b32", v(tc), 1, v(tc))
        A.I("v_cmp_ne_u32", "vcc", 0, v(tc))
        if not nochk: A.I("s_cbranch_vccnz", lrs)
        A.label(lrg)
        A.I("v_permlane32_swap_b32", v(RD), v(RD + 2))
        A.I("v_permlane32_swap_b32", v(RD + 1), v(RD + 3))
        A.I("v_pk_add_f32", v(RD, 2), v(RD, 2), v(RD + 2, 2))
        A.I("s_mov_b64", "exec", s(sRMASK, 2))
        A.I("v_cvt_pk_bf16_f32", v(SEL), v(RD), v(RD + 1))
        A.I("v_min_u32", v(SEL), "0xfffffffe", v(SEL))
        A.I("buffer_store_dword", v(SEL), v(vMST), s(S_WS, 4), s(sMBST), mods=self.mods("offen", sc or opt('mmod', '')))
        A.I("s_mov_b64", "exec", -1)
        self.fl(15)
        def ool_r():
            A.label(lrs)
            rloads("sc1", False)
            self.retry_head(sNRR, lrg)
            if rg:
                for m in range(4):
                    A.I("s_waitcnt", f"vmcnt({7 - m})")
                    A.I(MF, v(RD, 4), v(RB[m], 4), v(SEL, 4), 0 if m == 0 else v(RD, 4))
                    A.I("v_xor_b32", v(tc + (m > 0)), s(sTAG), v(RB[m]))
                    if m: A.I("v_or_b32", v(tc), v(tc), v(tc + 1))
                self.fl("h8")
                A.I("v_and_b32", v(tc), 1, v(tc))
                A.I("v_cmp_ne_u32", "vcc", 0, v(tc))
                A.I("s_cbranch_vccz", lrg)
                rloads("sc1", False, RB)
                A.I("s_add_u32", s(sNRR), s(sNRR), 1)
                A.I("s_branch", lrl)
                return
            A.I("s_waitcnt", "vmcnt(0)")
            A.I("s_branch", lrl)
        self.ool.append(ool_r)
        tail()
        A.I("s_waitcnt", "lgkmcnt(0)")
        A.I("s_branch", LTOP)

    def dump_timing(self):
        A = self.A
        A.I("s_lshl_b32", s(sT0), s(sH), 2)
        A.I("s_add_u32", s(sT0), s(sT0), s(sWV))
        A.I("s_lshl_b32", s(sT0), s(sT0), 7)
        A.I("s_add_u32", s(sT0), s(sT0), hex(WS_TS))
        regs = [sACC + i for i in range(16)] + [sNRM, sNRR, sNRF, self.sNRX]
        for i, r in enumerate(regs):
            A.I("v_mov_b32", v(1), s(r))
            A.I("buffer_store_dword", v(1), "off", s(S_WS, 4), s(sT0), mods=f"offset:{4*i}")

    def emit_ool(self):
        for f in self.ool:
            self.A.reset_haz()
            f()
        self.ool = []
```

```python
S, DM, H, DH, M, SEG, NSEG, FF = 2048, 512, 32, 128, 8, 32, 64, 1792

WS_CTRL = 0x0
CT_PROG = 0x1000
CT_F1   = 0x2000
CT_F2   = 0x4000
CT_KEY  = 0x6000
CT_F4   = 0x8000
CT_F2F  = 0x8800
EARLY   = 1792
CT_KEYE = 0x8B00
CT_THR  = 0x8F00
CT_KEYS = 0x9000
CT_SIZE = 0xB000
LATE    = 60
WS_MB   = 0x10000
WS_PB   = 0x100000
WS_KM   = 0x240000
WS_VM   = 0xA80000
WS_KX   = 0x1000000
WS_VX   = 0x2000000
WS_QX   = 0x3000000
WS_PO   = 0x4000000
WS_H    = 0x6000000
WS_HN   = 0x6200000
WS_KEY  = CT_KEY
WS_FY   = 0x6410000
NFW = 56
WS_TS   = 0x8000000

def tok_of_row(c):
    return 2 * (c >> 2) + (c & 1)
def half_of_row(c):
    return (c >> 1) & 1

def d_of(kappa, k):
    return 128 * (k >> 4) + 64 * (kappa >> 2) + 16 * ((k >> 2) & 3) + 4 * (kappa & 3) + (k & 3)

def e_of(kp, k):
    gA, p, gp, b = k >> 4, (k >> 2) & 3, (k >> 1) & 1, k & 1
    return 64 * kp + 32 * (gA >> 1) + 16 * (p >> 1) + 8 * (gA & 1) + 4 * gp + 2 * (p & 1) + b

def feat_of(ks, g, j):
    return 32 * ks + 16 * (j & 1) + 4 * g + (j >> 1)

def key_of(g, j):
    return 16 * (j >> 2) + 4 * g + (j & 3)
```

```python
import math
from asmgen import *
from layout import *
from common import *

S_WS = 8; S_W = 12
sHP, sWV, sSEG, sSTR = 20, 21, 22, 23
sT0, sT1, sT2 = 24, 25, 26
sW1K = 27
sC1 = 28
sMASK = 30
sQ, sK, sV, sKM, sVM, sPO = 46, 47, 48, 49, 50, 51
sF2 = 52
sNEG = 53
sK2, sV2 = 54, 55
sLATE, sFAST = 81, 83

vQ = 0; vK = 16; vKMf = 48; vV = 64; vKV = 220; vVMB = 104
KSCR = 0x22000
vS = 112
vP = 124
vLA = 132; vONE = 136
vO = 140
vOF = 0
vACC = 172
vL16, vL8, vPOo, vOXW, vOXR, vT, vT2, vT3 = 240, 241, 242, 243, 244, 246, 247, 248
vKSW, vKSR = 253, 254
vPF = 245; vXR = 96; vPJ = 104; vIF = 108; vEX = 109
sPA, sPB = 61, 50
sHALF = 82
MF = "v_mfma_f32_16x16x32_bf16"; MF16 = "v_mfma_f32_16x16x16_bf16"

class Phase2:
    def __init__(self, A, tag="p2", ldmod="", stmod="", progmask=0xff, sl=(8, 2), kms=None, pol=None, smode=None, um=False, half=False, xr=False, poc=None, quad=None, pre=None, pmod='sc1'):
        self.pmod = pmod
        self.pre = pre
        self.quad = quad
        self.poc = poc
        self.um = um; self.half = half; self.xr = xr
        self.sl = sl; self.kms = kms; self.pol = pol; self.smode = smode
        self.progmask = progmask
        self.A = A; self.tag = tag; self.ldmod = ldmod; self.stmod = stmod

    def setup(self):
        A = self.A
        L, G, C, T, U, R = 1, 2, 3, 4, 5, 6
        srd(A, S_W, 40, 4 << 20)
        A.I("v_lshrrev_b32", v(T), 6, v(0))
        A.I("v_readfirstlane_b32", s(sWV), v(T))
        A.I("v_and_b32", v(L), 63, v(0))
        A.I("v_lshrrev_b32", v(G), 4, v(L))
        A.I("v_and_b32", v(C), 15, v(L))
        A.I("v_lshrrev_b32", v(R), 2, v(C))
        A.I("v_lshlrev_b32", v(vL16), 4, v(L))
        A.I("v_lshlrev_b32", v(vL8), 3, v(L))
        A.I("s_lshl_b32", s(sW1K), s(sWV), 10)
        A.I("s_lshl_b32", s(sT0), s(sWV), 5)
        A.I("v_xor_b32", v(T), s(sT0), v(vL16))
        A.I("v_add_u32", v(8), s(sW1K), v(T))
        A.I("v_xor_b32", v(9), 128, v(8))
        A.I("v_lshl_add_u32", v(T), v(G), 2, v(R))
        A.I("v_and_b32", v(U), 7, v(T))
        A.I("v_lshlrev_b32", v(T), 10, v(T))
        A.I("v_lshl_add_u32", v(T), v(U), 5, v(T))
        A.I("v_and_b32", v(U), 3, v(C))
        A.I("v_lshlrev_b32", v(U), 4, v(U))
        A.I("v_xor_b32", v(T), v(U), v(T))
        A.I("s_lshl_b32", s(sT0), s(sWV), 8)
        A.I("v_add_u32", v(10), s(sT0), v(T))
        for hh in range(2):
            if hh: A.I("s_barrier")
            A.I("s_lshl_b32", s(sT1), s(sHP), 18)
            for ks in range(4):
                for i in range(8):
                    A.I("s_add_u32", s(sT0), s(sT1), hex(hh * 131072 + (32 * ks + 4 * i) * 1024))
                    A.I("s_add_u32", "m0", s(sW1K), hex(ks * 32768 + 4 * i * 1024))
                    A.I("buffer_load_dwordx4", v(9 if i & 1 else 8), s(S_W, 4), s(sT0), mods="offen lds")
            A.I("s_waitcnt", "vmcnt(0)")
            A.I("s_barrier")
            for half in range(2):
                for t in range(8):
                    A.I("v_xor_b32", v(11), hex((t >> 1) << 6 | (t & 1) << 3 | half << 16), v(10))
                    for k2 in range(2):
                        ks = 2 * half + k2
                        for q in range(2):
                            A.I("ds_read_b64_tr_b16", a(((hh * 4 + ks) * 8 + t) * 4 + 2 * q, 2), v(11), mods=off(k2 * 32768 + q * 16384))
                    if t & 1: A.I("s_waitcnt", "lgkmcnt(0)")
        A.I("s_barrier")
        A.I("s_and_b32", s(sT0), s(sWV), 1)
        A.I("s_lshl_b32", s(sT0), s(sT0), 4)
        A.I("v_add_u32", v(T), s(sT0), v(C))
        A.I("v_lshlrev_b32", v(U), 2, v(G))
        A.I("v_sub_u32", v(T), v(T), v(U))
        for tau in range(2):
            for r in range(4):
                A.I("v_cmp_le_i32", s(sMASK + 2 * (tau * 4 + r), 2), 16 * tau + r, v(T))
        c1 = f2h((DH ** -0.5) * math.log2(math.e))
        A.I("s_mov_b32", s(sC1), c1)
        A.I("s_mov_b32", s(sC1 + 1), c1)
        A.I("s_mov_b32", s(sNEG), "0xff000000")
        for i in range(4):
            A.I("v_mov_b32", v(vONE + i), "0x3f803f80")
        A.I("v_lshlrev_b32", v(T), 10, v(C))
        A.I("v_lshl_add_u32", v(T), v(G), 4, v(T))
        A.I("s_lshl_b32", s(sT0), s(sWV), 8)
        A.I("v_add_u32", v(vPOo), s(sT0), v(T))
        A.I("s_lshl_b32", s(sT0), s(sWV), 12)
        A.I("v_add_u32", v(vOXW), s(sT0), v(vL16))
        A.I("v_mov_b32", v(vOXR), v(vL16))
        A.I("s_add_u32", s(sT0), s(sT0), hex(KSCR))
        A.I("v_xor_b32", v(7), v(G), v(R))
        A.I("v_lshl_add_u32", v(T), v(G), 4, v(7))
        A.I("v_and_b32", v(U), 3, v(C))
        A.I("v_lshl_add_u32", v(T), v(T), 2, v(U))
        A.I("v_lshl_add_u32", v(vKSW), v(T), 2, s(sT0))
        A.I("v_lshl_add_u32", v(T), v(C), 2, v(7))
        A.I("v_lshl_add_u32", v(vKSR), v(T), 4, s(sT0))

    def seg_addrs(self):
        A = self.A
        A.I("s_lshl_b32", s(sT0), s(sSEG), 5)
        A.I("s_lshl_b32", s(sT1), s(sHP), 1)
        A.I("s_add_u32", s(sT0), s(sT0), s(sT1))
        A.I("s_lshr_b32", s(sT1), s(sWV), 1)
        A.I("s_add_u32", s(sT0), s(sT0), s(sT1))
        A.I("s_lshl_b32", s(sT1), s(sT0), 13)
        A.I("s_add_u32", s(sK), s(sT1), hex(WS_KX))
        A.I("s_add_u32", s(sK2), s(sK), 4096)
        A.I("s_add_u32", s(sV), s(sT1), hex(WS_VX))
        A.I("s_add_u32", s(sV2), s(sV), 4096)
        A.I("s_and_b32", s(sT2), s(sWV), 1)
        A.I("s_lshl_b32", s(sT2), s(sT2), 12)
        A.I("s_add_u32", s(sQ), s(sT1), s(sT2))
        A.I("s_add_u32", s(sQ), s(sQ), hex(WS_QX))
        A.I("s_lshl_b32", s(sT1), s(sT0), 12)
        A.I("s_add_u32", s(sKM), s(sT1), hex(WS_KM))
        A.I("s_lshl_b32", s(sT0), s(sSEG), 4)
        A.I("s_add_u32", s(sT0), s(sT0), s(sHP))
        A.I("s_lshl_b32", s(sT0), s(sT0), 15)
        A.I("s_add_u32", s(sPO), s(sT0), hex(WS_PO))

    def loads_x(self):
        A = self.A; m = self.ldmod
        for ks in range(4):
            A.I("buffer_load_dwordx4", v(vQ + 4 * ks, 4), v(vL16), s(S_WS, 4), s(sQ), mods=mods("offen", off(1024 * ks), m))
        for i in range(8):
            A.I("buffer_load_dwordx4", v(vK + 4 * i, 4), v(vL16), s(S_WS, 4), s(sK if i < 4 else sK2), mods=mods("offen", off(1024 * (i & 3)), m))
        for i in range(8):
            A.I("buffer_load_dwordx4", v(vV + 4 * i, 4), v(vL16), s(S_WS, 4), s(sV if i < 4 else sV2), mods=mods("offen", off(1024 * (i & 3)), m))

    def loads_m(self, m=None):
        A = self.A; m = m or self.ldmod
        for w in range(4):
            A.I("buffer_load_dwordx4", v(vKV + 4 * w, 4), v(vL16), s(S_WS, 4), s(sKM), mods=mods("offen", off(1024 * w), m))

    def segment(self, mid=None):
        A = self.A
        DM_, D0, D1 = vS, vS + 4, vS + 8
        PX, PM = vP, vP + 4
        tm, tt, mc, ri = vT, vT2, vT3, 250
        if self.pre:
            self.attention(mid)
        else:
            A.I("s_waitcnt", "vmcnt(8)" if mid else "vmcnt(12)")
            for tau, D in ((0, D0), (1, D1)):
                for ks in range(4):
                    A.I(MF, v(D, 4), v(vK + 16 * tau + 4 * ks, 4), v(vQ + 4 * ks, 4), 0 if ks == 0 else v(D, 4))
            A.I("v_mov_b32", v(tt), s(sNEG))
            for tau, D in ((0, D0), (1, D1)):
                for r in range(4):
                    A.I("v_cndmask_b32", v(D + r), v(tt), v(D + r), s(sMASK + 2 * (tau * 4 + r), 2))
            A.I("v_max3_f32", v(251), v(D0), v(D0 + 1), v(D0 + 2))
            A.I("v_max3_f32", v(251), v(251), v(D0 + 3), v(D1))
            A.I("v_max3_f32", v(251), v(251), v(D1 + 1), v(D1 + 2))
            if mid: mid()
            else: A.I("s_waitcnt", "vmcnt(0)")
            for w in range(4):
                for b in range(2):
                    A.I("ds_write_b32", v(vKSW), v(vKV + 4 * w + 1 + 2 * b), mods=off(1024 * w + 64 * b))
            for ks in range(4):
                A.I("ds_read_b128", v(vKMf + 4 * ks, 4), v(vKSR), mods=off(1024 * ks))
            A.I("s_waitcnt", "lgkmcnt(0)")
            for ks in range(4):
                A.I(MF, v(DM_, 4), v(vKMf + 4 * ks, 4), v(vQ + 4 * ks, 4), 0 if ks == 0 else v(DM_, 4))
            A.I("v_mov_b32", v(tm), v(251))
            A.I("v_max3_f32", v(tm), v(tm), v(D1 + 3), v(DM_))
            A.I("v_max_f32", v(tm), v(tm), v(DM_ + 1))
            xor_reduce(A, "v_max_f32", tm, tt)
            A.I("v_mul_f32", v(mc), s(sC1), v(tm))
            prs = [D0, D0 + 2, D1, D1 + 2, DM_]
            for r in prs:
                A.I("v_pk_fma_f32", v(r, 2), v(r, 2), s(sC1, 2), v(mc, 2), mods="op_sel_hi:[1,1,0] neg_lo:[0,0,1] neg_hi:[0,0,1]")
            for r in prs:
                A.I("v_exp_f32", v(r), v(r))
                A.I("v_exp_f32", v(r + 1), v(r + 1))
            for i, r in enumerate(prs):
                A.I("v_cvt_pk_bf16_f32", v(PX + i), v(r), v(r + 1))
            A.I("v_mov_b32", v(PM + 1), 0)
            A.I(MF, v(vLA, 4), v(vONE, 4), v(PX, 4), 0)
            for phi in range(8):
                A.I(MF, v(vO + 4 * phi, 4), v(vV + 4 * phi, 4), v(PX, 4), 0)
            A.I(MF16, v(vLA, 4), v(vONE, 2), v(PM, 2), v(vLA, 4))
            for phi in range(8):
                src = vKV + 2 * phi
                A.I(MF16, v(vO + 4 * phi, 4), v(src, 2), v(PM, 2), v(vO + 4 * phi, 4))
            A.I("v_rcp_f32", v(ri), v(vLA))
            for i in range(16):
                A.I("v_pk_mul_f32", v(vO + 2 * i, 2), v(vO + 2 * i, 2), v(ri, 2), mods="op_sel_hi:[1,0]")
            for i in range(16):
                A.I("v_cvt_pk_bf16_f32", v(vO + i), v(vO + 2 * i), v(vO + 2 * i + 1))
            for ks in range(4):
                A.I("ds_write_b128", v(vOXW), v(vO + 4 * ks, 4), mods=off(1024 * ks))
        A.I("s_waitcnt", "lgkmcnt(0)")
        A.I("s_barrier")
        if self.um:
            self.outproj()
            return
        for f in range(16):
            A.I("ds_read_b128", v(vOF + 4 * f, 4), v(vOXR), mods=off(1024 * f))
            if f == 7: A.I("s_waitcnt", "lgkmcnt(4)")
        A.I("v_xor_b32", v(vOXW), hex(0x4000), v(vOXW))
        A.I("v_xor_b32", v(vOXR), hex(0x4000), v(vOXR))
        A.I("s_waitcnt", "vmcnt(0) lgkmcnt(0)")
        for qt in range(2):
            for hh in range(2):
                for ks in range(4):
                    for t in range(8):
                        acc = v(vACC + (qt * 8 + t) * 4, 4)
                        A.I(MF, acc, a(((hh * 4 + ks) * 8 + t) * 4, 4), v(vOF + ((hh * 2 + qt) * 4 + ks) * 4, 4),
                            0 if (hh == 0 and ks == 0) else acc)
                    if qt == 1 and hh == 0: self.store_u(0, ks)

    def attention(self, mid):
        A = self.A
        DM_, D0, D1 = vS, vS + 4, vS + 8
        PX, PM = vP, vP + 4
        tm, tt, mc, ri = vT, vT2, vT3, 250
        sub = lambda d, r: A.I("v_pk_fma_f32", v(d, 2), v(r, 2), s(sC1, 2), v(mc, 2), mods="op_sel_hi:[1,1,0] neg_lo:[0,0,1] neg_hi:[0,0,1]")
        def xpart(full):
            for tau, D in ((0, D0), (1, D1)):
                for ks in range(4):
                    A.I(MF, v(D, 4), v(vK + 16 * tau + 4 * ks, 4), v(vQ + 4 * ks, 4), 0 if ks == 0 else v(D, 4))
            A.I("v_mov_b32", v(tt), s(sNEG))
            for tau, D in ((0, D0), (1, D1)):
                for r in range(4):
                    A.I("v_cndmask_b32", v(D + r), v(tt), v(D + r), s(sMASK + 2 * (tau * 4 + r), 2))
            A.I("v_max3_f32", v(tm), v(D0), v(D0 + 1), v(D0 + 2))
            A.I("v_max3_f32", v(tm), v(tm), v(D0 + 3), v(D1))
            A.I("v_max3_f32", v(tm), v(tm), v(D1 + 1), v(D1 + 2))
            A.I("v_max_f32", v(tm), v(tm), v(D1 + 3))
            if full: A.I("v_max3_f32", v(tm), v(tm), v(DM_), v(DM_ + 1))
            xor_reduce(A, "v_max_f32", tm, tt)
            A.I("v_mul_f32", v(mc), s(sC1), v(tm))
            prs = [D0, D0 + 2, D1, D1 + 2]
            for r in prs: sub(r, r)
            for r in range(D0, D0 + 8): A.I("v_exp_f32", v(r), v(r))
            for i, r in enumerate(prs): A.I("v_cvt_pk_bf16_f32", v(PX + i), v(r), v(r + 1))
            A.I("v_mov_b32", v(PM + 1), 0)
            A.I(MF, v(vLA, 4), v(vONE, 4), v(PX, 4), 0)
            for phi in range(8):
                if not full: A.I("s_waitcnt", f"vmcnt({7 - phi})")
                A.I(MF, v(vO + 4 * phi, 4), v(vV + 4 * phi, 4), v(PX, 4), 0)
        A.I("s_waitcnt", "vmcnt(8)")
        xpart(False)
        mid()
        for w in range(4):
            for b in range(2):
                A.I("ds_write_b32", v(vKSW), v(vKV + 4 * w + 1 + 2 * b), mods=off(1024 * w + 64 * b))
        for ks in range(4):
            A.I("ds_read_b128", v(vKMf + 4 * ks, 4), v(vKSR), mods=off(1024 * ks))
        self.side()
        for ks in range(4):
            A.I("s_waitcnt", f"lgkmcnt({3 - ks})")
            A.I(MF, v(DM_, 4), v(vKMf + 4 * ks, 4), v(vQ + 4 * ks, 4), 0 if ks == 0 else v(DM_, 4))
        ls = A.newlabel("redo"); lb = A.newlabel("redone")
        sub(DM_ + 2, DM_)
        A.I("v_max_f32", v(tm), v(DM_ + 2), v(DM_ + 3))
        A.I("v_cmp_lt_f32", "vcc", f2h(self.pre), v(tm))
        A.I("s_cbranch_vccnz", ls)
        A.label(lb)
        def redo():
            A.label(ls)
            A.reset_haz()
            xpart(True)
            sub(DM_ + 2, DM_)
            A.barrier_haz()
            A.I("s_branch", lb)
        self.ool = redo
        for i in range(2): A.I("v_exp_f32", v(DM_ + 2 + i), v(DM_ + 2 + i))
        A.I("v_cvt_pk_bf16_f32", v(PM), v(DM_ + 2), v(DM_ + 3))
        A.I(MF16, v(vLA, 4), v(vONE, 2), v(PM, 2), v(vLA, 4))
        work = []
        for phi in range(8):
            if phi < 2: work += [lambda r=r: A.I("v_mul_f32", v(r), v(ri), v(r)) for r in range(vO + 4 * phi, vO + 4 * phi + 4)]
            else: work += [lambda r=r: A.I("v_pk_mul_f32", v(r, 2), v(r, 2), v(ri, 2), mods="op_sel_hi:[1,0]") for r in (vO + 4 * phi, vO + 4 * phi + 2)]
            work += [lambda i=i: A.I("v_cvt_pk_bf16_f32", v(vO + i), v(vO + 2 * i), v(vO + 2 * i + 1)) for i in (2 * phi, 2 * phi + 1)]
            if phi & 1: work.append(lambda ks=phi >> 1: A.I("ds_write_b128", v(vOXW), v(vO + 4 * ks, 4), mods=off(1024 * ks)))
        for phi in range(8):
            A.I(MF16, v(vO + 4 * phi, 4), v(vKV + 2 * phi, 2), v(PM, 2), v(vO + 4 * phi, 4))
            if phi == 2: A.I("v_rcp_f32", v(ri), v(vLA))
            if phi > 2:
                for _ in range(2): work.pop(0)()
        for f in work: f()

    def outproj(self):
        A = self.A
        if self.half:
            A.I("s_lshr_b32", s(sT1), s(sHALF), 1)
            A.I("s_lshl_b32", s(sT0), s(sT1), 12)
            A.I("v_add_u32", v(vT), s(sT0), v(vOXR))
        ra = vT if self.half else vOXR
        fr = lambda qt: [(hh * 2 + qt) * 4 + ks for hh in range(2) for ks in range(4)]
        for f in fr(0): A.I("ds_read_b128", v(vOF + 4 * f, 4), v(ra), mods=off(1024 * f))
        A.I("v_xor_b32", v(vOXW), hex(0x4000), v(vOXW))
        later = fr(1)
        lh = A.newlabel("half"); le = A.newlabel("proj")
        for qt in range(2):
            for u in range(4):
                for i, f in enumerate(fr(qt)):
                    if qt == 0 and u == 0: A.I("s_waitcnt", f"lgkmcnt({7 - i})")
                    if qt == 1 and u == 2 and i == 0: A.I("s_waitcnt", "vmcnt(5)")
                    if qt == 1 and u == 0 and i == 0: A.I("s_waitcnt", "lgkmcnt(0)")
                    for t in (2 * u, 2 * u + 1):
                        acc = v(vACC + (qt * 8 + t) * 4, 4)
                        A.I(MF, acc, a((i * 8 + t) * 4, 4), v(vOF + 4 * f, 4), 0 if i == 0 else acc)
                    if qt == 0 and u == 1: A.I("ds_read_b128", v(vOF + 4 * later[i], 4), v(vOXR), mods=off(1024 * later[i]))
                    if i == 1 and qt + u: self.store_u(*divmod(4 * qt + u - 1, 4))
            if qt == 0:
                A.I("v_xor_b32", v(vOXR), hex(0x4000), v(vOXR))
                if self.half:
                    A.I("s_cmp_lg_u32", s(sHALF), 0)
                    A.I("s_cbranch_scc1", lh)
        self.store_u(1, 3)
        if self.half:
            A.I("s_branch", le)
            A.label(lh)
            A.reset_haz()
            A.nop(8)
            self.store_u(0, 3)
            A.I("s_waitcnt", "lgkmcnt(0)")
            A.label(le)

    def store_u(self, qt, u):
        A = self.A
        g = vO + 4 * u
        t0 = vACC + (qt * 8 + 2 * u) * 4
        for i in range(4):
            A.I("v_cvt_pk_bf16_f32", v(g + i), v(t0 + 2 * i), v(t0 + 2 * i + 1))
        if self.quad: A.I("v_min_u32", v(g), "0xfffffffe", v(g))
        if u == 0: A.I("s_add_u32", s(sT0), s(sPO), qt * 16384)
        self.either(lambda m: A.I("buffer_store_dwordx4", v(g, 4), v(vPOo), s(S_WS, 4), s(sT0), mods=mods("offen", off(64 * u), m)))

    def gather(self, fin, lsk):
        A = self.A
        RA, RB, Hh, EX = 32, 48, fin.b + 68, 112
        def issue(R, sb, m):
            for j in range(4): A.I("buffer_load_dwordx4", v(R + 4 * j, 4), v(vPJ + j if j else vL16), s(S_WS, 4), s(sb), mods=mods("offen", m))
        def check(R):
            A.I("s_waitcnt", "vmcnt(4)")
            A.I("v_max3_u32", v(vT), v(R), v(R + 4), v(R + 8))
            A.I("v_max_u32", v(vT), v(vT), v(R + 12))
            A.I("v_cmp_eq_u32", "vcc", -1, v(vT))
        def total(R):
            for j in range(4):
                for i in range(4):
                    A.I("v_dot2_f32_bf16", v(Hh + 2 * i), v(R + 4 * j + i), s(fin.sLO), v(Hh + 2 * i))
                    A.I("v_dot2_f32_bf16", v(Hh + 2 * i + 1), v(R + 4 * j + i), s(fin.sHI), v(Hh + 2 * i + 1))
        lp = A.newlabel("gp"); lb = A.newlabel("gb"); la = A.newlabel("ga"); ld = A.newlabel("gd"); l1 = A.newlabel("g1")
        self.either(lambda m: issue(RB, sPB, "" if m else "sc1"))
        for i in range(8): A.I("v_mov_b32", v(Hh + i), 0)
        for i in range(self.quad[0]): A.I("v_mov_b32", v(vT), 0)
        A.I("s_mov_b32", s(sPT0), 0)
        A.label(lp)
        self.either(lambda m: issue(RA, sPA, "" if m else "sc1"))
        check(RB)
        A.I("s_cbranch_vccz", lb)
        issue(RB, sPB, "sc1")
        check(RA)
        A.I("s_add_u32", s(sPT0), s(sPT0), 1)
        A.I("s_cbranch_vccz", la)
        A.I("s_cmp_lt_u32", s(sPT0), hex(POLL_MAX))
        A.I("s_cbranch_scc1", lp)
        A.label(lb)
        A.reset_haz()
        total(RB)
        A.I("s_cmp_lg_u32", s(sHALF), 0)
        A.I("s_cbranch_scc1", ld)
        A.I("s_waitcnt", "vmcnt(0)")
        A.label(la)
        total(RA)
        A.label(ld)
        A.nop(3)
        A.reset_haz()
        for i in range(2): A.I("ds_write_b128", v(vEX), v(Hh + 4 * i, 4), mods=off(1024 * i))
        A.I("s_cmp_lg_u32", s(sHALF), 0)
        A.I("s_cselect_b32", s(sT0), 3, 1)
        A.I("s_and_b32", s(sT0), s(sT0), s(sGW))
        A.I("s_waitcnt", "lgkmcnt(0)")
        A.I("s_barrier")
        A.I("s_cbranch_scc1", lsk)
        for i in range(2): A.I("ds_read_b128", v(EX + 4 * i, 4), v(vEX), mods=off(4096 + 1024 * i))
        A.I("s_cmp_eq_u32", s(sHALF), 0)
        A.I("s_cbranch_scc1", l1)
        for i in range(2, 6): A.I("ds_read_b128", v(EX + 4 * i, 4), v(vEX), mods=off(4096 * (1 + i // 2) + 1024 * (i & 1)))
        A.I("s_waitcnt", "lgkmcnt(0)")
        for i in range(4): A.I("v_pk_add_f32", v(EX + 8 + 2 * i, 2), v(EX + 8 + 2 * i, 2), v(EX + 16 + 2 * i, 2))
        for i in range(4): A.I("v_pk_add_f32", v(EX + 2 * i, 2), v(EX + 2 * i, 2), v(EX + 8 + 2 * i, 2))
        A.label(l1)
        A.I("s_waitcnt", "lgkmcnt(0)")
        for i in range(4): A.I("v_pk_add_f32", v(Hh + 2 * i, 2), v(Hh + 2 * i, 2), v(EX + 2 * i, 2))
        ts(A, 18, dyn=80)

    def either(self, st):
        A = self.A
        if not self.pol: return st(self.stmod)
        l1 = A.newlabel("near"); l2 = A.newlabel("far")
        A.I("s_cmp_lg_u32", s(sFAST), 0)
        A.I("s_cbranch_scc1", l1)
        st(self.stmod)
        A.I("s_branch", l2)
        A.label(l1)
        st("")
        A.label(l2)

    def store_po(self):
        if self.um: return
        for u in range(4): self.store_u(1, u)

    def body(self):
        A = self.A
        self.setup()
        LP = f"L_{self.tag}_seg"; LE = f"L_{self.tag}_end"
        A.barrier_haz()
        A.label(LP)
        A.reset_haz()
        A.I("s_cmp_ge_u32", s(sSEG), NSEG)
        A.I("s_cbranch_scc1", LE)
        self.seg_addrs()
        self.loads_x()
        self.loads_m()
        self.segment()
        self.store_po()
        A.I("s_add_u32", s(sSEG), s(sSEG), s(sSTR))
        A.I("s_branch", LP)
        A.label(LE)
        A.reset_haz()

    def mega(self, fin, after_setup=None, lag=None, late_stage=None, slag=None):
        A = self.A
        if slag:
            A.I("v_mov_b32", v(1), 0)
            A.I("s_lshl_b32", s(sT0), s(sHP), 7)
            A.I("s_add_u32", s(sT0), s(sT0), hex(WS_CTRL + CT_PROG))
            A.I("s_mul_i32", s(sT1), s(sSEG), slag[1])
            A.I("s_lshr_b32", s(sT1), s(sT1), 4)
            A.I("s_add_u32", s(sT1), s(sT1), slag[0])
            wait_words(A, S_WS, 1, s(sT0), 1, s(sT1), 2, sleep=self.sl[0], paced=True)
        self.setup()
        fin.setup()
        if after_setup: after_setup()
        ts(A, 3)
        A.I("v_lshrrev_b32", v(vT), 2, v(vL16))
        for mat in range(3):
            A.I("s_lshl_b32", s(sT0), s(sHP), 7)
            A.I("s_add_u32", s(sT0), s(sT0), hex(WS_CTRL + CT_F1 + mat * 32 * 64))
            wait_words(A, S_WS, vT, s(sT0), 32, 1, vT2, sleep=32)
        ts(A, 4)
        A.I("s_mov_b32", s(80), 0)
        A.I("s_mov_b32", s(sHALF), 0)
        SENT = self.quad and self.quad[1]
        if self.quad:
            for j in range(1, 4): A.I("v_add_u32", v(vPJ + j), hex(j << 15), v(vL16))
            A.I("s_lshl_b32", s(sT0), s(sWV), 12)
            A.I("s_add_u32", s(sT0), s(sT0), hex(KSCR))
            A.I("v_add_u32", v(vEX), s(sT0), v(vL16))
        def own_flag(how):
            A.I("s_lshl_b32", s(sT2), s(sHP), 2)
            A.I("s_add_u32", s(sT2), s(sT2), s(sF2))
            set_flag(A, S_WS, s(sT2), vT, how=how)
        LP = f"L_{self.tag}_seg"; LE = f"L_{self.tag}_end"
        A.barrier_haz()
        A.label(LP)
        A.reset_haz()
        A.I("s_cmp_ge_u32", s(sSEG), NSEG)
        A.I("s_cbranch_scc1", LE)
        if lag:
            A.I("v_lshrrev_b32", v(vT), 2, v(vL16))
            A.I("s_lshl_b32", s(sT0), s(sHP), 7)
            A.I("s_add_u32", s(sT0), s(sT0), hex(WS_CTRL + CT_PROG))
            A.I("s_mul_i32", s(sT1), s(sSEG), lag[1])
            A.I("s_lshr_b32", s(sT1), s(sT1), 4)
            A.I("s_add_u32", s(sT1), s(sT1), lag[0])
            wait_words(A, S_WS, vT, s(sT0), 1, s(sT1), vT2, sleep=self.sl[0], paced=True)
        if late_stage: late_stage()
        self.seg_addrs()
        A.I("s_cmp_ge_u32", s(sSEG), LATE)
        A.I("s_cselect_b32", s(sLATE), 1, 0)
        A.I("s_lshl_b32", s(fin.sROW), s(sHP), 1)
        A.I("s_lshr_b32" if self.quad else "s_and_b32", s(sT0), s(sGW), 1)
        A.I("s_add_u32", s(fin.sROW), s(fin.sROW), s(sT0))
        if self.half:
            A.I("s_cmp_ge_u32", s(sSEG), NSEG - 2)
            A.I("s_cselect_b32", s(sT0), 1, 0)
            A.I("s_max_u32", s(sHALF), s(sHALF), s(sT0))
            A.I("s_lshl_b32", s(sT0), s(sHALF), 3)
            A.I("s_and_b32", s(sT0), s(sT0), 16)
            A.I("s_add_u32", s(sT0), s(sT0), s(sHP))
            A.I("s_cmp_lg_u32", s(sHALF), 0)
            A.I("s_cselect_b32", s(fin.sROW), s(sT0), s(fin.sROW))
            if self.quad:
                A.I("s_cselect_b32", s(sPA), 0, hex(4 << 15))
                A.I("s_cselect_b32", s(sT0), 17, 18)
                A.I("s_lshl_b32", s(sPB), s(sGW), s(sT0))
                A.I("s_and_b32", s(sPB), s(sPB), hex(3 << 17))
                A.I("s_lshl_b32", s(sT0), s(fin.sROW), 10)
                A.I("s_add_u32", s(sPB), s(sPB), s(sT0))
                A.I("s_lshl_b32", s(sT0), s(sSEG), 19)
                A.I("s_add_u32", s(sPB), s(sPB), s(sT0))
                A.I("s_add_u32", s(sPB), s(sPB), hex(WS_PO))
                A.I("s_add_u32", s(sPA), s(sPA), s(sPB))
            A.I("s_and_b32", s(sT0), s(sHALF), 2)
            A.I("s_lshl_b32", s(sT0), s(sT0), 13)
            A.I("s_add_u32", s(sPO), s(sPO), s(sT0))
        A.I("s_lshl_b32", s(sT0), s(sSEG), 5)
        A.I("s_add_u32", s(fin.sROW), s(fin.sROW), s(sT0))
        if self.xr: fin.xload(vXR)
        A.I("s_lshl_b32", s(sF2), s(sSEG), 6)
        A.I("s_add_u32", s(sF2), s(sF2), hex(WS_CTRL + CT_F2))
        A.I("s_lshl_b32", s(sT0), s(sSEG), 7)
        if self.half:
            A.I("s_and_b32", s(sT1), s(sHALF), 2)
            A.I("s_lshl_b32", s(sT1), s(sT1), 7)
            A.I("s_add_u32", s(sT0), s(sT0), s(sT1))
        A.I("s_add_u32", s(sT0), s(sT0), hex(WS_CTRL + CT_F2F - 128 * LATE))
        A.I("s_cmp_lg_u32", s(sLATE), 0)
        A.I("s_cselect_b32", s(sF2), s(sT0), s(sF2))
        if self.pol:
            A.I("s_cmp_ge_u32", s(sSEG), self.pol[0])
            A.I("s_cselect_b32", s(sFAST), s(self.smode), 0)
            A.I("s_and_b32", s(sFAST), s(sFAST), 1)
            l = A.newlabel("notouch")
            A.I("s_cbranch_scc0", l)
            A.I("buffer_load_dword", v(vPF), "off", s(S_WS, 4), s(sF2), mods="sc1")
            if self.pol[1]:
                A.I("s_cmp_lg_u32", s(sHALF), 0)
                A.I("s_cselect_b32", s(sT1), 2, 3)
                A.I("v_lshlrev_b32", v(vT), s(sT1), v(vL16))
                A.I("s_lshl_b32", s(sT0), s(sW1K), s(sT1))
                A.I("s_add_u32", s(sT0), s(sT0), s(sPO))
                A.I("buffer_load_dword", v(vPF), v(vT), s(S_WS, 4), s(sT0), mods="offen sc1")
            if SENT:
                A.I("s_cmp_eq_u32", s(sHALF), 0)
                A.I("s_cbranch_scc1", l)
                A.I("s_mov_b32", s(sFAST), 3)
                for i in range(4): A.I("v_mov_b32", v(vO + i), -1)
                A.I("s_waitcnt", "vmcnt(0)")
                A.I("s_barrier")
                for u in range(4): A.I("buffer_store_dwordx4", v(vO, 4), v(vPOo), s(S_WS, 4), s(sPO), mods=mods("offen", off(64 * u)))
            A.label(l)
        self.loads_x()
        def side():
            if fin.thr and not self.pre: fin.tload()
            if SENT:
                l = A.newlabel("noside")
                A.I("s_cmp_lg_u32", s(sFAST), 3)
                A.I("s_cbranch_scc1", l)
                if fin.thr: fin.tload()
                A.I("v_bfe_u32", v(vIF), v(vL16), 2, 6)
                A.I("buffer_load_dword", v(vIF), v(vIF), s(S_WS, 4), s(sF2), mods="offen sc1")
                A.label(l)
        self.side = side
        def mid():
            A.I("v_lshrrev_b32", v(vT), 2, v(vL16))
            A.I("s_lshl_b32", s(sT0), s(sHP), 7)
            A.I("s_add_u32", s(sT0), s(sT0), hex(WS_CTRL + CT_PROG))
            A.I("s_add_u32", s(sT1), s(sSEG), 1)
            if self.kms:
                A.I("s_sub_u32", s(sT2), s(sSEG), 1)
                A.I("s_min_u32", s(sT2), s(sT2), NSEG - 3)
                A.I("s_cmp_lg_u32", s(sLATE), 0)
                A.I("s_cselect_b32", s(sT1), s(sT2), s(sT1))
            A.barrier_haz()
            wait_words(A, S_WS, vT, s(sT0), 8, s(sT1), vT2, sleep=self.sl[0], paced=True, mask=self.progmask)
            if not self.kms:
                ts(A, 16, dyn=80)
                self.loads_m()
                A.I("s_waitcnt", "vmcnt(0)")
                return
            nd, gap = self.kms[:2]
            lp = A.newlabel("kmp"); lf = A.newlabel("kmf"); lo = A.newlabel("kmo")
            A.I("s_cmp_eq_u32", s(sLATE), 0)
            A.I("s_cbranch_scc1", lf)
            if SENT:
                l = A.newlabel("noinit")
                A.I("s_cmp_lg_u32", s(sFAST), 3)
                A.I("s_cbranch_scc1", l)
                own_flag(lambda st: st(""))
                A.label(l)
            A.I("s_lshr_b32", s(sT2), s(sWV), 1)
            A.I("s_lshl_b32", s(sT2), s(sT2), 4)
            A.I("s_add_u32", s(sT0), s(sT0), s(sT2))
            A.I("s_mov_b32", s(sPT0), 0)
            def probe():
                A.I("buffer_load_dword", v(vPF), "off", s(S_WS, 4), s(sT0), mods="sc1")
                self.loads_m(self.pmod)
            for i in range(nd - 1):
                probe()
                A.I("s_sleep", gap)
            A.label(lp)
            probe()
            A.I("s_add_u32", s(sPT0), s(sPT0), 1)
            A.I("s_waitcnt", f"vmcnt({5 * (nd - 1)})")
            A.I("v_max3_u32", v(vT), v(vKV), v(vKV + 1), v(vKV + 2))
            for i in range(3, 15, 2): A.I("v_max3_u32", v(vT), v(vT), v(vKV + i), v(vKV + i + 1))
            A.I("v_max_u32", v(vT), v(vT), v(vKV + 15))
            A.I("v_cmp_eq_u32", "vcc", -1 if len(self.kms) < 3 else v(vT), v(vT))
            A.I("v_readfirstlane_b32", s(sT2), v(vPF))
            A.I("s_cbranch_vccz", lo)
            A.I("s_cmp_gt_u32", s(sT2), s(sSEG))
            A.I("s_cbranch_scc1", lf)
            A.I("s_cmp_lt_u32", s(sPT0), hex(POLL_MAX))
            A.I("s_cbranch_scc1", lp)
            A.label(lf)
            self.loads_m("sc1")
            A.I("s_waitcnt", "vmcnt(0)")
            A.label(lo)
            A.reset_haz()
            if not self.pre: side()
            ts(A, 16, dyn=80)
        self.segment(mid)
        self.store_po()
        lgo = A.newlabel("parts"); lwf = A.newlabel("wflag")
        if SENT:
            l = A.newlabel("flags")
            A.I("s_cmp_lg_u32", s(sFAST), 3)
            A.I("s_cbranch_scc1", l)
            A.I("s_waitcnt", "vmcnt(4)")
            A.I("v_cmp_eq_u32", "vcc", 0, v(vIF))
            ts(A, 17, dyn=80)
            A.I("s_cbranch_vccz", lgo)
            A.I("v_lshrrev_b32", v(vT), 2, v(vL16))
            wait_words(A, S_WS, vT, s(sF2), 16, 1, vT2, sleep=self.sl[1], barrier=False)
            A.I("s_branch", lgo)
            A.label(l)
        if fin.thr: fin.tload()
        A.I("s_waitcnt", "vmcnt(0)")
        A.I("s_barrier")
        ts(A, 17, dyn=80)
        own_flag(self.either)
        A.I("v_lshrrev_b32", v(vT), 2, v(vL16))
        wait_words(A, S_WS, vT, s(sF2), 16, 1, vT2, sleep=self.sl[1])
        A.label(lgo)
        A.reset_haz()
        lsk = A.newlabel("nofin")
        if self.quad:
            self.gather(fin, lsk)
        else:
            ts(A, 18, dyn=80)
            if self.half:
                A.I("s_cmp_lg_u32", s(sHALF), 0)
                A.I("s_cselect_b32", s(sT0), 1, 2)
            A.I("s_cmp_ge_u32", s(sGW), s(sT0) if self.half else 2)
            A.I("s_cbranch_scc1", lsk)
        fin.row(vXR if self.xr else None, summed=bool(self.quad))
        A.barrier_haz()
        A.label(lsk)
        A.reset_haz()
        if self.poc:
            assert self.half and self.pol[0] == NSEG - 2
            l = A.newlabel("clean")
            A.I("s_cmp_eq_u32", s(sFAST), 0)
            A.I("s_cbranch_scc1", l)
            for u in range(4): A.I("buffer_store_dwordx4", v(vO + 4 * u, 4), v(vPOo), s(S_WS, 4), s(sPO), mods=mods("offen", off(64 * u), self.poc))
            A.label(l)
        ts(A, 19, dyn=80)
        A.I("s_add_u32", s(80), s(80), 4)
        A.I("s_add_u32", s(sSEG), s(sSEG), s(sSTR))
        if self.half:
            A.I("s_sub_u32", s(sT0), s(sSEG), 68)
            A.I("s_cmp_lt_u32", s(sT0), 2)
            A.I("s_cselect_b32", s(sHALF), 2, 0)
            A.I("s_cselect_b32", s(sT0), 6, 0)
            A.I("s_sub_u32", s(sSEG), s(sSEG), s(sT0))
        A.I("s_branch", LP)
        if self.pre: self.ool()
        A.label(LE)
        A.reset_haz()
```

```python
import math
from asmgen import *
from layout import *
from common import *

MF = "v_mfma_f32_16x16x32_bf16"
LOG2E = math.log2(math.e)

def full_reduce(A, op, x, t):
    row_reduce16(A, op, x)
    xor_reduce(A, op, x, t)

class Finisher:
    S_WS = 8; S_X = 12; S_OUT = 16; S_WR = 56
    sROW, sWV, sT0, sT1, sT2, sLO, sHI = 60, 61, 62, 63, 64, 65, 66
    def __init__(self, A, ldmod="", stmod="", base=0, home=(96, 97, 104, 88), early=False, thr=None, kf=0, ksp=0):
        self.ksp = ksp; self.kf = kf; self.early = early; self.thr = thr; self.A = A; self.ldmod = ldmod; self.stmod = stmod; self.b = base; self.home = home

    def setup(self):
        A = self.A; b = self.b
        srd(A, self.S_X, 0, 2 << 20)
        srd(A, self.S_OUT, 96, 2 << 20)
        srd(A, self.S_WR, 64, 1024)
        L, T, U = b + 100, b + 101, b + 102
        self.vL16, self.vCOL, self.vWRP, self.vWR = self.home
        A.I("v_and_b32", v(L), 63, v(0))
        A.I("v_lshlrev_b32", v(self.vL16), 4, v(L))
        A.I("buffer_load_dwordx4", v(self.vWRP, 4), v(self.vL16), s(self.S_WR, 4), 0, mods="offen")
        A.I("s_mov_b32", s(self.sLO), "0x3f80")
        A.I("s_mov_b32", s(self.sHI), "0x3f800000")
        A.I("s_waitcnt", "vmcnt(0)")

    def xload(self, X):
        self.A.I("s_lshl_b32", s(self.sT2), s(self.sROW), 10)
        self.A.I("buffer_load_dwordx4", v(X, 4), v(self.vL16), s(self.S_X, 4), s(self.sT2), mods="offen")

    def tload(self):
        self.A.I("s_mov_b32", s(self.sT0), hex(WS_CTRL + CT_THR))
        self.A.I("buffer_load_dword", v(self.thr), "off", s(self.S_WS, 4), s(self.sT0), mods="sc1")

    def row(self, xr=None, summed=False):
        A = self.A; b = self.b
        sROW, sT0, sT1, sT2 = self.sROW, self.sT0, self.sT1, self.sT2
        P = b; X = b + 64; Hh = b + 68; D = b + 76; S_, T, MB, DMn, Q = b + 84, b + 85, b + 86, b + 87, b + 100
        if summed: X = xr
        else:
            A.I("s_lshr_b32", s(sT0), s(sROW), 5)
            A.I("s_lshl_b32", s(sT0), s(sT0), 19)
            A.I("s_and_b32", s(sT1), s(sROW), 31)
            A.I("s_lshl_b32", s(sT1), s(sT1), 10)
            A.I("s_add_u32", s(sT0), s(sT0), s(sT1))
            A.I("s_add_u32", s(sT0), s(sT0), hex(WS_PO))
            if xr is None: self.xload(X)
            else: X = xr
            for hp in range(16):
                A.I("buffer_load_dwordx4", v(P + 4 * hp, 4), v(self.vL16), s(self.S_WS, 4), s(sT0), mods=mods("offen", self.ldmod))
                if hp < 15: A.I("s_add_u32", s(sT0), s(sT0), 32768)
            for i in range(8):
                A.I("v_mov_b32", v(Hh + i), 0)
            for hp in range(16):
                A.I("s_waitcnt", f"vmcnt({15 - hp})")
                for i in range(4):
                    A.I("v_dot2_f32_bf16", v(Hh + 2 * i), v(P + 4 * hp + i), s(self.sLO), v(Hh + 2 * i))
                    A.I("v_dot2_f32_bf16", v(Hh + 2 * i + 1), v(P + 4 * hp + i), s(self.sHI), v(Hh + 2 * i + 1))
        for i in range(4):
            A.I("v_cvt_pk_bf16_f32", v(P + i), v(Hh + 2 * i), v(Hh + 2 * i + 1))
        for i in range(4):
            A.I("v_lshlrev_b32", v(Hh + 2 * i), 16, v(P + i))
            A.I("v_and_b32", v(Hh + 2 * i + 1), "0xffff0000", v(P + i))
            A.I("v_lshlrev_b32", v(D + 2 * i), 16, v(X + i))
            A.I("v_and_b32", v(D + 2 * i + 1), "0xffff0000", v(X + i))
        for i in range(4):
            A.I("v_pk_add_f32", v(Hh + 2 * i, 2), v(Hh + 2 * i, 2), v(D + 2 * i, 2))
        HP_ = P + 4
        for i in range(4):
            A.I("v_cvt_pk_bf16_f32", v(HP_ + i), v(Hh + 2 * i), v(Hh + 2 * i + 1))
        for i in range(4):
            A.I("v_lshlrev_b32", v(Hh + 2 * i), 16, v(HP_ + i))
            A.I("v_and_b32", v(Hh + 2 * i + 1), "0xffff0000", v(HP_ + i))
        later = []
        def put(n, f):
            if self.kf & n: later.append(f)
            else: f()
        def st_h():
            A.I("s_add_u32", s(sT1), s(sT2), hex(WS_H))
            A.I("buffer_store_dwordx4", v(HP_, 4), v(self.vL16), s(self.S_WS, 4), s(sT1), mods=mods("offen", self.stmod))
        put(1, st_h)
        A.I("v_add_f32", v(S_), v(Hh), v(Hh + 1))
        for i in range(2, 8):
            A.I("v_add_f32", v(S_), v(S_), v(Hh + i))
        full_reduce(A, "v_add_f32", S_, T)
        ln_mean(A, S_, MB, DMn)
        for i in range(8):
            A.I("v_sub_f32", v(D + i), v(Hh + i), v(MB))
        A.I("v_mul_f32", v(Q), v(D), v(D))
        for i in range(1, 8):
            A.I("v_fmac_f32", v(Q), v(D + i), v(D + i))
        full_reduce(A, "v_add_f32", Q, T)
        ln_rinv(A, Q, DMn, T)
        NP = P + 8
        for i in range(4):
            A.I("v_cvt_pk_bf16_f32", v(NP + i), v(D + 2 * i), v(D + 2 * i + 1))
        for i in range(4):
            A.I("v_lshlrev_b32", v(D + 2 * i), 16, v(NP + i))
            A.I("v_and_b32", v(D + 2 * i + 1), "0xffff0000", v(NP + i))
        for i in range(8):
            A.I("v_mul_f32", v(D + i), v(Q), v(D + i))
        for i in range(4):
            A.I("v_cvt_pk_bf16_f32", v(NP + i), v(D + 2 * i), v(D + 2 * i + 1))
        for i in range(4):
            A.I("v_lshlrev_b32", v(D + 2 * i), 16, v(NP + i))
            A.I("v_and_b32", v(D + 2 * i + 1), "0xffff0000", v(NP + i))
        def st_n():
            A.I("s_add_u32", s(sT1), s(sT2), hex(WS_HN))
            A.I("buffer_store_dwordx4", v(NP, 4), v(self.vL16), s(self.S_WS, 4), s(sT1), mods=mods("offen", self.stmod))
        def st_o():
            OP = P + 12
            for i in range(4):
                A.I("v_pk_add_f32", v(Hh + 2 * i, 2), v(Hh + 2 * i, 2), v(D + 2 * i, 2))
            for i in range(4):
                A.I("v_cvt_pk_bf16_f32", v(OP + i), v(Hh + 2 * i), v(Hh + 2 * i + 1))
            A.I("buffer_store_dwordx4", v(OP, 4), v(self.vL16), s(self.S_OUT, 4), s(sT2), mods=mods("offen", self.stmod))
        put(4, st_o); put(2, st_n)
        for i in range(4):
            A.I("v_lshlrev_b32", v(self.vWR + 2 * i), 16, v(self.vWRP + i))
            A.I("v_and_b32", v(self.vWR + 2 * i + 1), "0xffff0000", v(self.vWRP + i))
        A.I("v_mul_f32", v(S_), v(D), v(self.vWR))
        for i in range(1, 8):
            A.I("v_fmac_f32", v(S_), v(D + i), v(self.vWR + i))
        full_reduce(A, "v_add_f32", S_, T)
        bf16r(A, S_, S_)
        A.I("v_ashrrev_i32", v(T), 31, v(S_))
        A.I("v_or_b32", v(T), "0x80000000", v(T))
        A.I("v_xor_b32", v(S_), v(S_), v(T))
        A.I("v_and_b32", v(S_), "0xffff0000", v(S_))
        A.I("s_sub_u32", s(sT0), hex(0x8000 + 2047), s(sROW))
        A.I("v_or_b32", v(S_), s(sT0), v(S_))
        A.I("s_lshl_b32", s(sT0), s(sROW), 2)
        A.I("s_mov_b64", "exec", 1)
        if self.early:
            A.I("s_add_u32", s(sT1), s(sT0), hex(WS_CTRL + CT_KEYE - 4 * EARLY))
            if self.ksp:
                A.I("s_lshl_b32", s(sPT0), s(sROW), self.ksp)
                A.I("s_add_u32", s(sPT0), s(sPT0), hex((WS_CTRL + CT_KEYS - (1984 << self.ksp)) & 0xffffffff))
                A.I("s_cmp_ge_u32", s(sROW), 1984)
                A.I("s_cselect_b32", s(sT1), s(sPT0), s(sT1))
            A.I("s_cmp_ge_u32", s(sROW), EARLY)
            A.I("s_cselect_b32", s(sT1), s(sT1), "0x7ff00000")
            A.I("buffer_store_dword", v(S_), "off", s(self.S_WS, 4), s(sT1), mods=self.stmod)
        ln = A.newlabel("nokey")
        def rest(fs):
            if not fs: return
            A.I("s_mov_b64", "exec", -1)
            for f in fs: f()
            A.I("s_mov_b64", "exec", 1)
        rest([f for f in later if f is st_o])
        if self.thr:
            A.I("v_cmp_ge_u32", "vcc", v(self.thr), v(S_))
            A.I("s_cselect_b32", s(sT1), 1, 0)
            A.I("s_and_b32", s(sT1), s(sT1), "vcc_lo")
            A.I("s_cbranch_scc1", ln)
        rest([f for f in later if f is not st_o])
        A.I("s_add_u32", s(sT0), s(sT0), hex(WS_KEY))
        A.I("s_waitcnt", "vmcnt(0)")
        A.I("buffer_store_dword", v(S_), "off", s(self.S_WS, 4), s(sT0), mods=self.stmod)
        A.label(ln)
        A.I("s_mov_b64", "exec", -1)


def top2(A, S_WS, sK1, sK2, ldmod, lds_off, tb=0, poll=False, srnd=None, lim=240):
    K, T, U, AD = tb + 4, tb + 12, tb + 13, tb + 14
    A.I("v_lshlrev_b32", v(AD), 5, v(0))
    A.I("s_mov_b32", s(sK1), hex(WS_KEY))
    if srnd is not None:
        A.I("v_cmp_le_u32", "vcc", lim, v(0))
        A.I("v_mov_b32", v(U), s(srnd))
        A.I("v_add_u32", v(U), -1, v(U))
        A.I("v_cndmask_b32", v(tb + 3), 0, v(U), "vcc")
    if poll:
        lp = A.newlabel("kpoll"); ld = A.newlabel("kpolld")
        A.I("s_mov_b32", s(sK2), 0)
        A.label(lp)
        ldmod = "sc1"
    A.I("buffer_load_dwordx4", v(K, 4), v(AD), s(S_WS, 4), s(sK1), mods=mods("offen", ldmod))
    A.I("buffer_load_dwordx4", v(K + 4, 4), v(AD), s(S_WS, 4), s(sK1), mods=mods("offen offset:16", ldmod))
    if poll:
        A.I("s_waitcnt", "vmcnt(0)")
        A.I("v_min3_u32", v(T), v(K), v(K + 1), v(K + 2))
        A.I("v_min3_u32", v(T), v(T), v(K + 3), v(K + 4))
        A.I("v_min3_u32", v(T), v(T), v(K + 5), v(K + 6))
        A.I("v_min_u32", v(T), v(T), v(K + 7))
        if srnd is not None:
            A.I("v_or_b32", v(T), v(T), v(tb + 3))
        A.I("v_cmp_eq_u32", "vcc", 0, v(T))
        A.I("s_cbranch_vccz", ld)
        A.I("s_sleep", 6)
        A.I("s_add_u32", s(sK2), s(sK2), 1)
        A.I("s_cmp_lt_u32", s(sK2), hex(POLL_MAX))
        A.I("s_cbranch_scc1", lp)
        A.label(ld)
        if srnd is not None:
            for i in range(8):
                A.I("v_bfi_b32", v(K + i), v(tb + 3), 0, v(K + i))
    A.I("v_lshrrev_b32", v(AD), 6, v(0))
    A.I("v_lshlrev_b32", v(AD), 2, v(AD))
    A.I("v_add_u32", v(AD), hex(lds_off), v(AD))
    A.I("v_mov_b32", v(tb + 15), hex(lds_off))
    A.I("s_waitcnt", "vmcnt(0)")
    for rnd, sK in ((0, sK1), (1, sK2)):
        if rnd:
            for i in range(8):
                A.I("v_cmp_ne_u32", "vcc", s(sK1), v(K + i))
                A.I("v_cndmask_b32", v(K + i), 0, v(K + i), "vcc")
        A.I("v_max3_u32", v(T), v(K), v(K + 1), v(K + 2))
        A.I("v_max3_u32", v(T), v(T), v(K + 3), v(K + 4))
        A.I("v_max3_u32", v(T), v(T), v(K + 5), v(K + 6))
        A.I("v_max_u32", v(T), v(T), v(K + 7))
        full_reduce(A, "v_max_u32", T, U)
        A.I("ds_write_b32", v(AD), v(T), mods=off(16 * rnd))
        A.I("s_waitcnt", "lgkmcnt(0)")
        A.I("s_barrier")
        A.I("ds_read_b128", v(tb, 4), v(tb + 15), mods=off(16 * rnd))
        A.I("s_waitcnt", "lgkmcnt(0)")
        A.I("v_max3_u32", v(T), v(tb), v(tb + 1), v(tb + 2))
        A.I("v_max_u32", v(T), v(T), v(tb + 3))
        A.I("v_readfirstlane_b32", s(sK), v(T))

def sigmoid(A, d, x, t):
    A.I("v_mul_f32", v(t), f2h(-LOG2E), v(x))
    A.I("v_exp_f32", v(t), v(t))
    A.I("v_add_f32", v(t), 1.0, v(t))
    A.I("v_rcp_f32", v(d), v(t))

class FFN:
    S_WS = 8; S_W = 76
    sJ, sWV, sK1, sK2, sT0, sT1, sW1K = 67, 68, 69, 70, 71, 72, 73
    LG, LU, LD, LX = 32768, 65536, 98304, 131072
    def __init__(self, A, ldmod="", stmod="", poll=False):
        self.A = A; self.ldmod = ldmod; self.stmod = stmod; self.poll = poll

    def stage(self, spart=None, parts=(0, 4, 8)):
        A = self.A
        L, T, U = 1, 2, 3
        ls = [A.newlabel("part") for _ in range(3)]
        def part(i):
            if spart is None: return
            if i: A.label(ls[i - 1])
            if i < 3:
                A.I("s_cmp_lg_u32", s(spart), parts[i])
                A.I("s_cbranch_scc1", ls[i])
        A.I("v_lshrrev_b32", v(T), 6, v(0))
        A.I("v_readfirstlane_b32", s(self.sWV), v(T))
        A.I("v_and_b32", v(L), 63, v(0))
        A.I("s_lshl_b32", s(self.sW1K), s(self.sWV), 10)
        A.I("v_lshrrev_b32", v(T), 2, v(L))
        A.I("s_lshl_b32", s(self.sT0), s(self.sWV), 4)
        A.I("v_add_u32", v(T), s(self.sT0), v(T))
        A.I("s_movk_i32", s(self.sT0), 3584)
        A.I("v_mul_lo_u32", v(T), v(T), s(self.sT0))
        A.I("v_and_b32", v(U), 3, v(L))
        A.I("v_lshl_add_u32", v(4), v(U), 4, v(T))
        for karg, lds in ((72, self.LG), (80, self.LU)):
            part((karg - 72) // 8)
            srd(A, self.S_W, karg, 512 * 3584)
            for i in range(8):
                A.I("s_lshl_b32", s(self.sT0), s(self.sJ), 6)
                A.I("s_add_u32", s(self.sT0), s(self.sT0), hex(64 * i * 3584))
                A.I("s_add_u32", "m0", s(self.sW1K), hex(lds + 4096 * i))
                A.I("buffer_load_dwordx4", v(4), s(self.S_W, 4), s(self.sT0), mods="offen lds")
        part(2)
        srd(A, self.S_W, 88, 1792 * 1024)
        A.I("v_lshlrev_b32", v(5), 4, v(L))
        A.I("v_add_u32", v(5), s(self.sW1K), v(5))
        for i in range(8):
            A.I("s_lshl_b32", s(self.sT0), s(self.sJ), 15)
            A.I("s_add_u32", s(self.sT0), s(self.sT0), 4096 * i)
            A.I("s_add_u32", "m0", s(self.sW1K), hex(self.LD + 4096 * i))
            A.I("buffer_load_dwordx4", v(5), s(self.S_W, 4), s(self.sT0), mods="offen lds")
        part(3)

    def select(self, srnd=None, lim=240):
        top2(self.A, self.S_WS, self.sK1, self.sK2, self.ldmod, self.LX + 1024, tb=16, poll=self.poll, srnd=srnd, lim=lim)
        self.A.I("s_barrier")

    def reselect(self, sleep=1, ksp=0):
        A = self.A
        sK1, sK2, sT0, sT1 = self.sK1, self.sK2, self.sT0, self.sT1
        K, C_, T, U, AD = 20, 24, 28, 29, 30
        lp = A.newlabel("rsel"); ld = A.newlabel("rseld"); le = A.newlabel("rsele"); lw = A.newlabel("rselw")
        l2 = A.newlabel("rack"); l3 = A.newlabel("rackd")
        def red(op, X):
            A.I(f"v_{op}3_u32", v(T), v(X), v(X + 1), v(X + 2))
            A.I(f"v_{op}_u32", v(T), v(T), v(X + 3))
        def load(X):
            if not ksp: return A.I("buffer_load_dwordx4", v(X, 4), v(AD), s(self.S_WS, 4), s(sT0), mods="offen sc1")
            A.I("buffer_load_dword", v(X + 3), v(AD + 1), s(self.S_WS, 4), s(sT0), mods="offen sc1")
            A.I("buffer_load_dwordx3", v(X, 3), v(AD), s(self.S_WS, 4), s(sT0), mods="offen sc1")
        A.I("v_mul_u32_u24", v(AD), 12 if ksp else 16, v(0))
        A.I("v_lshlrev_b32", v(AD + 1), ksp, v(0))
        A.I("v_add_u32", v(AD + 1), hex(CT_KEYS - CT_KEYE), v(AD + 1))
        A.I("v_mov_b32", v(U), hex(self.LX + 1024))
        A.I("s_cmp_lg_u32", s(sGW), 0)
        A.I("s_cbranch_scc1", lw)
        A.I("s_mov_b32", s(sT0), hex(WS_CTRL + CT_KEYE))
        A.I("s_mov_b32", s(sT1), 0)
        A.label(lp)
        load(K)
        A.I("s_waitcnt", "vmcnt(0)")
        red("min", K)
        A.I("v_cmp_eq_u32", "vcc", 0, v(T))
        A.I("s_cbranch_vccz", ld)
        A.I("s_sleep", sleep)
        A.I("s_add_u32", s(sT1), s(sT1), 1)
        A.I("s_cmp_lt_u32", s(sT1), hex(POLL_MAX))
        A.I("s_cbranch_scc1", lp)
        A.label(ld)
        A.reset_haz()
        red("max", K)
        A.I("v_cmp_lt_u32", "vcc", s(sK2), v(T))
        A.I("s_cbranch_vccz", le)
        A.I("s_mov_b32", s(sT0), hex(WS_KEY + EARLY * 4))
        A.I("v_lshlrev_b32", v(AD + 1), 2, v(0))
        A.I("v_add_u32", v(AD + 1), 768, v(AD + 1))
        A.label(l2)
        load(C_)
        A.I("s_add_u32", s(sT1), s(sT1), 1)
        A.I("s_waitcnt", "vmcnt(0)")
        for i in range(4): A.I("v_sub_u32", v(C_ + i), v(K + i), v(C_ + i))
        red("max", C_)
        A.I("v_cmp_lt_u32", "vcc", s(sK2), v(T))
        A.I("s_cbranch_vccz", l3)
        A.I("s_cmp_lt_u32", s(sT1), hex(POLL_MAX))
        A.I("s_cbranch_scc1", l2)
        A.label(l3)
        A.reset_haz()
        red("max", K)
        full_reduce(A, "v_max_u32", T, U)
        A.I("v_readfirstlane_b32", s(sT0), v(T))
        for i in range(4):
            A.I("v_cmp_ne_u32", "vcc", s(sT0), v(K + i))
            A.I("v_cndmask_b32", v(K + i), 0, v(K + i), "vcc")
        red("max", K)
        full_reduce(A, "v_max_u32", T, U)
        A.I("v_readfirstlane_b32", s(sT1), v(T))
        A.I("s_max_u32", s(sK2), s(sK2), s(sT1))
        A.I("s_min_u32", s(sT1), s(sT0), s(sK1))
        A.I("s_max_u32", s(sK2), s(sK2), s(sT1))
        A.I("s_max_u32", s(sK1), s(sK1), s(sT0))
        A.I("v_mov_b32", v(U), hex(self.LX + 1024))
        A.label(le)
        A.reset_haz()
        A.I("v_mov_b32", v(K), s(sK1))
        A.I("v_mov_b32", v(K + 1), s(sK2))
        A.I("ds_write_b64", v(U), v(K, 2))
        A.I("s_waitcnt", "lgkmcnt(0)")
        A.label(lw)
        A.I("s_barrier")
        A.I("ds_read_b64", v(K, 2), v(U))
        A.I("s_waitcnt", "lgkmcnt(0)")
        A.I("v_readfirstlane_b32", s(sK1), v(K))
        A.I("v_readfirstlane_b32", s(sK2), v(K + 1))
        A.nop(4)

    def compute(self):
        A = self.A
        sK1, sK2, sT0, sT1 = self.sK1, self.sK2, self.sT0, self.sT1
        L, G, C, T, U, R = 1, 2, 3, 4, 5, 6
        A.I("v_and_b32", v(L), 63, v(0))
        A.I("v_lshrrev_b32", v(G), 4, v(L))
        A.I("v_and_b32", v(C), 15, v(L))
        A.I("v_lshrrev_b32", v(R), 2, v(C))
        A.I("s_and_b32", s(sT0), s(sK1), 2047)
        A.I("s_sub_u32", s(sT0), 2047, s(sT0))
        A.I("s_and_b32", s(sT1), s(sK2), 2047)
        A.I("s_sub_u32", s(sT1), 2047, s(sT1))
        A.I("v_and_b32", v(T), 1, v(C))
        A.I("v_cmp_eq_u32", "vcc", 0, v(T))
        A.I("v_mov_b32", v(T), s(sT0))
        A.I("v_mov_b32", v(U), s(sT1))
        A.I("v_cndmask_b32", v(T), v(U), v(T), "vcc")
        A.I("v_lshlrev_b32", v(T), 10, v(T))
        A.I("v_lshl_add_u32", v(T), v(G), 4, v(T))
        XA = 32
        A.I("s_mov_b32", s(sT0), hex(WS_HN))
        for ks in range(16):
            A.I("buffer_load_dwordx4", v(XA + 4 * ks, 4), v(T), s(self.S_WS, 4), s(sT0), mods=mods("offen", off(64 * ks), self.ldmod))
        A.I("v_lshl_add_u32", v(T), v(G), 3, v(R))
        A.I("v_lshlrev_b32", v(T), 6, v(T))
        A.I("v_and_b32", v(U), 3, v(C))
        A.I("v_lshl_add_u32", v(T), v(U), 3, v(T))
        A.I("s_lshr_b32", s(sT0), s(self.sWV), 1)
        A.I("s_lshl_b32", s(sT0), s(sT0), 15)
        A.I("s_and_b32", s(sT1), s(self.sWV), 1)
        A.I("s_lshl_b32", s(sT1), s(sT1), 5)
        A.I("s_add_u32", s(sT0), s(sT0), s(sT1))
        A.I("s_add_u32", s(sT0), s(sT0), hex(self.LG))
        A.I("v_add_u32", v(7), s(sT0), v(T))
        WB = 96
        for ks in range(16):
            for q in range(2):
                A.I("ds_read_b64_tr_b16", v(WB + 4 * ks + 2 * q, 2), v(7), mods=off(ks * 2048 + q * 256))
            if ks % 4 == 3: A.I("s_waitcnt", "lgkmcnt(0)")
        A.I("s_waitcnt", "vmcnt(0)")
        D = 8
        for ks in range(16):
            A.I(MF, v(D, 4), v(XA + 4 * ks, 4), v(WB + 4 * ks, 4), 0 if ks == 0 else v(D, 4))
        for r in range(2):
            bf16r(A, D + r, D + r)
        lu = A.newlabel("ffn_up")
        A.I("s_cmp_ge_u32", s(self.sWV), 2)
        A.I("s_cbranch_scc1", lu)
        for r in range(2):
            sigmoid(A, 12, D + r, 13)
            A.I("v_mul_f32", v(D + r), v(12), v(D + r))
            bf16r(A, D + r, D + r)
        A.barrier_haz()
        A.label(lu)
        A.I("s_lshr_b32", s(sT0), s(self.sWV), 1)
        A.I("s_lshl_b32", s(sT0), s(sT0), 8)
        A.I("s_and_b32", s(sT1), s(self.sWV), 1)
        A.I("s_lshl_b32", s(sT1), s(sT1), 6)
        A.I("s_add_u32", s(sT0), s(sT0), s(sT1))
        A.I("s_add_u32", s(sT0), s(sT0), hex(self.LX))
        A.I("v_lshlrev_b32", v(T), 2, v(C))
        A.I("v_add_u32", v(T), s(sT0), v(T))
        A.I("ds_write_b32", v(T), v(D))
        A.I("ds_write_b32", v(T), v(D + 1), mods="offset:128")
        A.I("s_waitcnt", "lgkmcnt(0)")
        A.I("s_barrier")
        A.I("v_and_b32", v(T), 1, v(C))
        A.I("v_lshlrev_b32", v(T), 7, v(T))
        A.I("v_lshl_add_u32", v(T), v(G), 5, v(T))
        A.I("v_add_u32", v(T), hex(self.LX), v(T))
        GG, UU = 32, 40
        A.I("ds_read_b128", v(GG, 4), v(T))
        A.I("ds_read_b128", v(GG + 4, 4), v(T), mods="offset:16")
        A.I("ds_read_b128", v(UU, 4), v(T), mods="offset:256")
        A.I("ds_read_b128", v(UU + 4, 4), v(T), mods="offset:272")
        A.I("v_lshl_add_u32", v(U), v(G), 3, v(R))
        A.I("v_lshlrev_b32", v(U), 10, v(U))
        A.I("v_and_b32", v(7), 3, v(C))
        A.I("v_lshl_add_u32", v(U), v(7), 3, v(U))
        A.I("s_lshl_b32", s(sT0), s(self.sWV), 8)
        A.I("s_add_u32", s(sT0), s(sT0), hex(self.LD))
        A.I("v_add_u32", v(7), s(sT0), v(U))
        A.I("s_waitcnt", "lgkmcnt(0)")
        for t in range(8):
            for q in range(2):
                A.I("ds_read_b64_tr_b16", v(WB + 4 * t + 2 * q, 2), v(7), mods=off(t * 32 + q * 4096))
            if t == 3: A.I("s_waitcnt", "lgkmcnt(0)")
        for i in range(8):
            A.I("v_mul_f32", v(GG + i), v(GG + i), v(UU + i))
        HA = 48
        for i in range(4):
            A.I("v_cvt_pk_bf16_f32", v(HA + i), v(GG + 2 * i), v(GG + 2 * i + 1))
        A.I("s_waitcnt", "lgkmcnt(0)")
        Y = 56
        for t in range(8):
            A.I(MF, v(Y + 4 * t, 4), v(HA, 4), v(WB + 4 * t, 4), 0)
        A.I("v_cmp_eq_u32", "vcc", 0, v(G))
        A.I("v_lshlrev_b32", v(T), 11, v(G))
        A.I("v_lshl_add_u32", v(T), v(C), 2, v(T))
        A.I("s_lshl_b32", s(sT0), s(self.sJ), 12)
        A.I("s_lshl_b32", s(sT1), s(self.sWV), 9)
        A.I("s_add_u32", s(sT0), s(sT0), s(sT1))
        A.I("s_add_u32", s(sT0), s(sT0), hex(WS_FY))
        for t in range(8):
            A.I("v_cndmask_b32", v(Y + 4 * t), v(Y + 4 * t + 1), v(Y + 4 * t), "vcc")
        A.I("s_mov_b32", "exec_hi", 0)
        for t in range(8):
            A.I("buffer_store_dword", v(Y + 4 * t), v(T), s(self.S_WS, 4), s(sT0), mods=mods("offen", off(64 * t), self.stmod))
        A.I("s_mov_b64", "exec", -1)

class Final:
    S_WS = 8; S_OUT = 16
    NWG = 8
    sK1, sK2, sT0, sT1 = 69, 70, 71, 72
    def __init__(self, A, ldmod="sc1"):
        self.A = A; self.ldmod = ldmod

    def pre(self, sI):
        A = self.A
        sK1, sK2, sT0, sT1 = self.sK1, self.sK2, self.sT0, self.sT1
        srd(A, self.S_OUT, 96, 2 << 20)
        L, U, KEY, RO, FO = 3, 4, 5, 6, 7
        A.I("v_and_b32", v(L), 63, v(0))
        A.I("s_cmp_lt_u32", s(sGW), 2)
        A.I("s_cselect_b32", s(sT0), s(sK1), s(sK2))
        A.I("v_mov_b32", v(KEY), s(sT0))
        A.I("s_and_b32", s(sT0), s(sT0), 2047)
        A.I("s_sub_u32", s(sT0), 2047, s(sT0))
        A.I("s_lshl_b32", s(sT0), s(sT0), 10)
        A.I("s_lshl_b32", s(sT1), s(sI), 1)
        A.I("s_and_b32", s(sPT0), s(sGW), 1)
        A.I("s_add_u32", s(sT1), s(sT1), s(sPT0))
        A.I("s_lshl_b32", s(sPT0), s(sT1), 6)
        A.I("s_add_u32", s(sT0), s(sT0), s(sPT0))
        A.I("v_and_b32", v(U), 7, v(L))
        A.I("v_lshlrev_b32", v(RO), 3, v(U))
        A.I("v_add_u32", v(RO), s(sT0), v(RO))
        A.I("v_lshrrev_b32", v(FO), 3, v(L))
        A.I("v_lshlrev_b32", v(FO), 12, v(FO))
        A.I("v_lshl_add_u32", v(FO), v(U), 4, v(FO))
        A.I("s_lshl_b32", s(sT1), s(sT1), 7)
        A.I("s_lshr_b32", s(sPT0), s(sGW), 1)
        A.I("s_lshl_b32", s(sPT0), s(sPT0), 11)
        A.I("s_add_u32", s(sT1), s(sT1), s(sPT0))
        A.I("v_add_u32", v(FO), s(sT1), v(FO))
        A.I("s_mov_b32", s(sT0), hex(WS_H))
        A.I("s_mov_b32", s(sT1), hex(WS_HN))
        A.I("buffer_load_dwordx2", v(8, 2), v(RO), s(self.S_WS, 4), s(sT0), mods=mods("offen", self.ldmod))
        A.I("buffer_load_dwordx2", v(10, 2), v(RO), s(self.S_WS, 4), s(sT1), mods=mods("offen", self.ldmod))
        A.I("v_and_b32", v(KEY), "0xffff0000", v(KEY))
        A.I("v_ashrrev_i32", v(U), 31, v(KEY))
        A.I("v_not_b32", v(U), v(U))
        A.I("v_or_b32", v(U), "0x80000000", v(U))
        A.I("v_xor_b32", v(KEY), v(KEY), v(U))
        A.I("v_and_b32", v(KEY), "0xffff0000", v(KEY))
        sigmoid(A, 22, KEY, 23)
        bf16r(A, 22, 22)

    def post(self):
        A = self.A
        sT0 = self.sT0
        RO, FO, P = 6, 7, 32
        A.I("s_mov_b32", s(sT0), hex(WS_FY))
        for j in range(NFW // 8):
            A.I("buffer_load_dwordx4", v(P + 4 * j, 4), v(FO), s(self.S_WS, 4), s(sT0), mods=mods("offen", self.ldmod))
            A.I("s_add_u32", s(sT0), s(sT0), 32768)
        Hh, N = 12, 16
        A.I("s_waitcnt", f"vmcnt({NFW // 8})")
        for i in range(2):
            A.I("v_lshlrev_b32", v(Hh + 2 * i), 16, v(8 + i))
            A.I("v_and_b32", v(Hh + 2 * i + 1), "0xffff0000", v(8 + i))
            A.I("v_lshlrev_b32", v(N + 2 * i), 16, v(10 + i))
            A.I("v_and_b32", v(N + 2 * i + 1), "0xffff0000", v(10 + i))
        A.I("s_waitcnt", "vmcnt(0)")
        for j in range(1, NFW // 8):
            A.I("v_pk_add_f32", v(P, 2), v(P, 2), v(P + 4 * j, 2))
            A.I("v_pk_add_f32", v(P + 2, 2), v(P + 2, 2), v(P + 4 * j + 2, 2))
        for i in range(4):
            A.I("v_add_f32_dpp", v(P + i), v(P + i), v(P + i), mods="row_ror:8 row_mask:0xf bank_mask:0xf")
        for i in range(4):
            xor_reduce(A, "v_add_f32", P + i, 24)
        for i in range(4):
            bf16r(A, P + i, P + i)
            A.I("v_mul_f32", v(P + i), v(22), v(P + i))
            bf16r(A, P + i, P + i)
            A.I("v_add_f32", v(P + i), v(N + i), v(P + i))
            bf16r(A, P + i, P + i)
            A.I("v_add_f32", v(P + i), v(Hh + i), v(P + i))
        A.I("v_cvt_pk_bf16_f32", v(200), v(P), v(P + 1))
        A.I("v_cvt_pk_bf16_f32", v(201), v(P + 2), v(P + 3))
        A.I("v_mov_b32", v(202), v(RO))
        for i in range(2):
            A.I("v_pk_add_f32", v(Hh + 2 * i, 2), v(Hh + 2 * i, 2), v(N + 2 * i, 2))
            A.I("v_cvt_pk_bf16_f32", v(204 + i), v(Hh + 2 * i), v(Hh + 2 * i + 1))

    def store(self, src=200, mod=""):
        A = self.A
        A.I("s_mov_b32", "exec_lo", "0xff")
        A.I("s_mov_b32", "exec_hi", 0)
        A.I("buffer_store_dwordx2", v(src, 2), v(202), s(self.S_OUT, 4), 0, mods=mods("offen", mod))
        A.I("s_mov_b64", "exec", -1)
```

```python
import sys
from asmgen import *
from layout import *
from common import *
import chain6 as C
import phase1 as P1
import phase2 as P2
import tail as TL

HEAD = open("sequential_preLN__memory_aug_recurrent_mem_tr__moe_arch_mod__prompt.s.ref").read().split("; Override launch")[0]

KNAME = "sequential_preLN__memory_aug_recurrent_mem_tr__moe_arch_mod__prompt_kernel"
DB_GARR, DB_MODE, DB_CTRL, DB_TICK, DB_XCD = 32, 36, 40, 44, 64
FB_OFF = 0x7000000

def entry_warm(A, mats=(0, 1, 2, 3)):
    A.I("s_load_dwordx4", s(20, 4), s(0, 2), 16)
    A.I("s_load_dwordx4", s(24, 4), s(0, 2), 32)
    A.I("v_lshlrev_b32", v(3), 6, v(0))
    A.I("s_lshl_b32", s(28), s(2), 14)
    A.I("s_cmp_eq_u32", s(84), 0)
    A.I("s_cselect_b32", s(14), 0, hex(4 << 20))
    A.I("s_mov_b32", s(15), "0x20000")
    A.I("s_waitcnt", "lgkmcnt(0)")
    for i in mats:
        A.I("s_mov_b32", s(12), s(20 + 2 * i))
        A.I("s_and_b32", s(13), s(21 + 2 * i), "0xffff")
        A.I("buffer_load_dword", v(255), v(3), s(12, 4), s(28), mods="offen")
    return len(mats)

def staged_warm(A, stages, depth, first=96):
    l = A.newlabel("nowarm")
    A.I("s_sub_u32", s(28), s(sGB), first)
    A.I("s_cmp_ge_u32", s(28), 128)
    A.I("s_cbranch_scc1", l)
    A.I("s_load_dwordx4", s(20, 4), s(0, 2), 16)
    A.I("s_load_dwordx4", s(24, 4), s(0, 2), 32)
    restore_tid(A)
    A.I("v_lshlrev_b32", v(3), 6, v(0))
    A.I("s_lshr_b32", s(29), s(28), 5)
    A.I("s_lshl_b32", s(29), s(29), 19)
    A.I("s_lshl_b32", s(28), s(28), 14)
    A.I("s_add_u32", s(29), s(29), s(28))
    A.I("s_mov_b32", s(14), hex(4 << 20))
    A.I("s_mov_b32", s(15), "0x20000")
    A.I("s_waitcnt", "lgkmcnt(0)")
    for n, x in enumerate(stages.split()):
        m, b = "qkvo".index(x[0]), int(x[1])
        A.I("s_mov_b32", s(12), s(20 + 2 * m))
        A.I("s_and_b32", s(13), s(21 + 2 * m), "0xffff")
        A.I("s_add_u32", s(30), s(28 if m == 3 else 29), hex(b << (21 if m == 3 else 19)))
        if n >= depth: A.I("s_waitcnt", f"vmcnt({depth - 1})")
        A.I("buffer_load_dword", v(255), v(3), s(12, 4), s(30), mods="offen")
    A.label(l)
    A.reset_haz()

def entry_code(A):
    A.I("v_lshlrev_b32", v(3), 6, v(0))
    A.I("s_lshr_b32", s(28), s(2), 3)
    A.I("s_mul_i32", s(29), s(28), 52)
    A.I("s_lshr_b32", s(29), s(29), 8)
    A.I("s_mul_i32", s(29), s(29), 5)
    A.I("s_sub_u32", s(28), s(28), s(29))
    A.I("s_min_u32", s(28), s(28), 4)
    A.I("s_lshl_b32", s(28), s(28), 14)
    code_touch(A, KNAME, 30, 3, 254, back=True, extra=s(28))
    return 1

def bcast_atomic(A, off_s_or_imm, sdst, lds_slot, mid=None):
    l = A.newlabel("at")
    A.I("s_cmp_lg_u32", s(sGW), 0)
    A.I("s_cbranch_scc1", l)
    A.I("s_mov_b64", "exec", 1)
    A.I("v_mov_b32", v(2), 1)
    A.I("buffer_atomic_add", v(2), "off", s(S_DBGG, 4), off_s_or_imm, mods="sc0")
    A.I("s_mov_b64", "exec", -1)
    A.label(l)
    l = A.newlabel("at2")
    nm = sum(m(A) for m in mid or [])
    A.I("s_cmp_lg_u32", s(sGW), 0)
    A.I("s_cbranch_scc1", l)
    A.I("s_mov_b64", "exec", 1)
    A.I("v_mov_b32", v(1), lds_slot)
    A.I("s_waitcnt", f"vmcnt({nm})")
    A.I("ds_write_b32", v(1), v(2))
    A.I("s_waitcnt", "lgkmcnt(0)")
    A.I("s_mov_b64", "exec", -1)
    A.label(l)
    A.I("s_barrier")
    A.I("v_mov_b32", v(1), lds_slot)
    A.I("ds_read_b32", v(2), v(1))
    A.I("s_waitcnt", "lgkmcnt(0)")
    A.I("v_readfirstlane_b32", s(sdst), v(2))

def wait_mode(A, sdst, vt):
    lp = A.newlabel("mode"); ld = A.newlabel("moded"); lf = A.newlabel("modef")
    A.I("s_mov_b32", s(sPT0), 0)
    A.label(lp)
    A.I("buffer_load_dwordx2", v(vt, 2), "off", s(S_DBGG, 4), 0, mods=f"offset:{DB_MODE} sc1")
    A.I("s_waitcnt", "vmcnt(0)")
    A.I("v_readfirstlane_b32", s(sdst), v(vt))
    A.I("v_readfirstlane_b32", s(sPT1), v(vt + 1))
    A.I("s_min_u32", s(sPT1), s(sPT1), s(sdst))
    A.I("s_cmp_lg_u32", s(sPT1), 0)
    A.I("s_cbranch_scc1", ld)
    A.I("s_sleep", 4)
    A.I("s_add_u32", s(sPT0), s(sPT0), 1)
    A.I("s_cmp_lg_u32", s(sPT0), hex(1 << 8))
    A.I("s_cbranch_scc1", lf)
    A.I("v_mov_b32", v(vt), 2)
    A.I("v_mov_b32", v(vt + 1), 0)
    A.I("s_mov_b64", "exec", 1)
    A.I("buffer_atomic_cmpswap", v(vt, 2), "off", s(S_DBGG, 4), 0, mods=f"offset:{DB_MODE}")
    A.I("s_mov_b64", "exec", -1)
    A.label(lf)
    A.I("s_cmp_lt_u32", s(sPT0), hex(POLL_MAX))
    A.I("s_cbranch_scc1", lp)
    A.label(ld)
    A.reset_haz()

def k_mega(A, force_fb=False, **kw):
    name = KNAME
    kernel_header(A, name)
    sX, sR, sG, sMODE = 84, 85, 86, 87
    A.I("s_cmp_ge_u32", s(2), 256)
    A.I("s_cbranch_scc1", "L_exit")
    if PROF[0]: A.I("s_memrealtime", s(82, 2))
    A.I("s_load_dwordx2", s(8, 2), s(0, 2), 112)
    A.I("s_load_dwordx2", s(S_DBGG, 2), s(0, 2), 104)
    A.I("s_load_dwordx8", s(60, 8), s(0, 2), 16)
    A.I("s_load_dwordx2", s(P1.S_X, 2), s(0, 2), 0)
    A.I("v_lshrrev_b32", v(1), 6, v(0))
    A.I("v_readfirstlane_b32", s(sGW), v(1))
    A.I("s_getreg_b32", s(sX), "hwreg(HW_REG_XCC_ID)")
    A.I("s_and_b32", s(sX), s(sX), 7)
    A.I("s_lshr_b32", s(sR), s(2), 3)
    A.I("s_mov_b32", s(sG), s(sGW))
    A.I("s_cmp_eq_u32", s(2), kw.get('zwg', 7))
    A.I("s_cbranch_scc1", "L_zero")
    A.label("L_noz")
    A.reset_haz()
    A.I("s_cmp_lg_u32", s(sX), 0)
    A.I("s_cbranch_scc1", "L_other")

    def entry_fin():
        for sd, n in ((8, 0x10000000), (S_DBGG, 256)):
            A.I("s_and_b32", s(sd + 1), s(sd + 1), "0xffff")
            A.I("s_mov_b32", s(sd + 2), hex(n))
            A.I("s_mov_b32", s(sd + 3), "0x20000")
        A.I("s_mov_b32", s(sMODE), 0)
        l = A.newlabel("reg")
        A.I("s_cmp_lg_u32", s(sG), 0)
        A.I("s_cbranch_scc1", l)
        A.I("s_lshl_b32", s(sPT1), s(sX), 4)
        A.I("s_lshl_b32", s(sPT0), 1, s(sR))
        A.I("v_mov_b32", v(250), s(sPT0))
        A.I("v_mov_b32", v(251), 256)
        A.I("s_mov_b64", "exec", 1)
        A.I("buffer_atomic_add_x2", v(250, 2), "off", s(S_DBGG, 4), s(sPT1), mods=f"offset:{DB_XCD}")
        A.I("s_mov_b64", "exec", -1)
        A.I("s_mov_b32", s(sG), 1)
        A.label(l)

    def zero_block():
        A.label("L_zero")
        A.reset_haz()
        A.I("s_waitcnt", "lgkmcnt(0)")
        entry_fin()
        for i in range(4):
            A.I("v_mov_b32", v(4 + i), 0)
        A.I("v_lshlrev_b32", v(1), 4, v(0))
        for i in range(CT_SIZE // 4096):
            A.I("s_mov_b32", s(sPT1), hex(WS_CTRL + i * 4096))
            A.I("buffer_store_dwordx4", v(4, 4), v(1), s(8, 4), s(sPT1), mods="offen sc1")
        A.I("s_waitcnt", "vmcnt(0)")
        A.I("s_barrier")
        set_flag(A, S_DBGG, DB_CTRL, 2)
        A.I("s_cmp_lg_u32", s(sGW), 0)
        A.I("s_cbranch_scc1", "L_noz")
        A.I("s_mov_b64", "exec", "0xff")
        A.I("s_mov_b32", s(sPT0), 0)
        A.label("L_count")
        A.I("buffer_load_dwordx2", v(2, 2), v(1), s(S_DBGG, 4), 0, mods=f"offen offset:{DB_XCD} sc1")
        A.I("s_waitcnt", "vmcnt(0)")
        A.I("v_cmp_le_u32", "vcc", 32 << 8, v(3))
        A.I("v_add_u32", v(2), 1, v(2))
        A.I("v_xor_b32", v(3), (33 if force_fb else 32) << 8, v(3))
        A.I("v_or_b32", v(2), v(2), v(3))
        A.I("s_mov_b32", s(4), "vcc_lo")
        A.I("v_cmp_eq_u32", "vcc", 0, v(2))
        A.I("v_mov_b32", v(2), 1)
        A.I("s_nop", 1)
        A.I("s_cmp_eq_u32", "vcc_lo", "0xff")
        A.I("s_cbranch_scc1", "L_propose")
        A.I("v_mov_b32", v(2), 2)
        A.I("s_andn2_b32", s(4), s(4), "vcc_lo")
        A.I("s_cbranch_scc1", "L_propose")
        A.I("s_sleep", 2)
        A.I("s_add_u32", s(sPT0), s(sPT0), 1)
        A.I("s_cmp_lt_u32", s(sPT0), hex(1 << 8))
        A.I("s_cbranch_scc1", "L_count")
        A.label("L_propose")
        A.I("v_mov_b32", v(3), 0)
        A.I("s_mov_b64", "exec", 1)
        A.I("buffer_atomic_cmpswap", v(2, 2), "off", s(S_DBGG, 4), 0, mods=f"offset:{DB_MODE}")
        A.I("s_mov_b64", "exec", -1)
        A.I("s_branch", "L_noz")

    def kv_wait(ch, first=True, mask=0x00010001):
        t0, t1 = (1, 2) if first else (8, 9)
        A.I("v_lshrrev_b32", v(t0), 4, v(C.vL16))
        A.I("v_and_b32", v(t1), 15, v(t0))
        A.I("v_lshrrev_b32", v(t0), 4, v(t0))
        A.I("v_lshlrev_b32", v(t0), 11, v(t0))
        A.I("v_lshl_add_u32", v(t0), v(t1), 2, v(t0))
        A.I("s_lshl_b32", s(C.sT0), s(C.sH), 6)
        A.I("s_add_u32", s(C.sT0), s(C.sT0), hex(WS_CTRL + CT_F1))
        wait_words(A, C.S_WS, t0, s(C.sT0), 32, 1, t1, sleep=8, barrier=False, mask=mask)

    def chain_role(fast):
        def fin():
            if fast: entry_fin()
            for i in range(4):
                A.I("s_mov_b32", s(C.S_DBG + i), s(S_DBGG + i))
            A.I("s_mov_b32", s(sPID), s(C.sH))
            ts(A, 0, 24)
            if PROF[0]:
                A.I("s_lshl_b32", s(89), s(sPID), 8)
                A.I("s_add_u32", s(89), s(89), hex(WS_TS + 4 * 5))
                A.I("v_mov_b32", v(24), s(82))
                A.I("buffer_store_dword", v(24), "off", s(8, 4), s(89))
                A.I("v_mov_b32", v(24), s(2))
                A.I("buffer_store_dword", v(24), "off", s(8, 4), s(89), mods="offset:4")
        def pre(ch):
            ts(A, 1, 3)
            if fast:
                wait_mode(A, sMODE, 2)
                A.I("s_cmp_lg_u32", s(sMODE), 1)
                A.I("s_cbranch_scc1", "L_fallback")
            kv_wait(ch)
            ts(A, 2, 3)
        ch = C.Chain(A, sc="" if fast else "sc1", tag="f" if fast else "s", wsoff=0 if fast else FB_OFF, cbar=4 if fast else 8, pre_start=pre, kvcheck=True, gate=DB_MODE, wptr=fast, fin=fin, **kw)
        ch.lane_consts()
        ch.load_weights()
        if PROF[0] and kw.get('marks'):
            A.I("s_lshl_b32", s(89), s(sPID), 8)
            A.I("s_lshl_b32", s(78), s(sGW), 5)
            A.I("s_add_u32", s(89), s(89), s(78))
            A.I("s_add_u32", s(89), s(89), hex(WS_TS + 4 * 32))
            for i in range(5):
                A.I("v_mov_b32", v(3), s((68, 70, 72, 74, 80)[i]))
                A.I("buffer_store_dword", v(3), "off", s(8, 4), s(89), mods=f"offset:{4 * i}")
            A.I("v_mov_b32", v(3), s(82))
            A.I("buffer_store_dword", v(3), "off", s(8, 4), s(89), mods=f"offset:{4 * 5}")
        ch.prologue()
        ts(A, 3, 3)
        if PROF[0]:
            A.I("s_memtime", s(78, 2))
            A.I("s_waitcnt", "lgkmcnt(0)")
        ch.step_loop()
        if PROF[0]: A.I("s_mov_b32", s(sPID), s(C.sH))
        if not kw.get('lts'): ts(A, 4, 3)
        if PROF[0]:
            A.I("s_memtime", s(80, 2))
            A.I("s_lshl_b32", s(C.sT0), s(C.sH), 2)
            A.I("s_add_u32", s(C.sT0), s(C.sT0), s(C.sWV))
            A.I("s_lshl_b32", s(C.sT0), s(C.sT0), 5)
            A.I("s_add_u32", s(C.sT0), s(C.sT0), hex(WS_TS + 0x100000))
            A.I("s_waitcnt", "lgkmcnt(0)")
            A.I("s_sub_u32", s(80), s(80), s(78))
            for i, r in enumerate((80, C.sNRM, C.sNRR, C.sNRF)):
                A.I("v_mov_b32", v(1), s(r))
                A.I("buffer_store_dword", v(1), "off", s(C.S_WS, 4), s(C.sT0), mods=f"offset:{4 * i}")
        if kw.get("wb"):
            l = A.newlabel("nowb")
            A.I("s_add_u32", s(C.sT0), s(C.sH), s(C.sWV))
            A.I("s_cmp_lg_u32", s(C.sT0), 0)
            A.I("s_cbranch_scc1", l)
            A.I("buffer_wbl2", mods="sc1")
            A.I("s_waitcnt", "vmcnt(0)")
            A.label(l)
        A.I("s_endpgm")
        return ch

    A.I("s_xor_b32", s(C.sH), s(sR), kw.get('hx', 0))
    chf = chain_role(True)
    chf.emit_ool()
    zero_block()
    A.label("L_fallback")
    A.reset_haz()
    A.I("s_mov_b32", s(sMODE), 2)
    A.I("s_waitcnt", "vmcnt(0) lgkmcnt(0)")
    A.I("s_barrier")
    restore_tid(A)
    A.I("s_mov_b32", s(sPT1), DB_TICK)
    bcast_atomic(A, s(sPT1), sR, 8)
    A.I("s_barrier")
    A.I("s_sub_u32", s(sGB), s(sR), 32)
    A.I("s_cmp_ge_u32", s(sR), 32)
    A.I("s_cbranch_scc1", "L_bulk")
    A.I("s_mov_b32", s(C.sH), s(sR))
    chs = chain_role(False)
    chs.emit_ool()
    A.label("L_bulk")
    A.reset_haz()
    P1.pointers(A)
    A.I("s_branch", "L_bulk2")
    A.raw(".p2align 7")
    A.label("L_other")
    A.reset_haz()
    A.I("s_sub_u32", s(sGB), s(sX), 1)
    A.I("s_lshl_b32", s(sGB), s(sGB), 5)
    A.I("s_add_u32", s(sGB), s(sGB), s(sR))
    if kw.get('bcode'):
        A.I("s_cmp_ge_u32", s(sR), kw['bcode'][0])
        A.I("s_cbranch_scc1", "L_nobc")
        A.I("v_lshlrev_b32", v(1), kw['bcode'][1], v(0))
        A.I("s_lshl_b32", s(sPT0), s(sR), 8 + kw['bcode'][1])
        code_touch(A, "L_bulk2", 4, 1, 255, extra=s(sPT0))
        A.label("L_nobc")
    A.I("s_waitcnt", "lgkmcnt(0)")
    entry_fin()
    A.label("L_bulk2")
    A.reset_haz()
    A.I("s_add_u32", s(sPID), s(sGB), 32)
    ts(A, 0)
    if kw.get('sw'): staged_warm(A, *kw['sw'])
    NURG = 3
    def pass_b():
        A.I("s_mov_b32", s(P1.sPASS), 1)
        A.I("s_and_b32", s(P1.sRB), s(sGB), 15)
        A.I("s_lshr_b32", s(P1.sCG), s(sGB), 4)
        A.I("s_mov_b32", s(P1.sSTR), 14)
        A.I("s_add_u32", s(P1.sT0), s(P1.sCG), 70)
        A.I("s_add_u32", s(P1.sT1), s(P1.sCG), 56)
        A.I("s_cmp_ge_u32", s(P1.sT1), 64)
        A.I("s_cselect_b32", s(P1.sT0), s(P1.sT1), s(P1.sT0))
        A.I("s_add_u32", s(P1.sT1), s(P1.sCG), 42)
        A.I("s_add_u32", s(P1.sT2), s(P1.sCG), 28)
        A.I("s_cmp_ge_u32", s(P1.sT2), 32)
        A.I("s_cselect_b32", s(P1.sT1), s(P1.sT2), s(P1.sT1))
        A.I("s_cmp_eq_u32", s(P1.sRB), NURG)
        A.I("s_cselect_b32", s(P1.sCG), s(P1.sT1), s(P1.sCG))
        A.I("s_cmp_lt_u32", s(P1.sRB), NURG)
        A.I("s_cselect_b32", s(P1.sCG), s(P1.sT0), s(P1.sCG))
    def pass_b2():
        A.I("s_mov_b32", s(P1.sPASS), 1)
        A.I("s_mul_i32", s(P1.sCG), s(sGB), 171)
        A.I("s_lshr_b32", s(P1.sCG), s(P1.sCG), 11)
        A.I("s_mul_i32", s(P1.sT0), s(P1.sCG), 12)
        A.I("s_sub_u32", s(P1.sRB), s(sGB), s(P1.sT0))
        A.I("s_add_u32", s(P1.sRB), s(P1.sRB), 4)
        A.I("s_mul_i32", s(P1.sT1), s(sGB), 683)
        A.I("s_lshr_b32", s(P1.sT1), s(P1.sT1), 11)
        A.I("s_mul_i32", s(P1.sT0), s(P1.sT1), 3)
        A.I("s_sub_u32", s(P1.sT0), s(sGB), s(P1.sT0))
        A.I("s_cmp_eq_u32", s(P1.sT0), 2)
        A.I("s_cselect_b32", s(P1.sT2), 10, 11)
        A.I("s_cmp_ge_u32", s(sGB), 192)
        A.I("s_cselect_b32", s(P1.sRB), s(P1.sT0), s(P1.sRB))
        A.I("s_cselect_b32", s(P1.sCG), s(P1.sT1), s(P1.sCG))
        A.I("s_cselect_b32", s(P1.sSTR), s(P1.sT2), 16)
        cover = set()
        for g in range(224):
            cg = g * 171 >> 11; rb = g - 12 * cg + 4; st = 16
            if g >= 192:
                cg = g * 683 >> 11; rb = g - 3 * cg; st = 10 if rb == 2 else 11
            for u in list(range(cg, 96, st)) + [(g >> 6, m) for m in range(g & 63, 96, 32 if g >= 192 else 1000)]:
                u = u if isinstance(u, tuple) else (rb, u)
                assert u not in cover
                cover.add(u)
        assert len(cover) == 16 * 96
    if kw.get('bal', True): pass_b = pass_b2
    A.I("s_mov_b32", s(P1.sPASS), 0)
    A.I("s_lshr_b32", s(P1.sRB), s(sGB), 6)
    A.I("s_and_b32", s(P1.sCG), s(sGB), 63)
    A.I("s_cmp_ge_u32", s(sGB), 192 if kw.get('bal', True) else 1000)
    A.I("s_cselect_b32", s(P1.sSTR), 32, 1000)
    A.label("L_p1go")
    def next_pass(LP):
        A.I("s_cmp_lg_u32", s(P1.sPASS), 0)
        A.I("s_cbranch_scc1", "L_p1done")
        if kw.get('pbw'):
            A.I("v_mov_b32", v(1), 4 if kw['pbw'] > 0 else 0)
            A.I("s_and_b32", s(P1.sT0), s(sGB), 15)
            A.I("s_lshl_b32", s(P1.sT0), s(P1.sT0), 7)
            A.I("s_add_u32", s(P1.sT0), s(P1.sT0), hex(WS_CTRL + CT_PROG))
            wait_words(A, 8, 1, s(P1.sT0), 1, 1, 2, sleep=abs(kw['pbw']))
        pass_b()
        A.I("s_branch", LP)
        A.label("L_p1done")
        A.reset_haz()
    def ffn_warm():
        l = A.newlabel("nofw")
        A.I("s_and_b32", s(P1.sT0), s(sGB), 3)
        A.I("s_add_u32", s(P1.sT0), s(P1.sT0), kw['fw'])
        A.I("s_cmp_lg_u32", s(P1.sT0), s(80))
        A.I("s_cbranch_scc1", l)
        A.I("s_load_dwordx4", s(48, 4), s(0, 2), 72)
        A.I("s_load_dwordx2", s(4, 2), s(0, 2), 88)
        A.I("v_lshlrev_b32", v(P1.vT), 3, v(P1.vL16))
        A.I("s_lshl_b32", s(P1.sT0), s(sGB), 13)
        A.I("s_waitcnt", "lgkmcnt(0)")
        for i in range(2):
            A.I("s_cmp_eq_u32", s(sGW), i)
            A.I("s_cselect_b64", s(4, 2), s(48 + 2 * i, 2), s(4, 2))
        A.I("s_and_b32", s(5), s(5), "0xffff")
        A.I("s_cmp_eq_u32", s(sGW), 3)
        A.I("s_cselect_b32", s(6), 0, 512 * 3584)
        A.I("s_mov_b32", s(7), "0x20000")
        for i in range(2): A.I("buffer_load_dword", v(143), v(P1.vT), s(4, 4), s(P1.sT0), mods=mods("offen", off(64 * i)))
        A.label(l)
    def pre_flag():
        l = A.newlabel("modeok")
        A.I("s_cmp_lg_u32", s(sMODE), 0)
        A.I("s_cbranch_scc1", l)
        if kw.get('mpre'):
            A.I("v_readfirstlane_b32", s(sPT0), v(140))
            A.I("v_readfirstlane_b32", s(sPT1), v(141))
            A.I("s_cmp_lg_u32", s(sPT1), 0)
            A.I("s_cselect_b32", s(sMODE), s(sPT0), 0)
            A.I("s_cmp_eq_u32", s(sMODE), 1)
            A.I("s_cbranch_scc1", l)
        wait_mode(A, sMODE, 140)
        A.I("s_cmp_lg_u32", s(sMODE), 1)
        A.I("s_cbranch_scc1", "L_fallback")
        A.label(l)
    P1.Phase1(A, xt=kw.get('xt'), rot=kw.get('krot'), spread=kw.get('spread'), wfrom=kw.get('wfrom', 0), xdrop=kw.get('xdrop'), rr=kw.get('rr'), trickle=kw.get('tr', 0)).body(stmod="sc1", flags=True, pre_flag=pre_flag, warm_id=sGB, next_pass=next_pass, warm=kw.get('pwm', {}), unit_top=ffn_warm if kw.get('fw') else None,
        after_ln=(lambda: A.I("buffer_load_dwordx2", v(140, 2), "off", s(S_DBGG, 4), 0, mods=f"offset:{DB_MODE} sc1")) if kw.get('mpre') else None, sent=kw.get('kms'))
    ts(A, 2)
    restore_tid(A)
    if kw.get('gm') == 2:
        A.I("s_lshr_b32", s(sPT0), s(sGB), 4)
        A.I("s_lshl_b32", s(sPT0), s(sPT0), 2)
        A.I("s_mov_b32", s(4), hex(kw['gtab'] & 0xffffffff))
        A.I("s_mov_b32", s(5), hex(kw['gtab'] >> 32))
        A.I("s_lshr_b64", s(4, 2), s(4, 2), s(sPT0))
        A.I("s_and_b32", s(sPT0), s(4), 15)
        A.I("s_lshl_b32", s(sPT0), s(sPT0), 4)
        A.I("s_and_b32", s(sGB), s(sGB), 15)
        A.I("s_or_b32", s(sGB), s(sGB), s(sPT0))
        A.I("s_add_u32", s(sPID), s(sGB), 32)
        assert sorted(kw['gtab'] >> 4 * i & 15 for i in range(14)) == list(range(14))
    if kw.get('gm') == 1:
        A.I("s_bfe_u32", s(sPT0), s(sGB), hex(0x10004))
        A.I("s_mul_i32", s(sPT0), s(sPT0), 7)
        A.I("s_lshr_b32", s(sPT1), s(sGB), 5)
        A.I("s_add_u32", s(sPT0), s(sPT0), s(sPT1))
        A.I("s_lshl_b32", s(sPT0), s(sPT0), 4)
        A.I("s_and_b32", s(sGB), s(sGB), 15)
        A.I("s_or_b32", s(sGB), s(sGB), s(sPT0))
        A.I("s_add_u32", s(sPID), s(sGB), 32)
    A.I("s_and_b32", s(P2.sHP), s(sGB), 15)
    A.I("s_lshr_b32", s(P2.sSEG), s(sGB), 4)
    A.I("s_mov_b32", s(P2.sSTR), 14)
    fin = TL.Finisher(A, stmod="sc1", home=(P2.vL16, 252, 236, 88), early=kw.get('ek'), thr=104 if kw.get('thr') else None, kf=kw.get('kf', 0), ksp=kw.get('kst', 0))
    ffn = TL.FFN(A, stmod="sc1", poll=True)
    def stage():
        l = A.newlabel("nostage")
        A.I("s_sub_u32", s(ffn.sJ), s(sGB), 128)
        A.I("s_cmp_ge_u32", s(ffn.sJ), NFW)
        A.I("s_cbranch_scc1", l)
        if not kw.get('nostage') and not kw.get('lst'): ffn.stage()
        A.label(l)
        A.reset_haz()
    def late_stage():
        l = A.newlabel("nostage")
        A.I("s_cmp_ge_u32", s(ffn.sJ), NFW)
        A.I("s_cbranch_scc1", l)
        restore_tid(A)
        ffn.stage(80)
        A.label(l)
        A.reset_haz()
    P2.Phase2(A, stmod="sc1", progmask=0x11 if kw.get("flag0") else 0xff, sl=kw.get("sl", (8, 2)), kms=kw.get('kms'), pol=kw.get('pol'), smode=sMODE, um=kw.get('um'), half=kw.get('half'), xr=kw.get('xr'), poc=kw.get('poc'), quad=kw.get('quad'), pre=kw.get('pre'), pmod=kw.get('kpm', 'sc1')).mega(fin, after_setup=stage, lag=kw.get('lag'), slag=kw.get('slag'), late_stage=late_stage if kw.get('lst') else None)
    A.I("s_cmp_ge_u32", s(ffn.sJ), NFW)
    A.I("s_cbranch_scc1", "L_exit")
    ts(A, 5)
    sID, sRND = 74, 75
    A.I("s_mov_b32", s(sID), 0)
    A.I("s_mov_b32", s(sRND), 0)
    A.I("v_mov_b32", v(202), "0x7ffffff0")
    if kw.get('tcode'):
        restore_tid(A)
        A.I("v_lshlrev_b32", v(1), 6, v(0))
        code_touch(A, "L_ffn_round", 70, 1, 3)
    A.I("v_mov_b32", v(1), 0)
    A.I("s_and_b32", s(ffn.sT0), s(sGB), 15)
    A.I("s_lshl_b32", s(ffn.sT0), s(ffn.sT0), 7)
    A.I("s_add_u32", s(ffn.sT0), s(ffn.sT0), hex(WS_CTRL + CT_PROG))
    A.I("s_mov_b32", s(ffn.sT1), EARLY // 32 + 1)
    wait_words(A, 8, 1, s(ffn.sT0), 1, s(ffn.sT1), 2, sleep=16, paced=True)
    A.label("L_ffn_round")
    A.reset_haz()
    restore_tid(A)
    A.I("s_cmp_lg_u32", s(sRND), 0)
    A.I("s_cbranch_scc1", "L_ffn_re")
    ffn.select(sRND, EARLY // 8)
    if kw.get('thr'):
        A.I("s_cmp_lg_u32", s(ffn.sJ), NFW - 1)
        A.I("s_cbranch_scc1", "L_ffn_sel")
        A.I("s_mov_b32", s(ffn.sT0), hex(WS_CTRL + CT_THR))
        set_flag(A, 8, s(ffn.sT0), 2, val=s(ffn.sK2))
    A.I("s_branch", "L_ffn_sel")
    A.label("L_ffn_re")
    A.reset_haz()
    ffn.reselect(sleep=kw.get('rsl', 1), ksp=kw.get('kst', 0))
    A.label("L_ffn_sel")
    A.reset_haz()
    A.I("s_and_b32", s(ffn.sT0), s(ffn.sK1), 2047)
    A.I("s_lshl_b32", s(ffn.sT0), s(ffn.sT0), 11)
    A.I("s_and_b32", s(ffn.sT1), s(ffn.sK2), 2047)
    A.I("s_or_b32", s(ffn.sT0), s(ffn.sT0), s(ffn.sT1))
    A.I("s_add_u32", s(ffn.sT0), s(ffn.sT0), 1)
    A.I("s_cmp_eq_u32", s(ffn.sT0), s(sID))
    A.I("s_cbranch_scc1", "L_ffn_same")
    A.I("s_mov_b32", s(sID), s(ffn.sT0))
    fnl = TL.Final(A)
    if kw.get('sf'): fnl.store(204, "sc1")
    ffn.compute()
    A.I("s_waitcnt", "vmcnt(0)")
    A.I("s_barrier")
    A.I("s_lshl_b32", s(ffn.sT0), s(ffn.sJ), 2)
    A.I("s_lshl_b32", s(ffn.sT1), s(sRND), 8)
    A.I("s_add_u32", s(ffn.sT0), s(ffn.sT0), s(ffn.sT1))
    A.I("s_add_u32", s(ffn.sT0), s(ffn.sT0), hex(WS_CTRL + CT_F4))
    set_flag(A, 8, s(ffn.sT0), 2, val=s(sID))
    A.I("s_cmp_ge_u32", s(ffn.sJ), TL.Final.NWG)
    A.I("s_cbranch_scc1", "L_ffn_same")
    fnl.pre(ffn.sJ)
    A.I("v_lshlrev_b32", v(1), 2, v(0))
    A.I("s_lshl_b32", s(ffn.sT0), s(sRND), 8)
    A.I("s_add_u32", s(ffn.sT0), s(ffn.sT0), hex(WS_CTRL + CT_F4))
    wait_words(A, 8, 1, s(ffn.sT0), NFW, s(sID), 2, sleep=2, equal=True)
    fnl.post()
    if kw.get('sf'): fnl.store(200, "sc1")
    A.label("L_ffn_same")
    A.reset_haz()
    ts(A, 6, dyn=sRND)
    A.I("s_add_u32", s(sRND), s(sRND), 1)
    A.I("s_cmp_lt_u32", s(sRND), 2)
    A.I("s_cbranch_scc1", "L_ffn_round")
    A.I("s_cmp_ge_u32", s(ffn.sJ), TL.Final.NWG)
    A.I("s_cbranch_scc1", "L_exit")
    if not kw.get('sf'): fnl.store()
    A.I("s_waitcnt", "vmcnt(0)")
    ts(A, 8)
    A.label("L_exit")
    A.I("s_endpgm")
    code_end(A)
    return name, 256, 163840

def build_single(k):
    A = Asm()
    name, grid, lds = k(A)[:3]
    out = HEAD + f"; @launch grid=({grid},1,1) block=(256,1,1) lds={lds}\n"
    out += '.amdgcn_target "amdgcn-amd-amdhsa--gfx950"\n.text\n' + A.text()
    out += '.section .rodata,"a"\n' + kernel_desc(name)
    return out

def build(kernels):
    A = Asm()
    infos = []
    for k in kernels:
        infos.append(k(A))
    body = A.text()
    out = HEAD
    for info in infos:
        name, grid, lds = info[:3]
        out += f"; @launch kernel={name} grid=({grid},1,1) block=(256,1,1) lds={lds}\n"
    out += '.amdgcn_target "amdgcn-amd-amdhsa--gfx950"\n.text\n' + body
    out += '.section .rodata,"a"\n'
    for info in infos:
        out += kernel_desc(info[0], *info[3:])
    return out

CH = dict(wnt='qk', onepb=1, rmod='sc1', sf=1, kst=7, pre=40.0, quad=(0, 1), sl=(4, 1), ek=1, one=1, kms=(2, 14), pol=(61, 1), kf=7, um=1, xr=1, half=1, thr=1, rsl=1, flag0=True, rp=(50, 80), rg=(40, 30), wpad=31, kreg=False, lag=(17, 10), slag=(12, 14), lst=True, tcode=True, cc={-1: (27, 7), 12: (28, 6)}, hold=(12, 12),
          spread=(100, 50), wfrom=96, pwm={1300: (3,)}, bcode=(2, 6), mpre=True, seq='q0 q2 q1 q3 k0 k2 k1 k3 v0 v2 o2 o3 v1 v3 o0 o1', tc=(12,), rd=14, t0=99, vhelp={-1: [('q', 1, 0), ('q', 1, 161)], 0: [('k', 0, 0)]})
if __name__ == "__main__":
    which = sys.argv[1] if len(sys.argv) > 1 else "mega"
    if len(sys.argv) > 2: CH.update(eval(sys.argv[2]))
    OUT = sys.argv[3] if len(sys.argv) > 3 else None
    if which == "mega":
        txt = build_single(lambda A: k_mega(A, **CH))
        open("sequential_preLN__memory_aug_recurrent_mem_tr__moe_arch_mod__prompt.s", "w").write(txt)
        open("mega.s", "w").write(build([lambda A: k_mega(A, **CH)]))
        open("megafb.s", "w").write(build([lambda A: k_mega(A, force_fb=True, **CH)]))
    if which == "dev":
        open(OUT, "w").write(build([lambda A: k_mega(A, **CH)]))
    if which == "var":
        open(OUT, "w").write(build_single(lambda A: k_mega(A, **CH)))
    if which == "prof":
        PROF[0] = True
        open(OUT or "prof.s", "w").write(build([lambda A: k_mega(A, **CH)]))
    if which == "dbgts":
        DBGTS[0] = {0: (0, 12), 3: (0, 13), 4: (0, 14), 8: (160, 15)}
        open(OUT or "dbgts.s", "w").write(build_single(lambda A: k_mega(A, **CH)))
```

```python
import math, struct
from asmgen import *
from layout import *
from common import ts, f2h, code_touch, mark

MBUF, KXB, VXB, WV = 0x0, 0x2000, 0x6000, 0x8000
XI, OI, FLG, ZRO = 0x4000, 0x5000, 0x5800, 0x5c00
PBPAR = 0x40000

S_WS = 8; S_W = 12; S_DBG = 16
sH, sWV, sSTEP = 20, 21, 22
sMBLD, sMBST = 23, 24
sPBST = 25
sTHR = 27
sKVF = 28
sPBLD = 29
sKXN, sVXN, sKM, sTAG = 30, 31, 32, 33
sC1, sBIG = 34, 35
sOMASK = 36
sRMASK = 38
sT1, sT2, sT3, sT0 = 40, 41, 42, 43
sFLAGOFF = 44
sNRM, sNRR = 45, 46
sNRF = 47
sNRX = 76
sMBLD2 = 48
sRETRY = 49
sONES = 50
sW1K, sW2K = 51, 52
sPBLD2 = 53
sLOGO = 54
sRST = 55
sSENT = 56
sOK = 57
sNEED = 58
sSEL = 92
sACC = 60

vM = 0; vQK = 32; vVA = 48; vWB = 56; vWA = 96; vPUB = 112
vIDX, vL16, vPBST, vMST, vXW, vXR, vOW, vWL, vWL2, vDUM, vFLG, vOR = range(116, 128)
vL4 = vMST; vSEL = vDUM
vWVR = 128; vWOR = 192
RETRY_MAX = 1 << 16
WE, WL_ = 2, 3

SMF = "v_smfmac_f32_16x16x64_bf16"; MF = "v_mfma_f32_16x16x32_bf16"; MF16 = "v_mfma_f32_16x16x16_bf16"

def home(mat, phi, slot):
    a_, fi = slot & 3, (slot >> 2) * 2 + phi
    if mat < 2:
        if a_ == 0: return ("lds", mat * 32768 + fi * 2048)
        return ("a", ((mat * 3 + a_ - 1) * 4 + fi) * 8)
    if a_ < 2: return ("a", 192 + (a_ * 4 + fi) * 8)
    return ("v", vWVR + ((a_ - 2) * 4 + fi) * 8)
def wo_home(T, j):
    if T < 2: return ("v", vWOR + (T * 4 + j) * 8)
    return ("lds", T * 32768 + j * 2048)
def reg8(h):
    return a(h[1], 8) if h[0] == "a" else v(h[1], 8)

class Chain:
    def __init__(self, A, sc, tag="f", **kw):
        self.A = A; self.sc = sc; self.tag = tag
        self.ool = []
        self.kw = kw
        self.x = kw.get('x', '')
        self.la = 4
        self.pollmod = kw.get('pollmod', 'nt') if not sc else 'sc1'
        self.align = kw.get('align', 0)
        self.cbar = kw.get('cbar', 4)
        self.flog = kw.get('flog', False)
        self.pubmod = 'sc1'
        self.wo = kw.get('wsoff', 0)
        self.pre_start = kw.get('pre_start')
        self.kvcheck = kw.get('kvcheck', False)
        self.skew = kw.get('skew', True)
        self.ring = kw.get('ring', True)
        self.merge = kw.get('merge', False)
        self.z = kw.get('z', (8, 24, 4, 24, 0))
        self.rp = kw.get('rp', (40, 65))
        self.lq = []; self.vq = []
        self.nfl = 0
        self.sSEL = sSEL if self.flog else 68
        self.sNRX = sNRF if self.flog else sNRX
        od = kw.get('order', 1)
        if od == 1: self.ORDER = [(0, 2), (0, 3), (1, 2), (1, 3), (2, 0), (2, 1), (2, 2), (2, 3), (3, 0), (3, 1), (1, 1), (0, 1), (0, 0), (1, 0), (3, 2), (3, 3)]
        if od == 2: self.ORDER = [(0, 2), (0, 3), (1, 2), (1, 3), (2, 0), (2, 1), (2, 2), (2, 3), (3, 0), (3, 1), (0, 1), (1, 1), (0, 0), (1, 0), (3, 2), (3, 3)]
        self.full = kw.get('full', True)
        if self.full: self.ORDER = [(0, 2), (0, 3), (1, 2), (1, 3), (2, 0), (2, 1), (2, 2), (2, 3), (0, 0), (1, 0), (3, 0), (3, 1), (0, 1), (1, 1), (3, 2), (3, 3)]
        self.wfull = kw.get('wfull', True) and self.full
        self.lr = False
        self.par = 0 if kw.get('onepb') else PBPAR
        if kw.get('seq'):
            self.ORDER = [("qkvo".index(x[0]), int(x[1])) for x in kw['seq'].split()]
            o = self.ORDER
            self.lr = o[10:12] == [(3, 2), (3, 3)]
            assert sorted(o) == [(m, a_) for m in range(4) for a_ in range(4)]
            assert (3, 0) in o[12:] and (3, 1) in o[12:] if self.lr else o[14:] == [(3, 2), (3, 3)] and o[12][0] < 3 and o[13][0] < 3
            assert max(o.index((0, 0)), o.index((0, 1))) <= 12 and all(x[0] < 3 for x in o[:4])
        self.kreg = kw.get('kreg', True)
        if self.kreg:
            self.STG = {(0, 0, 0): 24, (0, 1, 0): 88, (1, 0, 0): 96, (1, 1, 0): 104, (1, 1, 4): 24, (0, 0, 4): 88, (0, 1, 4): 96, (1, 0, 4): 104}

    def mods(self, *m): return " ".join(x for x in m if x)
    def off(self, o): return f"offset:{o}" if o else ""

    def fl(self, i):
        if not isinstance(i, str): self.A.comment(f"@{i}")
        if self.flog == 2:
            if i == self.kw.get('probe2', 'h5'): i = 5
            elif i == 'h5': return
            elif isinstance(i, str): i = int(i[1:])
            elif i == self.kw.get('probe', 3): i = 3
            elif i not in (0, 1, 14, 15): return
        elif self.flog == 3:
            if i == 1:
                cnt = [0]
                def hook():
                    k = cnt[0]; cnt[0] += 1
                    if k == self.kw['poff']: self.A.raw(f"    s_memtime {s(sACC + 4, 2)}")
                self.A.mfhook = hook
            elif i == 14: self.A.mfhook = None
            elif i != 0: return
        elif isinstance(i, str): return
        if self.flog:
            self.A.I("s_memtime", s(sACC + 2 * i, 2)); self.nfl = max(self.nfl, i + 1)

    def fl_collect(self, vt):
        if not self.flog: return
        A = self.A
        if self.flog == 2: A.I("s_memrealtime", s(sACC + 4, 2))
        A.I("s_waitcnt", "lgkmcnt(0)")
        for i in range(16):
            if self.flog == 2 and i in (9, 10, 11): A.I("v_writelane_b32", v(vt), s((sNRM, sNRR, sNRF)[i - 9]), i)
            elif self.flog != 2 or i in (0, 1, 2, 3, 5, 6, 7, 8, 14, 15): A.I("v_writelane_b32", v(vt), s(sACC + 2 * i), i)
        A.I("v_lshrrev_b32", v(vt + 1), 2, v(vL16))
        A.I("s_mov_b64", "exec", "0xffff")
        A.I("buffer_store_dword", v(vt), v(vt + 1), s(S_WS, 4), s(sLOGO), mods="offen")
        A.I("s_mov_b64", "exec", -1)
        A.I("s_add_u32", s(sLOGO), s(sLOGO), 64)

    def ds(self, tag, op, *ops, mods=""):
        self.A.I(op, *ops, mods=mods)
        if tag is None: return
        self.lq.append(tag)
    def vm(self, tag, op, *ops, mods=""):
        self.A.I(op, *ops, mods=mods); self.vq.append(tag)
    def needl(self, tag):
        if tag not in self.lq: return
        i = len(self.lq) - 1 - self.lq[::-1].index(tag)
        self.lq = self.lq[i + 1:]
        assert len(self.lq) <= 15, self.lq
        self.A.I("s_waitcnt", f"lgkmcnt({len(self.lq)})")
    def needv(self, tag):
        if tag not in self.vq: return
        i = len(self.vq) - 1 - self.vq[::-1].index(tag)
        self.vq = self.vq[i + 1:]
        if "n" in self.x and tag in ("f0", "f1", "fd", "r0", "r1", "r2", "r3"): return
        self.A.I("s_waitcnt", f"vmcnt({len(self.vq)})")

    def needvl(self, vt, lt):
        n = len(self.A.out); t = self.A.t
        self.needv(vt); self.needl(lt)
        if len(self.A.out) == n + 2:
            b = self.A.out.pop(); self.A.out[-1] += " " + b.split()[-1]; self.A.t = t + 1

    def wread(self, tag, dst, ldsoff):
        base, o = (vWL, ldsoff) if ldsoff < 65536 else (vWL2, ldsoff - 65536)
        self.ds(tag, "ds_read_b128", v(dst, 4), v(base), mods=self.off(o))

    def lane_consts(self):
        A = self.A
        L, G, C, T, U, R = 1, 2, 3, 4, 5, 6
        A.I("v_lshrrev_b32", v(T), 6, v(0))
        A.I("v_readfirstlane_b32", s(sWV), v(T))
        A.I("v_and_b32", v(L), 63, v(0))
        A.I("v_lshrrev_b32", v(G), 4, v(L))
        A.I("v_and_b32", v(C), 15, v(L))
        A.I("v_lshrrev_b32", v(R), 2, v(C))
        A.I("v_lshlrev_b32", v(vL16), 4, v(L))
        A.I("s_lshl_b32", s(sW1K), s(sWV), 10)
        A.I("s_lshl_b32", s(sW2K), s(sWV), 11)

    def lane_consts2(self):
        A = self.A
        L, G, C, T, U, R = 1, 2, 3, 4, 5, 6
        A.I("v_and_b32", v(T), 2, v(C))
        A.I("v_cmp_ne_u32", "vcc", 0, v(T))
        A.I("v_mov_b32", v(T), "0x4444")
        A.I("v_mov_b32", v(U), "0xeeee")
        A.I("v_cndmask_b32", v(vIDX), v(T), v(U), "vcc")
        A.I("v_lshrrev_b32", v(U), 1, v(G))
        A.I("v_lshl_add_u32", v(T), v(R), 3, v(U))
        A.I("s_lshl_b32", s(sT0), s(sWV), 1)
        A.I("v_add_u32", v(T), s(sT0), v(T))
        if self.skew:
            A.I("v_add_u32", v(U), s(sH), v(T))
            A.I("v_and_b32", v(U), 31, v(U))
        else:
            A.I("v_mov_b32", v(U), s(sH))
        A.I("v_lshl_add_u32", v(T), v(T), 6, v(U))
        A.I("v_and_b32", v(U), 1, v(G))
        A.I("v_lshl_add_u32", v(T), v(T), 1, v(U))
        A.I("v_and_b32", v(U), 3, v(C))
        A.I("v_lshl_add_u32", v(T), v(T), 2, v(U))
        A.I("v_lshlrev_b32", v(vPBST), 4, v(T))
        A.I("v_and_b32", v(T), 1, v(G))
        A.I("v_lshlrev_b32", v(T), 2, v(T))
        A.I("v_and_b32", v(7), 2, v(G))
        A.I("v_add_u32", v(T), v(T), v(7))
        A.I("v_and_b32", v(7), 1, v(R))
        A.I("v_add_u32", v(T), v(T), v(7))
        A.I("v_lshl_add_u32", v(T), v(T), 2, v(U))
        A.I("v_lshlrev_b32", v(T), 2, v(T))
        A.I("s_and_b32", s(sT0), s(sWV), 1)
        A.I("s_lshl_b32", s(sT0), s(sT0), 12)
        A.I("s_lshl_b32", s(sT1), s(sH), 7)
        A.I("s_add_u32", s(sT0), s(sT0), s(sT1))
        A.I("v_add_u32", v(vMST), s(sT0), v(T))
        A.I("v_sub_u32", v(7), 0, v(G))
        A.I("v_and_b32", v(7), 3, v(7))
        A.I("v_xor_b32", v(7), v(7), v(R))
        A.I("v_lshl_add_u32", v(T), v(G), 4, v(7))
        A.I("v_and_b32", v(U), 3, v(C))
        A.I("v_lshl_add_u32", v(T), v(T), 2, v(U))
        A.I("s_add_u32", s(sT0), s(sW1K), XI)
        A.I("v_lshl_add_u32", v(vXW), v(T), 2, s(sT0))
        A.I("v_sub_u32", v(7), 0, v(R))
        A.I("v_and_b32", v(7), 3, v(7))
        A.I("v_xor_b32", v(7), v(7), v(G))
        A.I("v_lshl_add_u32", v(T), v(C), 2, v(7))
        A.I("v_lshlrev_b32", v(vXR), 4, v(T))
        A.I("v_and_b32", v(U), 1, v(C))
        A.I("v_lshl_add_u32", v(T), v(R), 1, v(U))
        A.I("v_lshl_add_u32", v(T), v(G), 3, v(T))
        A.I("v_lshlrev_b32", v(vOR), 4, v(T))
        A.I("v_and_or_b32", v(vOW), v(vIDX), 8, v(vOR))
        A.I("s_lshl_b32", s(sT0), s(sWV), 13)
        A.I("s_add_u32", s(sT0), s(sT0), WV)
        A.I("v_add_u32", v(vWL), s(sT0), v(vL16))
        A.I("v_add_u32", v(vWL2), hex(0x10000), v(vWL))
        A.I("s_mov_b32", s(sOMASK), "0xcccccccc")
        A.I("s_mov_b32", s(sOMASK + 1), "0xcccccccc")
        A.I("s_mov_b32", s(sRMASK), "0x00ff00ff")
        A.I("s_mov_b32", s(sRMASK + 1), "0x00ff00ff")
        A.I("s_mov_b32", s(sC1), f2h((DH ** -0.5) * math.log2(math.e)))
        A.I("s_mov_b32", s(sBIG), f2h(2.0 ** self.kw.get('bigexp', 20)))
        A.I("s_mov_b32", s(sONES), "0x3f803f80")

    def set_wsrd(self, mat):
        A = self.A
        A.I("s_mov_b32", s(S_W), s(60 + 2 * mat))
        A.I("s_and_b32", s(S_W + 1), s(61 + 2 * mat), "0xffff")

    ORDER = [(0, 1), (0, 2), (0, 3), (1, 1), (1, 2), (1, 3), (2, 0), (2, 1), (2, 2), (2, 3), (3, 0), (3, 1),
             (0, 0), (1, 0), (3, 2), (3, 3)]

    def dma_chunk(self, idx, lo=None, hi=8):
        A = self.A
        mat, a_ = self.ORDER[idx]
        slot = idx & 1 if self.lr and idx >= 14 else idx & 3
        if lo is None and (idx == 0 or self.ORDER[idx - 1][0] != mat):
            self.set_wsrd(mat)
        if lo is None and mat < 3:
            A.I("v_xor_b32", v(15), a_ & 2 if self.full else a_, v(14))
            A.I("v_lshl_add_u32", v(15), v(15), 15, v(8))
        for i in range(lo or 0, hi):
            if mat < 3:
                vo = 15
                row = 128 * (i >> 1) + 64 * (a_ & 1) + 4 * (i & 1) if self.full else i << 6
                A.I("s_add_u32", s(sT0), s(sT2), hex(row * 8192))
            else:
                vo = 9 if i & 1 else 10
                o = (64 * ((i >> 2) ^ (a_ & 1)) + 16 * (i & 3)) * 1024 + (i >> 2) * 512 + (a_ >> 1) * 128 if self.wfull else 16 * i * 1024 + a_ * 64
                A.I("s_add_u32", s(sT0), s(sT3), hex(o))
            A.I("s_add_u32", "m0", s(sW1K), hex(WV + slot * 32768 + 4 * i * 1024))
            A.I("buffer_load_dwordx4", v(vo), s(S_W, 4), s(sT0), mods=self.mods("offen", "nt" if "qkvo"[mat] in self.kw.get('wnt', '') else self.kw.get('wmod', ''), "lds"))

    def park(self, mat, fi):
        if not self.lr: return 32 + 32 * mat + fi * 8
        r = self.STG[(mat, fi & 1, 4 * (fi >> 1))]
        return r if r >= 56 else 32

    def unpark(self, mat):
        for k in range(8):
            self.A.I("ds_write_b128", v(vWL), v(self.park(mat, k >> 1) + 4 * (k & 1), 4), mods=self.off(mat * 32768 + k * 1024))

    def read_chunk(self, idx, tmp=None):
        A = self.A
        mat, a_ = self.ORDER[idx]
        slot = idx & 1 if self.lr and idx >= 14 else idx & 3
        VT = 13
        def dst(h, fi, q):
            if tmp is not None: return v(tmp + fi * 8 + 2 * q, 2)
            return (a if h[0] == "a" else v)(h[1] + 2 * q, 2)
        if mat < 3 and self.full:
            hi = a_ & 1
            for e in range(2):
                for phi in range(2):
                    A.I("v_xor_b32", v(VT), hex(phi << 5 | e << 12), v(11))
                    A.I("v_add_u32", v(VT), hex(slot * 32768), v(VT))
                    h = home(mat, phi, (a_ & 2) + e + 4 * hi)
                    if h[0] == "lds": h = ("v", self.park(mat, hi * 2 + phi))
                    for q in range(4):
                        o = (64 * (q >> 1) + 4 * (q & 1)) * 256
                        A.I("ds_read_b64_tr_b16", (a if h[0] == "a" else v)(h[1] + 2 * q, 2), v(VT), mods=self.off(o))
        elif mat < 3:
            for phi in range(2):
                A.I("v_xor_b32", v(VT), phi << 5, v(11))
                A.I("v_add_u32", v(VT), hex(slot * 32768), v(VT))
                for hi in range(2):
                    for q in range(4):
                        o = (64 * (q >> 1) + 16 * hi + 4 * (q & 1)) * 256
                        A.I("ds_read_b64_tr_b16", dst(home(mat, phi, a_ + 4 * hi), hi * 2 + phi, q), v(VT), mods=self.off(o))
                A.I("s_waitcnt", "lgkmcnt(0)")
        elif self.wfull:
            for t in range(2):
                for jj in range(2):
                    A.I("v_xor_b32", v(VT), hex(jj << 13 | t << 6), v(12))
                    A.I("v_add_u32", v(VT), hex(slot * 32768), v(VT))
                    j = 2 * (a_ & 1) + jj
                    h = wo_home((a_ & 2) + t, j)
                    if h[0] == "lds": h = ("v", (vWOR if self.lr else 32) + 32 * t + 8 * j)
                    for q in range(4):
                        o = (8 * (q >> 1) + 2 * (q & 1)) * 256
                        A.I("ds_read_b64_tr_b16", v(h[1] + 2 * q, 2), v(VT), mods=self.off(o))
        else:
            for j in range(4):
                A.I("v_xor_b32", v(VT), hex(j << 13), v(12))
                A.I("v_add_u32", v(VT), hex(slot * 32768), v(VT))
                for q in range(4):
                    o = (8 * (q >> 1) + 2 * (q & 1)) * 256
                    A.I("ds_read_b64_tr_b16", dst(wo_home(a_, j), j, q), v(VT), mods=self.off(o))

    def load_weights(self):
        A = self.A
        L, G, C, T, U, R = 1, 2, 3, 4, 5, 6
        if not self.kw.get('wptr'): A.I("s_load_dwordx8", s(60, 8), s(0, 2), 16)
        A.I("s_mov_b32", s(S_W + 2), hex(4 << 20))
        A.I("s_mov_b32", s(S_W + 3), "0x20000")
        A.I("s_lshl_b32", s(sT2), s(sH), 8)
        A.I("s_lshl_b32", s(sT3), s(sH), 17)
        A.I("s_lshr_b32", s(sT0), s(sWV), 1)
        A.I("s_lshl_b32", s(sT0), s(sT0), 2)
        A.I("v_or_b32", v(U), s(sT0), v(G))
        A.I("v_lshlrev_b32", v(U), 1, v(U))
        A.I("v_xor_b32", v(U), v(U), v(C))
        A.I("v_lshrrev_b32", v(14), 2, v(U))
        if self.full: A.I("v_and_b32", v(14), 2, v(14))
        A.I("v_lshlrev_b32", v(U), 4, v(U))
        A.I("s_lshl_b32", s(sT0), s(sWV), 4)
        A.I("v_add_u32", v(T), s(sT0), v(G))
        A.I("v_lshl_add_u32", v(8), v(T), 13, v(U))
        LA = self.la
        hf, hold = self.kw.get('hold', (0, 0))
        if self.sc: hold = hf
        sFAR = sTHR
        if hold != hf or self.kw.get('help'): A.I("s_and_b32", s(sFAR), s(sH), 3)
        if self.kw.get('only') is not None:
            A.I("s_lshr_b32", s(sT0), self.kw['only'], s(sH))
            A.I("s_and_b32", s(sT0), s(sT0), 1)
            A.I("s_lshl_b32", s(S_W + 2), s(sT0), 22)
        q = []; qn = []
        def span(lo, hi, Q):
            for n in range(max(lo, 0), min(hi, 128)):
                self.dma_chunk(n >> 3, (n & 7) or None, (n & 7) + 1)
                for x in Q: x.append(n >> 3)
        def issue(lo, hi):
            if hold == hf: return span(lo - hf, hi - hf, (q, qn))
            l = A.newlabel("far"); l2 = A.newlabel("near")
            A.I("s_cmp_eq_u32", s(sFAR), self.kw.get('far', 1))
            A.I("s_cbranch_scc1", l)
            span(lo - hold, hi - hold, (qn,))
            A.I("s_branch", l2)
            A.label(l)
            span(lo - hf, hi - hf, (q,))
            A.label(l2)
        HELP = self.kw.get('help', {}) if not self.sc else {}
        def helper(when):
            if when not in HELP: return
            A.I("s_sub_u32", s(sT0), s(sFAR), self.kw.get('far', 1))
            A.I("s_and_b32", s(sT0), s(sT0), 3)
            A.I("s_sub_u32", s(sT1), s(sH), s(sT0))
            A.I("s_and_b32", s(sT1), s(sT1), 31)
            A.I("s_lshl_b32", s(sT1), s(sT1), 8)
            A.I("s_mov_b32", s(7), "0x20000")
            le = A.newlabel("helped")
            for k in (1, 2, 3, 0):
                c = HELP[when][k - 1] if k else None
                if k and c is None: continue
                l = A.newlabel("help")
                if k:
                    A.I("s_cmp_lg_u32", s(sT0), k)
                    A.I("s_cbranch_scc1", l)
                mat, a_ = self.ORDER[c or 0]
                assert mat < 3
                A.I("s_mov_b32", s(4), s(60 + 2 * mat))
                A.I("s_and_b32", s(5), s(61 + 2 * mat), "0xffff")
                A.I("s_mov_b32", s(6), hex(4 << 20) if k else 0)
                A.I("v_xor_b32", v(25), a_ & 2, v(14))
                A.I("v_lshl_add_u32", v(25), v(25), 15, v(8))
                for i in range(8):
                    A.I("s_add_u32", s(sT0), s(sT1), hex((128 * (i >> 1) + 64 * (a_ & 1) + 4 * (i & 1)) * 8192))
                    A.I("buffer_load_dwordx4", v(28, 4), v(25), s(4, 4), s(sT0), mods="offen")
                if k: A.I("s_branch", le)
                A.label(l)
            A.label(le)
            for x in (q, qn): x += [-1] * 8
        VH = self.kw.get('vhelp', {}) if not self.sc else {}
        L128 = self.kw.get('vh128', False)
        NR = 14 if L128 else 7
        def vh_setup():
            A.I("v_mul_u32_u24", v(22), 114 if L128 else 57, v(0))
            A.I("v_lshrrev_b32", v(22), 11, v(22))
            A.I("v_mul_u32_u24", v(23), 18 if L128 else 36, v(22))
            A.I("v_sub_u32", v(23), v(0), v(23))
            if L128: A.I("v_lshlrev_b32", v(23), 1, v(23))
            A.I("v_and_b32", v(25), 3, v(23))
            A.I("v_and_or_b32", v(23), v(23), 0x3c, 1)
            A.I("v_min_u32", v(23), 31, v(23))
            A.I("v_lshl_add_u32", v(23), v(23), 2, v(25))
            A.I("v_lshlrev_b32", v(31), 6, v(23))
            A.I("s_add_u32", s(sT0), s(sH), 2)
            A.I("s_lshr_b32", s(sT0), s(sT0), 2)
            A.I("s_sub_u32", s(sT0), s(sH), s(sT0))
            A.I("s_mul_i32", s(sT0), s(sT0), NR)
            A.I("v_add_u32", v(22), s(sT0), v(22))
        def vhelper(when):
            for mat, b, k, *who in VH.get(when, ()):
                mat = "qkv".index(mat)
                A.I("s_mov_b32", s(4), s(60 + 2 * mat))
                A.I("s_and_b32", s(5), s(61 + 2 * mat), "0xffff")
                A.I("s_lshr_b32", s(6), hex(who[0] if who else 0x5ddddddd), s(sH))
                A.I("s_and_b32", s(6), s(6), 1)
                A.I("s_lshl_b32", s(6), s(6), 22)
                A.I("s_mov_b32", s(7), "0x20000")
                A.I("v_add_u32", v(23), k, v(22))
                A.I("v_and_b32", v(25), 0x1c0, v(23))
                A.I("v_add_u32", v(23), v(23), v(25))
                A.I("v_lshl_add_u32", v(23), v(23), 13, v(31))
                A.I("s_mov_b32", s(sT0), hex(b << 19))
                A.I("buffer_load_dword", v(30), v(23), s(4, 4), s(sT0), mods=self.mods("offen", self.kw.get('hmod')))
                for x in (q, qn): x.append(-1)
        def ctouch(when):
            if self.sc or when not in self.kw.get('cc', {}): return
            hd, sh = self.kw['cc'][when]
            l = A.newlabel("nocc")
            A.I("s_cmp_lg_u32", s(sH), hd)
            A.I("s_cbranch_scc1", l)
            A.I("v_lshlrev_b32", v(25), sh - 4, v(vL16))
            A.I("s_lshl_b32", s(sT0), s(sWV), sh + 6)
            code_touch(A, l, 4, 25, 29, extra=s(sT0))
            A.label(l)
        ctouch(-1)
        if VH: vh_setup()
        A.I("s_waitcnt", "lgkmcnt(0)")
        mark(A, 2)
        vhelper(-1)
        if self.kw.get('fin'): self.kw['fin']()
        if self.kw.get('diag1'):
            self.dma_chunk(0, None, self.kw['diag1'])
            A.I("s_waitcnt", "vmcnt(0)")
            mark(A, 3)
        helper(-1)
        span(0, 8 * LA - hold, (q, qn))
        if not self.kw.get('diag1'): mark(A, 3)
        if hold != hf:
            l = A.newlabel("near")
            A.I("s_cmp_eq_u32", s(sFAR), self.kw.get('far', 1))
            A.I("s_cbranch_scc0", l)
            span(8 * LA - hold, 8 * LA - hf, (q,))
            A.label(l)
        self.lane_consts2()
        for odd, dst in ((0, 10), (1, 9)):
            A.I("v_and_b32", v(U), 1, v(G))
            A.I("v_or_b32", v(U), odd << 1, v(U))
            A.I("v_xor_b32", v(U), v(U), v(R))
            if self.wfull:
                A.I("v_and_b32", v(7), 2, v(U))
                A.I("v_add_u32", v(U), v(U), v(7))
            A.I("v_lshlrev_b32", v(U), 6 if self.wfull else 8, v(U))
            A.I("v_and_b32", v(7), 3, v(C))
            A.I("v_lshl_add_u32", v(7), v(7), 4, v(U))
            A.I("s_lshl_b32", s(sT0), s(sWV), 2)
            A.I("v_add_u32", v(T), s(sT0), v(G))
            A.I("v_lshl_add_u32", v(dst), v(T), 10, v(7))
        A.I("v_and_b32", v(U), 1, v(G))
        A.I("v_lshl_add_u32", v(T), v(U), 3, v(R))
        A.I("v_lshrrev_b32", v(7), 1, v(G))
        A.I("v_lshl_add_u32", v(T), v(7), 5, v(T))
        A.I("v_lshlrev_b32", v(T), 8, v(T))
        A.I("v_lshl_or_b32", v(U), v(U), 2, v(R))
        A.I("v_lshlrev_b32", v(U), 5, v(U))
        A.I("s_lshl_b32", s(sT0), s(sWV), 6)
        A.I("v_xor_b32", v(U), s(sT0), v(U))
        A.I("v_add_u32", v(T), v(T), v(U))
        A.I("v_and_b32", v(U), 3, v(C))
        A.I("v_lshl_add_u32", v(T), v(U), 3, v(T))
        A.I("v_add_u32", v(11), WV, v(T))
        if self.full:
            A.I("s_and_b32", s(sT0), s(sWV), 1)
            A.I("s_lshl_b32", s(sT0), s(sT0), 12)
            A.I("v_add_u32", v(11), s(sT0), v(11))
        A.I("v_and_b32", v(U), 1, v(G))
        A.I("v_lshlrev_b32", v(T), 4, v(U))
        A.I("v_lshl_add_u32", v(T), v(7), 2, v(T))
        A.I("v_and_b32", v(7), 1, v(R))
        A.I("v_add_u32", v(T), v(T), v(7))
        A.I("s_lshl_b32", s(sT0), s(sWV), 5)
        A.I("v_add_u32", v(T), s(sT0), v(T))
        A.I("v_lshlrev_b32", v(T), 8, v(T))
        A.I("v_lshl_or_b32", v(U), v(U), 1, v(7))
        A.I("s_lshl_b32", s(sT0), s(sWV), 1 if self.wfull else 0)
        A.I("s_and_b32", s(sT0), s(sT0), 3)
        A.I("v_xor_b32", v(U), s(sT0), v(U))
        A.I("v_lshl_add_u32", v(T), v(U), 6, v(T))
        A.I("v_lshrrev_b32", v(U), 1, v(R))
        A.I("v_lshl_add_u32", v(T), v(U), 5, v(T))
        A.I("v_and_b32", v(U), 3, v(C))
        A.I("v_lshl_add_u32", v(T), v(U), 3, v(T))
        A.I("v_add_u32", v(12), WV, v(T))
        T0 = self.kw.get('t0', 11) if self.kw.get('touch', True) and not self.sc else None
        TC = self.kw.get('tc', ()) if not self.sc else ()
        if TC:
            A.I("v_mul_u32_u24", v(T), hex(self.par), v(G))
            A.I("v_lshl_add_u32", v(T), v(C), 7, v(T))
            A.I("s_lshl_b32", s(sT0), s(sH), 13)
            A.I("s_add_u32", s(sT0), s(sT0), s(sW2K))
            A.I("s_add_u32", s(sT0), s(sT0), hex(WS_PB - WS_MB))
            A.I("v_add_u32", v(T), s(sT0), v(T))
            A.I("v_and_b32", v(U), 3, v(C))
            A.I("v_lshl_add_u32", v(U), v(U), 13, v(vMST))
            A.I("v_cmp_gt_u32", "vcc", 2, v(G))
            A.I("v_cndmask_b32", v(7), v(U), v(T), "vcc")
        def touch2(when):
            if when not in TC: return
            A.I("s_mov_b32", s(sT0), hex(WS_MB + self.wo))
            A.I("buffer_load_dword", v(30), v(7), s(S_WS, 4), s(sT0), mods=self.mods("offen", self.kw.get('tmod', 'sc1')))
            for x in (q, qn): x.append('t')
        touch2(-1)
        self.init_buffers()
        self.write_mem0()
        for x in (q, qn): x += [-1] * (self.n_init_vm + 1)
        LR = self.lr; nxt = 8 * LA
        assert not LR or hold == hf and not self.kreg and self.wfull
        EV = (15 if LR else self.kw.get('ev', 14)) if not self.sc else None
        RD_ = self.kw.get('rd', EV) if EV else 15
        EP = self.kw.get('ep') if EV and self.kw.get('gate') else None
        sKVD = sNEED
        def fprobe(r):
            A.I("v_lshlrev_b32", v(r), 3, v(vL16))
            A.I("v_and_b32", v(r), 0x800, v(r))
            A.I("s_lshl_b32", s(sT0), s(sH), 6)
            A.I("s_add_u32", s(sT0), s(sT0), hex(WS_CTRL + CT_F1))
            A.I("buffer_load_dword", v(r), v(r), s(S_WS, 4), s(sT0), mods="offen sc1")
        def feval(r, dst):
            A.I("v_readlane_b32", s(sT0), v(r), 0)
            A.I("v_readlane_b32", s(sT1), v(r), 16)
            A.I("s_min_u32", s(sT0), s(sT0), s(sT1))
            A.I("s_cmp_lg_u32", s(sT0), 0)
            A.I("s_cselect_b32", s(dst), s(sOK), 0)
        def early_kv():
            assert 'e' not in q
            if EP == 's':
                A.I("s_waitcnt", "lgkmcnt(0)")
                A.I("s_min_u32", s(sT0), s(4), s(5))
                A.I("s_cmp_lg_u32", s(sT0), 0)
                A.I("s_cselect_b32", s(sKVD), s(sOK), 0)
            else: feval(28, sKVD)
            A.I("s_cmp_eq_u32", s(sKVD), 1)
            for r, x_, lds in ((sT2, sKXN, KXB), (sT3, sVXN, VXB)):
                A.I("s_cselect_b32", s(r), s(x_), "0x7ff00000")
            for r, x_, lds in ((sT2, sKXN, KXB), (sT3, sVXN, VXB)):
                A.I("s_add_u32", "m0", s(sW2K), lds)
                for i in range(2): A.I("buffer_load_dwordx4", v(vL16), s(S_WS, 4), s(r), mods=self.mods("offen", self.off(1024 * i), "lds"))
            for x in (q, qn): x += [-1] * 4
        SQ = self.kw.get('sq') if not self.sc else None
        seen = {}
        def sfetch(when):
            if not SQ or when + SQ[0] > 15 or when < SQ[2]: return
            mat, a_ = self.ORDER[when + SQ[0]]
            key = (mat, a_ & 1 if mat < 3 else a_ >> 1)
            n = seen[key] = seen.get(key, -1) + 1
            if mat < 3:
                A.I("s_lshl_b32", s(sT0), s(sWV), 20)
                A.I("s_add_u32", s(sT0), s(sT0), s(sT2))
                offs = [(64 * key[1] + 8 * n + (i >> 1)) * 8192 + 128 * (i & 1) for i in range(SQ[1])]
            else:
                A.I("s_lshl_b32", s(sT0), s(sWV), 15)
                A.I("s_add_u32", s(sT0), s(sT0), s(sT3))
                offs = [(4 * n + (i >> 2)) * 1024 + 256 * (i & 3) + 128 * key[1] for i in range(SQ[1])]
            A.I("s_add_u32", s(4), s(60 + 2 * mat), s(sT0))
            A.I("s_addc_u32", s(5), s(61 + 2 * mat), 0)
            A.I("s_and_b32", s(5), s(5), "0xffff")
            A.I("s_mov_b32", s(6), hex(max(offs) + 4))
            A.I("s_mov_b32", s(7), "0x20000")
            for o in offs: A.I("s_buffer_load_dword", s(77), s(4, 4), hex(o))
        sfetch(-1)
        gate = self.kw.get('gate')
        A.I("s_mov_b32", s(sOK), 0)
        self.kv_addr()
        probed = False
        mark(A, 4)
        for idx in range(16):
            for x in (q, qn):
                if idx in x: del x[:len(x) - x[::-1].index(idx)]
                if idx == EV: del x[:len(x) - x[::-1].index('p')]
            if not (EV and idx > EV): A.I("s_waitcnt", f"vmcnt({max(len(q), len(qn))})" + (" lgkmcnt(0)" if LR and idx == 15 else ""))
            if len(qn) != len(q):
                l = A.newlabel("far")
                A.I("s_cmp_eq_u32", s(sFAR), self.kw.get('far', 1))
                A.I("s_cbranch_scc1" if len(qn) < len(q) else "s_cbranch_scc0", l)
                A.I("s_waitcnt", f"vmcnt({min(len(q), len(qn))})")
                A.label(l)
            if EV and gate and idx == 9:
                A.I("v_readfirstlane_b32", s(sOK), v(26))
                A.I("v_readfirstlane_b32", s(sT0), v(27))
                A.I("s_cmp_lg_u32", s(sT0), 0)
                A.I("s_cselect_b32", s(sOK), s(sOK), 0)
            LATE_ = LR and self.kw.get('lis', False)
            if LR and EP and idx == 14 and not LATE_: early_kv()
            if idx == EV:
                assert probed
                if gate: feval(26, sOK)
                else: A.I("s_mov_b32", s(sOK), 1)
                A.I("v_readfirstlane_b32", s(sT0), v(27))
                A.I("s_cmp_ge_u32", s(sT0), 32)
                A.I("s_cselect_b32", s(sOK), s(sOK), 0)
                l = A.newlabel("nokv")
                A.I("s_cmp_lg_u32", s(sOK), 1)
                A.I("s_cbranch_scc1", l)
                if EP:
                    A.I("s_cmp_eq_u32", s(sKVD), 1)
                    A.I("s_cbranch_scc1", l)
                self.kv_first()
                A.label(l)
            def again():
                if idx == 4 or (T0 and idx == RD_): self.write_mem0_b()
                if T0 and idx == RD_ and self.kw.get('redo', True):
                    assert 't' not in q
                    self.init_buffers(True)
                    for x in (q, qn): x += [-1] * (self.n_init_vm + 1)
            if not (LATE_ and idx == 14): again()
            both = EV == 14 and self.full
            if not (both and idx == 15):
                A.I("s_barrier")
                if self.tag == "f" and idx <= self.kw.get('tsmax', 15): ts(A, 16 + idx, 24)
                if idx == self.kw.get('arr', 9): self.arrive()
                self.read_chunk(idx, tmp=(64 if self.full and idx & 1 else 32) if idx >= 12 else None)
                if both and idx == 14: self.read_chunk(15, tmp=64)
                if idx < 14 if LR else both or idx != 14 or not self.wfull or 8 * (idx + 4) - hold < 128:
                    A.I("s_waitcnt", "lgkmcnt(0)")
                    A.I("s_barrier")
            if idx == EP:
                assert idx > 9
                fprobe(28)
                for x in (q, qn): x.append('e')
            if EP == 's' and idx == self.kw.get('sp', 13):
                l = A.newlabel("nosp")
                A.I("s_cmp_lg_u32", s(sOK), 1)
                A.I("s_cbranch_scc1", l)
                A.I("s_lshl_b32", s(sT0), s(sH), 6)
                A.I("s_add_u32", s(sT0), s(sT0), hex(WS_CTRL + CT_F1))
                A.I("s_add_u32", s(sT1), s(sT0), 2048)
                A.I("s_buffer_load_dword", s(4), s(S_WS, 4), s(sT0))
                A.I("s_buffer_load_dword", s(5), s(S_WS, 4), s(sT1))
                A.label(l)
                assert idx not in self.kw.get('cc', {}) and idx not in VH
            touch2(idx)
            ctouch(idx)
            if idx == T0: self.touch(); q += [-1] * 8; qn += [-1] * 8
            if idx in self.kw.get('ccode', ()) and not self.sc:
                A.I("v_lshlrev_b32", v(25), 2, v(vL16))
                A.I("s_lshl_b32", s(sT0), s(sWV), 12)
                code_touch(A, "L_chain_warm", 4, 25, 29, extra=s(sT0))
                q.append(-1); qn.append(-1)
            if idx == 12 and not self.sc: A.label("L_chain_warm")
            if EV and gate and idx == 5:
                A.I("buffer_load_dwordx2", v(26, 2), "off", s(S_DBG, 4), 0, mods=f"offset:{gate} sc1")
                q.append(-1); qn.append(-1)
            helper(idx)
            vhelper(idx)
            if LR:
                hi_ = min(8 * (idx + 5), (112 if idx < 12 else 120) + hold) if idx < 13 else 128 + hold
                issue(nxt, hi_); nxt = max(nxt, hi_)
            elif 8 * (idx + 4) - hold < 128: issue(8 * (idx + 4), 8 * (idx + 5))
            if EV and not probed and (idx == 13 if LR else 8 * (idx + 5) - hold >= 128):
                probed = True
                if gate: fprobe(26)
                A.I("buffer_load_dword", v(27), "off", s(S_DBG, 4), 0, mods=f"offset:{self.cbar} sc1")
                for x in (q, qn): x += ['p'] * (2 if gate else 1)
                if EP and not LR: early_kv()
            if not (LR and idx == 11): sfetch(idx)
            if LR:
                for k in range(16 if idx == 11 else 0):
                    A.I("ds_write_b128", v(vWL2), v(vWOR + 4 * k, 4), mods=self.off((k >> 3) * 32768 + (k & 7) * 1024))
                if idx == 11: sfetch(idx)
                if idx == 14:
                    self.prologue_a()
                    if LATE_:
                        if EP: early_kv()
                        again()
                if idx == 15: self.unpark(0)
                continue
            for slot in ((), (2, 3))[idx & 1] if self.wfull and idx >= 14 and not both else (idx & 3,) if idx >= 12 else ():
                tb = 64 if self.full and slot & 1 else 32
                for k in range(8):
                    A.I("ds_write_b128", v(vWL if slot < 2 else vWL2), v(tb + 4 * k, 4), mods=self.off((slot & 1) * 32768 + k * 1024))
        if not LR: A.I("s_waitcnt", "lgkmcnt(0)")

    def kv_addr(self):
        A = self.A
        A.I("s_lshl_b32", s(sT0), s(sH), 13)
        A.I("s_add_u32", s(sT0), s(sT0), s(sW2K))
        A.I("s_add_u32", s(sKXN), s(sT0), hex(WS_KX))
        A.I("s_add_u32", s(sVXN), s(sT0), hex(WS_VX))
        A.I("s_lshr_b32", s(sT0), s(sT0), 1)
        A.I("s_add_u32", s(sKM), s(sT0), hex(WS_KM - 32 * 4096))

    def kv_first(self):
        self.A.I("s_add_u32", "m0", s(sW2K), KXB)
        for i in range(2): self.kdma(i)
        for i in range(2): self.vdma(i)

    def touch(self):
        A = self.A
        tm = self.kw.get('tmod', 'sc1')
        A.I("s_lshl_b32", s(sT0), s(sH), 13)
        A.I("s_add_u32", s(sT0), s(sT0), hex(WS_PB + self.wo))
        A.I("s_add_u32", s(sT0), s(sT0), s(sW2K))
        A.I("s_xor_b32", s(sT1), s(sT0), hex(self.par))
        for base in (sT0, sT1):
            for m in range(2):
                A.I("buffer_load_dwordx4", v(28, 4), v(vL16), s(S_WS, 4), s(base), mods=self.mods("offen", self.off(m * 1024), tm))
        for m in range(4):
            A.I("s_mov_b32", s(sT0), hex(WS_MB + self.wo + m * 8192))
            A.I("buffer_load_dword", v(28), v(vMST), s(S_WS, 4), s(sT0), mods=self.mods("offen", tm))

    def init_buffers(self, again=False):
        A = self.A
        sc = self.sc
        n = 0
        for i in range(4):
            A.I("v_mov_b32", v(16 + i), -1)
        A.I("s_lshl_b32", s(sT0), s(sH), 13)
        A.I("s_add_u32", s(sT0), s(sT0), hex(WS_PB + self.wo))
        A.I("s_and_b32", s(sT1), s(sWV), 1)
        A.I("s_lshl_b32", s(sT1), s(sT1), 12)
        A.I("s_add_u32", s(sPBLD), s(sT0), s(sT1))
        A.I("s_add_u32", s(sT0), s(sT0), s(sW2K))
        A.I("s_xor_b32", s(sT1), s(sT0), hex(self.par))
        for base in (sT0, sT1)[again:2 if self.par else 1]:
            for m in range(2):
                A.I("buffer_store_dwordx4", v(16, 4), v(vL16), s(S_WS, 4), s(base), mods=self.mods("offen", self.off(m * 1024), sc))
                n += 1
        if self.ring:
            for m in range(1, 4):
                A.I("s_mov_b32", s(sT0), hex(WS_MB + self.wo + m * 8192))
                A.I("buffer_store_dword", v(16), v(vMST), s(S_WS, 4), s(sT0), mods=self.mods("offen", sc))
            self.n_init_vm = n + 3
            return
        A.I("s_lshl_b32", s(sT0), s(sH), 14)
        A.I("s_lshl_b32", s(sT1), s(sWV), 12)
        A.I("s_add_u32", s(sT0), s(sT0), s(sT1))
        A.I("s_cmp_lt_u32", s(sT0), 8192)
        A.I("s_cselect_b32", s(sT0), 8192, s(sT0))
        A.I("s_add_u32", s(sT0), s(sT0), hex(WS_MB + self.wo))
        for m in range(4):
            A.I("buffer_store_dwordx4", v(16, 4), v(vL16), s(S_WS, 4), s(sT0), mods=self.mods("offen", self.off(m * 1024), sc))
            n += 1
        self.n_init_vm = n

    def write_mem0(self):
        A = self.A
        G, C, R, T, U = 2, 3, 6, 20, 21
        S_W = 4
        A.I("s_load_dwordx2", s(S_W, 2), s(0, 2), 8)
        A.I("s_waitcnt", "lgkmcnt(0)")
        A.I("s_and_b32", s(S_W + 1), s(S_W + 1), "0xffff")
        A.I("s_mov_b32", s(S_W + 2), 8192)
        A.I("s_mov_b32", s(S_W + 3), "0x20000")
        A.I("v_and_b32", v(T), 1, v(G))
        A.I("v_and_b32", v(U), 1, v(R))
        A.I("v_lshl_add_u32", v(T), v(T), 1, v(U))
        A.I("v_lshlrev_b32", v(T), 9, v(T))
        A.I("v_and_b32", v(U), 3, v(C))
        A.I("v_lshl_add_u32", v(T), v(U), 4, v(T))
        A.I("v_and_b32", v(U), 2, v(G))
        A.I("v_add_u32", v(T), v(T), v(U))
        A.I("s_and_b32", s(sT0), s(sH), 1)
        A.I("s_lshl_b32", s(sT0), s(sT0), 11)
        A.I("s_bfe_u32", s(sT1), s(sH), hex(0x20001))
        A.I("s_lshl_b32", s(sT1), s(sT1), 7)
        A.I("s_add_u32", s(sT0), s(sT0), s(sT1))
        A.I("s_and_b32", s(sT1), s(sWV), 1)
        A.I("s_lshl_b32", s(sT1), s(sT1), 6)
        A.I("s_add_u32", s(sT0), s(sT0), s(sT1))
        A.I("s_lshr_b32", s(sT1), s(sH), 3)
        A.I("s_lshl_b32", s(sT1), s(sT1), 2)
        A.I("s_add_u32", s(sT0), s(sT0), s(sT1))
        A.I("v_add_u32", v(T), s(sT0), v(T))
        A.I("v_lshlrev_b32", v(T), 1, v(T))
        A.I("buffer_load_dword", v(U), v(T), s(S_W, 4), 0, mods="offen")

    def write_mem0_b(self):
        A = self.A
        U = 21
        A.I("v_min_u32", v(U), "0xfffffffe", v(U))
        A.I("s_mov_b32", s(sT0), hex(WS_MB + self.wo))
        A.I("s_mov_b64", "exec", s(sRMASK, 2))
        A.I("buffer_store_dword", v(U), v(vMST), s(S_WS, 4), s(sT0), mods=self.mods("offen", self.sc))
        A.I("s_mov_b64", "exec", -1)

    def arrive(self):
        A = self.A
        l = A.newlabel("arr")
        A.I("s_cmp_lg_u32", s(sWV), 0)
        A.I("s_cbranch_scc1", l)
        A.I("v_mov_b32", v(23), 1)
        A.I("s_mov_b64", "exec", 1)
        A.I("buffer_atomic_add", v(23), "off", s(S_DBG, 4), 0, mods=f"offset:{self.cbar}")
        A.I("s_mov_b64", "exec", -1)
        A.label(l)

    def walk(self):
        A = self.A; tg = self.tag
        A.I("s_mov_b64", "exec", 0)
        A.I("s_branch", f"L_chain_last_{tg}")
        A.label(f"L_chain_walked_{tg}")
        A.I("s_mov_b64", "exec", -1)

    def prologue(self):
        A = self.A
        if self.kw.get('lwarm') == 1: self.walk()
        lok = A.newlabel("started")
        A.I("s_cmp_eq_u32", s(sOK), 1)
        A.I("s_cbranch_scc1", lok)
        if self.pre_start: self.pre_start(self)
        self.kv_first()
        lp = A.newlabel("cb_poll"); ld = A.newlabel("cb_done")
        A.I("s_mov_b32", s(sRETRY), 0)
        A.label(lp)
        A.I("buffer_load_dword", v(3), "off", s(S_DBG, 4), 0, mods=f"offset:{self.cbar} sc1")
        A.I("s_waitcnt", "vmcnt(0)")
        A.I("v_readfirstlane_b32", s(sT0), v(3))
        A.I("s_cmp_ge_u32", s(sT0), 32)
        A.I("s_cbranch_scc1", lok)
        A.I("s_sleep", 8)
        A.I("s_add_u32", s(sRETRY), s(sRETRY), 1)
        A.I("s_cmp_lt_u32", s(sRETRY), hex(RETRY_MAX * 4))
        A.I("s_cbranch_scc1", lp)
        A.label(lok)
        A.reset_haz()
        if not self.lr: self.prologue_a()
        if self.flog: self.sel_masks()
        A.I("v_lshrrev_b32", v(1), 2, v(vL16))
        A.I("s_cmp_lt_u32", s(sWV), WE)
        A.I("s_cselect_b64", "vcc", -1, 0)
        A.I("v_cndmask_b32", v(vL4), v(vMST), v(1), "vcc")
        A.I("s_add_u32", "m0", s(sW1K), MBUF + 4096)
        if self.lr:
            for i in range(8): A.I("v_mov_b32", v(24 + i), v(32 + i))
        else:
            for r in range(vQK, vQK + 8): A.I("v_mov_b32", v(r), 0)
        A.I("s_add_u32", s(sKXN), s(sKXN), hex(32 * 8192))
        A.I("s_add_u32", s(sVXN), s(sVXN), hex(32 * 8192))
        if not self.lr:
            for it in self.prefetch_items(): it()
        A.I("s_mov_b32", s(sRETRY), 0)
        A.I("s_waitcnt", "vmcnt(0) lgkmcnt(0)")
        A.I("s_barrier")
        if self.lr:
            self.unpark(1)
            for r in range(vQK, vQK + 8): A.I("v_mov_b32", v(r), 0)
        self.lq = []; self.vq = []

    def sel_masks(self):
        self.A.I("v_bfe_u32", v(1), v(vL16), 5, 3)
        for d in range(4): self.A.I("v_cmp_eq_u32", s(self.sSEL + 2 * d, 2), d, v(1))

    def prologue_a(self):
        A = self.A
        A.I("s_lshr_b32", s(sT0), s(sH), 1)
        A.I("s_lshl_b32", s(sT0), s(sT0), 7)
        A.I("s_and_b32", s(sT1), s(sH), 1)
        A.I("s_lshl_b32", s(sT1), s(sT1), 4)
        A.I("s_add_u32", s(sT0), s(sT0), s(sT1))
        A.I("s_add_u32", s(sFLAGOFF), s(sT0), hex(WS_CTRL + CT_PROG))
        A.I("s_cmp_eq_u32", s(sWV), 0)
        A.I("s_cselect_b32", s(sFLAGOFF), s(sFLAGOFF), "0x7ff00000")
        if self.kw.get('pbw'):
            A.I("v_mov_b32", v(1), 1)
            A.I("buffer_store_dword", v(1), "off", s(S_WS, 4), s(sFLAGOFF), mods="offset:4 sc1")
        A.I("s_mov_b32", s(sSTEP), 0)
        A.I("s_mov_b32", s(sTAG), 0)
        if self.kw.get('rot') is not None:
            A.I("s_bfe_u32", s(sT0), s(sH), hex(0x10000 | self.kw['rot']))
            A.I("s_lshl_b32", s(sT0), s(sT0), 10)
            A.I("s_xor_b32", s(sPBLD), s(sPBLD), s(sT0))
        A.I("s_xor_b32", s(sPBLD2), s(sPBLD), 1024)
        A.I("s_add_u32", s(sMBLD), s(sW1K), hex(WS_MB + self.wo))
        A.I("s_add_u32", s(sMBLD2), s(sMBLD), 4096)
        A.I("s_mov_b32", s(sMBST), hex(WS_MB + 8192 + self.wo))
        A.I("s_add_u32", s(sRST), s(sMBST), 16384)
        for j in range(2):
            A.I("s_mov_b32", s(sPBST + j), hex(WS_PB + j * 4096 + self.wo))
        for i in range(4): A.I("v_mov_b32", v(vPUB + i), 0)
        for o in (FLG, ZRO): A.I("ds_write_b128", v(vL16), v(vPUB, 4), mods=self.off(o))
        A.I("s_cmp_lg_u32", s(sWV), 0)
        A.I("s_cselect_b32", s(sT1), -1, 0)
        A.I("v_mov_b32", v(vFLG), s(sT1))
        if self.kw.get('pfk'):
            A.I("s_cmp_eq_u32", s(sWV), 1)
            A.I("s_cselect_b64", "vcc", -1, 0)
            A.I("s_mov_b32", s(sT1), hex(32 * 8192 - 2048))
            A.I("v_lshl_add_u32", v(1), v(vL16), self.kw.get('pfsh', 3), s(sT1))
            A.I("v_cndmask_b32", v(vFLG), v(vFLG), v(1), "vcc")
        A.I("v_bfe_u32", v(1), v(vL16), 4, 1)
        A.I("v_lshlrev_b32", v(1), 4, v(1))
        A.I("s_movk_i32", s(sT0), "0x3f80")
        A.I("v_lshlrev_b32", v(vSEL), v(1), s(sT0))
        if not self.flog: self.sel_masks()
        for r in range(vQK + 8, vQK + 24): A.I("v_mov_b32", v(r), 0)
        A.I("s_mov_b32", s(sNRM), 0)
        A.I("s_mov_b32", s(sNRR), 0)
        A.I("s_mov_b32", s(sNRF), 0)
        A.I("s_mov_b32", s(self.sNRX), 0)
        A.I("s_and_b32", s(sT0), s(sWV), 1)
        A.I("s_lshl_b32", s(sT0), s(sT0), 5)
        A.I("s_add_u32", s(sT0), s(sT0), s(sH))
        A.I("s_lshl_b32", s(sT0), s(sT0), 6)
        A.I("s_add_u32", s(sKVF), s(sT0), hex(WS_CTRL + CT_F1))
        A.I("s_mov_b32", s(sNEED + 1), 0)
        if self.flog:
            A.I("s_lshl_b32", s(sT0), s(sH), 2)
            A.I("s_add_u32", s(sT0), s(sT0), s(sWV))
            A.I("s_lshl_b32", s(sT0), s(sT0), 12)
            A.I("s_add_u32", s(sLOGO), s(sT0), hex(WS_TS + 0x10000))

    STG = {(0, 0, 0): 80, (0, 1, 0): 56, (1, 0, 0): 64, (1, 1, 0): 72, (0, 0, 4): 88, (0, 1, 4): 96, (1, 0, 4): 104, (1, 1, 4): 24}
    MR = {0: 0, 4: 4, 1: 8, 5: 12, 2: 16, 3: 20, 6: 24, 7: 28}

    def prefetch_items(self, late=False, tag=None):
        A = self.A
        L = []
        for f, r in self.STG.items():
            if self.kreg and (f[2] == 4) != late: continue
            for hf in range(2):
                L.append(lambda f=f, r=r, hf=hf: self.wread(tag and (tag, f), r + 4 * hf, home(*f)[1] + 1024 * hf))
        return L

    def kreads(self, tag=None):
        return [lambda i=i: self.ds(tag, "ds_read_b128", v(56 + 4 * i, 4), v(vL16), mods=self.off(KXB + i * 1024)) for i in (6, 7, 0, 1, 2, 3, 4, 5)]

    def kdma(self, i):
        if "g" in self.x:
            self.vm("kk", "buffer_load_dwordx4", v(240 + 4 * i, 4), v(vL16), s(S_WS, 4), s(sKXN), mods=self.mods("offen", self.off(1024 * i), self.kw.get('kmod', '')))
            return
        self.vm("kk", "buffer_load_dwordx4", v(vL16), s(S_WS, 4), s(sKXN), mods=self.mods("offen", self.off(1024 * i), self.kw.get('kmod', ''), "lds"))
        if i: self.A.I("s_add_u32", "m0", s(sW2K), hex(VXB))
    def vdma(self, i, nxt=None):
        if "g" in self.x:
            self.vm("kd", "buffer_load_dwordx4", v(248 + 4 * i, 4), v(vL16), s(S_WS, 4), s(sVXN), mods=self.mods("offen", self.off(1024 * i), self.kw.get('kmod', '')))
            if nxt is not None: self.A.I("s_mov_b32", "m0", nxt)
            return
        self.vm("kd", "buffer_load_dwordx4", v(vL16), s(S_WS, 4), s(sVXN), mods=self.mods("offen", self.off(1024 * i), self.kw.get('kmod', ''), "lds"))
        if nxt is not None: self.A.I("s_mov_b32", "m0", nxt)

    def retry_head(self, cnt, lgo):
        A = self.A
        A.I("s_add_u32", s(cnt), s(cnt), 1)
        A.I("s_add_u32", s(sRETRY), s(sRETRY), 1)
        A.I("s_cmp_ge_u32", s(sRETRY), hex(RETRY_MAX))
        A.I("s_cbranch_scc1", lgo)

    def step_loop(self):
        A = self.A; tg = self.tag
        A.barrier_haz()
        if self.kw.get('early3'): A.I("buffer_load_dwordx4", v(self.MR[0], 4), v(vL16), s(S_WS, 4), s(sMBLD), mods="offen sc1")
        if self.kreg:
            for x in self.kreads(): x()
        lw = self.kw.get('lwarm')
        if not self.lr: A.I("s_waitcnt", "vmcnt(0) lgkmcnt(0)")
        for w in range(1, 4):
            A.I("s_cmp_eq_u32", s(sWV), w)
            A.I("s_cbranch_scc1", f"L_chain_top{w}_{tg}")
        for w in range(4): self.wave_loop(w)
        A.label(f"L_chain_last_{tg}")
        A.reset_haz()
        hop = [0]
        def line(last=False):
            if not lw: return
            if hop[0]: A.label(f"L_chain_hop{hop[0]}_{tg}")
            hop[0] += 1
            A.I("s_cbranch_execz", f"L_chain_walked_{tg}" if last else f"L_chain_hop{hop[0]}_{tg}")
        line()
        A.nop(2)
        for i, x in enumerate(self.last):
            if i % 6 == 5: line()
            x()
        line(True)
        A.I("s_add_u32", s(sKM), s(sKM), hex(32 * 4096))
        A.I("buffer_store_dwordx4", v(vPUB, 4), v(vL16), s(S_WS, 4), s(sKM), mods="offen " + self.kw.get('lmod', self.pubmod))
        if self.kw.get('lts'): ts(A, 4, 3)
        A.I("v_mov_b32", v(94), NSEG)
        A.I("s_waitcnt", "vmcnt(0) lgkmcnt(0)")
        A.I("s_barrier")
        A.I("s_mov_b64", "exec", 1)
        A.I("buffer_store_dword", v(94), "off", s(S_WS, 4), s(sFLAGOFF), mods="sc1")
        A.I("s_mov_b64", "exec", -1)
        if self.kw.get('pbc') and not self.sc:
            A.I("s_lshl_b32", s(sT0), s(sH), 13)
            A.I("s_add_u32", s(sT0), s(sT0), hex(WS_PB + self.wo))
            A.I("s_add_u32", s(sT0), s(sT0), s(sW2K))
            A.I("s_xor_b32", s(sT1), s(sT0), hex(self.par))
            for base in (sT0, sT1):
                for m in range(2):
                    A.I("buffer_store_dwordx4", v(vPUB, 4), v(vL16), s(S_WS, 4), s(base), mods=self.mods("offen", self.off(m * 1024), self.kw['pbc']))

    def wave_loop(self, w):
        A = self.A
        sc = self.sc; tg = self.tag; X_ = self.x
        def opt(k, d):
            x = self.kw.get(k, d)
            return x[w] if isinstance(x, list) else x
        LTOP = f"L_chain_top{w}_{tg}"; LLAST = f"L_chain_last_{tg}"
        nochk = "n" in X_
        Mr = lambda sl: self.MR[sl]
        acc = lambda mat, phi: (vQK + 8 * mat + 4 * phi) if mat < 2 else (vVA + 4 * phi)
        def smf(mat, phi, sl):
            h = home(mat, phi, sl)
            self.needl(f"m{sl}")
            B = v(self.STG[(mat, phi, sl)], 8) if h[0] == "lds" else reg8(h)
            A.I(SMF, v(acc(mat, phi), 4), v(Mr(sl), 4), B, v(vIDX))
        def valu(*x, **k): return lambda: A.I(*x, **k)
        untracked = lambda t_, *a_, **k: A.I(*a_, **k)

        A.raw(".p2align 6")
        for _ in range(self.align): A.raw("    s_nop 0")
        A.label(LTOP)
        A.reset_haz()
        self.lq = []; self.vq = []
        self.fl(0)
        t0 = 15
        RL = [4, 8, 16, 20]; SEL = 12; RD = vVA; tc = vVA + 4
        zr = list(range(vVA, vVA + 6)) if w >= WE else []
        def zero(n, pad=False):
            for _ in range(n):
                if zr: A.I("v_mov_b32", v(zr.pop(0)), 0)
                elif pad: A.I("v_mov_b32", v(t0), 0)
        def mload(half, mod, tag=None):
            (self.vm if tag else untracked)(tag, "buffer_load_dwordx4", v(Mr(4 * half), 4), v(vL16), s(S_WS, 4),
                    s(sMBLD2 if half else sMBLD), mods="offen " + mod)
        def mdma(mod, tag=None):
            (self.vm if tag else untracked)(tag, "buffer_load_dwordx4", v(vL16), s(S_WS, 4), s(sMBLD2), mods=f"offen {mod} lds")
            A.I("s_mov_b32", "m0", KXB + 2048 * w)
        self.mload0 = lambda: mload(0, self.pollmod)
        z = opt('z', (0, 16, 16))
        early3 = w == WL_ and opt('early3', False)
        if early3:
            self.vq += ["f0", "st"]
        else:
            zero(z[0], True)
            self.fl("h7")
            mload(0, self.pollmod, "f0")
        rg = self.kw.get('rg')
        for i, n in enumerate(z[1:]):
            if i: mload(0, "sc1", "fx")
            if i == len(z) - 2 and rg and w >= WE:
                A.I("s_waitcnt", f"vmcnt({len(self.vq) + 1})")
                zr += list(range(vQK + 4, vQK + 16))
            if not (early3 and i == 0): zero(n, True)
        zero(20)
        chk = lambda r: [valu("v_max3_u32", v(t0), v(r), v(r + 1), v(r + 2)), valu("v_max_u32", v(t0), v(t0), v(r + 3)),
                         valu("v_cmp_lt_u32", "vcc", s(sSENT), v(t0))]
        def mwrite(): self.ds("mw0", "ds_write_b128", v(vL16), v(Mr(0), 4), mods=self.off(MBUF + 1024 * w))
        def mread(sl): self.ds(f"m{sl}", "ds_read_b128", v(Mr(sl), 4), v(vL16), mods=self.off(MBUF + (sl ^ w) * 1024))
        nw = opt('nw', '')
        own0 = [(0, 0, 0), (0, 1, 0), (1, 0, 0), (1, 1, 0), (2, 0, 0), (2, 1, 0)]
        spec = opt('spec', 2)
        lret0 = A.newlabel("mret")
        if opt('lal', None) is not None:
            A.raw(".p2align 6")
            for _ in range(opt('lal', 0)): A.raw("    s_nop 0")
        A.label(lret0)
        mload(0, "sc1", "fx")
        A.I("s_add_u32", s(sNRM), s(sNRM), 1)
        A.I("s_cmp_lt_u32", s(sNRM), hex(RETRY_MAX))
        A.I("s_cselect_b32", s(sSENT), -2, -1)
        if spec:
            A.nop(4)
            for i in range(4): A.I("v_mov_b32", v(acc(0, 0) + i), 0)
        for _ in range(opt('zl', 0)): A.I("v_mov_b32", v(t0), 0)
        self.needv("f0")
        self.fl(1)
        c = chk(Mr(0))
        c[0](); c[1]()
        if spec == 3: mwrite()
        if spec >= 2: c[2]()
        if spec: smf(*own0[0])
        if opt('wspec', False): mwrite()
        if spec < 2: c[2]()
        if not nochk: A.I("s_cbranch_vccnz", lret0)

        q0, q1, k0, k1 = vQK, vQK + 4, vQK + 8, vQK + 12
        K0, K1, VX, X, VA = 56, 72, 88, 32, vVA
        D0, D1, DM_, PX, PM, ONES, OA, LA, ri = 56, 60, 64, 68, 52, 48, 72, 80, 84
        OF = [60, 92, 80, 84]
        G = [72, 76]
        WS_ = {(2, 0): 0, (3, 0): 8, (2, 1): 16, (2, 2): 24, (2, 3): 32, (3, 1): 40, (3, 2): 56, (3, 3): 64}
        def woread(T, j, hf): self.wread(("o", T, j), WS_[(T, j)] + 4 * hf, wo_home(T, j)[1] + 1024 * hf)
        def W(T, j, hf): return lambda: woread(T, j, hf)
        def vread(i): return lambda: self.ds("vx", "ds_read_b128", v(VX + 4 * i, 4), v(vL16), mods=self.off(VXB + w * 2048 + i * 1024))
        def kread(i): return lambda: self.ds("k", "ds_read_b128", v(K0 + 4 * i, 4), v(vL16), mods=self.off(KXB + i * 1024))
        def zread(r, tag="z"): return lambda: self.ds(tag, "ds_read_b128", v(r, 4), v(vL16), mods=self.off(ZRO))
        def j_pub(): self.vm("pub", "buffer_store_dwordx4", v(vPUB, 4), v(vL16), s(S_WS, 4), s(sKM), mods="offen " + self.pubmod)
        def j_kvf(): self.vm("kvf", "buffer_load_dword", v(vDUM), v(vL4), s(S_WS, 4), s(sKVF), mods="offen sc1")
        add2 = lambda r: [valu("v_add_f32", v(r), v(r), v(r + 2)), valu("v_add_f32", v(r + 1), v(r + 1), v(r + 3))]
        mul2 = lambda r: [valu("v_mul_f32", v(r), s(sC1), v(r)), valu("v_mul_f32", v(r + 1), s(sC1), v(r + 1))]
        cvp = lambda d, x, y: valu("v_cvt_pk_bf16_f32", v(d), v(x), v(y))
        def xwrite(t):
            d = (vPUB + 1, vPUB + 3) if t else (q0 + 2, q0 + 3)
            o = 0 if t else 32
            self.ds(f"xw{t}", "ds_write2_b32", v(vXW), v(d[0]), v(d[1]), mods=f"offset0:{o} offset1:{o + 16}")
        def xread(i): return lambda: self.ds(f"x{i}", "ds_read_b128", v(X + 4 * i, 4), v(vXR), mods=self.off(XI + 1024 * i))
        def oread(j): return lambda: self.ds(f"of{j}", "ds_read_b128", v(OF[j], 4), v(vOR), mods=self.off(OI + (w ^ j) * 512))
        bar = valu("s_barrier")
        nl = lambda t: (lambda: self.needl(t))
        FL = lambda i: (lambda: self.fl(i))
        none = lambda: None
        E_ = lambda m, p: [(m, p, 1), (m, p, 2), (m, p, 3)]
        L_ = lambda m, p: [(m, p, 5), (m, p, 6), (m, p, 7)]
        ve = [(2, 0, 1), (2, 1, 1), (2, 0, 2), (2, 0, 3), (2, 1, 2), (2, 1, 3)][:opt('ve', 0)]
        es = [(0, 0, 1), (0, 1, 1), (0, 0, 2), (0, 1, 2), (0, 0, 3), (0, 1, 3)] + E_(1, 0) + E_(1, 1) + ve
        ne = opt('ne', len(es)); rest = es[ne:]; assert ne <= len(es) and not [f for f in rest if f[0] == 2]
        own1 = [(1, 1, 4), (0, 0, 4), (0, 1, 4), (1, 0, 4), (2, 0, 4), (2, 1, 4)]
        o1v = opt('o1v', 0); vdef = own1[4 + o1v:]; own1 = own1[:4 + o1v]
        R_ = lambda m, p: [f for f in rest if f[:2] == (m, p)]
        vl = vdef + [(2, p, sl) for p, sl in [(0, 1), (1, 1), (0, 5), (1, 5), (0, 2), (0, 3), (0, 6), (0, 7), (1, 2), (1, 3), (1, 6), (1, 7)] if (2, p, sl) not in ve]
        vm_ = opt('vmid', 2)
        frs = own0 + es[:ne] + own1 + R_(0, 0) + R_(0, 1) + L_(0, 0) + L_(0, 1) + R_(1, 0) + L_(1, 0) + vl[:vm_] + R_(1, 1) + L_(1, 1)
        NQ = len(frs)
        frs += vl[vm_:]
        NS = len(frs); assert NS == 48
        O1 = 6 + ne
        last = lambda m, p: max(i for i, f in enumerate(frs) if f[:2] == (m, p))
        def smf_(f):
            h = home(*f)
            return valu(SMF, v(acc(*f[:2]), 4), v(Mr(f[2]), 4), v(self.STG[f], 8) if h[0] == "lds" else reg8(h), v(vIDX))
        ST = [(smf_(f), [f"m{f[2]}", ("k", f)]) for f in frs]
        for D, Areg in ((D0, K0), (D1, K1), (DM_, X)):
            ST += [(valu(MF, v(D, 4), v(Areg + 4 * ks, 4), v(X + 4 * ks, 4), 0 if ks == 0 else v(D, 4)), [f"x{ks}"]) for ks in range(4)]
        pvx = {"a": valu(MF, v(OA, 4), v(VX, 4), v(PX, 4), 0), "b": valu(MF, v(OA + 4, 4), v(VX + 4, 4), v(PX, 4), 0), "l": valu(MF, v(LA, 4), v(ONES, 4), v(PX, 4), 0)}
        pvm = {"a": valu(MF16, v(OA, 4), v(vPUB, 2), v(PM, 2), v(OA, 4)), "b": valu(MF16, v(OA + 4, 4), v(vPUB + 2, 2), v(PM, 2), v(OA + 4, 4)),
               "l": valu(MF16, v(LA, 4), v(ONES, 2), v(PM, 2), v(LA, 4))}
        nrm = opt('nrm', 0)
        pvo = "abl" if nrm == 0 else "lab"
        ST += [(pvx[k], ["vx"]) for k in pvo] + [(pvm[k], []) for k in pvo]
        worder = [(T, 0) for T in range(4)] + [(T, j) for T in range(4) for j in (1, 2, 3)]
        for T, j in worder:
            h = wo_home(T, j)
            ST.append((valu(SMF, v(vWA + 4 * T, 4), v(OF[j], 4), v(WS_[(T, j)], 8) if h[0] == "lds" else reg8(h), v(vIDX)),
                       ["z", ("o", T, j), f"of{j}"]))
        SC, PV, WO, N = 48, 60, 66, 82
        assert len(ST) == N
        mems = [[] for _ in range(N)]; vals = [[] for _ in range(N)]; post = [[] for _ in range(N)]
        def place(L, ops, first, step=1):
            i = first
            while ops:
                if not L[i]:
                    L[i].append(ops.pop(0)); i += step - 1
                i += 1
            return i - step
        ab = opt('abar', 3); ar = opt('ard', 3)
        mems[0] += [none if opt('wspec', False) or spec == 3 else mwrite]
        pp = opt('pubpos', [7, 9, 11, 13])
        if "p" not in X_: mems[pp] += [j_pub]
        def j_flag():
            if w == 0: self.vm("j", "buffer_store_dword", v(vFLG), "off", s(S_WS, 4), s(sFLAGOFF), mods=self.pubmod)
            if w >= WE: self.vm("j", "buffer_store_dword", v(vFLG), v(vMST), s(S_WS, 4), s(sRST), mods=self.mods("offen", sc))
        keep = lambda n: [valu("v_mov_b32", v(vPBST), v(vPBST))] * n
        mems[ab] += keep(opt('ka', 0)) + [none if 'A' in nw else nl("mw0"), bar, FL(2)]
        a1 = opt('ard1', 1)
        rdA = [lambda: mread(1), lambda: mread(2), lambda: mread(3)]
        mems[ar] += rdA[:a1]; mems[ar + 1] += rdA[a1:]
        f1p = opt('f1pos', 1)
        mems[f1p].insert(int(f1p == 0), lambda: mload(1, self.pollmod, "f1")); mems[f1p + 1].insert(0, lambda: mdma(self.pollmod, "fd"))
        def kplace():
            if self.kreg and "k" not in X_:
                for i, j in enumerate(opt('kdpos', [(5, 6), (7, 8), (9, 10), (11, 12)])):
                    assert j > ab and j > f1p + 1
                    mems[j] += [lambda i=i: self.kdma(i)]
            kl = place(mems, self.prefetch_items(True, "k") if self.kreg else self.kreads("k"), opt('kfirst', 4))
            assert kl < O1 - (1 if self.kreg else 2)
        if self.kreg: kplace()
        lret1 = A.newlabel("mret"); lgo1 = A.newlabel("mgo")
        def ool1():
            A.label(lret1)
            A.I("s_mov_b32", s(sT0), "m0")
            A.I("s_mov_b32", "m0", MBUF + 4096 + 1024 * w)
            mload(1, "sc1")
            mdma("sc1")
            A.I("s_mov_b32", "m0", s(sT0))
            A.I("s_waitcnt", "vmcnt(0)")
            for x in chk(Mr(4)): x()
            self.retry_head(sNRF, lgo1)
            A.I("s_cbranch_vccnz", lret1)
            A.I("s_branch", lgo1)
        self.ool.append(ool1)
        c = chk(Mr(4))
        ckn = opt('ckn', 3)
        cplan = {1: [c], 2: [c[:2], c[2:]], 3: [c[:1], c[1:2], c[2:]]}[ckn]
        fw = O1 - 1 - ckn
        mems[fw] += [lambda: self.needv("f1"), FL(3)]
        for i in range(ckn): vals[fw + i] = cplan[i]
        def xb():
            if not nochk: A.I("s_cbranch_vccnz", lret1)
            A.label(lgo1)
        bb = O1 - 1 + opt('bbar', 1); br = bb + opt('brd', 0)
        mems[O1 - 2] += [lambda: self.needvl("fd", "k")]
        mems[O1 - 1] += [xb]
        mems[bb] += [bar, FL(4)]
        mems[br] += [lambda: mread(5)]
        place(mems, [lambda: mread(6), lambda: mread(7)], max(br + 1, O1))
        if not self.kreg: kplace()
        place(mems, [vread(0), vread(1)], O1 + 1)
        i = place(vals, add2(q0) + mul2(q0), last(0, 0) + 2)
        i = place(vals, add2(q1) + mul2(q1) + [cvp(q0 + 2, q0, q1), cvp(q0 + 3, q0 + 1, q1 + 1)], max(i, last(0, 1) + 2))
        xq = i + 1
        xk = NQ + 1
        kf = add2(k0)
        for j in range(last(1, 0) + 2, xk):
            if kf and (not vals[j] or xk - j <= len(kf)): vals[j].append(kf.pop(0))
        if xq == xk: xq += 1
        assert not kf and xq <= xk + 1
        mems[xq] += [lambda: xwrite(0)]
        kt = add2(k1) + [cvp(vPUB + 1, k0, k1), cvp(vPUB + 3, k0 + 1, k1 + 1)]
        ks_ = opt('ksp', 1)
        for j in range(ks_): vals[xk + j] += kt[j * 4 // ks_:(j + 1) * 4 // ks_]
        xk += ks_ - 1
        cb = xk + 1 + opt('cbar_', 4); cr = cb + opt('crd', 1)
        mems[NQ] += [FL(5)]
        mems[xk + 1] += [lambda: xwrite(1), FL(6)]
        vf0, vf1 = add2(VA) + [cvp(vPUB, VA, VA + 1)], add2(VA + 4) + [cvp(vPUB + 2, VA + 4, VA + 5)]
        assert xk + 2 < cb and xk + 2 < last(2, 0) + 2
        mems[xk + 2] += [valu("s_cmp_eq_u32", s(sSTEP), NSEG - 1), valu("s_cbranch_scc1", LLAST)]
        self.last = [x[0] for x in ST[xk + 3:NS]] + vf0 + vf1
        if opt('cw', 0): mems[cb - 1] += [none if 'C' in nw else nl("xw1")]
        assert pp <= NQ
        fp = xk + opt('fpos', [2, 2, 3, 4]); assert fp > ab
        if w != 1: mems[fp] += [j_flag]
        mems[cb] += keep(opt('kc', 0)) + [none if 'C' in nw else nl("xw1")] + [FL(21)] + keep(opt('kc2', 0)) + [bar, FL(7)]
        xp = opt('xpre', 2); xr = opt('xrate', 2)
        rdC = [xread(i) for i in range(4)]
        mems[cr] += rdC[:xp]; rdC = rdC[xp:]; j = cr + 1
        while rdC: mems[j] += rdC[:xr]; rdC = rdC[xr:]; j += 1
        xe = j
        vf0l = list(vf0)
        for j in range(last(2, 0) + 2, NS):
            if vf0l and not vals[j]: vals[j].append(vf0l.pop(0))
        vals[NS - 1] += vf0l
        post[NS - 1] += [FL(8)]
        for j in range(xk + 1, cr): mems[j].append(none)
        vms = [lambda: self.kdma(0), lambda: self.kdma(1), lambda: (self.needl("vx"), self.vdma(0)), lambda: self.vdma(1, MBUF + 4096 + 1024 * w)]
        if self.kreg: vms = vms[2:]
        if "k" in X_: vms = [valu("s_mov_b32", "m0", MBUF + 4096 + 1024 * w)]
        if "v" in X_: vms = vms[:-2] + [valu("s_mov_b32", "m0", MBUF + 4096 + 1024 * w)]
        if "1" in X_: vms = vms[:1] + [valu("s_mov_b32", "m0", MBUF + 4096 + 1024 * w)]
        if self.kvcheck and w < WE: vms.insert(opt('kvfi', 2), j_kvf)
        place(mems, vms, bb + 1 + opt('vbase', [2, 3, 4, 5]), opt('vstep', 3))
        if opt('pfk', 0) and w == 1:
            pfl = [(sKXN, 0), (sVXN, 0)] if opt('pfsh', 3) == 3 else [(sKXN, 0), (sKXN, 4095), (sVXN, 0), (sVXN, 4095)]
            for i, (r, o) in enumerate(pfl):
                mems[opt('pfk', 0) + i * opt('pfstep', 1)] += [lambda r=r, o=o: self.vm("pf", "buffer_load_ubyte" if o else "buffer_load_dword", v(vDUM), v(vFLG), s(S_WS, 4), s(r),
                                                                   mods=self.mods("offen", self.off(o), self.kw.get('pfmod', '')))]
        if opt('kprobe', 0): mems[opt('kprobe', 0)] += [lambda: self.needv(opt('ktag', "kd")), FL(20)]
        ex = lambda r: valu("v_exp_f32", v(r), v(r))
        cv = lambda d, r: valu("v_cvt_pk_bf16_f32", v(d), v(r), v(r + 1))
        one = lambda i: valu("v_mov_b32", v(ONES + i), s(sONES))
        sv = [[one(0), one(1)], [one(2), one(3)], vf1[:1], vf1[1:2], vf1[2:] + [valu("v_mov_b32", v(PM + 1), 0)],
              [ex(D0)], [ex(D0 + 1)], [ex(D0 + 2)], [ex(D0 + 3), cv(PX, D0)], [ex(D1), cv(PX + 1, D0 + 2)], [ex(D1 + 1)],
              [ex(D1 + 2), ex(D1 + 3), cv(PX + 2, D1), cv(PX + 3, D1 + 2)], [ex(DM_)], [ex(DM_ + 1)], [cv(PM, DM_)]]
        for j, x in enumerate(sv): vals[SC + j] = x
        post[PV - 1] += [FL(9)]
        mfree = lambda r: max(i for i, f in enumerate(frs) if Mr(f[2]) == r)
        wfirst = {(2, 0, 0): mfree(0), (2, 0, 1): mfree(4), (3, 0, 0): mfree(8), (3, 0, 1): mfree(12), (2, 1, 0): mfree(16), (2, 1, 1): mfree(20),
                  (2, 2, 0): mfree(24), (2, 2, 1): mfree(28), (2, 3, 0): SC + 8, (2, 3, 1): SC + 9, (3, 1, 0): SC + 10, (3, 1, 1): SC + 11,
                  (3, 2, 0): SC + 10, (3, 2, 1): WO + 4, (3, 3, 0): PV + 3, (3, 3, 1): PV + 2}
        place(mems, [zread(vWA + 4 * i) for i in range(4)], O1 + 4)
        lnorm = A.newlabel("norm"); lfb = A.newlabel("smax")
        QH = "quad_perm:[2,3,2,3] row_mask:0xf bank_mask:0xf"; QL = "quad_perm:[0,1,0,1] row_mask:0xf bank_mask:0xf"
        fb = opt('fbpos', 0)
        fbr = valu("s_nop", 0) if "f" in X_ else valu("s_cbranch_vccnz", lfb)
        if fb >= 0 and nrm == 0: mems[WO + fb] += [fbr]
        def norm():
            self.fl(10)
            A.label(lnorm)
            A.I("s_mov_b64", "vcc", s(sOMASK, 2))
            R_ = OA + 4
            for i in range(4):
                A.I("v_cndmask_b32_dpp", v(R_ + i), v(OA + i), v(R_ + i), "vcc", mods=QH)
            A.I("v_rcp_f32_dpp", v(ri), v(LA), mods=QH)
            for i in range(2): A.I("v_pk_mul_f32", v(R_ + 2 * i, 2), v(R_ + 2 * i, 2), v(ri, 2), mods="op_sel_hi:[1,0]")
            for i in range(2): A.I("v_cvt_pk_bf16_f32", v(OA + i), v(R_ + 2 * i), v(R_ + 2 * i + 1))
            self.ds("ow", "ds_write_b64", v(vOW), v(OA, 2), mods=self.off(OI + w * 512))
            self.fl(11)
            A.I("v_max_f32_dpp", v(ri + 2), v(LA), v(ri), mods=QH)
            for i in range(4):
                A.I("v_mov_b32_dpp", v(OF[0] + i), v(OA + (i & 1)), mods=QH if i >> 1 else QL)
                if i == 1: A.I("v_cmp_lt_f32", "vcc", s(sBIG), v(ri + 2))
            if fb < 0: fbr()
        def norm1():
            self.fl(10)
            A.label(lnorm)
            A.I("v_rcp_f32_dpp", v(ri), v(LA), mods=QH)
            for t in range(2):
                r = OA + 4 * t
                for i in range(4): A.I("v_mul_f32_dpp", v(r + i), v(r + i), v(ri), mods=QH)
                for i in range(2): A.I("v_cvt_pk_bf16_f32", v(OF[0] + 2 * t + i), v(r + 2 * i), v(r + 2 * i + 1))
                if nrm == 2: self.ds("ow", "ds_write_b64", v(vOR), v(OF[0] + 2 * t, 2), mods=self.off(OI + w * 512 + 8 * t))
            if nrm == 1: self.ds("ow", "ds_write_b128", v(vOR), v(OF[0], 4), mods=self.off(OI + w * 512))
            self.fl(11)
        def norm3():
            self.fl(10)
            A.label(lnorm)
            A.I("v_rcp_f32_dpp", v(ri), v(LA), mods=QH)
            for i in range(4): A.I("v_mul_f32_dpp", v(OA + i), v(OA + i), v(ri), mods=QH)
            for i in range(2): A.I("v_cvt_pk_bf16_f32", v(OA + i), v(OA + 2 * i), v(OA + 2 * i + 1))
            R_ = OA + 4
            for i in range(2): A.I("v_pk_mul_f32", v(R_ + 2 * i, 2), v(R_ + 2 * i, 2), v(ri, 2), mods="op_sel_hi:[1,0]")
            A.I("s_mov_b64", "exec", s(sOMASK, 2))
            for i in range(2): A.I("v_cvt_pk_bf16_f32", v(OA + i), v(R_ + 2 * i), v(R_ + 2 * i + 1))
            A.I("s_mov_b64", "exec", -1)
            self.ds("ow", "ds_write_b64", v(vOW), v(OA, 2), mods=self.off(OI + w * 512))
            self.fl(11)
            A.I("v_max_f32_dpp", v(ri + 2), v(LA), v(ri), mods=QH)
            A.I("v_cmp_lt_f32", "vcc", s(sBIG), v(ri + 2))
            for i in range(4): A.I("v_mov_b32_dpp", v(OF[0] + i), v(OA + (i & 1)), mods=QH if i >> 1 else QL)
            if "f" in X_: A.I("s_nop", 0)
            else: A.I("s_cbranch_vccnz", lfb)
        if nrm == 0: post[WO - 1] += [norm]
        elif nrm == 3: post[WO - 1] += [norm3]
        else:
            post[WO - 1] += [norm1]
            vals[WO] = [valu("v_max_f32_dpp", v(ri + 2), v(LA), v(ri), mods=QH)]
            vals[WO + 1] = [valu("v_cmp_lt_f32", "vcc", s(sBIG), v(ri + 2))]
            mems[WO + 2] += [valu("s_nop", 0) if "f" in X_ else valu("s_cbranch_vccnz", lfb)]
        def ool_smax():
            A.label(lfb)
            A.I("s_add_u32", s(sNRF), s(sNRF), 1)
            A.I("s_mov_b32", s(sBIG), "0x7f800000")
            A.I("s_waitcnt", "lgkmcnt(0)")
            A.I("s_sub_u32", s(sT0), s(sKXN), hex(32 * 8192 + 2048 * w))
            A.I("s_add_u32", s(sT1), s(sT0), 4096)
            A.nop(8)
            for i in range(8):
                A.I("buffer_load_dwordx4", v(K0 + 4 * i, 4), v(vL16), s(S_WS, 4), s(sT1 if i > 3 else sT0), mods=self.mods("offen", self.off((i & 3) * 1024)))
            for i in range(4):
                A.I("ds_read_b128", v(X + 4 * i, 4), v(vXR), mods=self.off(XI + 1024 * i))
            for i in range(16): A.I("v_mov_b32", v(vWA + i), 0)
            A.I("s_waitcnt", "vmcnt(0) lgkmcnt(0)")
            for x in ST[SC:PV]: x[0]()
            tm, tt = 84, 85
            A.I("v_max3_f32", v(tm), v(D0), v(D0 + 1), v(D0 + 2))
            A.I("v_max3_f32", v(tm), v(tm), v(D0 + 3), v(D1))
            A.I("v_max3_f32", v(tm), v(tm), v(D1 + 1), v(D1 + 2))
            A.I("v_max3_f32", v(tm), v(tm), v(D1 + 3), v(DM_))
            A.I("v_max_f32", v(tm), v(tm), v(DM_ + 1))
            for b in (32, 16):
                A.I("v_mov_b32", v(tt), v(tm))
                A.I(f"v_permlane{b}_swap_b32", v(tt), v(tm))
                A.I("v_max_f32", v(tm), v(tt), v(tm))
            rs = [D0, D0 + 1, D0 + 2, D0 + 3, D1, D1 + 1, D1 + 2, D1 + 3, DM_, DM_ + 1]
            for r in rs: A.I("v_sub_f32", v(r), v(r), v(tm))
            for r in rs: A.I("v_exp_f32", v(r), v(r))
            for i in range(5): A.I("v_cvt_pk_bf16_f32", v(PX + i if i < 4 else PM), v(rs[2 * i]), v(rs[2 * i + 1]))
            for x in ST[PV:WO]: x[0]()
            self.lq = []
            for f in ((2, 3, 0), (2, 3, 1), (3, 1, 0), (3, 1, 1), (3, 2, 0), (3, 3, 0), (3, 3, 1)): woread(*f)
            A.I("s_waitcnt", "lgkmcnt(0)")
            A.barrier_haz()
            A.I("s_branch", lnorm)
        self.ool.append(ool_smax)
        ob = WO + opt('obar', 1); od = ob + opt('ord', 0)
        if self.kreg and opt('kbd', False): mems[ob - 1] += [lambda: self.needv("kk")]
        mems[ob] += keep(opt('kd', 0)) + [none if 'D' in nw else nl("ow"), bar, FL(12)]
        o1 = opt('ord1', 3)
        rdD = [oread(j) for j in (1, 2, 3)]
        mems[od] += rdD[:o1]; mems[od + 1] += rdD[o1:]
        mems[WO + 4] += [FL(13)]
        for j in range(WO - 1, od): mems[j].append(none)
        def pack(T):
            g = G[T >> 1] + (T & 1); r = vWA + 4 * T
            L = [valu("v_cvt_pk_bf16_f32", v(g), v(r), v(r + 2)), valu("v_cvt_pk_bf16_f32", v(g + 2), v(r + 1), v(r + 3))]
            if not T & 1: L.insert(1, valu("v_and_or_b32", v(g), v(g), -2, s(sTAG)))
            return L
        def pstore(jj): self.vm("p", "buffer_store_dwordx4", v(G[jj], 4), v(vPBST), s(S_WS, 4), s(sPBST + jj), mods=self.mods("offen", sc or opt('pmod', '')))
        W4 = WO + 4
        place(vals, pack(0), W4 + 4)
        vals[W4 + 7] += pack(1)
        mems[W4 + 8] += [lambda: pstore(0), FL("h5")]
        p2 = pack(2)
        vals[W4 + 10] += p2[:1]; vals[W4 + 11] += p2[1:] + pack(3)
        post[N - 1] += [lambda: pstore(1)]
        wlo = opt('wlo', 0)
        for j in range(cr, xe + opt('xgap', 0)): mems[j].append(none)
        for j in opt('wno', tuple(range(SC + 5, PV + 3)) + (xq - 1, xk, NS - 1, SC)): mems[j].append(none)
        for f, fs in sorted(wfirst.items(), key=lambda x: x[1]):
            j = place(mems, [W(*f)], max(fs, O1 + 4))
            assert j + 3 <= WO + worder.index(f[:2]), (f, j)
        mems[WO + 3] += keep(opt('ke', 0))
        mems[5] += keep(opt('kb', 0))
        if opt('fill', True): A.fill = v(vOW)
        for i, (x, deps) in enumerate(ST):
            for d in deps: self.needl(d)
            if i or not spec: x()
            if self.kw.get('pslot') == i: self.fl("h3")
            for m in mems[i]: m()
            if i + 1 < N and i != WO - 1:
                for d in reversed(ST[i + 1][1]): self.needl(d)
            for x in vals[i]: x()
            for x in post[i]: x()
        A.fill = None
        self.fl(14)
        if self.flog:
            self.fl_collect(14); self.lq = []; self.vq.append("log")
        def pad16(n):
            for _ in range(n):
                A.I("v_mov_b32", v(t0), 0); A.nop(3)
        junk = []
        for r, inc in ((sKXN, 32 * 8192), (sVXN, 32 * 8192), (sKM, 32 * 4096)):
            junk.append(valu("s_add_u32", s(r), s(r), hex(inc)))
        junk.append(valu("s_add_u32", s(sMBLD), s(sMBST), 1024 * w))
        junk.append(valu("s_add_u32", s(sMBLD2), s(sMBLD), 4096))
        for j in range(2): junk.append(valu("s_xor_b32", s(sPBST + j), s(sPBST + j), hex(self.par)))
        junk.append(valu("s_mov_b32", s(sBIG), f2h(2.0 ** self.kw.get('bigexp', 20))))
        if w == 0: junk.append(valu("v_mov_b32", v(vFLG), s(sSTEP)))
        junk.append(valu("s_add_u32", s(sSTEP), s(sSTEP), 1))
        if w >= WE: junk += [valu("v_cndmask_b32", v(SEL + d), 0, v(vSEL), s(self.sSEL + 2 * d, 2)) for d in range(4)]
        junk += [valu("v_mov_b32", v(r), 0) for r in range(vQK, vQK + 24) if w < WE or not (vQK if rg else vVA) <= r < vVA + 6]
        pf = self.prefetch_items()
        if self.kreg:
            kb = [] if opt('kbd', False) else [lambda: self.needv("kk"), bar]
            pf = kb + pf + self.kreads() if opt('kb0', True) else pf + kb + self.kreads()
        def tail():
            A.I("s_add_u32", s(sMBST), s(sMBST), 8192)
            assert (WS_MB + self.wo) & 0xffff == 0
            A.I("s_bitset0_b32", s(sMBST), 15)
            A.I("s_xor_b32", s(sRST), s(sMBST), 16384)
            A.I("s_xor_b32", s(sPBLD), s(sPBLD), hex(self.par))
            A.I("s_xor_b32", s(sPBLD2), s(sPBLD), 1024)
            A.I("s_bfe_u32", s(sTAG), s(sSTEP), hex(0x10001 if self.par else 0x10000))
        if w < WE:
            if opt('pf1', self.kreg): junk, pf = pf, junk
            for x in junk: x()
            pad16(opt('wpre', 0))
            for x in pf: x()
            tail()
            if self.kvcheck:
                A.I("s_add_u32", s(sT1), s(sSTEP), 6 if opt('pfk', 0) else 5)
                A.I("s_lshr_b32", s(sT1), s(sT1), 2)
                A.I("s_min_u32", s(sT1), s(sT1), 16)
                A.I("s_bfm_b32", s(sNEED), s(sT1), 0)
                lkv = A.newlabel("kvw"); lkb = A.newlabel("kvb")
                self.needv("kvf")
                A.I("v_cmp_eq_u32", "vcc", 0, v(vDUM))
                A.I("s_and_b64", "vcc", "vcc", s(sNEED, 2))
                A.I("s_cbranch_scc1", lkv)
                A.label(lkb)
                def ool_kv():
                    A.label(lkv)
                    self.retry_head(sNRF, lkb)
                    A.I("s_sleep", 4)
                    A.I("buffer_load_dword", v(vDUM), v(vL4), s(S_WS, 4), s(sKVF), mods="offen sc1")
                    A.I("s_waitcnt", "vmcnt(0)")
                    A.I("v_cmp_eq_u32", "vcc", 0, v(vDUM))
                    A.I("s_and_b64", "vcc", "vcc", s(sNEED, 2))
                    A.I("s_cbranch_scc1", lkv)
                    A.I("s_branch", lkb)
                self.ool.append(ool_kv)
            pad16(opt('wpad', 20) - (7 if self.flog else 0))
            A.I("s_waitcnt", "lgkmcnt(0)")
            A.I("s_branch", LTOP)
            return
        def rloads(mod, track=True, RL=RL, t="r"):
            for m in range(4):
                (self.vm if track else untracked)(f"{t}{m}", "buffer_load_dwordx4", v(RL[m], 4), v(vL16), s(S_WS, 4), s(sPBLD2 if m & 1 else sPBLD),
                        mods=self.mods("offen", self.off((m & 2) * 1024), mod))
        rp = self.rp[w - WE] - (25 if self.flog else 0)
        npf = len(pf) - 16 + opt('rpf', 0 if self.kreg else 16)
        junk = pf[:npf] + junk
        junk += [valu("v_mov_b32", v(tc), 0)] * max(0, rp + 1 - len(junk))
        junk = junk[:rp] + pf[npf:] + junk[rp:]
        RB = [vQK + 4 * m for m in range(4)]
        if rg: junk += [valu("v_mov_b32", v(tc), 0)] * max(0, rp + rg[w - WE] + 1 - len(junk))
        for i, x in enumerate(junk):
            if i == rp: self.fl("h6"); rloads(opt('rmod', self.pollmod))
            if rg and i == rp + rg[w - WE]: rloads(opt('bmod', "sc1"), True, RB, "b")
            x()
        lrl = A.newlabel("rl"); lrs = A.newlabel("rslow"); lrg = A.newlabel("rgo")
        if early3:
            for _ in range(opt('e3pad', 0)): A.I("v_mov_b32", v(tc), 0)
            if opt('e3pos', 0) == 0: self.fl("h7"); mload(0, self.pollmod, "f0n")
        if rg: A.label(lrl)
        for m in range(4):
            self.needv(f"r{m}")
            if m == 0 and early3 and opt('e3pos', 0) == 1: self.fl("h7"); mload(0, self.pollmod, "f0n")
            if m == 0 and not rg: A.label(lrl)
            A.I(MF, v(RD, 4), v(RL[m], 4), v(SEL, 4), 0 if m == 0 else v(RD, 4))
            A.I("v_xor_b32", v(tc + (m > 0)), s(sTAG), v(RL[m]))
            if m: A.I("v_or_b32", v(tc), v(tc), v(tc + 1))
        self.fl("h8")
        A.I("v_and_b32", v(tc), 1, v(tc))
        A.I("v_cmp_ne_u32", "vcc", 0, v(tc))
        if not nochk: A.I("s_cbranch_vccnz", lrs)
        A.label(lrg)
        A.I("v_permlane32_swap_b32", v(RD), v(RD + 2))
        A.I("v_permlane32_swap_b32", v(RD + 1), v(RD + 3))
        A.I("v_pk_add_f32", v(RD, 2), v(RD, 2), v(RD + 2, 2))
        A.I("s_mov_b64", "exec", s(sRMASK, 2))
        A.I("v_cvt_pk_bf16_f32", v(SEL), v(RD), v(RD + 1))
        A.I("v_min_u32", v(SEL), "0xfffffffe", v(SEL))
        A.I("buffer_store_dword", v(SEL), v(vMST), s(S_WS, 4), s(sMBST), mods=self.mods("offen", sc or opt('mmod', '')))
        A.I("s_mov_b64", "exec", -1)
        self.fl(15)
        def ool_r():
            A.label(lrs)
            rloads("sc1", False)
            self.retry_head(sNRR, lrg)
            if rg:
                for m in range(4):
                    A.I("s_waitcnt", f"vmcnt({7 - m})")
                    A.I(MF, v(RD, 4), v(RB[m], 4), v(SEL, 4), 0 if m == 0 else v(RD, 4))
                    A.I("v_xor_b32", v(tc + (m > 0)), s(sTAG), v(RB[m]))
                    if m: A.I("v_or_b32", v(tc), v(tc), v(tc + 1))
                self.fl("h8")
                A.I("v_and_b32", v(tc), 1, v(tc))
                A.I("v_cmp_ne_u32", "vcc", 0, v(tc))
                A.I("s_cbranch_vccz", lrg)
                rloads("sc1", False, RB)
                A.I("s_add_u32", s(sNRR), s(sNRR), 1)
                A.I("s_branch", lrl)
                return
            A.I("s_waitcnt", "vmcnt(0)")
            A.I("s_branch", lrl)
        self.ool.append(ool_r)
        tail()
        A.I("s_waitcnt", "lgkmcnt(0)")
        A.I("s_branch", LTOP)

    def dump_timing(self):
        A = self.A
        A.I("s_lshl_b32", s(sT0), s(sH), 2)
        A.I("s_add_u32", s(sT0), s(sT0), s(sWV))
        A.I("s_lshl_b32", s(sT0), s(sT0), 7)
        A.I("s_add_u32", s(sT0), s(sT0), hex(WS_TS))
        regs = [sACC + i for i in range(16)] + [sNRM, sNRR, sNRF, self.sNRX]
        for i, r in enumerate(regs):
            A.I("v_mov_b32", v(1), s(r))
            A.I("buffer_store_dword", v(1), "off", s(S_WS, 4), s(sT0), mods=f"offset:{4*i}")

    def emit_ool(self):
        for f in self.ool:
            self.A.reset_haz()
            f()
        self.ool = []
```

```python
from asmgen import *
from layout import *
from common import *

S_WS = 8; S_X = 12; S_W = 16
sRB, sWV, sCG, sU = 20, 21, 22, 23
sDH = 24
sOUT = 25
sT0, sT1, sT2 = 26, 27, 28
sW1K = 29
sPQ, sPK, sPV, sPO = 60, 62, 64, 66
sNU, sSTR = 36, 37
sM = 38
sMD = 39
sPF = 40
sPASS = 41
sOUTP = 44
sFW = 45
sROT, sDH4 = 30, 52

vACC = 0; vWB = 64; vTR = 128; vDMA = 136; vL16 = 137; vT = 138; vXO = 139
MF = "v_mfma_f32_16x16x32_bf16"

def pointers(A):
    A.I("s_load_dwordx8", s(sPQ, 8), s(0, 2), 16)
    A.I("s_load_dwordx2", s(S_X, 2), s(0, 2), 0)
    A.I("s_waitcnt", "lgkmcnt(0)")

class Phase1:
    def __init__(self, A, tag="p1", xt=False, rot=False, spread=None, wfrom=0, xdrop=None, rr=None, trickle=0, xmod='', wmod='', qmod=None):
        self.xmod = xmod; self.wmod = wmod; self.qmod = qmod
        self.A = A; self.tag = tag; self.xt = xt; self.rot = rot; self.spread = spread; self.wfrom = wfrom; self.xdrop = xdrop; self.rr = rr; self.trickle = trickle

    def setup(self):
        A = self.A
        L, G, C, T, U, R = 144, 145, 146, 147, 148, 149
        A.I("s_and_b32", s(S_X + 1), s(S_X + 1), "0xffff")
        A.I("s_mov_b32", s(S_X + 2), hex(2 << 20))
        A.I("s_mov_b32", s(S_X + 3), "0x20000")
        A.I("v_lshrrev_b32", v(T), 6, v(0))
        A.I("v_readfirstlane_b32", s(sWV), v(T))
        A.I("v_and_b32", v(L), 63, v(0))
        A.I("v_lshrrev_b32", v(G), 4, v(L))
        A.I("v_and_b32", v(C), 15, v(L))
        A.I("v_lshrrev_b32", v(R), 2, v(C))
        A.I("v_lshlrev_b32", v(vL16), 4, v(L))
        A.I("s_lshl_b32", s(sW1K), s(sWV), 10)
        A.I("s_lshl_b32", s(sT0), s(sRB), 7)
        A.I("s_lshl_b32", s(sT1), s(sWV), 5)
        A.I("s_add_u32", s(sT0), s(sT0), s(sT1))
        A.I("v_add_u32", v(T), s(sT0), v(C))
        A.I("v_lshlrev_b32", v(T), 10, v(T))
        A.I("v_lshl_add_u32", v(vXO), v(G), 4, v(T))
        if self.xt:
            A.I("s_lshl_b32", s(sT0), s(sRB), 2)
            A.I("s_and_b32", s(sT1), s(sCG), 3)
            A.I("s_add_u32", s(sT0), s(sT0), s(sT1))
            A.I("s_lshl_b32", s(sT0), s(sT0), 15)
            A.I("v_lshlrev_b32", v(T), 7, v(0))
            A.I("buffer_load_dword", v(143), v(T), s(S_X, 4), s(sT0), mods="offen")
        if self.rot:
            for j in range(4):
                A.I("s_add_u32", s(sROT + j), s(sCG), j)
                A.I("s_and_b32", s(sROT + j), s(sROT + j), 3)
                A.I("s_lshl_b32", s(sROT + j), s(sROT + j), 8)
        def xloads(m):
            for tt in range(2):
                if not self.rot: A.I("s_mov_b32", s(sT0), hex(tt * 16 * 1024))
                for ks in range(16):
                    if self.rot and ks & 3 == 0: A.I("s_add_u32", s(sT0), s(sROT + (ks >> 2)), hex(tt * 16 * 1024))
                    A.I("buffer_load_dwordx4", v(64 * tt + 4 * ks, 4), v(vXO), s(S_X, 4), s(sT0), mods=mods("offen", off(64 * (ks & 3 if self.rot else ks)), m))
        if self.qmod:
            l1 = A.newlabel("xb"); l2 = A.newlabel("xa")
            A.I("s_cmp_lg_u32", s(sPASS), 0)
            A.I("s_cbranch_scc1", l1)
            xloads(self.qmod)
            A.label(l2)
            self.ool = lambda: (A.label(l1), xloads(self.xmod), A.I("s_branch", l2))
        else: xloads(self.xmod)
        if self.rot:
            for j in range(4): A.I("s_lshl_b32", s(sROT + j), s(sROT + j), 12)
        A.I("s_lshr_b32", s(sT0), s(sWV), 1)
        A.I("s_lshl_b32", s(sT0), s(sT0), 2)
        A.I("v_or_b32", v(U), s(sT0), v(G))
        A.I("v_lshlrev_b32", v(U), 1, v(U))
        A.I("v_xor_b32", v(U), v(U), v(C))
        A.I("v_lshlrev_b32", v(U), 4, v(U))
        A.I("s_lshl_b32", s(sT0), s(sWV), 2)
        A.I("v_add_u32", v(T), s(sT0), v(G))
        A.I("v_lshl_add_u32", v(vDMA), v(T), 13, v(U))
        A.I("v_lshl_add_u32", v(T), v(G), 3, v(R))
        A.I("v_lshlrev_b32", v(T), 8, v(T))
        A.I("v_and_b32", v(U), 1, v(G))
        A.I("v_lshl_or_b32", v(U), v(U), 2, v(R))
        A.I("v_lshl_add_u32", v(T), v(U), 5, v(T))
        A.I("v_and_b32", v(U), 3, v(C))
        A.I("v_lshl_add_u32", v(vTR), v(U), 3, v(T))
        for p in range(1, 8):
            A.I("v_xor_b32", v(vTR + p), p << 5, v(vTR))
        A.I("s_mov_b32", s(S_W + 3), "0x20000")

    def warm(self, when):
        A = self.A
        if when not in self.warmat: return 0
        sid = self.warm_id
        A.I("v_lshlrev_b32", v(vT), 2, v(vL16))
        if self.wfrom:
            A.I("v_lshlrev_b32", v(vT), 3, v(vL16))
            A.I("s_sub_u32", s(sT0), s(sid), self.wfrom)
            A.I("s_lshl_b32", s(sT0), s(sT0), 2)
            A.I("s_add_u32", s(sT0), s(sT0), s(sWV))
            A.I("s_min_u32", s(sT0), s(sT0), 512)
            A.I("s_lshl_b32", s(sT0), s(sT0), 13)
            A.I("s_cmp_eq_u32", s(sPASS), 0)
            A.I("s_cselect_b32", s(6), hex(4 << 20), 0)
            A.I("s_mov_b32", s(7), "0x20000")
            for m in self.warmat[when]:
                pp = (sPQ, sPK, sPV, sPO)[m]
                A.I("s_mov_b32", s(4), s(pp))
                A.I("s_and_b32", s(5), s(pp + 1), "0xffff")
                A.I("buffer_load_dword", v(143), v(vT), s(4, 4), s(sT0), mods="offen")
            return len(self.warmat[when])
        A.I("s_mul_i32", s(sT0), s(sid), 18752)
        A.I("s_mul_i32", s(sT1), s(sWV), 4736)
        A.I("s_add_u32", s(sT0), s(sT0), s(sT1))
        A.I("s_add_u32", s(sT1), s(sT0), 4096)
        A.I("s_cmp_eq_u32", s(sPASS), 0)
        A.I("s_cselect_b32", s(6), hex(4 << 20), 0)
        A.I("s_mov_b32", s(7), "0x20000")
        for m in self.warmat[when]:
            pp = (sPQ, sPK, sPV, sPO)[m]
            A.I("s_mov_b32", s(4), s(pp))
            A.I("s_and_b32", s(5), s(pp + 1), "0xffff")
            A.I("buffer_load_dword", v(143), v(vT), s(4, 4), s(sT0), mods="offen")
            A.I("s_mov_b32", "exec_lo", "0x3ff")
            A.I("s_mov_b32", "exec_hi", 0)
            A.I("buffer_load_dword", v(143), v(vT), s(4, 4), s(sT1), mods="offen")
            A.I("s_mov_b64", "exec", -1)
        return 2 * len(self.warmat[when])

    def dma_unit(self):
        A = self.A
        A.I("s_lshr_b32", s(sT0), s(sMD), 5)
        A.I("s_cmp_eq_u32", s(sT0), 0)
        A.I("s_cselect_b64", s(S_W, 2), s(sPK, 2), s(sPQ, 2))
        A.I("s_cmp_eq_u32", s(sT0), 1)
        A.I("s_cselect_b64", s(S_W, 2), s(sPV, 2), s(S_W, 2))
        A.I("s_and_b32", s(S_W + 1), s(S_W + 1), "0xffff")
        A.I("s_cmp_lt_u32", s(sMD), 96)
        A.I("s_cselect_b32", s(S_W + 2), hex(4 << 20), 0)
        A.I("s_and_b32", s(sDH), s(sMD), 31)
        A.I("s_lshl_b32", s(sDH), s(sDH), 8)
        if self.rot:
            for j in range(4): A.I("s_add_u32", s(sDH4 + j), s(sDH), s(sROT + j))

    def dma_one(self, a_, i):
        A = self.A
        if self.rot: A.I("s_add_u32", s(sT0), s(sDH4 + a_), hex(16 * i * 8192))
        else: A.I("s_add_u32", s(sT0), s(sDH), hex((128 * a_ + 16 * i) * 8192))
        A.I("s_add_u32", "m0", s(sW1K), hex(a_ * 32768 + 4 * i * 1024))
        A.I("buffer_load_dwordx4", v(vDMA), s(S_W, 4), s(sT0), mods=mods("offen", self.wmod, "lds"))

    def dma_chunk(self, a_):
        for i in range(8): self.dma_one(a_, i)

    def layernorm(self, between):
        A = self.A
        S_, Q, MB, DMn, T, ONE = 150, 152, 154, 156, 157, 158
        F = 160
        A.I("v_mov_b32", v(ONE), "0x3f803f80")
        n = self.warm(0)
        todo = []; cnt = [0]; late = [0]
        if self.spread:
            self.dma_unit()
            todo = [(a_, i) for a_ in range(3) for i in range(8)]
        class V:
            def I(_, *x, **k):
                A.I(*x, **k)
                cnt[0] += 1
                if cnt[0] in self.warmat and cnt[0] > 2: late[0] += self.warm(cnt[0])
                if todo and cnt[0] >= self.spread[0] and (cnt[0] - self.spread[0]) % self.spread[1] == 0:
                    self.dma_one(*todo.pop(0)); late[0] += 1
        V = V()
        for tt in range(2):
            RAW = 64 * tt
            A.I("s_waitcnt", f"vmcnt({16 * (1 - tt) + n + late[0]})")
            if tt == 0: ts(A, 12, dyn=sPASS); n += self.warm(1)
            if tt == 1: self.warm(2)
            if tt == 1 and not self.spread: between()
            A.I("v_pk_mov_b32", v(S_, 2), 0, 0)
            A.I("v_pk_mov_b32", v(Q, 2), 0, 0)
            for i in range(64):
                V.I("v_dot2_f32_bf16", v(S_ + (i & 1)), v(RAW + i), v(ONE), v(S_ + (i & 1)))
                V.I("v_dot2_f32_bf16", v(Q + (i & 1)), v(RAW + i), v(RAW + i), v(Q + (i & 1)))
            A.I("v_add_f32", v(S_), v(S_), v(S_ + 1))
            A.I("v_add_f32", v(Q), v(Q), v(Q + 1))
            xor_reduce(A, "v_add_f32", S_, T)
            xor_reduce(A, "v_add_f32", Q, T)
            ln_mean(A, S_, MB, DMn)
            ln_rinv(A, Q, S_, T)
            for i0 in range(0, 64, 8):
                R8 = range(i0, i0 + 8)
                for i in R8:
                    f = F + 2 * (i - i0)
                    V.I("v_lshlrev_b32", v(f), 16, v(RAW + i))
                    V.I("v_and_b32", v(f + 1), "0xffff0000", v(RAW + i))
                for i in R8:
                    f = F + 2 * (i - i0)
                    V.I("v_pk_add_f32", v(f, 2), v(f, 2), v(MB, 2), mods="op_sel_hi:[1,0] neg_lo:[0,1] neg_hi:[0,1]")
                for i in R8:
                    f = F + 2 * (i - i0)
                    V.I("v_cvt_pk_bf16_f32", v(RAW + i), v(f), v(f + 1))
                for i in R8:
                    f = F + 2 * (i - i0)
                    V.I("v_lshlrev_b32", v(f), 16, v(RAW + i))
                    V.I("v_and_b32", v(f + 1), "0xffff0000", v(RAW + i))
                for i in R8:
                    f = F + 2 * (i - i0)
                    V.I("v_pk_mul_f32", v(f, 2), v(f, 2), v(Q, 2), mods="op_sel_hi:[1,0]")
                for i in R8:
                    f = F + 2 * (i - i0)
                    V.I("v_cvt_pk_bf16_f32", v(f), v(f), v(f + 1))
                for i in R8:
                    V.I("v_accvgpr_write_b32", a(tt * 64 + i), v(F + 2 * (i - i0)))
        assert not todo

    def wread(self, a_, ksl, buf, n):
        p, q = n >> 1, n & 1
        self.A.I("ds_read_b64_tr_b16", v(vWB + buf * 32 + 4 * p + 2 * q, 2), v(vTR + p),
                 mods=off((a_ & 1) * 32768 + ksl * 8192 + q * 1024))

    def unit(self, isV):
        A = self.A
        for a_ in range(4):
            A.I("s_waitcnt", "vmcnt(16)")
            A.I("s_barrier")
            for n in range(14):
                self.wread(a_, 0, 0, n)
            if self.trickle:
                A.I("buffer_load_dword", v(143), v(142), s(4, 4), s(sFW), mods="offen")
                A.I("s_add_u32", s(sFW), s(sFW), 64 * self.trickle)
            if a_ == 2 and self.flags:
                self.pending_flag()
            if a_ == 1:
                A.I("s_add_u32", s(sMD), s(sMD), s(sSTR))
                self.dma_unit()
            stream = [(k, n) for k in range(4) for n in range(16)][14:]
            for ksl in range(4):
                ks = a_ * 4 + ksl
                for p in range(8):
                    done_needed = ksl * 16 + 2 * p + 2
                    issued = 64 - len(stream)
                    A.I("s_waitcnt", f"lgkmcnt({issued - done_needed})")
                    for tau in range(2):
                        acc = v(vACC + (p * 2 + tau) * 4, 4)
                        W = v(vWB + (ksl & 1) * 32 + 4 * p, 4); X = a((tau * 16 + ks) * 4, 4)
                        A.I(MF, acc, X if isV else W, W if isV else X, 0 if ks == 0 else acc)
                        if stream:
                            k2, n2 = stream.pop(0)
                            self.wread(a_, k2, k2 & 1, n2)
                    if ksl == 0:
                        self.dma_one((a_ + 3) & 3, p)
            if a_ & 1:
                for p in range(8):
                    A.I("v_xor_b32", v(vTR + p), hex(0x10000), v(vTR + p))
        G = 144
        for x in range(8):
            g = G + 4 * (x & 3)
            if isV:
                t0 = vACC + (x * 2) * 4; t1 = t0 + 4
            else:
                tau, kk = x >> 2, x & 3
                t0 = vACC + ((2 * kk) * 2 + tau) * 4; t1 = t0 + 8
            if isV:
                A.I("v_cvt_pk_bf16_f32", v(g), v(t0), v(t0 + 1))
                A.I("v_cvt_pk_bf16_f32", v(g + 1), v(t0 + 2), v(t0 + 3))
                A.I("v_cvt_pk_bf16_f32", v(g + 2), v(t1), v(t1 + 1))
                A.I("v_cvt_pk_bf16_f32", v(g + 3), v(t1 + 2), v(t1 + 3))
            else:
                for i in range(4): A.I("v_cvt_pk_bf16_f32", v(g + i), v(t0 + i), v(t1 + i))
            if x == 4: A.I("s_add_u32", s(sOUT), s(sOUT), 4096)
            A.I("buffer_store_dwordx4", v(g, 4), v(vL16), s(S_WS, 4), s(sOUT), mods=mods("offen", off((x & 3) * 1024), self.stmod))

    def pending_flag(self):
        A = self.A
        l = A.newlabel("nopf")
        A.I("s_cmp_eq_u32", s(sPF), 0)
        A.I("s_cbranch_scc1", l)
        if self.pre_flag: self.pre_flag()
        set_flag(A, S_WS, s(sPF), vT)
        A.I("s_mov_b32", s(sPF), 0)
        if self.rr:
            sh, mod, lim = self.rr
            A.I("s_cmp_ge_u32", s(sOUTP), hex(lim << 24))
            A.I("s_cbranch_scc1", l)
            A.I("v_lshlrev_b32", v(vT), sh - 4, v(vL16))
            for i in range(128 >> sh): A.I("buffer_load_ubyte", v(143), v(vT), s(S_WS, 4), s(sOUTP), mods=mods("offen", off(4095 * i), mod))
        A.label(l)

    def out_base(self):
        A = self.A
        A.I("s_lshr_b32", s(sT0), s(sM), 5)
        A.I("s_add_u32", s(sT1), s(sT0), 1)
        A.I("s_lshl_b32", s(sOUT), s(sT1), 24)
        A.I("s_lshl_b32", s(sT1), s(sRB), 2)
        A.I("s_add_u32", s(sT1), s(sT1), s(sWV))
        A.I("s_lshl_b32", s(sT1), s(sT1), 5)
        A.I("s_and_b32", s(sT2), s(sM), 31)
        A.I("s_add_u32", s(sT1), s(sT1), s(sT2))
        A.I("s_lshl_b32", s(sT1), s(sT1), 13)
        A.I("s_add_u32", s(sOUT), s(sOUT), s(sT1))
        if self.xdrop is not None:
            A.I("s_cmp_ge_u32", s(sRB), self.xdrop)
            A.I("s_cselect_b32", s(sT1), "0x7ff00000", s(sOUT))
            A.I("s_cmp_eq_u32", s(sPASS), 0)
            A.I("s_cselect_b32", s(sOUT), s(sT1), s(sOUT))

    def body(self, stmod="", flags=False, pre_flag=None, warm_id=None, next_pass=None, warm={}, unit_top=None, after_ln=None, sent=None):
        A = self.A
        self.stmod = stmod
        self.flags = flags
        self.pre_flag = pre_flag
        self.warm_id = warm_id; self.warmat = warm
        assert WS_KX == 1 << 24 and WS_VX == 2 << 24 and WS_QX == 3 << 24
        A.I("s_mov_b32", s(sPF), 0)
        A.I("s_mov_b32", s(80), 0)
        A.I("s_mov_b32", s(sU), 0)
        LP = f"L_{self.tag}_pass"
        A.label(LP)
        A.reset_haz()
        if next_pass: restore_tid(A)
        self.setup()
        A.I("s_mov_b32", s(sM), s(sCG))
        A.I("s_mov_b32", s(sMD), s(sCG))
        def between():
            self.dma_unit()
            for a_ in range(3):
                self.dma_chunk(a_)
        self.layernorm(between)
        if after_ln: after_ln()
        if self.trickle:
            A.I("s_load_dwordx4", s(48, 4), s(0, 2), 72)
            A.I("s_load_dwordx2", s(4, 2), s(0, 2), 88)
            A.I("v_lshlrev_b32", v(142), 2, v(vL16))
            A.I("v_cmp_gt_u32", "vcc", 64 * self.trickle, v(142))
            A.I("v_mov_b32", v(141), "0x7ffffff0")
            A.I("v_cndmask_b32", v(142), v(141), v(142), "vcc")
            A.I("s_lshl_b32", s(sFW), s(warm_id), 13)
            A.I("s_waitcnt", "lgkmcnt(0)")
            for i in range(2):
                A.I("s_cmp_eq_u32", s(sWV), i)
                A.I("s_cselect_b64", s(4, 2), s(48 + 2 * i, 2), s(4, 2))
            A.I("s_and_b32", s(5), s(5), "0xffff")
            A.I("s_cmp_eq_u32", s(sWV), 3)
            A.I("s_cselect_b32", s(6), 0, 512 * 3584)
            A.I("s_cmp_eq_u32", s(sPASS), 0)
            A.I("s_cselect_b32", s(6), 0, s(6))
            A.I("s_mov_b32", s(7), "0x20000")
        ts(A, 10, dyn=sPASS)
        LU = f"L_{self.tag}_unit"; LV = f"L_{self.tag}_v"; LN = f"L_{self.tag}_next"; LE = f"L_{self.tag}_end"
        A.barrier_haz()
        A.label(LU)
        A.reset_haz()
        A.I("s_cmp_ge_u32", s(sM), 96)
        A.I("s_cbranch_scc1", LE)
        if unit_top: unit_top()
        self.out_base()
        A.I("s_lshr_b32", s(sT0), s(sM), 5)
        A.I("s_cmp_eq_u32", s(sT0), 1)
        A.I("s_cbranch_scc1", LV)
        self.unit(False)
        A.I("s_branch", LN)
        A.label(LV)
        A.reset_haz()
        self.unit(True)
        if sent is not None:
            A.I("s_cmp_lt_u32", s(sRB), sent)
            A.I("s_cbranch_scc1", LN)
            for i in range(4): A.I("v_mov_b32", v(vACC + i), -1)
            A.I("s_sub_u32", s(sT0), s(sOUT), hex(WS_VX + 4096))
            A.I("s_lshr_b32", s(sT0), s(sT0), 1)
            A.I("s_add_u32", s(sT0), s(sT0), hex(WS_KM))
            for i in range(4): A.I("buffer_store_dwordx4", v(vACC, 4), v(vL16), s(S_WS, 4), s(sT0), mods=mods("offen", off(1024 * i), stmod))
            A.nop(2)
        A.label(LN)
        ts(A, 40, dyn=80)
        A.I("s_add_u32", s(80), s(80), 1)
        if flags:
            A.I("s_lshl_b32", s(sPF), s(sM), 4)
            A.I("s_add_u32", s(sPF), s(sPF), s(sRB))
            A.I("s_lshl_b32", s(sPF), s(sPF), 2)
            A.I("s_add_u32", s(sPF), s(sPF), hex(WS_CTRL + CT_F1))
            A.I("s_sub_u32", s(sOUTP), s(sOUT), 4095)
        A.I("s_add_u32", s(sM), s(sM), s(sSTR))
        A.I("s_branch", LU)
        if self.qmod: self.ool()
        A.label(LE)
        A.reset_haz()
        A.I("s_waitcnt", "vmcnt(0)")
        A.I("s_barrier")
        if flags:
            self.pending_flag()
        ts(A, 14, dyn=sPASS)
        if next_pass: next_pass(LP)
```

```python
import math
from asmgen import *
from layout import *
from common import *

S_WS = 8; S_W = 12
sHP, sWV, sSEG, sSTR = 20, 21, 22, 23
sT0, sT1, sT2 = 24, 25, 26
sW1K = 27
sC1 = 28
sMASK = 30
sQ, sK, sV, sKM, sVM, sPO = 46, 47, 48, 49, 50, 51
sF2 = 52
sNEG = 53
sK2, sV2 = 54, 55
sLATE, sFAST = 81, 83

vQ = 0; vK = 16; vKMf = 48; vV = 64; vKV = 220; vVMB = 104
KSCR = 0x22000
vS = 112
vP = 124
vLA = 132; vONE = 136
vO = 140
vOF = 0
vACC = 172
vL16, vL8, vPOo, vOXW, vOXR, vT, vT2, vT3 = 240, 241, 242, 243, 244, 246, 247, 248
vKSW, vKSR = 253, 254
vPF = 245; vXR = 96; vPJ = 104; vIF = 108; vEX = 109
sPA, sPB, sSL = 61, 50, 63
sHALF = 82
MF = "v_mfma_f32_16x16x32_bf16"; MF16 = "v_mfma_f32_16x16x16_bf16"

class Phase2:
    def __init__(self, A, tag="p2", ldmod="", stmod="", progmask=0xff, sl=(8, 2), kms=None, pol=None, smode=None, um=False, half=False, xr=False, poc=None, quad=None, pre=None, pmod='sc1', gmod='', por=None, wmod='', tmod='sc1'):
        self.por = por; self.wmod = wmod; self.tmod = tmod
        assert not por or quad and 'sc1' in gmod and por <= NSEG - 2
        self.gmod = gmod
        self.pmod = pmod
        self.pre = pre
        self.quad = quad
        self.poc = poc
        self.um = um; self.half = half; self.xr = xr
        self.sl = sl; self.kms = kms; self.pol = pol; self.smode = smode
        self.progmask = progmask
        self.A = A; self.tag = tag; self.ldmod = ldmod; self.stmod = stmod

    def setup(self):
        A = self.A
        L, G, C, T, U, R = 1, 2, 3, 4, 5, 6
        srd(A, S_W, 40, 4 << 20)
        A.I("v_lshrrev_b32", v(T), 6, v(0))
        A.I("v_readfirstlane_b32", s(sWV), v(T))
        A.I("v_and_b32", v(L), 63, v(0))
        A.I("v_lshrrev_b32", v(G), 4, v(L))
        A.I("v_and_b32", v(C), 15, v(L))
        A.I("v_lshrrev_b32", v(R), 2, v(C))
        A.I("v_lshlrev_b32", v(vL16), 4, v(L))
        A.I("v_lshlrev_b32", v(vL8), 3, v(L))
        A.I("s_lshl_b32", s(sW1K), s(sWV), 10)
        A.I("s_lshl_b32", s(sT0), s(sWV), 5)
        A.I("v_xor_b32", v(T), s(sT0), v(vL16))
        A.I("v_add_u32", v(8), s(sW1K), v(T))
        A.I("v_xor_b32", v(9), 128, v(8))
        A.I("v_lshl_add_u32", v(T), v(G), 2, v(R))
        A.I("v_and_b32", v(U), 7, v(T))
        A.I("v_lshlrev_b32", v(T), 10, v(T))
        A.I("v_lshl_add_u32", v(T), v(U), 5, v(T))
        A.I("v_and_b32", v(U), 3, v(C))
        A.I("v_lshlrev_b32", v(U), 4, v(U))
        A.I("v_xor_b32", v(T), v(U), v(T))
        A.I("s_lshl_b32", s(sT0), s(sWV), 8)
        A.I("v_add_u32", v(10), s(sT0), v(T))
        for hh in range(2):
            if hh: A.I("s_barrier")
            A.I("s_lshl_b32", s(sT1), s(sHP), 18)
            for ks in range(4):
                for i in range(8):
                    A.I("s_add_u32", s(sT0), s(sT1), hex(hh * 131072 + (32 * ks + 4 * i) * 1024))
                    A.I("s_add_u32", "m0", s(sW1K), hex(ks * 32768 + 4 * i * 1024))
                    A.I("buffer_load_dwordx4", v(9 if i & 1 else 8), s(S_W, 4), s(sT0), mods=mods("offen", self.wmod, "lds"))
            A.I("s_waitcnt", "vmcnt(0)")
            A.I("s_barrier")
            for half in range(2):
                for t in range(8):
                    A.I("v_xor_b32", v(11), hex((t >> 1) << 6 | (t & 1) << 3 | half << 16), v(10))
                    for k2 in range(2):
                        ks = 2 * half + k2
                        for q in range(2):
                            A.I("ds_read_b64_tr_b16", a(((hh * 4 + ks) * 8 + t) * 4 + 2 * q, 2), v(11), mods=off(k2 * 32768 + q * 16384))
                    if t & 1: A.I("s_waitcnt", "lgkmcnt(0)")
        A.I("s_barrier")
        A.I("s_and_b32", s(sT0), s(sWV), 1)
        A.I("s_lshl_b32", s(sT0), s(sT0), 4)
        A.I("v_add_u32", v(T), s(sT0), v(C))
        A.I("v_lshlrev_b32", v(U), 2, v(G))
        A.I("v_sub_u32", v(T), v(T), v(U))
        for tau in range(2):
            for r in range(4):
                A.I("v_cmp_le_i32", s(sMASK + 2 * (tau * 4 + r), 2), 16 * tau + r, v(T))
        c1 = f2h((DH ** -0.5) * math.log2(math.e))
        A.I("s_mov_b32", s(sC1), c1)
        A.I("s_mov_b32", s(sC1 + 1), c1)
        A.I("s_mov_b32", s(sNEG), "0xff000000")
        for i in range(4):
            A.I("v_mov_b32", v(vONE + i), "0x3f803f80")
        A.I("v_lshlrev_b32", v(T), 10, v(C))
        A.I("v_lshl_add_u32", v(T), v(G), 4, v(T))
        A.I("s_lshl_b32", s(sT0), s(sWV), 8)
        A.I("v_add_u32", v(vPOo), s(sT0), v(T))
        A.I("s_lshl_b32", s(sT0), s(sWV), 12)
        A.I("v_add_u32", v(vOXW), s(sT0), v(vL16))
        A.I("v_mov_b32", v(vOXR), v(vL16))
        A.I("s_add_u32", s(sT0), s(sT0), hex(KSCR))
        A.I("v_xor_b32", v(7), v(G), v(R))
        A.I("v_lshl_add_u32", v(T), v(G), 4, v(7))
        A.I("v_and_b32", v(U), 3, v(C))
        A.I("v_lshl_add_u32", v(T), v(T), 2, v(U))
        A.I("v_lshl_add_u32", v(vKSW), v(T), 2, s(sT0))
        A.I("v_lshl_add_u32", v(T), v(C), 2, v(7))
        A.I("v_lshl_add_u32", v(vKSR), v(T), 4, s(sT0))

    def seg_addrs(self):
        A = self.A
        A.I("s_lshl_b32", s(sT0), s(sSEG), 5)
        A.I("s_lshl_b32", s(sT1), s(sHP), 1)
        A.I("s_add_u32", s(sT0), s(sT0), s(sT1))
        A.I("s_lshr_b32", s(sT1), s(sWV), 1)
        A.I("s_add_u32", s(sT0), s(sT0), s(sT1))
        A.I("s_lshl_b32", s(sT1), s(sT0), 13)
        A.I("s_add_u32", s(sK), s(sT1), hex(WS_KX))
        A.I("s_add_u32", s(sK2), s(sK), 4096)
        A.I("s_add_u32", s(sV), s(sT1), hex(WS_VX))
        A.I("s_add_u32", s(sV2), s(sV), 4096)
        A.I("s_and_b32", s(sT2), s(sWV), 1)
        A.I("s_lshl_b32", s(sT2), s(sT2), 12)
        A.I("s_add_u32", s(sQ), s(sT1), s(sT2))
        A.I("s_add_u32", s(sQ), s(sQ), hex(WS_QX))
        A.I("s_lshl_b32", s(sT1), s(sT0), 12)
        A.I("s_add_u32", s(sKM), s(sT1), hex(WS_KM))
        A.I("s_mov_b32", s(sSL), s(sSEG))
        if self.por:
            for lim in (56, 28):
                A.I("s_cmp_ge_u32", s(sSL), lim)
                A.I("s_cselect_b32", s(sT0), 28, 0)
                A.I("s_sub_u32", s(sSL), s(sSL), s(sT0))
            A.I("s_cmp_ge_u32", s(sSEG), self.por)
            A.I("s_cselect_b32", s(sSL), s(sSEG), s(sSL))
        A.I("s_lshl_b32", s(sT0), s(sSL), 4)
        A.I("s_add_u32", s(sT0), s(sT0), s(sHP))
        A.I("s_lshl_b32", s(sT0), s(sT0), 15)
        A.I("s_add_u32", s(sPO), s(sT0), hex(WS_PO))

    def loads_x(self):
        A = self.A; m = self.ldmod
        for ks in range(4):
            A.I("buffer_load_dwordx4", v(vQ + 4 * ks, 4), v(vL16), s(S_WS, 4), s(sQ), mods=mods("offen", off(1024 * ks), m))
        for i in range(8):
            A.I("buffer_load_dwordx4", v(vK + 4 * i, 4), v(vL16), s(S_WS, 4), s(sK if i < 4 else sK2), mods=mods("offen", off(1024 * (i & 3)), m))
        for i in range(8):
            A.I("buffer_load_dwordx4", v(vV + 4 * i, 4), v(vL16), s(S_WS, 4), s(sV if i < 4 else sV2), mods=mods("offen", off(1024 * (i & 3)), m))

    def loads_m(self, m=None):
        A = self.A; m = m or self.ldmod
        for w in range(4):
            A.I("buffer_load_dwordx4", v(vKV + 4 * w, 4), v(vL16), s(S_WS, 4), s(sKM), mods=mods("offen", off(1024 * w), m))

    def segment(self, mid=None):
        A = self.A
        DM_, D0, D1 = vS, vS + 4, vS + 8
        PX, PM = vP, vP + 4
        tm, tt, mc, ri = vT, vT2, vT3, 250
        if self.pre:
            self.attention(mid)
        else:
            A.I("s_waitcnt", "vmcnt(8)" if mid else "vmcnt(12)")
            for tau, D in ((0, D0), (1, D1)):
                for ks in range(4):
                    A.I(MF, v(D, 4), v(vK + 16 * tau + 4 * ks, 4), v(vQ + 4 * ks, 4), 0 if ks == 0 else v(D, 4))
            A.I("v_mov_b32", v(tt), s(sNEG))
            for tau, D in ((0, D0), (1, D1)):
                for r in range(4):
                    A.I("v_cndmask_b32", v(D + r), v(tt), v(D + r), s(sMASK + 2 * (tau * 4 + r), 2))
            A.I("v_max3_f32", v(251), v(D0), v(D0 + 1), v(D0 + 2))
            A.I("v_max3_f32", v(251), v(251), v(D0 + 3), v(D1))
            A.I("v_max3_f32", v(251), v(251), v(D1 + 1), v(D1 + 2))
            if mid: mid()
            else: A.I("s_waitcnt", "vmcnt(0)")
            for w in range(4):
                for b in range(2):
                    A.I("ds_write_b32", v(vKSW), v(vKV + 4 * w + 1 + 2 * b), mods=off(1024 * w + 64 * b))
            for ks in range(4):
                A.I("ds_read_b128", v(vKMf + 4 * ks, 4), v(vKSR), mods=off(1024 * ks))
            A.I("s_waitcnt", "lgkmcnt(0)")
            for ks in range(4):
                A.I(MF, v(DM_, 4), v(vKMf + 4 * ks, 4), v(vQ + 4 * ks, 4), 0 if ks == 0 else v(DM_, 4))
            A.I("v_mov_b32", v(tm), v(251))
            A.I("v_max3_f32", v(tm), v(tm), v(D1 + 3), v(DM_))
            A.I("v_max_f32", v(tm), v(tm), v(DM_ + 1))
            xor_reduce(A, "v_max_f32", tm, tt)
            A.I("v_mul_f32", v(mc), s(sC1), v(tm))
            prs = [D0, D0 + 2, D1, D1 + 2, DM_]
            for r in prs:
                A.I("v_pk_fma_f32", v(r, 2), v(r, 2), s(sC1, 2), v(mc, 2), mods="op_sel_hi:[1,1,0] neg_lo:[0,0,1] neg_hi:[0,0,1]")
            for r in prs:
                A.I("v_exp_f32", v(r), v(r))
                A.I("v_exp_f32", v(r + 1), v(r + 1))
            for i, r in enumerate(prs):
                A.I("v_cvt_pk_bf16_f32", v(PX + i), v(r), v(r + 1))
            A.I("v_mov_b32", v(PM + 1), 0)
            A.I(MF, v(vLA, 4), v(vONE, 4), v(PX, 4), 0)
            for phi in range(8):
                A.I(MF, v(vO + 4 * phi, 4), v(vV + 4 * phi, 4), v(PX, 4), 0)
            A.I(MF16, v(vLA, 4), v(vONE, 2), v(PM, 2), v(vLA, 4))
            for phi in range(8):
                src = vKV + 2 * phi
                A.I(MF16, v(vO + 4 * phi, 4), v(src, 2), v(PM, 2), v(vO + 4 * phi, 4))
            A.I("v_rcp_f32", v(ri), v(vLA))
            for i in range(16):
                A.I("v_pk_mul_f32", v(vO + 2 * i, 2), v(vO + 2 * i, 2), v(ri, 2), mods="op_sel_hi:[1,0]")
            for i in range(16):
                A.I("v_cvt_pk_bf16_f32", v(vO + i), v(vO + 2 * i), v(vO + 2 * i + 1))
            for ks in range(4):
                A.I("ds_write_b128", v(vOXW), v(vO + 4 * ks, 4), mods=off(1024 * ks))
        A.I("s_waitcnt", "lgkmcnt(0)")
        A.I("s_barrier")
        if self.um:
            self.outproj()
            return
        for f in range(16):
            A.I("ds_read_b128", v(vOF + 4 * f, 4), v(vOXR), mods=off(1024 * f))
            if f == 7: A.I("s_waitcnt", "lgkmcnt(4)")
        A.I("v_xor_b32", v(vOXW), hex(0x4000), v(vOXW))
        A.I("v_xor_b32", v(vOXR), hex(0x4000), v(vOXR))
        A.I("s_waitcnt", "vmcnt(0) lgkmcnt(0)")
        for qt in range(2):
            for hh in range(2):
                for ks in range(4):
                    for t in range(8):
                        acc = v(vACC + (qt * 8 + t) * 4, 4)
                        A.I(MF, acc, a(((hh * 4 + ks) * 8 + t) * 4, 4), v(vOF + ((hh * 2 + qt) * 4 + ks) * 4, 4),
                            0 if (hh == 0 and ks == 0) else acc)
                    if qt == 1 and hh == 0: self.store_u(0, ks)

    def attention(self, mid):
        A = self.A
        DM_, D0, D1 = vS, vS + 4, vS + 8
        PX, PM = vP, vP + 4
        tm, tt, mc, ri = vT, vT2, vT3, 250
        sub = lambda d, r: A.I("v_pk_fma_f32", v(d, 2), v(r, 2), s(sC1, 2), v(mc, 2), mods="op_sel_hi:[1,1,0] neg_lo:[0,0,1] neg_hi:[0,0,1]")
        def xpart(full):
            for tau, D in ((0, D0), (1, D1)):
                for ks in range(4):
                    A.I(MF, v(D, 4), v(vK + 16 * tau + 4 * ks, 4), v(vQ + 4 * ks, 4), 0 if ks == 0 else v(D, 4))
            A.I("v_mov_b32", v(tt), s(sNEG))
            for tau, D in ((0, D0), (1, D1)):
                for r in range(4):
                    A.I("v_cndmask_b32", v(D + r), v(tt), v(D + r), s(sMASK + 2 * (tau * 4 + r), 2))
            A.I("v_max3_f32", v(tm), v(D0), v(D0 + 1), v(D0 + 2))
            A.I("v_max3_f32", v(tm), v(tm), v(D0 + 3), v(D1))
            A.I("v_max3_f32", v(tm), v(tm), v(D1 + 1), v(D1 + 2))
            A.I("v_max_f32", v(tm), v(tm), v(D1 + 3))
            if full: A.I("v_max3_f32", v(tm), v(tm), v(DM_), v(DM_ + 1))
            xor_reduce(A, "v_max_f32", tm, tt)
            A.I("v_mul_f32", v(mc), s(sC1), v(tm))
            prs = [D0, D0 + 2, D1, D1 + 2]
            for r in prs: sub(r, r)
            for r in range(D0, D0 + 8): A.I("v_exp_f32", v(r), v(r))
            for i, r in enumerate(prs): A.I("v_cvt_pk_bf16_f32", v(PX + i), v(r), v(r + 1))
            A.I("v_mov_b32", v(PM + 1), 0)
            A.I(MF, v(vLA, 4), v(vONE, 4), v(PX, 4), 0)
            for phi in range(8):
                if not full: A.I("s_waitcnt", f"vmcnt({7 - phi})")
                A.I(MF, v(vO + 4 * phi, 4), v(vV + 4 * phi, 4), v(PX, 4), 0)
        A.I("s_waitcnt", "vmcnt(8)")
        xpart(False)
        mid()
        for w in range(4):
            for b in range(2):
                A.I("ds_write_b32", v(vKSW), v(vKV + 4 * w + 1 + 2 * b), mods=off(1024 * w + 64 * b))
        for ks in range(4):
            A.I("ds_read_b128", v(vKMf + 4 * ks, 4), v(vKSR), mods=off(1024 * ks))
        self.side()
        for ks in range(4):
            A.I("s_waitcnt", f"lgkmcnt({3 - ks})")
            A.I(MF, v(DM_, 4), v(vKMf + 4 * ks, 4), v(vQ + 4 * ks, 4), 0 if ks == 0 else v(DM_, 4))
        ls = A.newlabel("redo"); lb = A.newlabel("redone")
        sub(DM_ + 2, DM_)
        A.I("v_max_f32", v(tm), v(DM_ + 2), v(DM_ + 3))
        A.I("v_cmp_lt_f32", "vcc", f2h(self.pre), v(tm))
        A.I("s_cbranch_vccnz", ls)
        A.label(lb)
        def redo():
            A.label(ls)
            A.reset_haz()
            xpart(True)
            sub(DM_ + 2, DM_)
            A.barrier_haz()
            A.I("s_branch", lb)
        self.ool = redo
        for i in range(2): A.I("v_exp_f32", v(DM_ + 2 + i), v(DM_ + 2 + i))
        A.I("v_cvt_pk_bf16_f32", v(PM), v(DM_ + 2), v(DM_ + 3))
        A.I(MF16, v(vLA, 4), v(vONE, 2), v(PM, 2), v(vLA, 4))
        work = []
        for phi in range(8):
            if phi < 2: work += [lambda r=r: A.I("v_mul_f32", v(r), v(ri), v(r)) for r in range(vO + 4 * phi, vO + 4 * phi + 4)]
            else: work += [lambda r=r: A.I("v_pk_mul_f32", v(r, 2), v(r, 2), v(ri, 2), mods="op_sel_hi:[1,0]") for r in (vO + 4 * phi, vO + 4 * phi + 2)]
            work += [lambda i=i: A.I("v_cvt_pk_bf16_f32", v(vO + i), v(vO + 2 * i), v(vO + 2 * i + 1)) for i in (2 * phi, 2 * phi + 1)]
            if phi & 1: work.append(lambda ks=phi >> 1: A.I("ds_write_b128", v(vOXW), v(vO + 4 * ks, 4), mods=off(1024 * ks)))
        for phi in range(8):
            A.I(MF16, v(vO + 4 * phi, 4), v(vKV + 2 * phi, 2), v(PM, 2), v(vO + 4 * phi, 4))
            if phi == 2: A.I("v_rcp_f32", v(ri), v(vLA))
            if phi > 2:
                for _ in range(2): work.pop(0)()
        for f in work: f()

    def outproj(self):
        A = self.A
        if self.half:
            A.I("s_lshr_b32", s(sT1), s(sHALF), 1)
            A.I("s_lshl_b32", s(sT0), s(sT1), 12)
            A.I("v_add_u32", v(vT), s(sT0), v(vOXR))
        ra = vT if self.half else vOXR
        fr = lambda qt: [(hh * 2 + qt) * 4 + ks for hh in range(2) for ks in range(4)]
        for f in fr(0): A.I("ds_read_b128", v(vOF + 4 * f, 4), v(ra), mods=off(1024 * f))
        A.I("v_xor_b32", v(vOXW), hex(0x4000), v(vOXW))
        later = fr(1)
        lh = A.newlabel("half"); le = A.newlabel("proj")
        for qt in range(2):
            for u in range(4):
                for i, f in enumerate(fr(qt)):
                    if qt == 0 and u == 0: A.I("s_waitcnt", f"lgkmcnt({7 - i})")
                    if qt == 1 and u == 2 and i == 0: A.I("s_waitcnt", "vmcnt(5)")
                    if qt == 1 and u == 0 and i == 0: A.I("s_waitcnt", "lgkmcnt(0)")
                    for t in (2 * u, 2 * u + 1):
                        acc = v(vACC + (qt * 8 + t) * 4, 4)
                        A.I(MF, acc, a((i * 8 + t) * 4, 4), v(vOF + 4 * f, 4), 0 if i == 0 else acc)
                    if qt == 0 and u == 1: A.I("ds_read_b128", v(vOF + 4 * later[i], 4), v(vOXR), mods=off(1024 * later[i]))
                    if i == 1 and qt + u: self.store_u(*divmod(4 * qt + u - 1, 4))
            if qt == 0:
                A.I("v_xor_b32", v(vOXR), hex(0x4000), v(vOXR))
                if self.half:
                    A.I("s_cmp_lg_u32", s(sHALF), 0)
                    A.I("s_cbranch_scc1", lh)
        self.store_u(1, 3)
        if self.half:
            A.I("s_branch", le)
            A.label(lh)
            A.reset_haz()
            A.nop(8)
            self.store_u(0, 3)
            A.I("s_waitcnt", "lgkmcnt(0)")
            A.label(le)

    def store_u(self, qt, u):
        A = self.A
        g = vO + 4 * u
        t0 = vACC + (qt * 8 + 2 * u) * 4
        for i in range(4):
            A.I("v_cvt_pk_bf16_f32", v(g + i), v(t0 + 2 * i), v(t0 + 2 * i + 1))
        if self.quad: A.I("v_min_u32", v(g), "0xfffffffe", v(g))
        if u == 0: A.I("s_add_u32", s(sT0), s(sPO), qt * 16384)
        self.either(lambda m: A.I("buffer_store_dwordx4", v(g, 4), v(vPOo), s(S_WS, 4), s(sT0), mods=mods("offen", off(64 * u), m)))

    def gather(self, fin, lsk):
        A = self.A
        RA, RB, Hh, EX = 32, 48, fin.b + 68, 112
        def issue(R, sb, m):
            for j in range(4): A.I("buffer_load_dwordx4", v(R + 4 * j, 4), v(vPJ + j if j else vL16), s(S_WS, 4), s(sb), mods=mods("offen", m))
        def check(R):
            A.I("s_waitcnt", "vmcnt(4)")
            A.I("v_max3_u32", v(vT), v(R), v(R + 4), v(R + 8))
            A.I("v_max_u32", v(vT), v(vT), v(R + 12))
            A.I("v_cmp_eq_u32", "vcc", -1, v(vT))
        def total(R):
            for j in range(4):
                for i in range(4):
                    A.I("v_dot2_f32_bf16", v(Hh + 2 * i), v(R + 4 * j + i), s(fin.sLO), v(Hh + 2 * i))
                    A.I("v_dot2_f32_bf16", v(Hh + 2 * i + 1), v(R + 4 * j + i), s(fin.sHI), v(Hh + 2 * i + 1))
        lp = A.newlabel("gp"); lb = A.newlabel("gb"); la = A.newlabel("ga"); ld = A.newlabel("gd"); l1 = A.newlabel("g1")
        self.either(lambda m: issue(RB, sPB, self.gmod if m else "sc1"))
        for i in range(8): A.I("v_mov_b32", v(Hh + i), 0)
        for i in range(self.quad[0]): A.I("v_mov_b32", v(vT), 0)
        A.I("s_mov_b32", s(sPT0), 0)
        A.label(lp)
        self.either(lambda m: issue(RA, sPA, self.gmod if m else "sc1"))
        check(RB)
        A.I("s_cbranch_vccz", lb)
        issue(RB, sPB, "sc1")
        check(RA)
        A.I("s_add_u32", s(sPT0), s(sPT0), 1)
        A.I("s_cbranch_vccz", la)
        A.I("s_cmp_lt_u32", s(sPT0), hex(POLL_MAX))
        A.I("s_cbranch_scc1", lp)
        A.label(lb)
        A.reset_haz()
        total(RB)
        A.I("s_cmp_lg_u32", s(sHALF), 0)
        A.I("s_cbranch_scc1", ld)
        A.I("s_waitcnt", "vmcnt(0)")
        A.label(la)
        total(RA)
        A.label(ld)
        A.nop(3)
        A.reset_haz()
        for i in range(2): A.I("ds_write_b128", v(vEX), v(Hh + 4 * i, 4), mods=off(1024 * i))
        A.I("s_cmp_lg_u32", s(sHALF), 0)
        A.I("s_cselect_b32", s(sT0), 3, 1)
        A.I("s_and_b32", s(sT0), s(sT0), s(sGW))
        A.I("s_waitcnt", "lgkmcnt(0)")
        A.I("s_barrier")
        A.I("s_cbranch_scc1", lsk)
        for i in range(2): A.I("ds_read_b128", v(EX + 4 * i, 4), v(vEX), mods=off(4096 + 1024 * i))
        A.I("s_cmp_eq_u32", s(sHALF), 0)
        A.I("s_cbranch_scc1", l1)
        for i in range(2, 6): A.I("ds_read_b128", v(EX + 4 * i, 4), v(vEX), mods=off(4096 * (1 + i // 2) + 1024 * (i & 1)))
        A.I("s_waitcnt", "lgkmcnt(0)")
        for i in range(4): A.I("v_pk_add_f32", v(EX + 8 + 2 * i, 2), v(EX + 8 + 2 * i, 2), v(EX + 16 + 2 * i, 2))
        for i in range(4): A.I("v_pk_add_f32", v(EX + 2 * i, 2), v(EX + 2 * i, 2), v(EX + 8 + 2 * i, 2))
        A.label(l1)
        A.I("s_waitcnt", "lgkmcnt(0)")
        for i in range(4): A.I("v_pk_add_f32", v(Hh + 2 * i, 2), v(Hh + 2 * i, 2), v(EX + 2 * i, 2))
        ts(A, 18, dyn=80)

    def either(self, st):
        A = self.A
        if not self.pol: return st(self.stmod)
        l1 = A.newlabel("near"); l2 = A.newlabel("far")
        A.I("s_cmp_lg_u32", s(sFAST), 0)
        A.I("s_cbranch_scc1", l1)
        st(self.stmod)
        A.I("s_branch", l2)
        A.label(l1)
        st("")
        A.label(l2)

    def store_po(self):
        if self.um: return
        for u in range(4): self.store_u(1, u)

    def body(self):
        A = self.A
        self.setup()
        LP = f"L_{self.tag}_seg"; LE = f"L_{self.tag}_end"
        A.barrier_haz()
        A.label(LP)
        A.reset_haz()
        A.I("s_cmp_ge_u32", s(sSEG), NSEG)
        A.I("s_cbranch_scc1", LE)
        self.seg_addrs()
        self.loads_x()
        self.loads_m()
        self.segment()
        self.store_po()
        A.I("s_add_u32", s(sSEG), s(sSEG), s(sSTR))
        A.I("s_branch", LP)
        A.label(LE)
        A.reset_haz()

    def mega(self, fin, after_setup=None, lag=None, late_stage=None, slag=None):
        A = self.A
        if slag:
            A.I("v_mov_b32", v(1), 0)
            A.I("s_lshl_b32", s(sT0), s(sHP), 7)
            A.I("s_add_u32", s(sT0), s(sT0), hex(WS_CTRL + CT_PROG))
            A.I("s_mul_i32", s(sT1), s(sSEG), slag[1])
            A.I("s_lshr_b32", s(sT1), s(sT1), 4)
            A.I("s_add_u32", s(sT1), s(sT1), slag[0])
            wait_words(A, S_WS, 1, s(sT0), 1, s(sT1), 2, sleep=self.sl[0], paced=True)
        self.setup()
        fin.setup()
        if after_setup: after_setup()
        ts(A, 3)
        A.I("v_lshrrev_b32", v(vT), 2, v(vL16))
        for mat in range(3):
            A.I("s_lshl_b32", s(sT0), s(sHP), 7)
            A.I("s_add_u32", s(sT0), s(sT0), hex(WS_CTRL + CT_F1 + mat * 32 * 64))
            wait_words(A, S_WS, vT, s(sT0), 32, 1, vT2, sleep=32)
        ts(A, 4)
        A.I("s_mov_b32", s(80), 0)
        A.I("s_mov_b32", s(sHALF), 0)
        SENT = self.quad and self.quad[1]
        if self.quad:
            for j in range(1, 4): A.I("v_add_u32", v(vPJ + j), hex(j << 15), v(vL16))
            A.I("s_lshl_b32", s(sT0), s(sWV), 12)
            A.I("s_add_u32", s(sT0), s(sT0), hex(KSCR))
            A.I("v_add_u32", v(vEX), s(sT0), v(vL16))
        def own_flag(how):
            A.I("s_lshl_b32", s(sT2), s(sHP), 2)
            A.I("s_add_u32", s(sT2), s(sT2), s(sF2))
            set_flag(A, S_WS, s(sT2), vT, how=how)
        LP = f"L_{self.tag}_seg"; LE = f"L_{self.tag}_end"
        A.barrier_haz()
        A.label(LP)
        A.reset_haz()
        A.I("s_cmp_ge_u32", s(sSEG), NSEG)
        A.I("s_cbranch_scc1", LE)
        if lag:
            A.I("v_lshrrev_b32", v(vT), 2, v(vL16))
            A.I("s_lshl_b32", s(sT0), s(sHP), 7)
            A.I("s_add_u32", s(sT0), s(sT0), hex(WS_CTRL + CT_PROG))
            A.I("s_mul_i32", s(sT1), s(sSEG), lag[1])
            A.I("s_lshr_b32", s(sT1), s(sT1), 4)
            A.I("s_add_u32", s(sT1), s(sT1), lag[0])
            wait_words(A, S_WS, vT, s(sT0), 1, s(sT1), vT2, sleep=self.sl[0], paced=True)
        if late_stage: late_stage()
        self.seg_addrs()
        A.I("s_cmp_ge_u32", s(sSEG), LATE)
        A.I("s_cselect_b32", s(sLATE), 1, 0)
        A.I("s_lshl_b32", s(fin.sROW), s(sHP), 1)
        A.I("s_lshr_b32" if self.quad else "s_and_b32", s(sT0), s(sGW), 1)
        A.I("s_add_u32", s(fin.sROW), s(fin.sROW), s(sT0))
        if self.half:
            A.I("s_cmp_ge_u32", s(sSEG), NSEG - 2)
            A.I("s_cselect_b32", s(sT0), 1, 0)
            A.I("s_max_u32", s(sHALF), s(sHALF), s(sT0))
            A.I("s_lshl_b32", s(sT0), s(sHALF), 3)
            A.I("s_and_b32", s(sT0), s(sT0), 16)
            A.I("s_add_u32", s(sT0), s(sT0), s(sHP))
            A.I("s_cmp_lg_u32", s(sHALF), 0)
            A.I("s_cselect_b32", s(fin.sROW), s(sT0), s(fin.sROW))
            if self.quad:
                A.I("s_cselect_b32", s(sPA), 0, hex(4 << 15))
                A.I("s_cselect_b32", s(sT0), 17, 18)
                A.I("s_lshl_b32", s(sPB), s(sGW), s(sT0))
                A.I("s_and_b32", s(sPB), s(sPB), hex(3 << 17))
                A.I("s_lshl_b32", s(sT0), s(fin.sROW), 10)
                A.I("s_add_u32", s(sPB), s(sPB), s(sT0))
                A.I("s_lshl_b32", s(sT0), s(sSL), 19)
                A.I("s_add_u32", s(sPB), s(sPB), s(sT0))
                A.I("s_add_u32", s(sPB), s(sPB), hex(WS_PO))
                A.I("s_add_u32", s(sPA), s(sPA), s(sPB))
            A.I("s_and_b32", s(sT0), s(sHALF), 2)
            A.I("s_lshl_b32", s(sT0), s(sT0), 13)
            A.I("s_add_u32", s(sPO), s(sPO), s(sT0))
        A.I("s_lshl_b32", s(sT0), s(sSEG), 5)
        A.I("s_add_u32", s(fin.sROW), s(fin.sROW), s(sT0))
        if self.xr: fin.xload(vXR)
        A.I("s_lshl_b32", s(sF2), s(sSEG), 6)
        A.I("s_add_u32", s(sF2), s(sF2), hex(WS_CTRL + CT_F2))
        A.I("s_lshl_b32", s(sT0), s(sSEG), 7)
        if self.half:
            A.I("s_and_b32", s(sT1), s(sHALF), 2)
            A.I("s_lshl_b32", s(sT1), s(sT1), 7)
            A.I("s_add_u32", s(sT0), s(sT0), s(sT1))
        A.I("s_add_u32", s(sT0), s(sT0), hex(WS_CTRL + CT_F2F - 128 * LATE))
        A.I("s_cmp_lg_u32", s(sLATE), 0)
        A.I("s_cselect_b32", s(sF2), s(sT0), s(sF2))
        if self.pol:
            A.I("s_cmp_ge_u32", s(sSEG), self.pol[0])
            A.I("s_cselect_b32", s(sFAST), s(self.smode), 0)
            A.I("s_and_b32", s(sFAST), s(sFAST), 1)
            l = A.newlabel("notouch")
            A.I("s_cbranch_scc0", l)
            A.I("buffer_load_dword", v(vPF), "off", s(S_WS, 4), s(sF2), mods="sc1")
            if self.pol[1]:
                A.I("s_cmp_lg_u32", s(sHALF), 0)
                A.I("s_cselect_b32", s(sT1), 2, 3)
                A.I("v_lshlrev_b32", v(vT), s(sT1), v(vL16))
                A.I("s_lshl_b32", s(sT0), s(sW1K), s(sT1))
                A.I("s_add_u32", s(sT0), s(sT0), s(sPO))
                A.I("buffer_load_dword", v(vPF), v(vT), s(S_WS, 4), s(sT0), mods="offen " + self.tmod)
            if SENT:
                A.I("s_cmp_eq_u32", s(sHALF), 0)
                A.I("s_cbranch_scc1", l)
                A.I("s_mov_b32", s(sFAST), 3)
                for i in range(4): A.I("v_mov_b32", v(vO + i), -1)
                A.I("s_waitcnt", "vmcnt(0)")
                A.I("s_barrier")
                for u in range(4): A.I("buffer_store_dwordx4", v(vO, 4), v(vPOo), s(S_WS, 4), s(sPO), mods=mods("offen", off(64 * u)))
            A.label(l)
        self.loads_x()
        def side():
            if fin.thr and not self.pre: fin.tload()
            if SENT:
                l = A.newlabel("noside")
                A.I("s_cmp_lg_u32", s(sFAST), 3)
                A.I("s_cbranch_scc1", l)
                if fin.thr: fin.tload()
                A.I("v_bfe_u32", v(vIF), v(vL16), 2, 6)
                A.I("buffer_load_dword", v(vIF), v(vIF), s(S_WS, 4), s(sF2), mods="offen sc1")
                A.label(l)
        self.side = side
        def mid():
            A.I("v_lshrrev_b32", v(vT), 2, v(vL16))
            A.I("s_lshl_b32", s(sT0), s(sHP), 7)
            A.I("s_add_u32", s(sT0), s(sT0), hex(WS_CTRL + CT_PROG))
            A.I("s_add_u32", s(sT1), s(sSEG), 1)
            if self.kms:
                A.I("s_sub_u32", s(sT2), s(sSEG), 1)
                A.I("s_min_u32", s(sT2), s(sT2), NSEG - 3)
                A.I("s_cmp_lg_u32", s(sLATE), 0)
                A.I("s_cselect_b32", s(sT1), s(sT2), s(sT1))
            A.barrier_haz()
            wait_words(A, S_WS, vT, s(sT0), 8, s(sT1), vT2, sleep=self.sl[0], paced=True, mask=self.progmask)
            if not self.kms:
                ts(A, 16, dyn=80)
                self.loads_m()
                A.I("s_waitcnt", "vmcnt(0)")
                return
            nd, gap = self.kms[:2]
            lp = A.newlabel("kmp"); lf = A.newlabel("kmf"); lo = A.newlabel("kmo")
            A.I("s_cmp_eq_u32", s(sLATE), 0)
            A.I("s_cbranch_scc1", lf)
            if SENT:
                l = A.newlabel("noinit")
                A.I("s_cmp_lg_u32", s(sFAST), 3)
                A.I("s_cbranch_scc1", l)
                own_flag(lambda st: st(""))
                A.label(l)
            A.I("s_lshr_b32", s(sT2), s(sWV), 1)
            A.I("s_lshl_b32", s(sT2), s(sT2), 4)
            A.I("s_add_u32", s(sT0), s(sT0), s(sT2))
            A.I("s_mov_b32", s(sPT0), 0)
            def probe():
                A.I("buffer_load_dword", v(vPF), "off", s(S_WS, 4), s(sT0), mods="sc1")
                self.loads_m(self.pmod)
            for i in range(nd - 1):
                probe()
                A.I("s_sleep", gap)
            A.label(lp)
            probe()
            A.I("s_add_u32", s(sPT0), s(sPT0), 1)
            A.I("s_waitcnt", f"vmcnt({5 * (nd - 1)})")
            A.I("v_max3_u32", v(vT), v(vKV), v(vKV + 1), v(vKV + 2))
            for i in range(3, 15, 2): A.I("v_max3_u32", v(vT), v(vT), v(vKV + i), v(vKV + i + 1))
            A.I("v_max_u32", v(vT), v(vT), v(vKV + 15))
            A.I("v_cmp_eq_u32", "vcc", -1 if len(self.kms) < 3 else v(vT), v(vT))
            A.I("v_readfirstlane_b32", s(sT2), v(vPF))
            A.I("s_cbranch_vccz", lo)
            A.I("s_cmp_gt_u32", s(sT2), s(sSEG))
            A.I("s_cbranch_scc1", lf)
            A.I("s_cmp_lt_u32", s(sPT0), hex(POLL_MAX))
            A.I("s_cbranch_scc1", lp)
            A.label(lf)
            self.loads_m("sc1")
            A.I("s_waitcnt", "vmcnt(0)")
            A.label(lo)
            A.reset_haz()
            if not self.pre: side()
            ts(A, 16, dyn=80)
        self.segment(mid)
        self.store_po()
        lgo = A.newlabel("parts"); lwf = A.newlabel("wflag")
        if SENT:
            l = A.newlabel("flags")
            A.I("s_cmp_lg_u32", s(sFAST), 3)
            A.I("s_cbranch_scc1", l)
            A.I("s_waitcnt", "vmcnt(4)")
            A.I("v_cmp_eq_u32", "vcc", 0, v(vIF))
            ts(A, 17, dyn=80)
            A.I("s_cbranch_vccz", lgo)
            A.I("v_lshrrev_b32", v(vT), 2, v(vL16))
            wait_words(A, S_WS, vT, s(sF2), 16, 1, vT2, sleep=self.sl[1], barrier=False)
            A.I("s_branch", lgo)
            A.label(l)
        if fin.thr: fin.tload()
        A.I("s_waitcnt", "vmcnt(0)")
        A.I("s_barrier")
        ts(A, 17, dyn=80)
        own_flag(lambda st: self.either(lambda m: st("sc1" if m else "")))
        A.I("v_lshrrev_b32", v(vT), 2, v(vL16))
        wait_words(A, S_WS, vT, s(sF2), 16, 1, vT2, sleep=self.sl[1])
        A.label(lgo)
        A.reset_haz()
        lsk = A.newlabel("nofin")
        if self.quad:
            self.gather(fin, lsk)
        else:
            ts(A, 18, dyn=80)
            if self.half:
                A.I("s_cmp_lg_u32", s(sHALF), 0)
                A.I("s_cselect_b32", s(sT0), 1, 2)
            A.I("s_cmp_ge_u32", s(sGW), s(sT0) if self.half else 2)
            A.I("s_cbranch_scc1", lsk)
        fin.row(vXR if self.xr else None, summed=bool(self.quad))
        A.barrier_haz()
        A.label(lsk)
        A.reset_haz()
        if self.poc:
            assert self.half and self.pol[0] == NSEG - 2
            l = A.newlabel("clean")
            A.I("s_cmp_eq_u32", s(sFAST), 0)
            A.I("s_cbranch_scc1", l)
            for u in range(4): A.I("buffer_store_dwordx4", v(vO + 4 * u, 4), v(vPOo), s(S_WS, 4), s(sPO), mods=mods("offen", off(64 * u), self.poc))
            A.label(l)
        ts(A, 19, dyn=80)
        A.I("s_add_u32", s(80), s(80), 4)
        A.I("s_add_u32", s(sSEG), s(sSEG), s(sSTR))
        if self.half:
            A.I("s_sub_u32", s(sT0), s(sSEG), 68)
            A.I("s_cmp_lt_u32", s(sT0), 2)
            A.I("s_cselect_b32", s(sHALF), 2, 0)
            A.I("s_cselect_b32", s(sT0), 6, 0)
            A.I("s_sub_u32", s(sSEG), s(sSEG), s(sT0))
        A.I("s_branch", LP)
        if self.pre: self.ool()
        A.label(LE)
        A.reset_haz()
```

```python
import math
from asmgen import *
from layout import *
from common import *

MF = "v_mfma_f32_16x16x32_bf16"
LOG2E = math.log2(math.e)

def full_reduce(A, op, x, t):
    row_reduce16(A, op, x)
    xor_reduce(A, op, x, t)

class Finisher:
    S_WS = 8; S_X = 12; S_OUT = 16; S_WR = 56
    sROW, sWV, sT0, sT1, sT2, sLO, sHI = 60, 61, 62, 63, 64, 65, 66
    def __init__(self, A, ldmod="", stmod="", base=0, home=(96, 97, 104, 88), early=False, thr=None, kf=0, ksp=0, omod='sc1'):
        self.omod = omod; self.ksp = ksp; self.kf = kf; self.early = early; self.thr = thr; self.A = A; self.ldmod = ldmod; self.stmod = stmod; self.b = base; self.home = home

    def setup(self):
        A = self.A; b = self.b
        srd(A, self.S_X, 0, 2 << 20)
        srd(A, self.S_OUT, 96, 2 << 20)
        srd(A, self.S_WR, 64, 1024)
        L, T, U = b + 100, b + 101, b + 102
        self.vL16, self.vCOL, self.vWRP, self.vWR = self.home
        A.I("v_and_b32", v(L), 63, v(0))
        A.I("v_lshlrev_b32", v(self.vL16), 4, v(L))
        A.I("buffer_load_dwordx4", v(self.vWRP, 4), v(self.vL16), s(self.S_WR, 4), 0, mods="offen")
        A.I("s_mov_b32", s(self.sLO), "0x3f80")
        A.I("s_mov_b32", s(self.sHI), "0x3f800000")
        A.I("s_waitcnt", "vmcnt(0)")

    def xload(self, X):
        self.A.I("s_lshl_b32", s(self.sT2), s(self.sROW), 10)
        self.A.I("buffer_load_dwordx4", v(X, 4), v(self.vL16), s(self.S_X, 4), s(self.sT2), mods="offen")

    def tload(self):
        self.A.I("s_mov_b32", s(self.sT0), hex(WS_CTRL + CT_THR))
        self.A.I("buffer_load_dword", v(self.thr), "off", s(self.S_WS, 4), s(self.sT0), mods="sc1")

    def row(self, xr=None, summed=False):
        A = self.A; b = self.b
        sROW, sT0, sT1, sT2 = self.sROW, self.sT0, self.sT1, self.sT2
        P = b; X = b + 64; Hh = b + 68; D = b + 76; S_, T, MB, DMn, Q = b + 84, b + 85, b + 86, b + 87, b + 100
        if summed: X = xr
        else:
            A.I("s_lshr_b32", s(sT0), s(sROW), 5)
            A.I("s_lshl_b32", s(sT0), s(sT0), 19)
            A.I("s_and_b32", s(sT1), s(sROW), 31)
            A.I("s_lshl_b32", s(sT1), s(sT1), 10)
            A.I("s_add_u32", s(sT0), s(sT0), s(sT1))
            A.I("s_add_u32", s(sT0), s(sT0), hex(WS_PO))
            if xr is None: self.xload(X)
            else: X = xr
            for hp in range(16):
                A.I("buffer_load_dwordx4", v(P + 4 * hp, 4), v(self.vL16), s(self.S_WS, 4), s(sT0), mods=mods("offen", self.ldmod))
                if hp < 15: A.I("s_add_u32", s(sT0), s(sT0), 32768)
            for i in range(8):
                A.I("v_mov_b32", v(Hh + i), 0)
            for hp in range(16):
                A.I("s_waitcnt", f"vmcnt({15 - hp})")
                for i in range(4):
                    A.I("v_dot2_f32_bf16", v(Hh + 2 * i), v(P + 4 * hp + i), s(self.sLO), v(Hh + 2 * i))
                    A.I("v_dot2_f32_bf16", v(Hh + 2 * i + 1), v(P + 4 * hp + i), s(self.sHI), v(Hh + 2 * i + 1))
        for i in range(4):
            A.I("v_cvt_pk_bf16_f32", v(P + i), v(Hh + 2 * i), v(Hh + 2 * i + 1))
        for i in range(4):
            A.I("v_lshlrev_b32", v(Hh + 2 * i), 16, v(P + i))
            A.I("v_and_b32", v(Hh + 2 * i + 1), "0xffff0000", v(P + i))
            A.I("v_lshlrev_b32", v(D + 2 * i), 16, v(X + i))
            A.I("v_and_b32", v(D + 2 * i + 1), "0xffff0000", v(X + i))
        for i in range(4):
            A.I("v_pk_add_f32", v(Hh + 2 * i, 2), v(Hh + 2 * i, 2), v(D + 2 * i, 2))
        HP_ = P + 4
        for i in range(4):
            A.I("v_cvt_pk_bf16_f32", v(HP_ + i), v(Hh + 2 * i), v(Hh + 2 * i + 1))
        for i in range(4):
            A.I("v_lshlrev_b32", v(Hh + 2 * i), 16, v(HP_ + i))
            A.I("v_and_b32", v(Hh + 2 * i + 1), "0xffff0000", v(HP_ + i))
        later = []
        def put(n, f):
            if self.kf & n: later.append(f)
            else: f()
        def st_h():
            A.I("s_add_u32", s(sT1), s(sT2), hex(WS_H))
            A.I("buffer_store_dwordx4", v(HP_, 4), v(self.vL16), s(self.S_WS, 4), s(sT1), mods=mods("offen", self.omod))
        put(1, st_h)
        A.I("v_add_f32", v(S_), v(Hh), v(Hh + 1))
        for i in range(2, 8):
            A.I("v_add_f32", v(S_), v(S_), v(Hh + i))
        full_reduce(A, "v_add_f32", S_, T)
        ln_mean(A, S_, MB, DMn)
        for i in range(8):
            A.I("v_sub_f32", v(D + i), v(Hh + i), v(MB))
        A.I("v_mul_f32", v(Q), v(D), v(D))
        for i in range(1, 8):
            A.I("v_fmac_f32", v(Q), v(D + i), v(D + i))
        full_reduce(A, "v_add_f32", Q, T)
        ln_rinv(A, Q, DMn, T)
        NP = P + 8
        for i in range(4):
            A.I("v_cvt_pk_bf16_f32", v(NP + i), v(D + 2 * i), v(D + 2 * i + 1))
        for i in range(4):
            A.I("v_lshlrev_b32", v(D + 2 * i), 16, v(NP + i))
            A.I("v_and_b32", v(D + 2 * i + 1), "0xffff0000", v(NP + i))
        for i in range(8):
            A.I("v_mul_f32", v(D + i), v(Q), v(D + i))
        for i in range(4):
            A.I("v_cvt_pk_bf16_f32", v(NP + i), v(D + 2 * i), v(D + 2 * i + 1))
        for i in range(4):
            A.I("v_lshlrev_b32", v(D + 2 * i), 16, v(NP + i))
            A.I("v_and_b32", v(D + 2 * i + 1), "0xffff0000", v(NP + i))
        def st_n():
            A.I("s_add_u32", s(sT1), s(sT2), hex(WS_HN))
            A.I("buffer_store_dwordx4", v(NP, 4), v(self.vL16), s(self.S_WS, 4), s(sT1), mods=mods("offen", self.omod))
        def st_o():
            OP = P + 12
            for i in range(4):
                A.I("v_pk_add_f32", v(Hh + 2 * i, 2), v(Hh + 2 * i, 2), v(D + 2 * i, 2))
            for i in range(4):
                A.I("v_cvt_pk_bf16_f32", v(OP + i), v(Hh + 2 * i), v(Hh + 2 * i + 1))
            A.I("buffer_store_dwordx4", v(OP, 4), v(self.vL16), s(self.S_OUT, 4), s(sT2), mods=mods("offen", self.omod))
        put(4, st_o); put(2, st_n)
        for i in range(4):
            A.I("v_lshlrev_b32", v(self.vWR + 2 * i), 16, v(self.vWRP + i))
            A.I("v_and_b32", v(self.vWR + 2 * i + 1), "0xffff0000", v(self.vWRP + i))
        A.I("v_mul_f32", v(S_), v(D), v(self.vWR))
        for i in range(1, 8):
            A.I("v_fmac_f32", v(S_), v(D + i), v(self.vWR + i))
        full_reduce(A, "v_add_f32", S_, T)
        bf16r(A, S_, S_)
        A.I("v_ashrrev_i32", v(T), 31, v(S_))
        A.I("v_or_b32", v(T), "0x80000000", v(T))
        A.I("v_xor_b32", v(S_), v(S_), v(T))
        A.I("v_and_b32", v(S_), "0xffff0000", v(S_))
        A.I("s_sub_u32", s(sT0), hex(0x8000 + 2047), s(sROW))
        A.I("v_or_b32", v(S_), s(sT0), v(S_))
        A.I("s_lshl_b32", s(sT0), s(sROW), 2)
        A.I("s_mov_b64", "exec", 1)
        if self.early:
            A.I("s_add_u32", s(sT1), s(sT0), hex(WS_CTRL + CT_KEYE - 4 * EARLY))
            if self.ksp:
                A.I("s_lshl_b32", s(sPT0), s(sROW), self.ksp)
                A.I("s_add_u32", s(sPT0), s(sPT0), hex((WS_CTRL + CT_KEYS - (1984 << self.ksp)) & 0xffffffff))
                A.I("s_cmp_ge_u32", s(sROW), 1984)
                A.I("s_cselect_b32", s(sT1), s(sPT0), s(sT1))
            A.I("s_cmp_ge_u32", s(sROW), EARLY)
            A.I("s_cselect_b32", s(sT1), s(sT1), "0x7ff00000")
            A.I("buffer_store_dword", v(S_), "off", s(self.S_WS, 4), s(sT1), mods=self.stmod)
        ln = A.newlabel("nokey")
        def rest(fs):
            if not fs: return
            A.I("s_mov_b64", "exec", -1)
            for f in fs: f()
            A.I("s_mov_b64", "exec", 1)
        rest([f for f in later if f is st_o])
        if self.thr:
            A.I("v_cmp_ge_u32", "vcc", v(self.thr), v(S_))
            A.I("s_cselect_b32", s(sT1), 1, 0)
            A.I("s_and_b32", s(sT1), s(sT1), "vcc_lo")
            A.I("s_cbranch_scc1", ln)
        rest([f for f in later if f is not st_o])
        A.I("s_add_u32", s(sT0), s(sT0), hex(WS_KEY))
        A.I("s_waitcnt", "vmcnt(0)")
        A.I("buffer_store_dword", v(S_), "off", s(self.S_WS, 4), s(sT0), mods=self.stmod)
        A.label(ln)
        A.I("s_mov_b64", "exec", -1)


def top2(A, S_WS, sK1, sK2, ldmod, lds_off, tb=0, poll=False, srnd=None, lim=240):
    K, T, U, AD = tb + 4, tb + 12, tb + 13, tb + 14
    A.I("v_lshlrev_b32", v(AD), 5, v(0))
    A.I("s_mov_b32", s(sK1), hex(WS_KEY))
    if srnd is not None:
        A.I("v_cmp_le_u32", "vcc", lim, v(0))
        A.I("v_mov_b32", v(U), s(srnd))
        A.I("v_add_u32", v(U), -1, v(U))
        A.I("v_cndmask_b32", v(tb + 3), 0, v(U), "vcc")
    if poll:
        lp = A.newlabel("kpoll"); ld = A.newlabel("kpolld")
        A.I("s_mov_b32", s(sK2), 0)
        A.label(lp)
        ldmod = "sc1"
    A.I("buffer_load_dwordx4", v(K, 4), v(AD), s(S_WS, 4), s(sK1), mods=mods("offen", ldmod))
    A.I("buffer_load_dwordx4", v(K + 4, 4), v(AD), s(S_WS, 4), s(sK1), mods=mods("offen offset:16", ldmod))
    if poll:
        A.I("s_waitcnt", "vmcnt(0)")
        A.I("v_min3_u32", v(T), v(K), v(K + 1), v(K + 2))
        A.I("v_min3_u32", v(T), v(T), v(K + 3), v(K + 4))
        A.I("v_min3_u32", v(T), v(T), v(K + 5), v(K + 6))
        A.I("v_min_u32", v(T), v(T), v(K + 7))
        if srnd is not None:
            A.I("v_or_b32", v(T), v(T), v(tb + 3))
        A.I("v_cmp_eq_u32", "vcc", 0, v(T))
        A.I("s_cbranch_vccz", ld)
        A.I("s_sleep", 6)
        A.I("s_add_u32", s(sK2), s(sK2), 1)
        A.I("s_cmp_lt_u32", s(sK2), hex(POLL_MAX))
        A.I("s_cbranch_scc1", lp)
        A.label(ld)
        if srnd is not None:
            for i in range(8):
                A.I("v_bfi_b32", v(K + i), v(tb + 3), 0, v(K + i))
    A.I("v_lshrrev_b32", v(AD), 6, v(0))
    A.I("v_lshlrev_b32", v(AD), 2, v(AD))
    A.I("v_add_u32", v(AD), hex(lds_off), v(AD))
    A.I("v_mov_b32", v(tb + 15), hex(lds_off))
    A.I("s_waitcnt", "vmcnt(0)")
    for rnd, sK in ((0, sK1), (1, sK2)):
        if rnd:
            for i in range(8):
                A.I("v_cmp_ne_u32", "vcc", s(sK1), v(K + i))
                A.I("v_cndmask_b32", v(K + i), 0, v(K + i), "vcc")
        A.I("v_max3_u32", v(T), v(K), v(K + 1), v(K + 2))
        A.I("v_max3_u32", v(T), v(T), v(K + 3), v(K + 4))
        A.I("v_max3_u32", v(T), v(T), v(K + 5), v(K + 6))
        A.I("v_max_u32", v(T), v(T), v(K + 7))
        full_reduce(A, "v_max_u32", T, U)
        A.I("ds_write_b32", v(AD), v(T), mods=off(16 * rnd))
        A.I("s_waitcnt", "lgkmcnt(0)")
        A.I("s_barrier")
        A.I("ds_read_b128", v(tb, 4), v(tb + 15), mods=off(16 * rnd))
        A.I("s_waitcnt", "lgkmcnt(0)")
        A.I("v_max3_u32", v(T), v(tb), v(tb + 1), v(tb + 2))
        A.I("v_max_u32", v(T), v(T), v(tb + 3))
        A.I("v_readfirstlane_b32", s(sK), v(T))

def sigmoid(A, d, x, t):
    A.I("v_mul_f32", v(t), f2h(-LOG2E), v(x))
    A.I("v_exp_f32", v(t), v(t))
    A.I("v_add_f32", v(t), 1.0, v(t))
    A.I("v_rcp_f32", v(d), v(t))

class FFN:
    S_WS = 8; S_W = 76
    sJ, sWV, sK1, sK2, sT0, sT1, sW1K = 67, 68, 69, 70, 71, 72, 73
    LG, LU, LD, LX = 32768, 65536, 98304, 131072
    def __init__(self, A, ldmod="", stmod="", poll=False, wmod=""):
        self.wmod = wmod; self.A = A; self.ldmod = ldmod; self.stmod = stmod; self.poll = poll

    def stage(self, spart=None, parts=(0, 4, 8)):
        A = self.A
        L, T, U = 1, 2, 3
        ls = [A.newlabel("part") for _ in range(3)]
        def part(i):
            if spart is None: return
            if i: A.label(ls[i - 1])
            if i < 3:
                A.I("s_cmp_lg_u32", s(spart), parts[i])
                A.I("s_cbranch_scc1", ls[i])
        A.I("v_lshrrev_b32", v(T), 6, v(0))
        A.I("v_readfirstlane_b32", s(self.sWV), v(T))
        A.I("v_and_b32", v(L), 63, v(0))
        A.I("s_lshl_b32", s(self.sW1K), s(self.sWV), 10)
        A.I("v_lshrrev_b32", v(T), 2, v(L))
        A.I("s_lshl_b32", s(self.sT0), s(self.sWV), 4)
        A.I("v_add_u32", v(T), s(self.sT0), v(T))
        A.I("s_movk_i32", s(self.sT0), 3584)
        A.I("v_mul_lo_u32", v(T), v(T), s(self.sT0))
        A.I("v_and_b32", v(U), 3, v(L))
        A.I("v_lshl_add_u32", v(4), v(U), 4, v(T))
        for karg, lds in ((72, self.LG), (80, self.LU)):
            part((karg - 72) // 8)
            srd(A, self.S_W, karg, 512 * 3584)
            for i in range(8):
                A.I("s_lshl_b32", s(self.sT0), s(self.sJ), 6)
                A.I("s_add_u32", s(self.sT0), s(self.sT0), hex(64 * i * 3584))
                A.I("s_add_u32", "m0", s(self.sW1K), hex(lds + 4096 * i))
                A.I("buffer_load_dwordx4", v(4), s(self.S_W, 4), s(self.sT0), mods=mods("offen", self.wmod, "lds"))
        part(2)
        srd(A, self.S_W, 88, 1792 * 1024)
        A.I("v_lshlrev_b32", v(5), 4, v(L))
        A.I("v_add_u32", v(5), s(self.sW1K), v(5))
        for i in range(8):
            A.I("s_lshl_b32", s(self.sT0), s(self.sJ), 15)
            A.I("s_add_u32", s(self.sT0), s(self.sT0), 4096 * i)
            A.I("s_add_u32", "m0", s(self.sW1K), hex(self.LD + 4096 * i))
            A.I("buffer_load_dwordx4", v(5), s(self.S_W, 4), s(self.sT0), mods=mods("offen", self.wmod, "lds"))
        part(3)

    def select(self, srnd=None, lim=240):
        top2(self.A, self.S_WS, self.sK1, self.sK2, self.ldmod, self.LX + 1024, tb=16, poll=self.poll, srnd=srnd, lim=lim)
        self.A.I("s_barrier")

    def reselect(self, sleep=1, ksp=0):
        A = self.A
        sK1, sK2, sT0, sT1 = self.sK1, self.sK2, self.sT0, self.sT1
        K, C_, T, U, AD = 20, 24, 28, 29, 30
        lp = A.newlabel("rsel"); ld = A.newlabel("rseld"); le = A.newlabel("rsele"); lw = A.newlabel("rselw")
        l2 = A.newlabel("rack"); l3 = A.newlabel("rackd")
        def red(op, X):
            A.I(f"v_{op}3_u32", v(T), v(X), v(X + 1), v(X + 2))
            A.I(f"v_{op}_u32", v(T), v(T), v(X + 3))
        def load(X):
            if not ksp: return A.I("buffer_load_dwordx4", v(X, 4), v(AD), s(self.S_WS, 4), s(sT0), mods="offen sc1")
            A.I("buffer_load_dword", v(X + 3), v(AD + 1), s(self.S_WS, 4), s(sT0), mods="offen sc1")
            A.I("buffer_load_dwordx3", v(X, 3), v(AD), s(self.S_WS, 4), s(sT0), mods="offen sc1")
        A.I("v_mul_u32_u24", v(AD), 12 if ksp else 16, v(0))
        A.I("v_lshlrev_b32", v(AD + 1), ksp, v(0))
        A.I("v_add_u32", v(AD + 1), hex(CT_KEYS - CT_KEYE), v(AD + 1))
        A.I("v_mov_b32", v(U), hex(self.LX + 1024))
        A.I("s_cmp_lg_u32", s(sGW), 0)
        A.I("s_cbranch_scc1", lw)
        A.I("s_mov_b32", s(sT0), hex(WS_CTRL + CT_KEYE))
        A.I("s_mov_b32", s(sT1), 0)
        A.label(lp)
        load(K)
        A.I("s_waitcnt", "vmcnt(0)")
        red("min", K)
        A.I("v_cmp_eq_u32", "vcc", 0, v(T))
        A.I("s_cbranch_vccz", ld)
        A.I("s_sleep", sleep)
        A.I("s_add_u32", s(sT1), s(sT1), 1)
        A.I("s_cmp_lt_u32", s(sT1), hex(POLL_MAX))
        A.I("s_cbranch_scc1", lp)
        A.label(ld)
        A.reset_haz()
        red("max", K)
        A.I("v_cmp_lt_u32", "vcc", s(sK2), v(T))
        A.I("s_cbranch_vccz", le)
        A.I("s_mov_b32", s(sT0), hex(WS_KEY + EARLY * 4))
        A.I("v_lshlrev_b32", v(AD + 1), 2, v(0))
        A.I("v_add_u32", v(AD + 1), 768, v(AD + 1))
        A.label(l2)
        load(C_)
        A.I("s_add_u32", s(sT1), s(sT1), 1)
        A.I("s_waitcnt", "vmcnt(0)")
        for i in range(4): A.I("v_sub_u32", v(C_ + i), v(K + i), v(C_ + i))
        red("max", C_)
        A.I("v_cmp_lt_u32", "vcc", s(sK2), v(T))
        A.I("s_cbranch_vccz", l3)
        A.I("s_cmp_lt_u32", s(sT1), hex(POLL_MAX))
        A.I("s_cbranch_scc1", l2)
        A.label(l3)
        A.reset_haz()
        red("max", K)
        full_reduce(A, "v_max_u32", T, U)
        A.I("v_readfirstlane_b32", s(sT0), v(T))
        for i in range(4):
            A.I("v_cmp_ne_u32", "vcc", s(sT0), v(K + i))
            A.I("v_cndmask_b32", v(K + i), 0, v(K + i), "vcc")
        red("max", K)
        full_reduce(A, "v_max_u32", T, U)
        A.I("v_readfirstlane_b32", s(sT1), v(T))
        A.I("s_max_u32", s(sK2), s(sK2), s(sT1))
        A.I("s_min_u32", s(sT1), s(sT0), s(sK1))
        A.I("s_max_u32", s(sK2), s(sK2), s(sT1))
        A.I("s_max_u32", s(sK1), s(sK1), s(sT0))
        A.I("v_mov_b32", v(U), hex(self.LX + 1024))
        A.label(le)
        A.reset_haz()
        A.I("v_mov_b32", v(K), s(sK1))
        A.I("v_mov_b32", v(K + 1), s(sK2))
        A.I("ds_write_b64", v(U), v(K, 2))
        A.I("s_waitcnt", "lgkmcnt(0)")
        A.label(lw)
        A.I("s_barrier")
        A.I("ds_read_b64", v(K, 2), v(U))
        A.I("s_waitcnt", "lgkmcnt(0)")
        A.I("v_readfirstlane_b32", s(sK1), v(K))
        A.I("v_readfirstlane_b32", s(sK2), v(K + 1))
        A.nop(4)

    def compute(self):
        A = self.A
        sK1, sK2, sT0, sT1 = self.sK1, self.sK2, self.sT0, self.sT1
        L, G, C, T, U, R = 1, 2, 3, 4, 5, 6
        A.I("v_and_b32", v(L), 63, v(0))
        A.I("v_lshrrev_b32", v(G), 4, v(L))
        A.I("v_and_b32", v(C), 15, v(L))
        A.I("v_lshrrev_b32", v(R), 2, v(C))
        A.I("s_and_b32", s(sT0), s(sK1), 2047)
        A.I("s_sub_u32", s(sT0), 2047, s(sT0))
        A.I("s_and_b32", s(sT1), s(sK2), 2047)
        A.I("s_sub_u32", s(sT1), 2047, s(sT1))
        A.I("v_and_b32", v(T), 1, v(C))
        A.I("v_cmp_eq_u32", "vcc", 0, v(T))
        A.I("v_mov_b32", v(T), s(sT0))
        A.I("v_mov_b32", v(U), s(sT1))
        A.I("v_cndmask_b32", v(T), v(U), v(T), "vcc")
        A.I("v_lshlrev_b32", v(T), 10, v(T))
        A.I("v_lshl_add_u32", v(T), v(G), 4, v(T))
        XA = 32
        A.I("s_mov_b32", s(sT0), hex(WS_HN))
        for ks in range(16):
            A.I("buffer_load_dwordx4", v(XA + 4 * ks, 4), v(T), s(self.S_WS, 4), s(sT0), mods=mods("offen", off(64 * ks), self.ldmod))
        A.I("v_lshl_add_u32", v(T), v(G), 3, v(R))
        A.I("v_lshlrev_b32", v(T), 6, v(T))
        A.I("v_and_b32", v(U), 3, v(C))
        A.I("v_lshl_add_u32", v(T), v(U), 3, v(T))
        A.I("s_lshr_b32", s(sT0), s(self.sWV), 1)
        A.I("s_lshl_b32", s(sT0), s(sT0), 15)
        A.I("s_and_b32", s(sT1), s(self.sWV), 1)
        A.I("s_lshl_b32", s(sT1), s(sT1), 5)
        A.I("s_add_u32", s(sT0), s(sT0), s(sT1))
        A.I("s_add_u32", s(sT0), s(sT0), hex(self.LG))
        A.I("v_add_u32", v(7), s(sT0), v(T))
        WB = 96
        for ks in range(16):
            for q in range(2):
                A.I("ds_read_b64_tr_b16", v(WB + 4 * ks + 2 * q, 2), v(7), mods=off(ks * 2048 + q * 256))
            if ks % 4 == 3: A.I("s_waitcnt", "lgkmcnt(0)")
        A.I("s_waitcnt", "vmcnt(0)")
        D = 8
        for ks in range(16):
            A.I(MF, v(D, 4), v(XA + 4 * ks, 4), v(WB + 4 * ks, 4), 0 if ks == 0 else v(D, 4))
        for r in range(2):
            bf16r(A, D + r, D + r)
        lu = A.newlabel("ffn_up")
        A.I("s_cmp_ge_u32", s(self.sWV), 2)
        A.I("s_cbranch_scc1", lu)
        for r in range(2):
            sigmoid(A, 12, D + r, 13)
            A.I("v_mul_f32", v(D + r), v(12), v(D + r))
            bf16r(A, D + r, D + r)
        A.barrier_haz()
        A.label(lu)
        A.I("s_lshr_b32", s(sT0), s(self.sWV), 1)
        A.I("s_lshl_b32", s(sT0), s(sT0), 8)
        A.I("s_and_b32", s(sT1), s(self.sWV), 1)
        A.I("s_lshl_b32", s(sT1), s(sT1), 6)
        A.I("s_add_u32", s(sT0), s(sT0), s(sT1))
        A.I("s_add_u32", s(sT0), s(sT0), hex(self.LX))
        A.I("v_lshlrev_b32", v(T), 2, v(C))
        A.I("v_add_u32", v(T), s(sT0), v(T))
        A.I("ds_write_b32", v(T), v(D))
        A.I("ds_write_b32", v(T), v(D + 1), mods="offset:128")
        A.I("s_waitcnt", "lgkmcnt(0)")
        A.I("s_barrier")
        A.I("v_and_b32", v(T), 1, v(C))
        A.I("v_lshlrev_b32", v(T), 7, v(T))
        A.I("v_lshl_add_u32", v(T), v(G), 5, v(T))
        A.I("v_add_u32", v(T), hex(self.LX), v(T))
        GG, UU = 32, 40
        A.I("ds_read_b128", v(GG, 4), v(T))
        A.I("ds_read_b128", v(GG + 4, 4), v(T), mods="offset:16")
        A.I("ds_read_b128", v(UU, 4), v(T), mods="offset:256")
        A.I("ds_read_b128", v(UU + 4, 4), v(T), mods="offset:272")
        A.I("v_lshl_add_u32", v(U), v(G), 3, v(R))
        A.I("v_lshlrev_b32", v(U), 10, v(U))
        A.I("v_and_b32", v(7), 3, v(C))
        A.I("v_lshl_add_u32", v(U), v(7), 3, v(U))
        A.I("s_lshl_b32", s(sT0), s(self.sWV), 8)
        A.I("s_add_u32", s(sT0), s(sT0), hex(self.LD))
        A.I("v_add_u32", v(7), s(sT0), v(U))
        A.I("s_waitcnt", "lgkmcnt(0)")
        for t in range(8):
            for q in range(2):
                A.I("ds_read_b64_tr_b16", v(WB + 4 * t + 2 * q, 2), v(7), mods=off(t * 32 + q * 4096))
            if t == 3: A.I("s_waitcnt", "lgkmcnt(0)")
        for i in range(8):
            A.I("v_mul_f32", v(GG + i), v(GG + i), v(UU + i))
        HA = 48
        for i in range(4):
            A.I("v_cvt_pk_bf16_f32", v(HA + i), v(GG + 2 * i), v(GG + 2 * i + 1))
        A.I("s_waitcnt", "lgkmcnt(0)")
        Y = 56
        for t in range(8):
            A.I(MF, v(Y + 4 * t, 4), v(HA, 4), v(WB + 4 * t, 4), 0)
        A.I("v_cmp_eq_u32", "vcc", 0, v(G))
        A.I("v_lshlrev_b32", v(T), 11, v(G))
        A.I("v_lshl_add_u32", v(T), v(C), 2, v(T))
        A.I("s_lshl_b32", s(sT0), s(self.sJ), 12)
        A.I("s_lshl_b32", s(sT1), s(self.sWV), 9)
        A.I("s_add_u32", s(sT0), s(sT0), s(sT1))
        A.I("s_add_u32", s(sT0), s(sT0), hex(WS_FY))
        for t in range(8):
            A.I("v_cndmask_b32", v(Y + 4 * t), v(Y + 4 * t + 1), v(Y + 4 * t), "vcc")
        A.I("s_mov_b32", "exec_hi", 0)
        for t in range(8):
            A.I("buffer_store_dword", v(Y + 4 * t), v(T), s(self.S_WS, 4), s(sT0), mods=mods("offen", off(64 * t), self.stmod))
        A.I("s_mov_b64", "exec", -1)

class Final:
    S_WS = 8; S_OUT = 16
    NWG = 8
    sK1, sK2, sT0, sT1 = 69, 70, 71, 72
    def __init__(self, A, ldmod="sc1"):
        self.A = A; self.ldmod = ldmod

    def pre(self, sI):
        A = self.A
        sK1, sK2, sT0, sT1 = self.sK1, self.sK2, self.sT0, self.sT1
        srd(A, self.S_OUT, 96, 2 << 20)
        L, U, KEY, RO, FO = 3, 4, 5, 6, 7
        A.I("v_and_b32", v(L), 63, v(0))
        A.I("s_cmp_lt_u32", s(sGW), 2)
        A.I("s_cselect_b32", s(sT0), s(sK1), s(sK2))
        A.I("v_mov_b32", v(KEY), s(sT0))
        A.I("s_and_b32", s(sT0), s(sT0), 2047)
        A.I("s_sub_u32", s(sT0), 2047, s(sT0))
        A.I("s_lshl_b32", s(sT0), s(sT0), 10)
        A.I("s_lshl_b32", s(sT1), s(sI), 1)
        A.I("s_and_b32", s(sPT0), s(sGW), 1)
        A.I("s_add_u32", s(sT1), s(sT1), s(sPT0))
        A.I("s_lshl_b32", s(sPT0), s(sT1), 6)
        A.I("s_add_u32", s(sT0), s(sT0), s(sPT0))
        A.I("v_and_b32", v(U), 7, v(L))
        A.I("v_lshlrev_b32", v(RO), 3, v(U))
        A.I("v_add_u32", v(RO), s(sT0), v(RO))
        A.I("v_lshrrev_b32", v(FO), 3, v(L))
        A.I("v_lshlrev_b32", v(FO), 12, v(FO))
        A.I("v_lshl_add_u32", v(FO), v(U), 4, v(FO))
        A.I("s_lshl_b32", s(sT1), s(sT1), 7)
        A.I("s_lshr_b32", s(sPT0), s(sGW), 1)
        A.I("s_lshl_b32", s(sPT0), s(sPT0), 11)
        A.I("s_add_u32", s(sT1), s(sT1), s(sPT0))
        A.I("v_add_u32", v(FO), s(sT1), v(FO))
        A.I("s_mov_b32", s(sT0), hex(WS_H))
        A.I("s_mov_b32", s(sT1), hex(WS_HN))
        A.I("buffer_load_dwordx2", v(8, 2), v(RO), s(self.S_WS, 4), s(sT0), mods=mods("offen", self.ldmod))
        A.I("buffer_load_dwordx2", v(10, 2), v(RO), s(self.S_WS, 4), s(sT1), mods=mods("offen", self.ldmod))
        A.I("v_and_b32", v(KEY), "0xffff0000", v(KEY))
        A.I("v_ashrrev_i32", v(U), 31, v(KEY))
        A.I("v_not_b32", v(U), v(U))
        A.I("v_or_b32", v(U), "0x80000000", v(U))
        A.I("v_xor_b32", v(KEY), v(KEY), v(U))
        A.I("v_and_b32", v(KEY), "0xffff0000", v(KEY))
        sigmoid(A, 22, KEY, 23)
        bf16r(A, 22, 22)

    def post(self):
        A = self.A
        sT0 = self.sT0
        RO, FO, P = 6, 7, 32
        A.I("s_mov_b32", s(sT0), hex(WS_FY))
        for j in range(NFW // 8):
            A.I("buffer_load_dwordx4", v(P + 4 * j, 4), v(FO), s(self.S_WS, 4), s(sT0), mods=mods("offen", self.ldmod))
            A.I("s_add_u32", s(sT0), s(sT0), 32768)
        Hh, N = 12, 16
        A.I("s_waitcnt", f"vmcnt({NFW // 8})")
        for i in range(2):
            A.I("v_lshlrev_b32", v(Hh + 2 * i), 16, v(8 + i))
            A.I("v_and_b32", v(Hh + 2 * i + 1), "0xffff0000", v(8 + i))
            A.I("v_lshlrev_b32", v(N + 2 * i), 16, v(10 + i))
            A.I("v_and_b32", v(N + 2 * i + 1), "0xffff0000", v(10 + i))
        A.I("s_waitcnt", "vmcnt(0)")
        for j in range(1, NFW // 8):
            A.I("v_pk_add_f32", v(P, 2), v(P, 2), v(P + 4 * j, 2))
            A.I("v_pk_add_f32", v(P + 2, 2), v(P + 2, 2), v(P + 4 * j + 2, 2))
        for i in range(4):
            A.I("v_add_f32_dpp", v(P + i), v(P + i), v(P + i), mods="row_ror:8 row_mask:0xf bank_mask:0xf")
        for i in range(4):
            xor_reduce(A, "v_add_f32", P + i, 24)
        for i in range(4):
            bf16r(A, P + i, P + i)
            A.I("v_mul_f32", v(P + i), v(22), v(P + i))
            bf16r(A, P + i, P + i)
            A.I("v_add_f32", v(P + i), v(N + i), v(P + i))
            bf16r(A, P + i, P + i)
            A.I("v_add_f32", v(P + i), v(Hh + i), v(P + i))
        A.I("v_cvt_pk_bf16_f32", v(200), v(P), v(P + 1))
        A.I("v_cvt_pk_bf16_f32", v(201), v(P + 2), v(P + 3))
        A.I("v_mov_b32", v(202), v(RO))
        for i in range(2):
            A.I("v_pk_add_f32", v(Hh + 2 * i, 2), v(Hh + 2 * i, 2), v(N + 2 * i, 2))
            A.I("v_cvt_pk_bf16_f32", v(204 + i), v(Hh + 2 * i), v(Hh + 2 * i + 1))

    def store(self, src=200, mod=""):
        A = self.A
        A.I("s_mov_b32", "exec_lo", "0xff")
        A.I("s_mov_b32", "exec_hi", 0)
        A.I("buffer_store_dwordx2", v(src, 2), v(202), s(self.S_OUT, 4), 0, mods=mods("offen", mod))
        A.I("s_mov_b64", "exec", -1)
```

```python
import sys
from asmgen import *
from layout import *
from common import *
import chain6 as C
import phase1 as P1
import phase2 as P2
import tail as TL

HEAD = open("sequential_preLN__memory_aug_recurrent_mem_tr__moe_arch_mod__prompt.s.ref").read().split("; Override launch")[0]

KNAME = "sequential_preLN__memory_aug_recurrent_mem_tr__moe_arch_mod__prompt_kernel"
DB_GARR, DB_MODE, DB_CTRL, DB_TICK, DB_XCD = 32, 36, 40, 44, 64
FB_OFF = 0x7000000

def entry_warm(A, mats=(0, 1, 2, 3)):
    A.I("s_load_dwordx4", s(20, 4), s(0, 2), 16)
    A.I("s_load_dwordx4", s(24, 4), s(0, 2), 32)
    A.I("v_lshlrev_b32", v(3), 6, v(0))
    A.I("s_lshl_b32", s(28), s(2), 14)
    A.I("s_cmp_eq_u32", s(84), 0)
    A.I("s_cselect_b32", s(14), 0, hex(4 << 20))
    A.I("s_mov_b32", s(15), "0x20000")
    A.I("s_waitcnt", "lgkmcnt(0)")
    for i in mats:
        A.I("s_mov_b32", s(12), s(20 + 2 * i))
        A.I("s_and_b32", s(13), s(21 + 2 * i), "0xffff")
        A.I("buffer_load_dword", v(255), v(3), s(12, 4), s(28), mods="offen")
    return len(mats)

def staged_warm(A, stages, depth, first=96):
    l = A.newlabel("nowarm")
    A.I("s_sub_u32", s(28), s(sGB), first)
    A.I("s_cmp_ge_u32", s(28), 128)
    A.I("s_cbranch_scc1", l)
    A.I("s_load_dwordx4", s(20, 4), s(0, 2), 16)
    A.I("s_load_dwordx4", s(24, 4), s(0, 2), 32)
    restore_tid(A)
    A.I("v_lshlrev_b32", v(3), 6, v(0))
    A.I("s_lshr_b32", s(29), s(28), 5)
    A.I("s_lshl_b32", s(29), s(29), 19)
    A.I("s_lshl_b32", s(28), s(28), 14)
    A.I("s_add_u32", s(29), s(29), s(28))
    A.I("s_mov_b32", s(14), hex(4 << 20))
    A.I("s_mov_b32", s(15), "0x20000")
    A.I("s_waitcnt", "lgkmcnt(0)")
    for n, x in enumerate(stages.split()):
        m, b = "qkvo".index(x[0]), int(x[1])
        A.I("s_mov_b32", s(12), s(20 + 2 * m))
        A.I("s_and_b32", s(13), s(21 + 2 * m), "0xffff")
        A.I("s_add_u32", s(30), s(28 if m == 3 else 29), hex(b << (21 if m == 3 else 19)))
        if n >= depth: A.I("s_waitcnt", f"vmcnt({depth - 1})")
        A.I("buffer_load_dword", v(255), v(3), s(12, 4), s(30), mods="offen")
    A.label(l)
    A.reset_haz()

def entry_code(A):
    A.I("v_lshlrev_b32", v(3), 6, v(0))
    A.I("s_lshr_b32", s(28), s(2), 3)
    A.I("s_mul_i32", s(29), s(28), 52)
    A.I("s_lshr_b32", s(29), s(29), 8)
    A.I("s_mul_i32", s(29), s(29), 5)
    A.I("s_sub_u32", s(28), s(28), s(29))
    A.I("s_min_u32", s(28), s(28), 4)
    A.I("s_lshl_b32", s(28), s(28), 14)
    code_touch(A, KNAME, 30, 3, 254, back=True, extra=s(28))
    return 1

def bcast_atomic(A, off_s_or_imm, sdst, lds_slot, mid=None):
    l = A.newlabel("at")
    A.I("s_cmp_lg_u32", s(sGW), 0)
    A.I("s_cbranch_scc1", l)
    A.I("s_mov_b64", "exec", 1)
    A.I("v_mov_b32", v(2), 1)
    A.I("buffer_atomic_add", v(2), "off", s(S_DBGG, 4), off_s_or_imm, mods="sc0")
    A.I("s_mov_b64", "exec", -1)
    A.label(l)
    l = A.newlabel("at2")
    nm = sum(m(A) for m in mid or [])
    A.I("s_cmp_lg_u32", s(sGW), 0)
    A.I("s_cbranch_scc1", l)
    A.I("s_mov_b64", "exec", 1)
    A.I("v_mov_b32", v(1), lds_slot)
    A.I("s_waitcnt", f"vmcnt({nm})")
    A.I("ds_write_b32", v(1), v(2))
    A.I("s_waitcnt", "lgkmcnt(0)")
    A.I("s_mov_b64", "exec", -1)
    A.label(l)
    A.I("s_barrier")
    A.I("v_mov_b32", v(1), lds_slot)
    A.I("ds_read_b32", v(2), v(1))
    A.I("s_waitcnt", "lgkmcnt(0)")
    A.I("v_readfirstlane_b32", s(sdst), v(2))

def wait_mode(A, sdst, vt):
    lp = A.newlabel("mode"); ld = A.newlabel("moded"); lf = A.newlabel("modef")
    A.I("s_mov_b32", s(sPT0), 0)
    A.label(lp)
    A.I("buffer_load_dwordx2", v(vt, 2), "off", s(S_DBGG, 4), 0, mods=f"offset:{DB_MODE} sc1")
    A.I("s_waitcnt", "vmcnt(0)")
    A.I("v_readfirstlane_b32", s(sdst), v(vt))
    A.I("v_readfirstlane_b32", s(sPT1), v(vt + 1))
    A.I("s_min_u32", s(sPT1), s(sPT1), s(sdst))
    A.I("s_cmp_lg_u32", s(sPT1), 0)
    A.I("s_cbranch_scc1", ld)
    A.I("s_sleep", 4)
    A.I("s_add_u32", s(sPT0), s(sPT0), 1)
    A.I("s_cmp_lg_u32", s(sPT0), hex(1 << 8))
    A.I("s_cbranch_scc1", lf)
    A.I("v_mov_b32", v(vt), 2)
    A.I("v_mov_b32", v(vt + 1), 0)
    A.I("s_mov_b64", "exec", 1)
    A.I("buffer_atomic_cmpswap", v(vt, 2), "off", s(S_DBGG, 4), 0, mods=f"offset:{DB_MODE}")
    A.I("s_mov_b64", "exec", -1)
    A.label(lf)
    A.I("s_cmp_lt_u32", s(sPT0), hex(POLL_MAX))
    A.I("s_cbranch_scc1", lp)
    A.label(ld)
    A.reset_haz()

def k_mega(A, force_fb=False, **kw):
    name = KNAME
    kernel_header(A, name)
    sX, sR, sG, sMODE = 84, 85, 86, 87
    A.I("s_cmp_ge_u32", s(2), 256)
    A.I("s_cbranch_scc1", "L_exit")
    if PROF[0]: A.I("s_memrealtime", s(82, 2))
    A.I("s_load_dwordx2", s(8, 2), s(0, 2), 112)
    A.I("s_load_dwordx2", s(S_DBGG, 2), s(0, 2), 104)
    A.I("s_load_dwordx8", s(60, 8), s(0, 2), 16)
    A.I("s_load_dwordx2", s(P1.S_X, 2), s(0, 2), 0)
    A.I("v_lshrrev_b32", v(1), 6, v(0))
    A.I("v_readfirstlane_b32", s(sGW), v(1))
    A.I("s_getreg_b32", s(sX), "hwreg(HW_REG_XCC_ID)")
    A.I("s_and_b32", s(sX), s(sX), 7)
    A.I("s_lshr_b32", s(sR), s(2), 3)
    A.I("s_mov_b32", s(sG), s(sGW))
    A.I("s_cmp_eq_u32", s(2), kw.get('zwg', 7))
    A.I("s_cbranch_scc1", "L_zero")
    A.label("L_noz")
    A.reset_haz()
    A.I("s_cmp_lg_u32", s(sX), 0)
    A.I("s_cbranch_scc1", "L_other")

    def entry_fin():
        for sd, n in ((8, 0x10000000), (S_DBGG, 256)):
            A.I("s_and_b32", s(sd + 1), s(sd + 1), "0xffff")
            A.I("s_mov_b32", s(sd + 2), hex(n))
            A.I("s_mov_b32", s(sd + 3), "0x20000")
        A.I("s_mov_b32", s(sMODE), 0)
        l = A.newlabel("reg")
        A.I("s_cmp_lg_u32", s(sG), 0)
        A.I("s_cbranch_scc1", l)
        A.I("s_lshl_b32", s(sPT1), s(sX), 4)
        A.I("s_lshl_b32", s(sPT0), 1, s(sR))
        A.I("v_mov_b32", v(250), s(sPT0))
        A.I("v_mov_b32", v(251), 256)
        A.I("s_mov_b64", "exec", 1)
        A.I("buffer_atomic_add_x2", v(250, 2), "off", s(S_DBGG, 4), s(sPT1), mods=f"offset:{DB_XCD}")
        A.I("s_mov_b64", "exec", -1)
        A.I("s_mov_b32", s(sG), 1)
        A.label(l)

    def zero_block():
        A.label("L_zero")
        A.reset_haz()
        A.I("s_waitcnt", "lgkmcnt(0)")
        entry_fin()
        for i in range(4):
            A.I("v_mov_b32", v(4 + i), 0)
        A.I("v_lshlrev_b32", v(1), 4, v(0))
        for i in range(CT_SIZE // 4096):
            A.I("s_mov_b32", s(sPT1), hex(WS_CTRL + i * 4096))
            A.I("buffer_store_dwordx4", v(4, 4), v(1), s(8, 4), s(sPT1), mods="offen sc1")
        A.I("s_waitcnt", "vmcnt(0)")
        A.I("s_barrier")
        set_flag(A, S_DBGG, DB_CTRL, 2)
        A.I("s_cmp_lg_u32", s(sGW), 0)
        A.I("s_cbranch_scc1", "L_noz")
        A.I("s_mov_b64", "exec", "0xff")
        A.I("s_mov_b32", s(sPT0), 0)
        A.label("L_count")
        A.I("buffer_load_dwordx2", v(2, 2), v(1), s(S_DBGG, 4), 0, mods=f"offen offset:{DB_XCD} sc1")
        A.I("s_waitcnt", "vmcnt(0)")
        A.I("v_cmp_le_u32", "vcc", 32 << 8, v(3))
        A.I("v_add_u32", v(2), 1, v(2))
        A.I("v_xor_b32", v(3), (33 if force_fb else 32) << 8, v(3))
        A.I("v_or_b32", v(2), v(2), v(3))
        A.I("s_mov_b32", s(4), "vcc_lo")
        A.I("v_cmp_eq_u32", "vcc", 0, v(2))
        A.I("v_mov_b32", v(2), 1)
        A.I("s_nop", 1)
        A.I("s_cmp_eq_u32", "vcc_lo", "0xff")
        A.I("s_cbranch_scc1", "L_propose")
        A.I("v_mov_b32", v(2), 2)
        A.I("s_andn2_b32", s(4), s(4), "vcc_lo")
        A.I("s_cbranch_scc1", "L_propose")
        A.I("s_sleep", 2)
        A.I("s_add_u32", s(sPT0), s(sPT0), 1)
        A.I("s_cmp_lt_u32", s(sPT0), hex(1 << 8))
        A.I("s_cbranch_scc1", "L_count")
        A.label("L_propose")
        A.I("v_mov_b32", v(3), 0)
        A.I("s_mov_b64", "exec", 1)
        A.I("buffer_atomic_cmpswap", v(2, 2), "off", s(S_DBGG, 4), 0, mods=f"offset:{DB_MODE}")
        A.I("s_mov_b64", "exec", -1)
        A.I("s_branch", "L_noz")

    def kv_wait(ch, first=True, mask=0x00010001):
        t0, t1 = (1, 2) if first else (8, 9)
        A.I("v_lshrrev_b32", v(t0), 4, v(C.vL16))
        A.I("v_and_b32", v(t1), 15, v(t0))
        A.I("v_lshrrev_b32", v(t0), 4, v(t0))
        A.I("v_lshlrev_b32", v(t0), 11, v(t0))
        A.I("v_lshl_add_u32", v(t0), v(t1), 2, v(t0))
        A.I("s_lshl_b32", s(C.sT0), s(C.sH), 6)
        A.I("s_add_u32", s(C.sT0), s(C.sT0), hex(WS_CTRL + CT_F1))
        wait_words(A, C.S_WS, t0, s(C.sT0), 32, 1, t1, sleep=8, barrier=False, mask=mask)

    def chain_role(fast):
        def fin():
            if fast: entry_fin()
            for i in range(4):
                A.I("s_mov_b32", s(C.S_DBG + i), s(S_DBGG + i))
            A.I("s_mov_b32", s(sPID), s(C.sH))
            ts(A, 0, 24)
            if PROF[0]:
                A.I("s_lshl_b32", s(89), s(sPID), 8)
                A.I("s_add_u32", s(89), s(89), hex(WS_TS + 4 * 5))
                A.I("v_mov_b32", v(24), s(82))
                A.I("buffer_store_dword", v(24), "off", s(8, 4), s(89))
                A.I("v_mov_b32", v(24), s(2))
                A.I("buffer_store_dword", v(24), "off", s(8, 4), s(89), mods="offset:4")
        def pre(ch):
            ts(A, 1, 3)
            if fast:
                wait_mode(A, sMODE, 2)
                A.I("s_cmp_lg_u32", s(sMODE), 1)
                A.I("s_cbranch_scc1", "L_fallback")
            kv_wait(ch)
            ts(A, 2, 3)
        ch = C.Chain(A, sc="" if fast else "sc1", tag="f" if fast else "s", wsoff=0 if fast else FB_OFF, cbar=4 if fast else 8, pre_start=pre, kvcheck=True, gate=DB_MODE, wptr=fast, fin=fin, **kw)
        ch.lane_consts()
        ch.load_weights()
        if PROF[0] and kw.get('marks'):
            A.I("s_lshl_b32", s(89), s(sPID), 8)
            A.I("s_lshl_b32", s(78), s(sGW), 5)
            A.I("s_add_u32", s(89), s(89), s(78))
            A.I("s_add_u32", s(89), s(89), hex(WS_TS + 4 * 32))
            for i in range(5):
                A.I("v_mov_b32", v(3), s((68, 70, 72, 74, 80)[i]))
                A.I("buffer_store_dword", v(3), "off", s(8, 4), s(89), mods=f"offset:{4 * i}")
            A.I("v_mov_b32", v(3), s(82))
            A.I("buffer_store_dword", v(3), "off", s(8, 4), s(89), mods=f"offset:{4 * 5}")
        ch.prologue()
        ts(A, 3, 3)
        if PROF[0]:
            A.I("s_memtime", s(78, 2))
            A.I("s_waitcnt", "lgkmcnt(0)")
        ch.step_loop()
        if PROF[0]: A.I("s_mov_b32", s(sPID), s(C.sH))
        if not kw.get('lts'): ts(A, 4, 3)
        if PROF[0]:
            A.I("s_memtime", s(80, 2))
            A.I("s_lshl_b32", s(C.sT0), s(C.sH), 2)
            A.I("s_add_u32", s(C.sT0), s(C.sT0), s(C.sWV))
            A.I("s_lshl_b32", s(C.sT0), s(C.sT0), 5)
            A.I("s_add_u32", s(C.sT0), s(C.sT0), hex(WS_TS + 0x100000))
            A.I("s_waitcnt", "lgkmcnt(0)")
            A.I("s_sub_u32", s(80), s(80), s(78))
            for i, r in enumerate((80, C.sNRM, C.sNRR, C.sNRF)):
                A.I("v_mov_b32", v(1), s(r))
                A.I("buffer_store_dword", v(1), "off", s(C.S_WS, 4), s(C.sT0), mods=f"offset:{4 * i}")
        if kw.get("wb"):
            l = A.newlabel("nowb")
            A.I("s_add_u32", s(C.sT0), s(C.sH), s(C.sWV))
            A.I("s_cmp_lg_u32", s(C.sT0), 0)
            A.I("s_cbranch_scc1", l)
            A.I("buffer_wbl2", mods="sc1")
            A.I("s_waitcnt", "vmcnt(0)")
            A.label(l)
        A.I("s_endpgm")
        return ch

    A.I("s_xor_b32", s(C.sH), s(sR), kw.get('hx', 0))
    chf = chain_role(True)
    chf.emit_ool()
    zero_block()
    A.label("L_fallback")
    A.reset_haz()
    A.I("s_mov_b32", s(sMODE), 2)
    A.I("s_waitcnt", "vmcnt(0) lgkmcnt(0)")
    A.I("s_barrier")
    restore_tid(A)
    A.I("s_mov_b32", s(sPT1), DB_TICK)
    bcast_atomic(A, s(sPT1), sR, 8)
    A.I("s_barrier")
    A.I("s_sub_u32", s(sGB), s(sR), 32)
    A.I("s_cmp_ge_u32", s(sR), 32)
    A.I("s_cbranch_scc1", "L_bulk")
    A.I("s_mov_b32", s(C.sH), s(sR))
    chs = chain_role(False)
    chs.emit_ool()
    A.label("L_bulk")
    A.reset_haz()
    P1.pointers(A)
    A.I("s_branch", "L_bulk2")
    A.raw(".p2align 7")
    A.label("L_other")
    A.reset_haz()
    A.I("s_sub_u32", s(sGB), s(sX), 1)
    A.I("s_lshl_b32", s(sGB), s(sGB), 5)
    A.I("s_add_u32", s(sGB), s(sGB), s(sR))
    if kw.get('bcode'):
        A.I("s_cmp_ge_u32", s(sR), kw['bcode'][0])
        A.I("s_cbranch_scc1", "L_nobc")
        A.I("v_lshlrev_b32", v(1), kw['bcode'][1], v(0))
        A.I("s_lshl_b32", s(sPT0), s(sR), 8 + kw['bcode'][1])
        code_touch(A, "L_bulk2", 4, 1, 255, extra=s(sPT0))
        A.label("L_nobc")
    A.I("s_waitcnt", "lgkmcnt(0)")
    entry_fin()
    A.label("L_bulk2")
    A.reset_haz()
    A.I("s_add_u32", s(sPID), s(sGB), 32)
    ts(A, 0)
    if kw.get('sw'): staged_warm(A, *kw['sw'])
    NURG = 3
    def pass_b():
        A.I("s_mov_b32", s(P1.sPASS), 1)
        A.I("s_and_b32", s(P1.sRB), s(sGB), 15)
        A.I("s_lshr_b32", s(P1.sCG), s(sGB), 4)
        A.I("s_mov_b32", s(P1.sSTR), 14)
        A.I("s_add_u32", s(P1.sT0), s(P1.sCG), 70)
        A.I("s_add_u32", s(P1.sT1), s(P1.sCG), 56)
        A.I("s_cmp_ge_u32", s(P1.sT1), 64)
        A.I("s_cselect_b32", s(P1.sT0), s(P1.sT1), s(P1.sT0))
        A.I("s_add_u32", s(P1.sT1), s(P1.sCG), 42)
        A.I("s_add_u32", s(P1.sT2), s(P1.sCG), 28)
        A.I("s_cmp_ge_u32", s(P1.sT2), 32)
        A.I("s_cselect_b32", s(P1.sT1), s(P1.sT2), s(P1.sT1))
        A.I("s_cmp_eq_u32", s(P1.sRB), NURG)
        A.I("s_cselect_b32", s(P1.sCG), s(P1.sT1), s(P1.sCG))
        A.I("s_cmp_lt_u32", s(P1.sRB), NURG)
        A.I("s_cselect_b32", s(P1.sCG), s(P1.sT0), s(P1.sCG))
    def pass_b2():
        A.I("s_mov_b32", s(P1.sPASS), 1)
        A.I("s_mul_i32", s(P1.sCG), s(sGB), 171)
        A.I("s_lshr_b32", s(P1.sCG), s(P1.sCG), 11)
        A.I("s_mul_i32", s(P1.sT0), s(P1.sCG), 12)
        A.I("s_sub_u32", s(P1.sRB), s(sGB), s(P1.sT0))
        A.I("s_add_u32", s(P1.sRB), s(P1.sRB), 4)
        A.I("s_mul_i32", s(P1.sT1), s(sGB), 683)
        A.I("s_lshr_b32", s(P1.sT1), s(P1.sT1), 11)
        A.I("s_mul_i32", s(P1.sT0), s(P1.sT1), 3)
        A.I("s_sub_u32", s(P1.sT0), s(sGB), s(P1.sT0))
        A.I("s_cmp_eq_u32", s(P1.sT0), 2)
        A.I("s_cselect_b32", s(P1.sT2), 10, 11)
        A.I("s_cmp_ge_u32", s(sGB), 192)
        A.I("s_cselect_b32", s(P1.sRB), s(P1.sT0), s(P1.sRB))
        A.I("s_cselect_b32", s(P1.sCG), s(P1.sT1), s(P1.sCG))
        A.I("s_cselect_b32", s(P1.sSTR), s(P1.sT2), 16)
        cover = set()
        for g in range(224):
            cg = g * 171 >> 11; rb = g - 12 * cg + 4; st = 16
            if g >= 192:
                cg = g * 683 >> 11; rb = g - 3 * cg; st = 10 if rb == 2 else 11
            for u in list(range(cg, 96, st)) + [(g >> 6, m) for m in range(g & 63, 96, 32 if g >= 192 else 1000)]:
                u = u if isinstance(u, tuple) else (rb, u)
                assert u not in cover
                cover.add(u)
        assert len(cover) == 16 * 96
    if kw.get('bal', True): pass_b = pass_b2
    A.I("s_mov_b32", s(P1.sPASS), 0)
    A.I("s_lshr_b32", s(P1.sRB), s(sGB), 6)
    A.I("s_and_b32", s(P1.sCG), s(sGB), 63)
    A.I("s_cmp_ge_u32", s(sGB), 192 if kw.get('bal', True) else 1000)
    A.I("s_cselect_b32", s(P1.sSTR), 32, 1000)
    A.label("L_p1go")
    def next_pass(LP):
        A.I("s_cmp_lg_u32", s(P1.sPASS), 0)
        A.I("s_cbranch_scc1", "L_p1done")
        if kw.get('pbw'):
            A.I("v_mov_b32", v(1), 4 if kw['pbw'] > 0 else 0)
            A.I("s_and_b32", s(P1.sT0), s(sGB), 15)
            A.I("s_lshl_b32", s(P1.sT0), s(P1.sT0), 7)
            A.I("s_add_u32", s(P1.sT0), s(P1.sT0), hex(WS_CTRL + CT_PROG))
            wait_words(A, 8, 1, s(P1.sT0), 1, 1, 2, sleep=abs(kw['pbw']))
        pass_b()
        A.I("s_branch", LP)
        A.label("L_p1done")
        A.reset_haz()
    def ffn_warm():
        l = A.newlabel("nofw")
        A.I("s_and_b32", s(P1.sT0), s(sGB), 3)
        A.I("s_add_u32", s(P1.sT0), s(P1.sT0), kw['fw'])
        A.I("s_cmp_lg_u32", s(P1.sT0), s(80))
        A.I("s_cbranch_scc1", l)
        A.I("s_load_dwordx4", s(48, 4), s(0, 2), 72)
        A.I("s_load_dwordx2", s(4, 2), s(0, 2), 88)
        A.I("v_lshlrev_b32", v(P1.vT), 3, v(P1.vL16))
        A.I("s_lshl_b32", s(P1.sT0), s(sGB), 13)
        A.I("s_waitcnt", "lgkmcnt(0)")
        for i in range(2):
            A.I("s_cmp_eq_u32", s(sGW), i)
            A.I("s_cselect_b64", s(4, 2), s(48 + 2 * i, 2), s(4, 2))
        A.I("s_and_b32", s(5), s(5), "0xffff")
        A.I("s_cmp_eq_u32", s(sGW), 3)
        A.I("s_cselect_b32", s(6), 0, 512 * 3584)
        A.I("s_mov_b32", s(7), "0x20000")
        for i in range(2): A.I("buffer_load_dword", v(143), v(P1.vT), s(4, 4), s(P1.sT0), mods=mods("offen", off(64 * i)))
        A.label(l)
    def pre_flag():
        l = A.newlabel("modeok")
        A.I("s_cmp_lg_u32", s(sMODE), 0)
        A.I("s_cbranch_scc1", l)
        if kw.get('mpre'):
            A.I("v_readfirstlane_b32", s(sPT0), v(140))
            A.I("v_readfirstlane_b32", s(sPT1), v(141))
            A.I("s_cmp_lg_u32", s(sPT1), 0)
            A.I("s_cselect_b32", s(sMODE), s(sPT0), 0)
            A.I("s_cmp_eq_u32", s(sMODE), 1)
            A.I("s_cbranch_scc1", l)
        wait_mode(A, sMODE, 140)
        A.I("s_cmp_lg_u32", s(sMODE), 1)
        A.I("s_cbranch_scc1", "L_fallback")
        A.label(l)
    P1.Phase1(A, xt=kw.get('xt'), rot=kw.get('krot'), spread=kw.get('spread'), wfrom=kw.get('wfrom', 0), xdrop=kw.get('xdrop'), rr=kw.get('rr'), trickle=kw.get('tr', 0), xmod=kw.get('xmod', ''), wmod=kw.get('bwm', ''), qmod=kw.get('qmod')).body(stmod="sc1", flags=True, pre_flag=pre_flag, warm_id=sGB, next_pass=next_pass, warm=kw.get('pwm', {}), unit_top=ffn_warm if kw.get('fw') else None,
        after_ln=(lambda: A.I("buffer_load_dwordx2", v(140, 2), "off", s(S_DBGG, 4), 0, mods=f"offset:{DB_MODE} sc1")) if kw.get('mpre') else None, sent=kw.get('sent', 15) if kw.get('kms') else None)
    ts(A, 2)
    restore_tid(A)
    if kw.get('gm') == 2:
        A.I("s_lshr_b32", s(sPT0), s(sGB), 4)
        A.I("s_lshl_b32", s(sPT0), s(sPT0), 2)
        A.I("s_mov_b32", s(4), hex(kw['gtab'] & 0xffffffff))
        A.I("s_mov_b32", s(5), hex(kw['gtab'] >> 32))
        A.I("s_lshr_b64", s(4, 2), s(4, 2), s(sPT0))
        A.I("s_and_b32", s(sPT0), s(4), 15)
        A.I("s_lshl_b32", s(sPT0), s(sPT0), 4)
        A.I("s_and_b32", s(sGB), s(sGB), 15)
        A.I("s_or_b32", s(sGB), s(sGB), s(sPT0))
        A.I("s_add_u32", s(sPID), s(sGB), 32)
        assert sorted(kw['gtab'] >> 4 * i & 15 for i in range(14)) == list(range(14))
    if kw.get('gm') == 1:
        A.I("s_bfe_u32", s(sPT0), s(sGB), hex(0x10004))
        A.I("s_mul_i32", s(sPT0), s(sPT0), 7)
        A.I("s_lshr_b32", s(sPT1), s(sGB), 5)
        A.I("s_add_u32", s(sPT0), s(sPT0), s(sPT1))
        A.I("s_lshl_b32", s(sPT0), s(sPT0), 4)
        A.I("s_and_b32", s(sGB), s(sGB), 15)
        A.I("s_or_b32", s(sGB), s(sGB), s(sPT0))
        A.I("s_add_u32", s(sPID), s(sGB), 32)
    A.I("s_and_b32", s(P2.sHP), s(sGB), 15)
    A.I("s_lshr_b32", s(P2.sSEG), s(sGB), 4)
    A.I("s_mov_b32", s(P2.sSTR), 14)
    fin = TL.Finisher(A, stmod="sc1", omod=kw.get('omod', "sc1"), home=(P2.vL16, 252, 236, 88), early=kw.get('ek'), thr=104 if kw.get('thr') else None, kf=kw.get('kf', 0), ksp=kw.get('kst', 0))
    ffn = TL.FFN(A, stmod="sc1", poll=True, wmod=kw.get('fwm', ""))
    def stage():
        l = A.newlabel("nostage")
        A.I("s_sub_u32", s(ffn.sJ), s(sGB), 128)
        A.I("s_cmp_ge_u32", s(ffn.sJ), NFW)
        A.I("s_cbranch_scc1", l)
        if not kw.get('nostage') and not kw.get('lst'): ffn.stage()
        A.label(l)
        A.reset_haz()
    def late_stage():
        l = A.newlabel("nostage")
        A.I("s_cmp_ge_u32", s(ffn.sJ), NFW)
        A.I("s_cbranch_scc1", l)
        restore_tid(A)
        ffn.stage(80)
        A.label(l)
        A.reset_haz()
    P2.Phase2(A, stmod=kw.get('pom', "sc1"), ldmod=kw.get('p2l', ""), gmod=kw.get('gmod', ""), por=kw.get('por'), wmod=kw.get('owm', ""), tmod=kw.get('ptm', "sc1"), progmask=0x11 if kw.get("flag0") else 0xff, sl=kw.get("sl", (8, 2)), kms=kw.get('kms'), pol=kw.get('pol'), smode=sMODE, um=kw.get('um'), half=kw.get('half'), xr=kw.get('xr'), poc=kw.get('poc'), quad=kw.get('quad'), pre=kw.get('pre'), pmod=kw.get('kpm', 'sc1')).mega(fin, after_setup=stage, lag=kw.get('lag'), slag=kw.get('slag'), late_stage=late_stage if kw.get('lst') else None)
    A.I("s_cmp_ge_u32", s(ffn.sJ), NFW)
    A.I("s_cbranch_scc1", "L_exit")
    ts(A, 5)
    sID, sRND = 74, 75
    A.I("s_mov_b32", s(sID), 0)
    A.I("s_mov_b32", s(sRND), 0)
    A.I("v_mov_b32", v(202), "0x7ffffff0")
    if kw.get('tcode'):
        restore_tid(A)
        A.I("v_lshlrev_b32", v(1), 6, v(0))
        code_touch(A, "L_ffn_round", 70, 1, 3)
    A.I("v_mov_b32", v(1), 0)
    A.I("s_and_b32", s(ffn.sT0), s(sGB), 15)
    A.I("s_lshl_b32", s(ffn.sT0), s(ffn.sT0), 7)
    A.I("s_add_u32", s(ffn.sT0), s(ffn.sT0), hex(WS_CTRL + CT_PROG))
    A.I("s_mov_b32", s(ffn.sT1), EARLY // 32 + 1)
    wait_words(A, 8, 1, s(ffn.sT0), 1, s(ffn.sT1), 2, sleep=16, paced=True)
    A.label("L_ffn_round")
    A.reset_haz()
    restore_tid(A)
    A.I("s_cmp_lg_u32", s(sRND), 0)
    A.I("s_cbranch_scc1", "L_ffn_re")
    ffn.select(sRND, EARLY // 8)
    if kw.get('thr'):
        A.I("s_cmp_lg_u32", s(ffn.sJ), NFW - 1)
        A.I("s_cbranch_scc1", "L_ffn_sel")
        A.I("s_mov_b32", s(ffn.sT0), hex(WS_CTRL + CT_THR))
        set_flag(A, 8, s(ffn.sT0), 2, val=s(ffn.sK2))
    A.I("s_branch", "L_ffn_sel")
    A.label("L_ffn_re")
    A.reset_haz()
    ffn.reselect(sleep=kw.get('rsl', 1), ksp=kw.get('kst', 0))
    A.label("L_ffn_sel")
    A.reset_haz()
    A.I("s_and_b32", s(ffn.sT0), s(ffn.sK1), 2047)
    A.I("s_lshl_b32", s(ffn.sT0), s(ffn.sT0), 11)
    A.I("s_and_b32", s(ffn.sT1), s(ffn.sK2), 2047)
    A.I("s_or_b32", s(ffn.sT0), s(ffn.sT0), s(ffn.sT1))
    A.I("s_add_u32", s(ffn.sT0), s(ffn.sT0), 1)
    A.I("s_cmp_eq_u32", s(ffn.sT0), s(sID))
    A.I("s_cbranch_scc1", "L_ffn_same")
    A.I("s_mov_b32", s(sID), s(ffn.sT0))
    fnl = TL.Final(A)
    if kw.get('sf'): fnl.store(204, "sc1")
    ffn.compute()
    A.I("s_waitcnt", "vmcnt(0)")
    A.I("s_barrier")
    A.I("s_lshl_b32", s(ffn.sT0), s(ffn.sJ), 2)
    A.I("s_lshl_b32", s(ffn.sT1), s(sRND), 8)
    A.I("s_add_u32", s(ffn.sT0), s(ffn.sT0), s(ffn.sT1))
    A.I("s_add_u32", s(ffn.sT0), s(ffn.sT0), hex(WS_CTRL + CT_F4))
    set_flag(A, 8, s(ffn.sT0), 2, val=s(sID))
    A.I("s_cmp_ge_u32", s(ffn.sJ), TL.Final.NWG)
    A.I("s_cbranch_scc1", "L_ffn_same")
    fnl.pre(ffn.sJ)
    A.I("v_lshlrev_b32", v(1), 2, v(0))
    A.I("s_lshl_b32", s(ffn.sT0), s(sRND), 8)
    A.I("s_add_u32", s(ffn.sT0), s(ffn.sT0), hex(WS_CTRL + CT_F4))
    wait_words(A, 8, 1, s(ffn.sT0), NFW, s(sID), 2, sleep=2, equal=True)
    fnl.post()
    if kw.get('sf'): fnl.store(200, "sc1")
    A.label("L_ffn_same")
    A.reset_haz()
    ts(A, 6, dyn=sRND)
    A.I("s_add_u32", s(sRND), s(sRND), 1)
    A.I("s_cmp_lt_u32", s(sRND), 2)
    A.I("s_cbranch_scc1", "L_ffn_round")
    A.I("s_cmp_ge_u32", s(ffn.sJ), TL.Final.NWG)
    A.I("s_cbranch_scc1", "L_exit")
    if not kw.get('sf'): fnl.store()
    A.I("s_waitcnt", "vmcnt(0)")
    ts(A, 8)
    A.label("L_exit")
    A.I("s_endpgm")
    code_end(A)
    return name, 256, 163840

def build_single(k):
    A = Asm()
    name, grid, lds = k(A)[:3]
    out = HEAD + f"; @launch grid=({grid},1,1) block=(256,1,1) lds={lds}\n"
    out += '.amdgcn_target "amdgcn-amd-amdhsa--gfx950"\n.text\n' + A.text()
    out += '.section .rodata,"a"\n' + kernel_desc(name)
    return out

def build(kernels):
    A = Asm()
    infos = []
    for k in kernels:
        infos.append(k(A))
    body = A.text()
    out = HEAD
    for info in infos:
        name, grid, lds = info[:3]
        out += f"; @launch kernel={name} grid=({grid},1,1) block=(256,1,1) lds={lds}\n"
    out += '.amdgcn_target "amdgcn-amd-amdhsa--gfx950"\n.text\n' + body
    out += '.section .rodata,"a"\n'
    for info in infos:
        out += kernel_desc(info[0], *info[3:])
    return out

CH = dict(por='kv', gmod='sc1', wnt='qk', onepb=1, rmod='sc1', sf=1, kst=7, pre=40.0, quad=(0, 1), sl=(4, 1), ek=1, one=1, kms=(2, 14), pol=(61, 1), kf=7, um=1, xr=1, half=1, thr=1, rsl=1, flag0=True, rp=(50, 80), rg=(40, 30), wpad=31, kreg=False, lag=(17, 10), slag=(12, 14), lst=True, tcode=True, cc={-1: (27, 7), 12: (28, 6)}, hold=(12, 12),
          spread=(100, 50), wfrom=96, pwm={1300: (3,)}, bcode=(2, 6), mpre=True, seq='q0 q2 q1 q3 k0 k2 k1 k3 v0 v2 o2 o3 v1 v3 o0 o1', tc=(12,), rd=14, t0=99, vhelp={-1: [('q', 1, 0), ('q', 1, 161)], 0: [('k', 0, 0)]})
if __name__ == "__main__":
    which = sys.argv[1] if len(sys.argv) > 1 else "mega"
    if len(sys.argv) > 2: CH.update(eval(sys.argv[2]))
    OUT = sys.argv[3] if len(sys.argv) > 3 else None
    if which == "mega":
        txt = build_single(lambda A: k_mega(A, **CH))
        open("sequential_preLN__memory_aug_recurrent_mem_tr__moe_arch_mod__prompt.s", "w").write(txt)
        open("mega.s", "w").write(build([lambda A: k_mega(A, **CH)]))
        open("megafb.s", "w").write(build([lambda A: k_mega(A, force_fb=True, **CH)]))
    if which == "dev":
        open(OUT, "w").write(build([lambda A: k_mega(A, **CH)]))
    if which == "var":
        open(OUT, "w").write(build_single(lambda A: k_mega(A, **CH)))
    if which == "prof":
        PROF[0] = True
        open(OUT or "prof.s", "w").write(build([lambda A: k_mega(A, **CH)]))
    if which == "dbgts":
        DBGTS[0] = {0: (0, 12), 3: (0, 13), 4: (0, 14), 8: (160, 15)}
        open(OUT or "dbgts.s", "w").write(build_single(lambda A: k_mega(A, **CH)))
```

```python
import math
from asmgen import *
from layout import *
from common import *

S_WS = 8; S_W = 12
sHP, sWV, sSEG, sSTR = 20, 21, 22, 23
sT0, sT1, sT2 = 24, 25, 26
sW1K = 27
sC1 = 28
sMASK = 30
sQ, sK, sV, sKM, sVM, sPO = 46, 47, 48, 49, 50, 51
sF2 = 52
sNEG = 53
sK2, sV2 = 54, 55
sLATE, sFAST = 81, 83

vQ = 0; vK = 16; vKMf = 48; vV = 64; vKV = 220; vVMB = 104
KSCR = 0x22000
vS = 112
vP = 124
vLA = 132; vONE = 136
vO = 140
vOF = 0
vACC = 172
vL16, vL8, vPOo, vOXW, vOXR, vT, vT2, vT3 = 240, 241, 242, 243, 244, 246, 247, 248
vKSW, vKSR = 253, 254
vPF = 245; vXR = 96; vPJ = 104; vIF = 108; vEX = 109
sPA, sPB, sSL = 61, 50, 63
sHALF = 82
MF = "v_mfma_f32_16x16x32_bf16"; MF16 = "v_mfma_f32_16x16x16_bf16"

class Phase2:
    def __init__(self, A, tag="p2", ldmod="", stmod="", progmask=0xff, sl=(8, 2), kms=None, pol=None, smode=None, um=False, half=False, xr=False, poc=None, quad=None, pre=None, pmod='sc1', gmod='', por=None, wmod='', tmod='sc1'):
        self.por = por; self.wmod = wmod; self.tmod = tmod
        assert not por or quad and 'sc1' in gmod and (por == 'kv' and half or por <= NSEG - 2)
        self.ps = 14 if por == 'kv' else 15; self.qs = 24 if por == 'kv' else 14
        assert WS_VX - WS_KX == 1 << 24
        self.gmod = gmod
        self.pmod = pmod
        self.pre = pre
        self.quad = quad
        self.poc = poc
        self.um = um; self.half = half; self.xr = xr
        self.sl = sl; self.kms = kms; self.pol = pol; self.smode = smode
        self.progmask = progmask
        self.A = A; self.tag = tag; self.ldmod = ldmod; self.stmod = stmod

    def setup(self):
        A = self.A
        L, G, C, T, U, R = 1, 2, 3, 4, 5, 6
        srd(A, S_W, 40, 4 << 20)
        A.I("v_lshrrev_b32", v(T), 6, v(0))
        A.I("v_readfirstlane_b32", s(sWV), v(T))
        A.I("v_and_b32", v(L), 63, v(0))
        A.I("v_lshrrev_b32", v(G), 4, v(L))
        A.I("v_and_b32", v(C), 15, v(L))
        A.I("v_lshrrev_b32", v(R), 2, v(C))
        A.I("v_lshlrev_b32", v(vL16), 4, v(L))
        A.I("v_lshlrev_b32", v(vL8), 3, v(L))
        A.I("s_lshl_b32", s(sW1K), s(sWV), 10)
        A.I("s_lshl_b32", s(sT0), s(sWV), 5)
        A.I("v_xor_b32", v(T), s(sT0), v(vL16))
        A.I("v_add_u32", v(8), s(sW1K), v(T))
        A.I("v_xor_b32", v(9), 128, v(8))
        A.I("v_lshl_add_u32", v(T), v(G), 2, v(R))
        A.I("v_and_b32", v(U), 7, v(T))
        A.I("v_lshlrev_b32", v(T), 10, v(T))
        A.I("v_lshl_add_u32", v(T), v(U), 5, v(T))
        A.I("v_and_b32", v(U), 3, v(C))
        A.I("v_lshlrev_b32", v(U), 4, v(U))
        A.I("v_xor_b32", v(T), v(U), v(T))
        A.I("s_lshl_b32", s(sT0), s(sWV), 8)
        A.I("v_add_u32", v(10), s(sT0), v(T))
        for hh in range(2):
            if hh: A.I("s_barrier")
            A.I("s_lshl_b32", s(sT1), s(sHP), 18)
            for ks in range(4):
                for i in range(8):
                    A.I("s_add_u32", s(sT0), s(sT1), hex(hh * 131072 + (32 * ks + 4 * i) * 1024))
                    A.I("s_add_u32", "m0", s(sW1K), hex(ks * 32768 + 4 * i * 1024))
                    A.I("buffer_load_dwordx4", v(9 if i & 1 else 8), s(S_W, 4), s(sT0), mods=mods("offen", self.wmod, "lds"))
            A.I("s_waitcnt", "vmcnt(0)")
            A.I("s_barrier")
            for half in range(2):
                for t in range(8):
                    A.I("v_xor_b32", v(11), hex((t >> 1) << 6 | (t & 1) << 3 | half << 16), v(10))
                    for k2 in range(2):
                        ks = 2 * half + k2
                        for q in range(2):
                            A.I("ds_read_b64_tr_b16", a(((hh * 4 + ks) * 8 + t) * 4 + 2 * q, 2), v(11), mods=off(k2 * 32768 + q * 16384))
                    if t & 1: A.I("s_waitcnt", "lgkmcnt(0)")
        A.I("s_barrier")
        A.I("s_and_b32", s(sT0), s(sWV), 1)
        A.I("s_lshl_b32", s(sT0), s(sT0), 4)
        A.I("v_add_u32", v(T), s(sT0), v(C))
        A.I("v_lshlrev_b32", v(U), 2, v(G))
        A.I("v_sub_u32", v(T), v(T), v(U))
        for tau in range(2):
            for r in range(4):
                A.I("v_cmp_le_i32", s(sMASK + 2 * (tau * 4 + r), 2), 16 * tau + r, v(T))
        c1 = f2h((DH ** -0.5) * math.log2(math.e))
        A.I("s_mov_b32", s(sC1), c1)
        A.I("s_mov_b32", s(sC1 + 1), c1)
        A.I("s_mov_b32", s(sNEG), "0xff000000")
        for i in range(4):
            A.I("v_mov_b32", v(vONE + i), "0x3f803f80")
        A.I("v_lshlrev_b32", v(T), 10, v(C))
        A.I("v_lshl_add_u32", v(T), v(G), 4, v(T))
        A.I("s_lshl_b32", s(sT0), s(sWV), 8)
        A.I("v_add_u32", v(vPOo), s(sT0), v(T))
        A.I("s_lshl_b32", s(sT0), s(sWV), 12)
        A.I("v_add_u32", v(vOXW), s(sT0), v(vL16))
        A.I("v_mov_b32", v(vOXR), v(vL16))
        A.I("s_add_u32", s(sT0), s(sT0), hex(KSCR))
        A.I("v_xor_b32", v(7), v(G), v(R))
        A.I("v_lshl_add_u32", v(T), v(G), 4, v(7))
        A.I("v_and_b32", v(U), 3, v(C))
        A.I("v_lshl_add_u32", v(T), v(T), 2, v(U))
        A.I("v_lshl_add_u32", v(vKSW), v(T), 2, s(sT0))
        A.I("v_lshl_add_u32", v(T), v(C), 2, v(7))
        A.I("v_lshl_add_u32", v(vKSR), v(T), 4, s(sT0))

    def seg_addrs(self):
        A = self.A
        A.I("s_lshl_b32", s(sT0), s(sSEG), 5)
        A.I("s_lshl_b32", s(sT1), s(sHP), 1)
        A.I("s_add_u32", s(sT0), s(sT0), s(sT1))
        A.I("s_lshr_b32", s(sT1), s(sWV), 1)
        A.I("s_add_u32", s(sT0), s(sT0), s(sT1))
        A.I("s_lshl_b32", s(sT1), s(sT0), 13)
        A.I("s_add_u32", s(sK), s(sT1), hex(WS_KX))
        A.I("s_add_u32", s(sK2), s(sK), 4096)
        A.I("s_add_u32", s(sV), s(sT1), hex(WS_VX))
        A.I("s_add_u32", s(sV2), s(sV), 4096)
        A.I("s_and_b32", s(sT2), s(sWV), 1)
        A.I("s_lshl_b32", s(sT2), s(sT2), 12)
        A.I("s_add_u32", s(sQ), s(sT1), s(sT2))
        A.I("s_add_u32", s(sQ), s(sQ), hex(WS_QX))
        A.I("s_lshl_b32", s(sT1), s(sT0), 12)
        A.I("s_add_u32", s(sKM), s(sT1), hex(WS_KM))
        if self.por == 'kv':
            A.I("s_cmp_ge_u32", s(sSEG), NSEG - 2)
            A.I("s_mov_b32", s(sSL), hex(WS_KX))
            A.I("s_cselect_b32", s(sSL), hex(WS_PO), s(sSL))
            A.I("s_lshl_b32", s(sT0), s(sSEG), 18)
            A.I("s_add_u32", s(sSL), s(sSL), s(sT0))
            A.I("s_lshl_b32", s(sT0), s(sHP), 14)
            A.I("s_add_u32", s(sPO), s(sSL), s(sT0))
            return
        A.I("s_mov_b32", s(sSL), s(sSEG))
        if self.por:
            for lim in (56, 28):
                A.I("s_cmp_ge_u32", s(sSL), lim)
                A.I("s_cselect_b32", s(sT0), 28, 0)
                A.I("s_sub_u32", s(sSL), s(sSL), s(sT0))
            A.I("s_cmp_ge_u32", s(sSEG), self.por)
            A.I("s_cselect_b32", s(sSL), s(sSEG), s(sSL))
        A.I("s_lshl_b32", s(sT0), s(sSL), 4)
        A.I("s_add_u32", s(sT0), s(sT0), s(sHP))
        A.I("s_lshl_b32", s(sT0), s(sT0), 15)
        A.I("s_add_u32", s(sPO), s(sT0), hex(WS_PO))

    def loads_x(self):
        A = self.A; m = self.ldmod
        for ks in range(4):
            A.I("buffer_load_dwordx4", v(vQ + 4 * ks, 4), v(vL16), s(S_WS, 4), s(sQ), mods=mods("offen", off(1024 * ks), m))
        for i in range(8):
            A.I("buffer_load_dwordx4", v(vK + 4 * i, 4), v(vL16), s(S_WS, 4), s(sK if i < 4 else sK2), mods=mods("offen", off(1024 * (i & 3)), m))
        for i in range(8):
            A.I("buffer_load_dwordx4", v(vV + 4 * i, 4), v(vL16), s(S_WS, 4), s(sV if i < 4 else sV2), mods=mods("offen", off(1024 * (i & 3)), m))

    def loads_m(self, m=None):
        A = self.A; m = m or self.ldmod
        for w in range(4):
            A.I("buffer_load_dwordx4", v(vKV + 4 * w, 4), v(vL16), s(S_WS, 4), s(sKM), mods=mods("offen", off(1024 * w), m))

    def segment(self, mid=None):
        A = self.A
        DM_, D0, D1 = vS, vS + 4, vS + 8
        PX, PM = vP, vP + 4
        tm, tt, mc, ri = vT, vT2, vT3, 250
        if self.pre:
            self.attention(mid)
        else:
            A.I("s_waitcnt", "vmcnt(8)" if mid else "vmcnt(12)")
            for tau, D in ((0, D0), (1, D1)):
                for ks in range(4):
                    A.I(MF, v(D, 4), v(vK + 16 * tau + 4 * ks, 4), v(vQ + 4 * ks, 4), 0 if ks == 0 else v(D, 4))
            A.I("v_mov_b32", v(tt), s(sNEG))
            for tau, D in ((0, D0), (1, D1)):
                for r in range(4):
                    A.I("v_cndmask_b32", v(D + r), v(tt), v(D + r), s(sMASK + 2 * (tau * 4 + r), 2))
            A.I("v_max3_f32", v(251), v(D0), v(D0 + 1), v(D0 + 2))
            A.I("v_max3_f32", v(251), v(251), v(D0 + 3), v(D1))
            A.I("v_max3_f32", v(251), v(251), v(D1 + 1), v(D1 + 2))
            if mid: mid()
            else: A.I("s_waitcnt", "vmcnt(0)")
            for w in range(4):
                for b in range(2):
                    A.I("ds_write_b32", v(vKSW), v(vKV + 4 * w + 1 + 2 * b), mods=off(1024 * w + 64 * b))
            for ks in range(4):
                A.I("ds_read_b128", v(vKMf + 4 * ks, 4), v(vKSR), mods=off(1024 * ks))
            A.I("s_waitcnt", "lgkmcnt(0)")
            for ks in range(4):
                A.I(MF, v(DM_, 4), v(vKMf + 4 * ks, 4), v(vQ + 4 * ks, 4), 0 if ks == 0 else v(DM_, 4))
            A.I("v_mov_b32", v(tm), v(251))
            A.I("v_max3_f32", v(tm), v(tm), v(D1 + 3), v(DM_))
            A.I("v_max_f32", v(tm), v(tm), v(DM_ + 1))
            xor_reduce(A, "v_max_f32", tm, tt)
            A.I("v_mul_f32", v(mc), s(sC1), v(tm))
            prs = [D0, D0 + 2, D1, D1 + 2, DM_]
            for r in prs:
                A.I("v_pk_fma_f32", v(r, 2), v(r, 2), s(sC1, 2), v(mc, 2), mods="op_sel_hi:[1,1,0] neg_lo:[0,0,1] neg_hi:[0,0,1]")
            for r in prs:
                A.I("v_exp_f32", v(r), v(r))
                A.I("v_exp_f32", v(r + 1), v(r + 1))
            for i, r in enumerate(prs):
                A.I("v_cvt_pk_bf16_f32", v(PX + i), v(r), v(r + 1))
            A.I("v_mov_b32", v(PM + 1), 0)
            A.I(MF, v(vLA, 4), v(vONE, 4), v(PX, 4), 0)
            for phi in range(8):
                A.I(MF, v(vO + 4 * phi, 4), v(vV + 4 * phi, 4), v(PX, 4), 0)
            A.I(MF16, v(vLA, 4), v(vONE, 2), v(PM, 2), v(vLA, 4))
            for phi in range(8):
                src = vKV + 2 * phi
                A.I(MF16, v(vO + 4 * phi, 4), v(src, 2), v(PM, 2), v(vO + 4 * phi, 4))
            A.I("v_rcp_f32", v(ri), v(vLA))
            for i in range(16):
                A.I("v_pk_mul_f32", v(vO + 2 * i, 2), v(vO + 2 * i, 2), v(ri, 2), mods="op_sel_hi:[1,0]")
            for i in range(16):
                A.I("v_cvt_pk_bf16_f32", v(vO + i), v(vO + 2 * i), v(vO + 2 * i + 1))
            for ks in range(4):
                A.I("ds_write_b128", v(vOXW), v(vO + 4 * ks, 4), mods=off(1024 * ks))
        A.I("s_waitcnt", "lgkmcnt(0)")
        A.I("s_barrier")
        if self.um:
            self.outproj()
            return
        for f in range(16):
            A.I("ds_read_b128", v(vOF + 4 * f, 4), v(vOXR), mods=off(1024 * f))
            if f == 7: A.I("s_waitcnt", "lgkmcnt(4)")
        A.I("v_xor_b32", v(vOXW), hex(0x4000), v(vOXW))
        A.I("v_xor_b32", v(vOXR), hex(0x4000), v(vOXR))
        A.I("s_waitcnt", "vmcnt(0) lgkmcnt(0)")
        for qt in range(2):
            for hh in range(2):
                for ks in range(4):
                    for t in range(8):
                        acc = v(vACC + (qt * 8 + t) * 4, 4)
                        A.I(MF, acc, a(((hh * 4 + ks) * 8 + t) * 4, 4), v(vOF + ((hh * 2 + qt) * 4 + ks) * 4, 4),
                            0 if (hh == 0 and ks == 0) else acc)
                    if qt == 1 and hh == 0: self.store_u(0, ks)

    def attention(self, mid):
        A = self.A
        DM_, D0, D1 = vS, vS + 4, vS + 8
        PX, PM = vP, vP + 4
        tm, tt, mc, ri = vT, vT2, vT3, 250
        sub = lambda d, r: A.I("v_pk_fma_f32", v(d, 2), v(r, 2), s(sC1, 2), v(mc, 2), mods="op_sel_hi:[1,1,0] neg_lo:[0,0,1] neg_hi:[0,0,1]")
        def xpart(full):
            for tau, D in ((0, D0), (1, D1)):
                for ks in range(4):
                    A.I(MF, v(D, 4), v(vK + 16 * tau + 4 * ks, 4), v(vQ + 4 * ks, 4), 0 if ks == 0 else v(D, 4))
            A.I("v_mov_b32", v(tt), s(sNEG))
            for tau, D in ((0, D0), (1, D1)):
                for r in range(4):
                    A.I("v_cndmask_b32", v(D + r), v(tt), v(D + r), s(sMASK + 2 * (tau * 4 + r), 2))
            A.I("v_max3_f32", v(tm), v(D0), v(D0 + 1), v(D0 + 2))
            A.I("v_max3_f32", v(tm), v(tm), v(D0 + 3), v(D1))
            A.I("v_max3_f32", v(tm), v(tm), v(D1 + 1), v(D1 + 2))
            A.I("v_max_f32", v(tm), v(tm), v(D1 + 3))
            if full: A.I("v_max3_f32", v(tm), v(tm), v(DM_), v(DM_ + 1))
            xor_reduce(A, "v_max_f32", tm, tt)
            A.I("v_mul_f32", v(mc), s(sC1), v(tm))
            prs = [D0, D0 + 2, D1, D1 + 2]
            for r in prs: sub(r, r)
            for r in range(D0, D0 + 8): A.I("v_exp_f32", v(r), v(r))
            for i, r in enumerate(prs): A.I("v_cvt_pk_bf16_f32", v(PX + i), v(r), v(r + 1))
            A.I("v_mov_b32", v(PM + 1), 0)
            A.I(MF, v(vLA, 4), v(vONE, 4), v(PX, 4), 0)
            for phi in range(8):
                if not full: A.I("s_waitcnt", f"vmcnt({7 - phi})")
                A.I(MF, v(vO + 4 * phi, 4), v(vV + 4 * phi, 4), v(PX, 4), 0)
        A.I("s_waitcnt", "vmcnt(8)")
        xpart(False)
        mid()
        for w in range(4):
            for b in range(2):
                A.I("ds_write_b32", v(vKSW), v(vKV + 4 * w + 1 + 2 * b), mods=off(1024 * w + 64 * b))
        for ks in range(4):
            A.I("ds_read_b128", v(vKMf + 4 * ks, 4), v(vKSR), mods=off(1024 * ks))
        self.side()
        for ks in range(4):
            A.I("s_waitcnt", f"lgkmcnt({3 - ks})")
            A.I(MF, v(DM_, 4), v(vKMf + 4 * ks, 4), v(vQ + 4 * ks, 4), 0 if ks == 0 else v(DM_, 4))
        ls = A.newlabel("redo"); lb = A.newlabel("redone")
        sub(DM_ + 2, DM_)
        A.I("v_max_f32", v(tm), v(DM_ + 2), v(DM_ + 3))
        A.I("v_cmp_lt_f32", "vcc", f2h(self.pre), v(tm))
        A.I("s_cbranch_vccnz", ls)
        A.label(lb)
        def redo():
            A.label(ls)
            A.reset_haz()
            xpart(True)
            sub(DM_ + 2, DM_)
            A.barrier_haz()
            A.I("s_branch", lb)
        self.ool = redo
        for i in range(2): A.I("v_exp_f32", v(DM_ + 2 + i), v(DM_ + 2 + i))
        A.I("v_cvt_pk_bf16_f32", v(PM), v(DM_ + 2), v(DM_ + 3))
        A.I(MF16, v(vLA, 4), v(vONE, 2), v(PM, 2), v(vLA, 4))
        work = []
        for phi in range(8):
            if phi < 2: work += [lambda r=r: A.I("v_mul_f32", v(r), v(ri), v(r)) for r in range(vO + 4 * phi, vO + 4 * phi + 4)]
            else: work += [lambda r=r: A.I("v_pk_mul_f32", v(r, 2), v(r, 2), v(ri, 2), mods="op_sel_hi:[1,0]") for r in (vO + 4 * phi, vO + 4 * phi + 2)]
            work += [lambda i=i: A.I("v_cvt_pk_bf16_f32", v(vO + i), v(vO + 2 * i), v(vO + 2 * i + 1)) for i in (2 * phi, 2 * phi + 1)]
            if phi & 1: work.append(lambda ks=phi >> 1: A.I("ds_write_b128", v(vOXW), v(vO + 4 * ks, 4), mods=off(1024 * ks)))
        for phi in range(8):
            A.I(MF16, v(vO + 4 * phi, 4), v(vKV + 2 * phi, 2), v(PM, 2), v(vO + 4 * phi, 4))
            if phi == 2: A.I("v_rcp_f32", v(ri), v(vLA))
            if phi > 2:
                for _ in range(2): work.pop(0)()
        for f in work: f()

    def outproj(self):
        A = self.A
        if self.half:
            A.I("s_lshr_b32", s(sT1), s(sHALF), 1)
            A.I("s_lshl_b32", s(sT0), s(sT1), 12)
            A.I("v_add_u32", v(vT), s(sT0), v(vOXR))
        ra = vT if self.half else vOXR
        fr = lambda qt: [(hh * 2 + qt) * 4 + ks for hh in range(2) for ks in range(4)]
        for f in fr(0): A.I("ds_read_b128", v(vOF + 4 * f, 4), v(ra), mods=off(1024 * f))
        A.I("v_xor_b32", v(vOXW), hex(0x4000), v(vOXW))
        later = fr(1)
        lh = A.newlabel("half"); le = A.newlabel("proj")
        for qt in range(2):
            for u in range(4):
                for i, f in enumerate(fr(qt)):
                    if qt == 0 and u == 0: A.I("s_waitcnt", f"lgkmcnt({7 - i})")
                    if qt == 1 and u == 2 and i == 0: A.I("s_waitcnt", "vmcnt(5)")
                    if qt == 1 and u == 0 and i == 0: A.I("s_waitcnt", "lgkmcnt(0)")
                    for t in (2 * u, 2 * u + 1):
                        acc = v(vACC + (qt * 8 + t) * 4, 4)
                        A.I(MF, acc, a((i * 8 + t) * 4, 4), v(vOF + 4 * f, 4), 0 if i == 0 else acc)
                    if qt == 0 and u == 1: A.I("ds_read_b128", v(vOF + 4 * later[i], 4), v(vOXR), mods=off(1024 * later[i]))
                    if i == 1 and qt + u: self.store_u(*divmod(4 * qt + u - 1, 4))
            if qt == 0:
                A.I("v_xor_b32", v(vOXR), hex(0x4000), v(vOXR))
                if self.half:
                    A.I("s_cmp_lg_u32", s(sHALF), 0)
                    A.I("s_cbranch_scc1", lh)
        self.store_u(1, 3)
        if self.half:
            A.I("s_branch", le)
            A.label(lh)
            A.reset_haz()
            A.nop(8)
            self.store_u(0, 3)
            A.I("s_waitcnt", "lgkmcnt(0)")
            A.label(le)

    def store_u(self, qt, u):
        A = self.A
        g = vO + 4 * u
        t0 = vACC + (qt * 8 + 2 * u) * 4
        for i in range(4):
            A.I("v_cvt_pk_bf16_f32", v(g + i), v(t0 + 2 * i), v(t0 + 2 * i + 1))
        if self.quad: A.I("v_min_u32", v(g), "0xfffffffe", v(g))
        if u == 0: A.I("s_add_u32", s(sT0), s(sPO), hex(qt << self.qs))
        self.either(lambda m: A.I("buffer_store_dwordx4", v(g, 4), v(vPOo), s(S_WS, 4), s(sT0), mods=mods("offen", off(64 * u), m)))

    def gather(self, fin, lsk):
        A = self.A
        RA, RB, Hh, EX = 32, 48, fin.b + 68, 112
        def issue(R, sb, m):
            for j in range(4): A.I("buffer_load_dwordx4", v(R + 4 * j, 4), v(vPJ + j if j else vL16), s(S_WS, 4), s(sb), mods=mods("offen", m))
        def check(R):
            A.I("s_waitcnt", "vmcnt(4)")
            A.I("v_max3_u32", v(vT), v(R), v(R + 4), v(R + 8))
            A.I("v_max_u32", v(vT), v(vT), v(R + 12))
            A.I("v_cmp_eq_u32", "vcc", -1, v(vT))
        def total(R):
            for j in range(4):
                for i in range(4):
                    A.I("v_dot2_f32_bf16", v(Hh + 2 * i), v(R + 4 * j + i), s(fin.sLO), v(Hh + 2 * i))
                    A.I("v_dot2_f32_bf16", v(Hh + 2 * i + 1), v(R + 4 * j + i), s(fin.sHI), v(Hh + 2 * i + 1))
        lp = A.newlabel("gp"); lb = A.newlabel("gb"); la = A.newlabel("ga"); ld = A.newlabel("gd"); l1 = A.newlabel("g1")
        self.either(lambda m: issue(RB, sPB, self.gmod if m else "sc1"))
        for i in range(8): A.I("v_mov_b32", v(Hh + i), 0)
        for i in range(self.quad[0]): A.I("v_mov_b32", v(vT), 0)
        A.I("s_mov_b32", s(sPT0), 0)
        A.label(lp)
        self.either(lambda m: issue(RA, sPA, self.gmod if m else "sc1"))
        check(RB)
        A.I("s_cbranch_vccz", lb)
        issue(RB, sPB, "sc1")
        check(RA)
        A.I("s_add_u32", s(sPT0), s(sPT0), 1)
        A.I("s_cbranch_vccz", la)
        A.I("s_cmp_lt_u32", s(sPT0), hex(POLL_MAX))
        A.I("s_cbranch_scc1", lp)
        A.label(lb)
        A.reset_haz()
        total(RB)
        A.I("s_cmp_lg_u32", s(sHALF), 0)
        A.I("s_cbranch_scc1", ld)
        A.I("s_waitcnt", "vmcnt(0)")
        A.label(la)
        total(RA)
        A.label(ld)
        A.nop(3)
        A.reset_haz()
        for i in range(2): A.I("ds_write_b128", v(vEX), v(Hh + 4 * i, 4), mods=off(1024 * i))
        A.I("s_cmp_lg_u32", s(sHALF), 0)
        A.I("s_cselect_b32", s(sT0), 3, 1)
        A.I("s_and_b32", s(sT0), s(sT0), s(sGW))
        A.I("s_waitcnt", "lgkmcnt(0)")
        A.I("s_barrier")
        A.I("s_cbranch_scc1", lsk)
        for i in range(2): A.I("ds_read_b128", v(EX + 4 * i, 4), v(vEX), mods=off(4096 + 1024 * i))
        A.I("s_cmp_eq_u32", s(sHALF), 0)
        A.I("s_cbranch_scc1", l1)
        for i in range(2, 6): A.I("ds_read_b128", v(EX + 4 * i, 4), v(vEX), mods=off(4096 * (1 + i // 2) + 1024 * (i & 1)))
        A.I("s_waitcnt", "lgkmcnt(0)")
        for i in range(4): A.I("v_pk_add_f32", v(EX + 8 + 2 * i, 2), v(EX + 8 + 2 * i, 2), v(EX + 16 + 2 * i, 2))
        for i in range(4): A.I("v_pk_add_f32", v(EX + 2 * i, 2), v(EX + 2 * i, 2), v(EX + 8 + 2 * i, 2))
        A.label(l1)
        A.I("s_waitcnt", "lgkmcnt(0)")
        for i in range(4): A.I("v_pk_add_f32", v(Hh + 2 * i, 2), v(Hh + 2 * i, 2), v(EX + 2 * i, 2))
        ts(A, 18, dyn=80)

    def either(self, st):
        A = self.A
        if not self.pol: return st(self.stmod)
        l1 = A.newlabel("near"); l2 = A.newlabel("far")
        A.I("s_cmp_lg_u32", s(sFAST), 0)
        A.I("s_cbranch_scc1", l1)
        st(self.stmod)
        A.I("s_branch", l2)
        A.label(l1)
        st("")
        A.label(l2)

    def store_po(self):
        if self.um: return
        for u in range(4): self.store_u(1, u)

    def body(self):
        A = self.A
        self.setup()
        LP = f"L_{self.tag}_seg"; LE = f"L_{self.tag}_end"
        A.barrier_haz()
        A.label(LP)
        A.reset_haz()
        A.I("s_cmp_ge_u32", s(sSEG), NSEG)
        A.I("s_cbranch_scc1", LE)
        self.seg_addrs()
        self.loads_x()
        self.loads_m()
        self.segment()
        self.store_po()
        A.I("s_add_u32", s(sSEG), s(sSEG), s(sSTR))
        A.I("s_branch", LP)
        A.label(LE)
        A.reset_haz()

    def mega(self, fin, after_setup=None, lag=None, late_stage=None, slag=None):
        A = self.A
        if slag:
            A.I("v_mov_b32", v(1), 0)
            A.I("s_lshl_b32", s(sT0), s(sHP), 7)
            A.I("s_add_u32", s(sT0), s(sT0), hex(WS_CTRL + CT_PROG))
            A.I("s_mul_i32", s(sT1), s(sSEG), slag[1])
            A.I("s_lshr_b32", s(sT1), s(sT1), 4)
            A.I("s_add_u32", s(sT1), s(sT1), slag[0])
            wait_words(A, S_WS, 1, s(sT0), 1, s(sT1), 2, sleep=self.sl[0], paced=True)
        self.setup()
        fin.setup()
        if after_setup: after_setup()
        ts(A, 3)
        A.I("v_lshrrev_b32", v(vT), 2, v(vL16))
        for mat in range(3):
            A.I("s_lshl_b32", s(sT0), s(sHP), 7)
            A.I("s_add_u32", s(sT0), s(sT0), hex(WS_CTRL + CT_F1 + mat * 32 * 64))
            wait_words(A, S_WS, vT, s(sT0), 32, 1, vT2, sleep=32)
        ts(A, 4)
        A.I("s_mov_b32", s(80), 0)
        A.I("s_mov_b32", s(sHALF), 0)
        SENT = self.quad and self.quad[1]
        if self.quad:
            for j in range(1, 4): A.I("v_add_u32", v(vPJ + j), hex(j << self.ps), v(vL16))
            A.I("s_lshl_b32", s(sT0), s(sWV), 12)
            A.I("s_add_u32", s(sT0), s(sT0), hex(KSCR))
            A.I("v_add_u32", v(vEX), s(sT0), v(vL16))
        def own_flag(how):
            A.I("s_lshl_b32", s(sT2), s(sHP), 2)
            A.I("s_add_u32", s(sT2), s(sT2), s(sF2))
            set_flag(A, S_WS, s(sT2), vT, how=how)
        LP = f"L_{self.tag}_seg"; LE = f"L_{self.tag}_end"
        A.barrier_haz()
        A.label(LP)
        A.reset_haz()
        A.I("s_cmp_ge_u32", s(sSEG), NSEG)
        A.I("s_cbranch_scc1", LE)
        if lag:
            A.I("v_lshrrev_b32", v(vT), 2, v(vL16))
            A.I("s_lshl_b32", s(sT0), s(sHP), 7)
            A.I("s_add_u32", s(sT0), s(sT0), hex(WS_CTRL + CT_PROG))
            A.I("s_mul_i32", s(sT1), s(sSEG), lag[1])
            A.I("s_lshr_b32", s(sT1), s(sT1), 4)
            A.I("s_add_u32", s(sT1), s(sT1), lag[0])
            wait_words(A, S_WS, vT, s(sT0), 1, s(sT1), vT2, sleep=self.sl[0], paced=True)
        if late_stage: late_stage()
        self.seg_addrs()
        A.I("s_cmp_ge_u32", s(sSEG), LATE)
        A.I("s_cselect_b32", s(sLATE), 1, 0)
        A.I("s_lshl_b32", s(fin.sROW), s(sHP), 1)
        A.I("s_lshr_b32" if self.quad else "s_and_b32", s(sT0), s(sGW), 1)
        A.I("s_add_u32", s(fin.sROW), s(fin.sROW), s(sT0))
        if self.half:
            A.I("s_cmp_ge_u32", s(sSEG), NSEG - 2)
            A.I("s_cselect_b32", s(sT0), 1, 0)
            A.I("s_max_u32", s(sHALF), s(sHALF), s(sT0))
            A.I("s_lshl_b32", s(sT0), s(sHALF), 3)
            A.I("s_and_b32", s(sT0), s(sT0), 16)
            A.I("s_add_u32", s(sT0), s(sT0), s(sHP))
            A.I("s_cmp_lg_u32", s(sHALF), 0)
            A.I("s_cselect_b32", s(fin.sROW), s(sT0), s(fin.sROW))
            if self.quad:
                A.I("s_cselect_b32", s(sPA), 0, hex(4 << self.ps))
                A.I("s_cselect_b32", s(sT0), self.ps + 2, self.ps + 3)
                A.I("s_lshl_b32", s(sPB), s(sGW), s(sT0))
                A.I("s_and_b32", s(sPB), s(sPB), hex(12 << self.ps))
                A.I("s_and_b32", s(sT0), s(fin.sROW), 15)
                A.I("s_lshl_b32", s(sT0), s(sT0), 10)
                A.I("s_add_u32", s(sPB), s(sPB), s(sT0))
                A.I("s_lshr_b32", s(sT0), s(fin.sROW), 4)
                A.I("s_lshl_b32", s(sT0), s(sT0), self.qs)
                A.I("s_add_u32", s(sPB), s(sPB), s(sT0))
                if self.por != 'kv':
                    A.I("s_lshl_b32", s(sSL), s(sSL), 19)
                    A.I("s_add_u32", s(sSL), s(sSL), hex(WS_PO))
                A.I("s_add_u32", s(sPB), s(sPB), s(sSL))
                A.I("s_add_u32", s(sPA), s(sPA), s(sPB))
            A.I("s_and_b32", s(sT0), s(sHALF), 2)
            A.I("s_lshl_b32", s(sT0), s(sT0), self.qs - 1)
            A.I("s_add_u32", s(sPO), s(sPO), s(sT0))
        A.I("s_lshl_b32", s(sT0), s(sSEG), 5)
        A.I("s_add_u32", s(fin.sROW), s(fin.sROW), s(sT0))
        if self.xr: fin.xload(vXR)
        A.I("s_lshl_b32", s(sF2), s(sSEG), 6)
        A.I("s_add_u32", s(sF2), s(sF2), hex(WS_CTRL + CT_F2))
        A.I("s_lshl_b32", s(sT0), s(sSEG), 7)
        if self.half:
            A.I("s_and_b32", s(sT1), s(sHALF), 2)
            A.I("s_lshl_b32", s(sT1), s(sT1), 7)
            A.I("s_add_u32", s(sT0), s(sT0), s(sT1))
        A.I("s_add_u32", s(sT0), s(sT0), hex(WS_CTRL + CT_F2F - 128 * LATE))
        A.I("s_cmp_lg_u32", s(sLATE), 0)
        A.I("s_cselect_b32", s(sF2), s(sT0), s(sF2))
        if self.pol:
            A.I("s_cmp_ge_u32", s(sSEG), self.pol[0])
            A.I("s_cselect_b32", s(sFAST), s(self.smode), 0)
            A.I("s_and_b32", s(sFAST), s(sFAST), 1)
            l = A.newlabel("notouch")
            A.I("s_cbranch_scc0", l)
            A.I("buffer_load_dword", v(vPF), "off", s(S_WS, 4), s(sF2), mods="sc1")
            if self.pol[1]:
                A.I("s_cmp_lg_u32", s(sHALF), 0)
                if self.por == 'kv': A.I("s_cbranch_scc0", l)
                A.I("s_cselect_b32", s(sT1), 2, 3)
                A.I("v_lshlrev_b32", v(vT), s(sT1), v(vL16))
                A.I("s_lshl_b32", s(sT0), s(sW1K), s(sT1))
                A.I("s_add_u32", s(sT0), s(sT0), s(sPO))
                A.I("buffer_load_dword", v(vPF), v(vT), s(S_WS, 4), s(sT0), mods="offen " + self.tmod)
            if SENT:
                A.I("s_cmp_eq_u32", s(sHALF), 0)
                A.I("s_cbranch_scc1", l)
                A.I("s_mov_b32", s(sFAST), 3)
                for i in range(4): A.I("v_mov_b32", v(vO + i), -1)
                A.I("s_waitcnt", "vmcnt(0)")
                A.I("s_barrier")
                for u in range(4): A.I("buffer_store_dwordx4", v(vO, 4), v(vPOo), s(S_WS, 4), s(sPO), mods=mods("offen", off(64 * u)))
            A.label(l)
        self.loads_x()
        def side():
            if fin.thr and not self.pre: fin.tload()
            if SENT:
                l = A.newlabel("noside")
                A.I("s_cmp_lg_u32", s(sFAST), 3)
                A.I("s_cbranch_scc1", l)
                if fin.thr: fin.tload()
                A.I("v_bfe_u32", v(vIF), v(vL16), 2, 6)
                A.I("buffer_load_dword", v(vIF), v(vIF), s(S_WS, 4), s(sF2), mods="offen sc1")
                A.label(l)
        self.side = side
        def mid():
            A.I("v_lshrrev_b32", v(vT), 2, v(vL16))
            A.I("s_lshl_b32", s(sT0), s(sHP), 7)
            A.I("s_add_u32", s(sT0), s(sT0), hex(WS_CTRL + CT_PROG))
            A.I("s_add_u32", s(sT1), s(sSEG), 1)
            if self.kms:
                A.I("s_sub_u32", s(sT2), s(sSEG), 1)
                A.I("s_min_u32", s(sT2), s(sT2), NSEG - 3)
                A.I("s_cmp_lg_u32", s(sLATE), 0)
                A.I("s_cselect_b32", s(sT1), s(sT2), s(sT1))
            A.barrier_haz()
            wait_words(A, S_WS, vT, s(sT0), 8, s(sT1), vT2, sleep=self.sl[0], paced=True, mask=self.progmask)
            if not self.kms:
                ts(A, 16, dyn=80)
                self.loads_m()
                A.I("s_waitcnt", "vmcnt(0)")
                return
            nd, gap = self.kms[:2]
            lp = A.newlabel("kmp"); lf = A.newlabel("kmf"); lo = A.newlabel("kmo")
            A.I("s_cmp_eq_u32", s(sLATE), 0)
            A.I("s_cbranch_scc1", lf)
            if SENT:
                l = A.newlabel("noinit")
                A.I("s_cmp_lg_u32", s(sFAST), 3)
                A.I("s_cbranch_scc1", l)
                own_flag(lambda st: st(""))
                A.label(l)
            A.I("s_lshr_b32", s(sT2), s(sWV), 1)
            A.I("s_lshl_b32", s(sT2), s(sT2), 4)
            A.I("s_add_u32", s(sT0), s(sT0), s(sT2))
            A.I("s_mov_b32", s(sPT0), 0)
            def probe():
                A.I("buffer_load_dword", v(vPF), "off", s(S_WS, 4), s(sT0), mods="sc1")
                self.loads_m(self.pmod)
            for i in range(nd - 1):
                probe()
                A.I("s_sleep", gap)
            A.label(lp)
            probe()
            A.I("s_add_u32", s(sPT0), s(sPT0), 1)
            A.I("s_waitcnt", f"vmcnt({5 * (nd - 1)})")
            A.I("v_max3_u32", v(vT), v(vKV), v(vKV + 1), v(vKV + 2))
            for i in range(3, 15, 2): A.I("v_max3_u32", v(vT), v(vT), v(vKV + i), v(vKV + i + 1))
            A.I("v_max_u32", v(vT), v(vT), v(vKV + 15))
            A.I("v_cmp_eq_u32", "vcc", -1 if len(self.kms) < 3 else v(vT), v(vT))
            A.I("v_readfirstlane_b32", s(sT2), v(vPF))
            A.I("s_cbranch_vccz", lo)
            A.I("s_cmp_gt_u32", s(sT2), s(sSEG))
            A.I("s_cbranch_scc1", lf)
            A.I("s_cmp_lt_u32", s(sPT0), hex(POLL_MAX))
            A.I("s_cbranch_scc1", lp)
            A.label(lf)
            self.loads_m("sc1")
            A.I("s_waitcnt", "vmcnt(0)")
            A.label(lo)
            A.reset_haz()
            if not self.pre: side()
            ts(A, 16, dyn=80)
        self.segment(mid)
        self.store_po()
        lgo = A.newlabel("parts"); lwf = A.newlabel("wflag")
        if SENT:
            l = A.newlabel("flags")
            A.I("s_cmp_lg_u32", s(sFAST), 3)
            A.I("s_cbranch_scc1", l)
            A.I("s_waitcnt", "vmcnt(4)")
            A.I("v_cmp_eq_u32", "vcc", 0, v(vIF))
            ts(A, 17, dyn=80)
            A.I("s_cbranch_vccz", lgo)
            A.I("v_lshrrev_b32", v(vT), 2, v(vL16))
            wait_words(A, S_WS, vT, s(sF2), 16, 1, vT2, sleep=self.sl[1], barrier=False)
            A.I("s_branch", lgo)
            A.label(l)
        if fin.thr: fin.tload()
        A.I("s_waitcnt", "vmcnt(0)")
        A.I("s_barrier")
        ts(A, 17, dyn=80)
        own_flag(lambda st: self.either(lambda m: st("sc1" if m else "")))
        A.I("v_lshrrev_b32", v(vT), 2, v(vL16))
        wait_words(A, S_WS, vT, s(sF2), 16, 1, vT2, sleep=self.sl[1])
        A.label(lgo)
        A.reset_haz()
        lsk = A.newlabel("nofin")
        if self.quad:
            self.gather(fin, lsk)
        else:
            ts(A, 18, dyn=80)
            if self.half:
                A.I("s_cmp_lg_u32", s(sHALF), 0)
                A.I("s_cselect_b32", s(sT0), 1, 2)
            A.I("s_cmp_ge_u32", s(sGW), s(sT0) if self.half else 2)
            A.I("s_cbranch_scc1", lsk)
        fin.row(vXR if self.xr else None, summed=bool(self.quad))
        A.barrier_haz()
        A.label(lsk)
        A.reset_haz()
        if self.poc:
            assert self.half and self.pol[0] == NSEG - 2
            l = A.newlabel("clean")
            A.I("s_cmp_eq_u32", s(sFAST), 0)
            A.I("s_cbranch_scc1", l)
            for u in range(4): A.I("buffer_store_dwordx4", v(vO + 4 * u, 4), v(vPOo), s(S_WS, 4), s(sPO), mods=mods("offen", off(64 * u), self.poc))
            A.label(l)
        ts(A, 19, dyn=80)
        A.I("s_add_u32", s(80), s(80), 4)
        A.I("s_add_u32", s(sSEG), s(sSEG), s(sSTR))
        if self.half:
            A.I("s_sub_u32", s(sT0), s(sSEG), 68)
            A.I("s_cmp_lt_u32", s(sT0), 2)
            A.I("s_cselect_b32", s(sHALF), 2, 0)
            A.I("s_cselect_b32", s(sT0), 6, 0)
            A.I("s_sub_u32", s(sSEG), s(sSEG), s(sT0))
        A.I("s_branch", LP)
        if self.pre: self.ool()
        A.label(LE)
        A.reset_haz()
```
